```python
import torch

def _softmax(x, axis=-1):
    return torch.softmax(x, dim=axis)
def _gelu(x):
    return torch.nn.functional.gelu(x, approximate="tanh")
def _silu(x):
    return torch.nn.functional.silu(x)
def _sigmoid(x):
    return torch.sigmoid(x)
def _layernorm(x, axis=-1, eps=1e-5):
    m = x.mean(dim=axis, keepdim=True)
    v = x.var(dim=axis, keepdim=True, unbiased=False)
    return (x - m) / torch.sqrt(v + eps)
def _scatter_add(tgt, idx, src, axis=0):
    return tgt.clone().index_add_(axis, idx, src)
def _segment_sum(src, seg, n):
    out = torch.zeros((n,) + src.shape[1:], dtype=src.dtype)
    return out.index_add_(0, seg, src)
def _pad(x, pw):
    flat = tuple(v for pair in reversed(pw) for v in pair)
    return torch.nn.functional.pad(x, flat)

kernel_name = 'parallel_sum__softmax_full_mha__dense_activation_relu__prompt'

def setup_inputs():

    _w = (lambda a: (lambda t: t.to(torch.bfloat16) if t.is_floating_point() else t)(torch.as_tensor(a)))
    def _A_setup():
        B, S, D = 1, 2048, 448
        return {
            "x": _w((lambda *s: torch.randn(*s, dtype=torch.bfloat16) * 0.05)(B, S, D)),
            "wqkv": _w((lambda *s: torch.randn(*s, dtype=torch.bfloat16) * 0.2)(D, 3 * D)),
            "wo": _w((lambda *s: torch.randn(*s, dtype=torch.bfloat16) * 0.1)(D, D)),
        }
    _A_in = _A_setup()

    def _B_setup():
        B, S, D, Dff = 1, 2048, 448, 1792
        return {
            "x": _w((lambda *s: torch.randn(*s, dtype=torch.bfloat16) * 0.05)(B, S, D)),
            "w1": _w((lambda *s: torch.randn(*s, dtype=torch.bfloat16) * 0.2)(D, Dff)),
            "w2": _w((lambda *s: torch.randn(*s, dtype=torch.bfloat16) * 0.2)(Dff, D)),
        }
    _B_in = _B_setup()

    return {
        "A_x": _A_in["x"],
        "A_wqkv": _A_in["wqkv"],
        "A_wo": _A_in["wo"],
        "B_x": _B_in["x"],
        "B_w1": _B_in["w1"],
        "B_w2": _B_in["w2"],
    }

def reference(A_x, A_wqkv, A_wo, B_x, B_w1, B_w2):
    def _A_ref(x, wqkv, wo):
        B, S, D = x.shape
        H = 16; Dh = D // H
        qkv = (lambda x, *d: x.permute(*d))((x @ wqkv).reshape(B, S, 3, H, Dh), 2, 0, 3, 1, 4)
        q, k, v = qkv[0], qkv[1], qkv[2]
        scale = Dh ** -0.5
        scores = torch.einsum("bhqd,bhkd->bhqk", q, k) * scale
        p = _softmax(scores, axis=-1)
        o = torch.einsum("bhqk,bhkd->bhqd", p, v)
        return (lambda x, *d: x.permute(*d))(o, 0, 2, 1, 3).reshape(B, S, D) @ wo

    def _B_ref(x, w1, w2):
        h = torch.einsum("bsd,df->bsf", x, w1)
        zero = torch.zeros_like(h)
        h = torch.maximum(h, zero)
        return torch.einsum("bsf,fd->bsd", h, w2)

    x = A_x
    xn = _layernorm(x, axis=-1)
    return x + _A_ref(xn, A_wqkv, A_wo) + _B_ref(xn, B_w1, B_w2)
```

```python
import re

TRANS = ("v_exp_", "v_log_", "v_rcp_", "v_rsq_", "v_sqrt_", "v_sin_", "v_cos_")

def regs_of(tok):
    tok = tok.strip()
    tok = tok.replace("-abs(", "").replace("abs(", "").replace(")", "").lstrip("-").strip("|")
    m = re.fullmatch(r"([vsa])\[(\d+):(\d+)\]", tok)
    if m:
        return {(m.group(1), i) for i in range(int(m.group(2)), int(m.group(3)) + 1)}
    m = re.fullmatch(r"([vsa])(\d+)", tok)
    if m:
        return {(m.group(1), int(m.group(2)))}
    if tok == "vcc": return {("s", 106), ("s", 107)}
    if tok == "vcc_lo": return {("s", 106)}
    if tok == "vcc_hi": return {("s", 107)}
    if tok == "m0": return {("s", 124)}
    if tok == "exec": return {("s", 126), ("s", 127)}
    if tok == "exec_lo": return {("s", 126)}
    if tok == "exec_hi": return {("s", 127)}
    return set()

def split_ops(s):
    out, depth, cur = [], 0, ""
    for ch in s:
        if ch in "[(": depth += 1
        if ch in "])": depth -= 1
        if ch == "," and depth == 0:
            out.append(cur.strip()); cur = ""
        else:
            cur += ch
    if cur.strip(): out.append(cur.strip())
    return out

class Ins:
    __slots__ = ("text", "mn", "kind", "wr", "rd", "A", "B", "C", "passes", "states", "label", "target", "stdata", "dma", "dpp")
    def __init__(self, text):
        self.text = text
        t = text.split(";")[0].strip()
        self.label = None; self.target = None
        self.wr = set(); self.rd = set(); self.A = self.B = self.C = set()
        self.passes = 0; self.states = 1; self.stdata = set(); self.dma = False; self.dpp = False
        if not t or t.startswith("."):
            self.kind = "none"; self.mn = ""; self.states = 0; return
        if t.endswith(":"):
            self.kind = "label"; self.label = t[:-1]; self.mn = ""; self.states = 0; return
        p = t.split(None, 1)
        mn = p[0]; rest = p[1] if len(p) > 1 else ""
        self.mn = mn
        ops = split_ops(rest)
        mods = ""
        if ops:
            q = ops[-1].split(None, 1)
            if len(q) > 1 and not mn.startswith("s_waitcnt"):
                ops[-1] = q[0]; mods = q[1]
        R = [regs_of(o) for o in ops]
        U = lambda xs: set().union(*xs) if xs else set()
        if mn.startswith("v_mfma"):
            self.kind = "mfma"
            self.wr = R[0]; self.A = R[1]; self.B = R[2]; self.C = R[3]; self.rd = U(R[1:])
            self.passes = 8 if "32x32x16" in mn else (4 if "16x16x32" in mn else 16)
        elif mn.startswith("v_"):
            self.kind = "trans" if mn.startswith(TRANS) else "valu"
            self.wr = R[0]; self.rd = U(R[1:])
            if mn.startswith(("v_fmac", "v_dot2c", "v_writelane")): self.rd |= R[0]
            if mn.startswith("v_permlane"):
                self.wr = R[0] | R[1]; self.rd = R[0] | R[1]
            if mn.startswith(("v_add_co", "v_sub_co", "v_addc_co", "v_subb_co")):
                self.wr = R[0] | R[1]; self.rd = U(R[2:])
            if "dpp" in mn or "row_" in mods or "quad_perm" in mods: self.dpp = True
        elif mn.startswith("ds_"):
            self.kind = "ds"
            if mn.startswith(("ds_read", "ds_bpermute", "ds_permute", "ds_swizzle")) or "_rtn" in mn:
                self.wr = R[0]; self.rd = U(R[1:])
            else:
                self.rd = U(R)
        elif mn.startswith(("buffer_", "global_")):
            self.kind = "vmem"
            if " lds" in (" " + mods) or mn.startswith("global_load_lds"):
                self.dma = True; self.rd = U(R) | {("s", 124)}
            elif "load" in mn:
                self.wr = R[0]; self.rd = U(R[1:])
            elif "atomic" in mn:
                self.rd = U(R)
                if "sc0" in mods: self.wr = R[0]
            else:
                self.rd = U(R)
                if mn.endswith(("x3", "x4")):
                    self.stdata = R[0] if mn.startswith("buffer_") else R[1]
        elif mn.startswith("s_"):
            self.kind = "salu"
            if mn == "s_nop":
                self.states = int(ops[0], 0) + 1
            elif mn.startswith(("s_cbranch", "s_branch")):
                self.kind = "branch"; self.target = ops[0]
            elif mn.startswith(("s_cmp", "s_waitcnt", "s_barrier", "s_endpgm", "s_setprio", "s_sleep", "s_bitcmp")):
                self.rd = U(R)
            else:
                self.wr = R[0] if R else set(); self.rd = U(R[1:])
                if mn.startswith("s_bitset"): self.rd |= R[0]
                if "saveexec" in mn: self.wr |= {("s", 126), ("s", 127)}
        else:
            raise ValueError("unknown instr: " + text)

def need(p, c):
    n = 0
    isval = lambda x: x.kind in ("valu", "trans")
    vw = {r for r in p.wr if r[0] in "va"}
    sw = {r for r in p.wr if r[0] == "s"}
    if isval(p):
        if sw:
            if c.kind == "vmem" and sw & c.rd: n = max(n, 5)
            if isval(c) and sw & c.rd: n = max(n, 4 if c.mn.startswith(("v_readlane", "v_writelane")) else 2)
        if vw:
            if c.kind == "mfma" and vw & c.rd: n = max(n, 2)
            if isval(c) and vw & c.rd:
                if c.mn.startswith("v_permlane") or c.dpp: n = max(n, 2)
                if c.mn.startswith(("v_readfirstlane", "v_readlane")): n = max(n, 1)
                if p.kind == "trans" and c.kind != "trans": n = max(n, 1)
                if p.mn.startswith("v_dot") and not (c.mn == p.mn): n = max(n, 3)
            if isval(c) and p.mn.startswith("v_dot") and (vw & c.wr) and c.mn != p.mn: n = max(n, 3)
            if p.mn.startswith("v_dot") and c.kind in ("vmem", "ds", "mfma") and vw & c.rd: n = max(n, 3)
    if p.kind == "salu" and ("s", 124) in p.wr and c.dma: n = max(n, 1)
    if p.stdata:
        if p.stdata & c.wr: n = max(n, 2 if isval(c) else 1)
    if p.kind == "mfma":
        big = {4: 8, 8: 12, 16: 20}[p.passes]
        if c.kind == "mfma":
            if p.wr & (c.A | c.B): n = max(n, big)
            if p.wr & c.C and not (p.wr == c.C and p.passes == c.passes): n = max(n, big - 2)
            if p.wr & c.wr and not (p.wr == c.C and p.passes == c.passes) and not (p.wr & c.C): n = max(n, 0)
        elif isval(c):
            if p.wr & (c.rd | c.wr): n = max(n, big)
            if p.C & c.wr: n = max(n, {4: 3, 8: 7, 16: 15}[p.passes])
        elif c.kind in ("vmem", "ds"):
            if p.wr & (c.rd | c.wr): n = max(n, big)
    return n

LOOK = 24
def ctx_need(ctx, c):
    dist = 0; extra = 0
    for p in reversed(ctx):
        if p.kind in ("none", "label"): continue
        k = need(p, c)
        if k > dist: extra = max(extra, k - dist)
        dist += p.states
        if dist >= LOOK: break
    return extra

def nops(n):
    out = []
    while n > 0:
        k = min(n, 16); out.append(Ins("    s_nop %d" % (k - 1))); n -= k
    return out

def fix(lines, verbose=False):
    ins = [Ins(l) for l in lines]
    out = []; added = 0
    for c in ins:
        if c.kind not in ("none", "label"):
            e = ctx_need(out[-80:], c)
            if e:
                out += nops(e); added += e
                if verbose: print("pad %d before: %s" % (e, c.text.strip()))
        out.append(c)
    changed = True
    while changed:
        changed = False
        pos = {x.label: i for i, x in enumerate(out) if x.kind == "label"}
        for i, b in enumerate(out):
            if b.kind != "branch" or b.target not in pos: continue
            ctx = out[max(0, i - 80): i + 1]
            j = pos[b.target] + 1; dist = 0; ctx = list(ctx)
            while j < len(out) and dist < LOOK:
                c = out[j]
                if c.kind in ("none", "label"): j += 1; continue
                e = ctx_need(ctx, c)
                if e:
                    out[j:j] = nops(e); added += e; changed = True
                    if verbose: print("edge pad %d before: %s" % (e, c.text.strip()))
                    break
                ctx.append(c); dist += c.states; j += 1
                if c.kind == "branch" and c.mn == "s_branch": break
            if changed: break
    return [x.text for x in out], added

class Asm:
    def __init__(self): self.l = []
    def __call__(self, fmt, *a):
        s = fmt % a if a else fmt
        for line in s.split("\n"):
            line = line.strip()
            if not line: continue
            self.l.append(line if line.endswith(":") or line.startswith(".") else "    " + line)
    def label(self, n): self.l.append(n + ":")
def vr(a, n): return "v[%d:%d]" % (a, a + n - 1) if n > 1 else "v%d" % a
def ar(a, n): return "a[%d:%d]" % (a, a + n - 1) if n > 1 else "a%d" % a
def sr(a, n): return "s[%d:%d]" % (a, a + n - 1) if n > 1 else "s%d" % a
```

```python
import sys, math
from asmlib import *

NAME = "parallel_sum__softmax_full_mha__dense_activation_relu__prompt"
QF, KV, AF, BF, WS_END = 0x000000, 0x200000, 0x600000, 0xF00000, 0x10F8000
XBYTES = 2048 * 448 * 2
OPT = dict(ln_double=True, bias=32.0)

import struct
def f32(x): return "0x%08x" % struct.unpack("<I", struct.pack("<f", x))[0]

def srd(a, d, base, nbytes):
    a("s_mov_b32 s%d, s%d", d, base)
    a("s_mov_b32 s%d, s%d", d + 1, base + 1)
    a("s_mov_b32 s%d, 0x%x", d + 2, nbytes)
    a("s_mov_b32 s%d, 0x00020000", d + 3)

def kdesc(name, vgpr, accum, sgpr=102):
    return """.amdhsa_kernel %s
  .amdhsa_next_free_vgpr %d
  .amdhsa_next_free_sgpr %d
  .amdhsa_accum_offset %d
  .amdhsa_group_segment_fixed_size 0
  .amdhsa_kernarg_size 72
  .amdhsa_user_sgpr_count 2
  .amdhsa_user_sgpr_kernarg_segment_ptr 1
  .amdhsa_system_sgpr_workgroup_id_x 1
.end_amdhsa_kernel
""" % (name, vgpr, sgpr, accum)

REG = 35840
SLOT = 7168
def k1():
    a = Asm()
    sX, sW, sWS = 8, 12, 16
    s_w, s_rb, s_cb, s_rot, s_rstr, s_colb = 20, 21, 22, 23, 24, 25
    s_xrow, s_t0, s_t1, s_ones, s_mask, s_ldsw, s_wk, s_cp = 26, 27, 28, 29, 30, 31, 32, 33
    s_hi = 34
    s_st = 36
    s_pm = 38
    v_lane, v_l16 = 1, 2
    v_woff = 3
    v_wa = 10
    v_m, v_r = 14, 15
    v_t = 16
    X0 = 32
    ACC0 = 144
    v_xoff = 144; v_xa = 148; v_sum = 152; v_sq = 154
    RING = 16
    def acc(t): return vr(ACC0 + 16 * t, 16) if t < 7 else ar(0, 16)

    a.label("k1_kernel")
    a("s_cmp_ge_u32 s2, 256")
    a("s_cbranch_scc1 K1_END")
    a("s_load_dwordx4 s[40:43], s[0:1], 0")
    a("s_load_dwordx2 s[44:45], s[0:1], 16")
    a("s_load_dwordx4 s[48:51], s[0:1], 32")
    a("s_load_dwordx2 s[46:47], s[0:1], 64")
    a("v_lshrrev_b32 v%d, 6, v0", v_t)
    a("v_and_b32 v%d, 63, v0", v_lane)
    a("v_readfirstlane_b32 s%d, v%d", s_w, v_t)
    a("v_lshlrev_b32 v%d, 4, v%d", v_l16, v_lane)
    a("s_mov_b32 s%d, 0", s_hi)
    a("s_mov_b32 s%d, -1", s_hi + 1)
    v_g, v_ch, v_rr, v_c = v_t + 1, v_t + 2, v_t + 3, v_t + 4
    a("v_lshrrev_b32 v%d, 5, v%d", v_g, v_lane)
    a("v_bfe_u32 v%d, v%d, 4, 1", v_ch, v_lane)
    a("v_bfe_u32 v%d, v%d, 2, 2", v_rr, v_lane)
    a("v_and_b32 v%d, 3, v%d", v_c, v_lane)
    v_cb = v_t + 5
    a("v_lshlrev_b32 v%d, 5, v%d", v_cb, v_ch)
    a("v_lshl_add_u32 v%d, v%d, 3, v%d", v_cb, v_c, v_cb)
    a("s_waitcnt lgkmcnt(0)")
    srd(a, sWS, 46, WS_END)
    a("s_cmp_ge_u32 s2, 224")
    a("s_cbranch_scc1 K1_RELAY")
    a("s_and_b32 s%d, s2, 7", s_t0)
    a("s_lshr_b32 s%d, s2, 3", s_t1)
    a("s_and_b32 s%d, s%d, 3", s_rb, s_t0)
    a("s_lshl_b32 s%d, s%d, 2", s_rb, s_rb)
    a("s_and_b32 s%d, s%d, 3", s_cb, s_t1)
    a("s_add_u32 s%d, s%d, s%d", s_rb, s_rb, s_cb)
    a("s_lshr_b32 s%d, s%d, 2", s_cb, s_t0)
    a("s_mul_i32 s%d, s%d, 7", s_cb, s_cb)
    a("s_lshr_b32 s%d, s%d, 2", s_t1, s_t1)
    a("s_add_u32 s%d, s%d, s%d", s_cb, s_cb, s_t1)
    srd(a, sX, 40, XBYTES)
    a("s_cmp_lt_u32 s%d, 6", s_cb)
    a("s_cselect_b32 s%d, s42, s48", sW)
    a("s_cselect_b32 s%d, s43, s49", sW + 1)
    a("s_cselect_b32 s%d, 0x%x, 0x%x" % (sW + 2, 448 * 1344 * 2, 448 * 1344 * 2)) if False else None
    a("s_mov_b32 s%d, 0x%x", s_t0, 448 * 1344 * 2)
    a("s_cselect_b32 s%d, s%d, 0x%x", sW + 2, s_t0, 448 * 1792 * 2)
    a("s_mov_b32 s%d, 0x00020000", sW + 3)
    a("s_movk_i32 s%d, 2688", s_t0)
    a("s_cselect_b32 s%d, s%d, 3584", s_rstr, s_t0)
    a("s_sub_u32 s%d, s%d, 6", s_t0, s_cb)
    a("s_cmp_lt_u32 s%d, 6", s_cb)
    a("s_cselect_b32 s%d, s%d, s%d", s_colb, s_cb, s_t0)
    a("s_mul_i32 s%d, s%d, 448", s_colb, s_colb)
    a("s_add_u32 s%d, s%d, s%d", s_rot, s_rb, s_cb)
    for _ in range(4):
        a("s_sub_u32 s%d, s%d, 7", s_t0, s_rot)
        a("s_cmp_ge_u32 s%d, 7", s_rot)
        a("s_cselect_b32 s%d, s%d, s%d", s_rot, s_t0, s_rot)
    a("s_mov_b32 s%d, 0x3f803f80", s_ones)
    a("s_mov_b32 s%d, 0xffff0000", s_mask)
    a("s_mul_i32 s%d, s%d, %d", s_ldsw, s_w, REG)
    a("s_lshl_b32 s%d, s%d, 2", s_xrow, s_rb)
    a("s_add_u32 s%d, s%d, s%d", s_xrow, s_xrow, s_w)
    a("s_mul_i32 s%d, s%d, %d", s_xrow, s_xrow, 32 * 896)
    t0, t1, t2 = v_t + 6, v_t + 7, v_t + 8
    a("v_lshrrev_b32 v%d, 3, v%d", t0, v_lane)
    a("v_mul_u32_u24 v%d, 896, v%d", t0, t0)
    a("v_lshrrev_b32 v%d, 4, v%d", t1, v_lane)
    a("v_and_b32 v%d, 7, v%d", t2, v_lane)
    a("v_xor_b32 v%d, v%d, v%d", t1, t1, t2)
    a("v_lshl_add_u32 v%d, v%d, 4, v%d", v_xoff, t1, t0)
    a("v_xor_b32 v%d, 64, v%d", v_xoff + 1, v_xoff)
    a("v_add_u32 v%d, %d, v%d", v_xoff + 2, 2 * (7168 - 1024), v_xoff)
    a("v_add_u32 v%d, %d, v%d", v_xoff + 3, 3 * (7168 - 1024), v_xoff + 1)
    a("v_add_u32 v%d, %d, v%d", v_xoff + 1, 1 * (7168 - 1024), v_xoff + 1)
    def cp_next(first):
        if first:
            a("s_mov_b32 s%d, s%d", s_cp, s_rot)
        else:
            a("s_add_u32 s%d, s%d, 1", s_cp, s_cp)
            a("s_cmp_eq_u32 s%d, 7", s_cp)
            a("s_cselect_b32 s%d, 0, s%d", s_cp, s_cp)
    for p in range(7):
        cp_next(p == 0)
        a("s_lshl_b32 s%d, s%d, 7", s_t0, s_cp)
        a("s_add_u32 s%d, s%d, s%d", s_t0, s_t0, s_xrow)
        a("s_add_u32 m0, s%d, %d", s_ldsw, SLOT + 4096 * p)
        for i in range(4):
            a("buffer_load_dwordx4 v%d, s[%d:%d], s%d offen offset:%d lds", v_xoff + i, sX, sX + 3, s_t0, 1024 * i)
    for i in range(7):
        a("v_add_u32 v%d, %d, v%d", t0, 64 * i, v_lane)
        a("v_mul_u32_u24 v%d, 2341, v%d", t1, t0)
        a("v_lshrrev_b32 v%d, 16, v%d", t1, t1)
        a("v_mul_u32_u24 v%d, 28, v%d", t2, t1)
        a("v_sub_u32 v%d, v%d, v%d", t2, t0, t2)
        a("v_mul_lo_u32 v%d, v%d, s%d", t1, t1, s_rstr)
        a("v_lshl_add_u32 v%d, v%d, 4, v%d", v_woff + i, t2, t1)
        if i & 3:
            a("v_subrev_u32 v%d, %d, v%d", v_woff + i, 1024 * (i & 3), v_woff + i)
    a("s_lshl_b32 s%d, s%d, 4", s_wk, s_w)
    a("s_mul_i32 s%d, s%d, s%d", s_wk, s_wk, s_rstr)
    a("s_add_u32 s%d, s%d, s%d", s_wk, s_wk, s_colb)
    def wdma(p):
        cp_next(p == 0)
        slot = p if p < 5 else p - 5
        a("s_lshl_b32 s%d, s%d, 6", s_t0, s_cp)
        a("s_mul_i32 s%d, s%d, s%d", s_t0, s_t0, s_rstr)
        a("s_add_u32 s%d, s%d, s%d", s_t0, s_t0, s_wk)
        a("s_add_u32 m0, s%d, %d", s_ldsw, slot * SLOT)
        for i in range(7):
            if i == 4: a("s_add_u32 m0, s%d, %d", s_ldsw, slot * SLOT + 4096)
            a("buffer_load_dwordx4 v%d, s[%d:%d], s%d offen offset:%d lds", v_woff + i, sW, sW + 3, s_t0, 1024 * (i & 3))
    wdma(0)
    a("v_and_b32 v%d, 31, v%d", t0, v_lane)
    a("v_bfe_u32 v%d, v%d, 1, 3", t1, v_lane)
    a("v_xor_b32 v%d, v%d, v%d", t1, t1, v_g)
    a("v_lshlrev_b32 v%d, 7, v%d", t0, t0)
    a("v_lshl_add_u32 v%d, v%d, 4, v%d", t0, t1, t0)
    for q in range(4):
        a("v_xor_b32 v%d, %d, v%d", t1, 32 * q, t0)
        a("v_add_u32 v%d, s%d, v%d", v_xa + q, s_ldsw, t1)
    a("v_lshl_add_u32 v%d, v%d, 3, v%d", t0, v_g, v_rr)
    a("v_mul_u32_u24 v%d, 448, v%d", t0, t0)
    a("v_add_u32 v%d, v%d, v%d", v_wa, t0, v_cb)
    for q in range(1, 4):
        a("v_add_u32 v%d, %d, v%d", v_wa + q, q * REG, v_wa)
    for i in range(4): a("v_mov_b32 v%d, 0", v_sum + i)
    def xread(p):
        for q in range(4):
            a("ds_read_b128 %s, v%d offset:%d", vr(X0 + 16 * p + 4 * q, 4), v_xa + q, SLOT + 4096 * p)
    def xstat(p):
        for j in range(16):
            x = X0 + 16 * p + j
            a("v_dot2c_f32_bf16 v%d, s%d, v%d", v_sum + (j & 1), s_ones, x)
            a("v_dot2c_f32_bf16 v%d, v%d, v%d", v_sq + (j & 1), x, x)
    for (ps, vm, wn) in (((0, 1), 27, 1), ((2, 3), 26, 2), ((4, 5), 25, 3), ((6,), 28, 4)):
        a("s_waitcnt vmcnt(%d)", vm)
        for p in ps: xread(p)
        a("s_waitcnt lgkmcnt(0)")
        wdma(wn)
        for p in ps: xstat(p)
    a("v_add_f32 v%d, v%d, v%d", v_sum, v_sum, v_sum + 1)
    a("v_add_f32 v%d, v%d, v%d", v_sq, v_sq, v_sq + 1)
    a("v_mov_b32 v%d, v%d", v_sum + 1, v_sum)
    a("v_mov_b32 v%d, v%d", v_sq + 1, v_sq)
    a("v_permlane32_swap_b32 v%d, v%d", v_sum, v_sum + 1)
    a("v_permlane32_swap_b32 v%d, v%d", v_sq, v_sq + 1)
    a("v_add_f32 v%d, v%d, v%d", v_sum, v_sum, v_sum + 1)
    a("v_add_f32 v%d, v%d, v%d", v_sq, v_sq, v_sq + 1)
    a("v_mul_f32 v%d, %s, v%d", v_sum, f32(1.0 / 448), v_sum)
    a("v_mul_f32 v%d, %s, v%d", v_sq, f32(1.0 / 448), v_sq)
    a("v_fma_f32 v%d, -v%d, v%d, v%d", v_sq, v_sum, v_sum, v_sq)
    a("v_max_f32 v%d, 0, v%d", v_sq, v_sq)
    a("v_cvt_pk_bf16_f32 v%d, v%d, v%d", t0, v_sum, v_sq)
    a("v_lshlrev_b32 v%d, 16, v%d", v_m, t0)
    a("v_and_b32 v%d, s%d, v%d", t0, s_mask, t0)
    a("v_add_f32 v%d, %s, v%d", t0, f32(1e-5), t0)
    a("v_cvt_pk_bf16_f32 v%d, v%d, v%d", t0, t0, t0)
    a("v_and_b32 v%d, s%d, v%d", t0, s_mask, t0)
    a("v_sqrt_f32 v%d, v%d", t0, t0)
    a("v_cvt_pk_bf16_f32 v%d, v%d, v%d", t0, t0, t0)
    a("v_and_b32 v%d, s%d, v%d", t0, s_mask, t0)
    a("v_rcp_f32 v%d, v%d", v_r, t0)
    if not OPT["ln_double"]:
        a("v_mul_f32 v%d, v%d, v%d", v_m, v_m, v_r)
    def norm_ops(s):
        seqs = []
        for j in range(4):
            x = X0 + 4 * s + j; lo = v_t + 2 * j; hi = lo + 1
            if OPT["ln_double"]:
                seqs.append(["v_lshlrev_b32 v%d, 16, v%d" % (lo, x), "v_and_b32 v%d, s%d, v%d" % (hi, s_mask, x),
                             "v_sub_f32 v%d, v%d, v%d" % (lo, lo, v_m), "v_sub_f32 v%d, v%d, v%d" % (hi, hi, v_m),
                             "v_cvt_pk_bf16_f32 v%d, v%d, v%d" % (x, lo, hi),
                             "v_lshlrev_b32 v%d, 16, v%d" % (lo, x), "v_and_b32 v%d, s%d, v%d" % (hi, s_mask, x),
                             "v_mul_f32 v%d, v%d, v%d" % (lo, lo, v_r), "v_mul_f32 v%d, v%d, v%d" % (hi, hi, v_r),
                             "v_cvt_pk_bf16_f32 v%d, v%d, v%d" % (x, lo, hi)])
            else:
                seqs.append(["v_lshlrev_b32 v%d, 16, v%d" % (lo, x), "v_and_b32 v%d, s%d, v%d" % (hi, s_mask, x),
                             "v_fma_f32 v%d, v%d, v%d, -v%d" % (lo, lo, v_r, v_m), "v_fma_f32 v%d, v%d, v%d, -v%d" % (hi, hi, v_r, v_m),
                             "v_cvt_pk_bf16_f32 v%d, v%d, v%d" % (x, lo, hi)])
        out = []
        for k in range(len(seqs[0])):
            for j in range(4): out.append(seqs[j][k])
        return out
    for o in norm_ops(0): a(o)
    a("s_waitcnt vmcnt(28)")
    a("s_barrier")
    a("s_cmp_ge_u32 s%d, 6", s_cb)
    a("s_cbranch_scc1 K1_FFN")
    a("s_cmp_ge_u32 s%d, 4", s_cb)
    a("s_cbranch_scc1 K1_V")

    LA = 4
    VM = {1: 21, 2: 14, 3: 14, 4: 14, 5: 7, 6: 0}
    def mainloop(T, tstride, swap):
        seq = [(s, t) for s in range(28) for t in range(T)]
        def rd(n):
            s, t = seq[n]
            p, q = s >> 2, s & 3
            slot = p if p < 5 else p - 5
            for h in range(2):
                a("ds_read_b64_tr_b16 %s, v%d offset:%d", ar(RING + 4 * (n % 8) + 2 * h, 2), v_wa + q, slot * SLOT + h * 1792 + tstride * t)
        for n in range(LA): rd(n)
        pend = []
        for n, (s, t) in enumerate(seq):
            if t == 0: pend = norm_ops(s + 1) if s + 1 < 28 else []
            nn = n + LA
            if nn < len(seq):
                s2, t2 = seq[nn]
                if t2 == 0 and (s2 & 3) == 0:
                    p2 = s2 >> 2
                    a("s_waitcnt vmcnt(%d)", VM[p2])
                    a("s_barrier")
                    if p2 in (2, 3): wdma(p2 + 3)
                rd(nn)
            outstanding = min(LA, len(seq) - 1 - n)
            a("s_waitcnt lgkmcnt(%d)", 2 * outstanding)
            wf = ar(RING + 4 * (n % 8), 4); xf = vr(X0 + 4 * s, 4)
            A, B = (xf, wf) if swap else (wf, xf)
            a("v_mfma_f32_32x32x16_bf16 %s, %s, %s, %s", acc(t), A, B, acc(t) if s else "0")
            k = -(-len(pend) // (T - t)) if t < T else 0
            for o in pend[:k]: a(o)
            pend = pend[k:]
    def getacc(t, j, tmp):
        if t < 7: return ACC0 + 16 * t + j
        a("v_accvgpr_read_b32 v%d, a%d", tmp, j)
        return tmp
    PK = X0
    def epilogue(T, kind):
        for t in range(T):
            pk = PK + 8 * t
            for jj in range(8):
                r0 = getacc(t, 2 * jj, v_t + 2 * (jj & 3)); r1 = getacc(t, 2 * jj + 1, v_t + 2 * (jj & 3) + 1)
                if kind == "q":
                    a("v_pk_mul_f32 %s, %s, %s", vr(r0, 2), vr(r0, 2), vr(v_m, 2))
                a("v_cvt_pk_bf16_f32 v%d, v%d, v%d", pk + jj, r0, r1)
                if kind == "h":
                    a("v_pk_max_i16 v%d, v%d, 0", pk + jj, pk + jj)
            if kind == "q":
                a("v_cndmask_b32 v%d, v%d, 0, s[%d:%d]", pk + 6, pk + 6, s_hi, s_hi + 1)
                a("v_cndmask_b32 v%d, v%d, 0, s[%d:%d]", pk + 7, pk + 7, s_hi, s_hi + 1)
            elif kind == "k":
                a("v_cndmask_b32 v%d, v%d, v%d, s[%d:%d]", pk + 6, pk + 6, v_m, s_hi, s_hi + 1)
                a("v_cndmask_b32 v%d, v%d, v%d, s[%d:%d]", pk + 7, pk + 7, v_r, s_hi, s_hi + 1)
            elif kind == "v":
                for jj in range(8):
                    a("v_cndmask_b32 v%d, v%d, v%d, s[%d:%d]", pk + jj, pk + jj, v_m, s_pm, s_pm + 1)
            fs = {"q": 1024, "k": 1024, "v": 1024, "h": 2048}[kind]
            ts = {"q": 131072, "k": 262144, "v": 262144, "h": 4096}[kind]
            for f in range(2):
                a("buffer_store_dwordx4 %s, v%d, s[%d:%d], s%d offen offset:%d", vr(pk + 4 * f, 4), v_l16, sWS, sWS + 3, s_st, fs * f)
            if t + 1 < T: a("s_add_u32 s%d, s%d, %d", s_st, s_st, ts)
    def rt_to(s_dst):
        a("s_lshl_b32 s%d, s%d, 2", s_dst, s_rb)
        a("s_add_u32 s%d, s%d, s%d", s_dst, s_dst, s_w)
    mainloop(8, 56, False)
    rt_to(s_t0)
    a("s_and_b32 s%d, s%d, 1", s_t1, s_cb)
    a("s_lshl_b32 s%d, s%d, 9", s_t1, s_t1)
    a("s_add_u32 s%d, s%d, s%d", s_t0, s_t0, s_t1)
    a("s_cmp_ge_u32 s%d, 2", s_cb)
    a("s_cbranch_scc1 K1_EPK")
    a("s_lshl_b32 s%d, s%d, 11", s_st, s_t0)
    c = 28 ** -0.5 * math.log2(math.e)
    a("v_mov_b32 v%d, %s", v_m, f32(c))
    a("v_mov_b32 v%d, %s", v_r, f32(c))
    epilogue(8, "q")
    a("s_endpgm")
    a.label("K1_EPK")
    a("s_lshl_b32 s%d, s%d, 12", s_st, s_t0)
    a("s_add_u32 s%d, s%d, 0x%x", s_st, s_st, KV)
    a("v_mov_b32 v%d, 0x3f803f80", v_m)
    a("v_mov_b32 v%d, 0x00003f80", v_r)
    epilogue(8, "k")
    a("s_endpgm")
    a.label("K1_V")
    mainloop(8, 56, True)
    rt_to(s_t0)
    a("s_and_b32 s%d, s%d, 1", s_t1, s_cb)
    a("s_lshl_b32 s%d, s%d, 9", s_t1, s_t1)
    a("s_add_u32 s%d, s%d, s%d", s_t0, s_t0, s_t1)
    a("s_lshl_b32 s%d, s%d, 12", s_st, s_t0)
    a("s_add_u32 s%d, s%d, 0x%x", s_st, s_st, KV + 2048)
    a("s_mov_b32 s%d, 0xf0000000", s_pm)
    a("s_mov_b32 s%d, 0xf0000000", s_pm + 1)
    a("s_mov_b32 s%d, 0x10000000", s_pm + 2)
    a("s_mov_b32 s%d, 0x10000000", s_pm + 3)
    a("v_mov_b32 v%d, 0x3f803f80", v_r)
    a("v_cndmask_b32 v%d, 0, v%d, s[%d:%d]", v_m, v_r, s_pm + 2, s_pm + 3)
    epilogue(8, "v")
    a("s_endpgm")
    a.label("K1_FFN")
    mainloop(7, 64, False)
    rt_to(s_t0)
    a("s_lshr_b32 s%d, s%d, 1", s_t1, s_t0)
    a("s_mul_i32 s%d, s%d, 144", s_t1, s_t1)
    a("s_sub_u32 s%d, s%d, 6", s_st, s_cb)
    a("s_mul_i32 s%d, s%d, 14", s_st, s_st)
    a("s_add_u32 s%d, s%d, s%d", s_st, s_st, s_t1)
    a("s_lshl_b32 s%d, s%d, 1", s_st, s_st)
    a("s_and_b32 s%d, s%d, 1", s_t0, s_t0)
    a("s_add_u32 s%d, s%d, s%d", s_st, s_st, s_t0)
    a("s_lshl_b32 s%d, s%d, 10", s_st, s_st)
    a("s_add_u32 s%d, s%d, 0x%x", s_st, s_st, AF)
    epilogue(7, "h")
    a("s_endpgm")
    a.label("K1_RELAY")
    s_ks = s_rb
    a("s_sub_u32 s%d, s2, 224", s_ks)
    a("s_lshl_b32 s%d, s%d, 2", s_ks, s_ks)
    a("s_add_u32 s%d, s%d, s%d", s_ks, s_ks, s_w)
    a("s_mul_i32 s%d, s%d, 14336", s_ldsw, s_w)
    a("v_lshl_add_u32 v%d, v%d, 2, v%d", t0, v_g, v_rr)
    a("v_mul_u32_u24 v%d, 896, v%d", t0, t0)
    a("v_add3_u32 v%d, v%d, v%d, s%d", v_wa, t0, v_cb, s_ldsw)
    a.label("K1_RL_LOOP")
    a("s_cmp_lt_u32 s%d, 112", s_ks)
    a("s_cselect_b32 s%d, s50, s44", sW)
    a("s_cselect_b32 s%d, s51, s45", sW + 1)
    a("s_mov_b32 s%d, 0x%x", s_t0, 1792 * 448 * 2)
    a("s_cselect_b32 s%d, s%d, 0x%x", sW + 2, s_t0, 448 * 448 * 2)
    a("s_mov_b32 s%d, 0x00020000", sW + 3)
    a("s_sub_u32 s%d, s%d, 112", s_t0, s_ks)
    a("s_lshr_b32 s%d, s%d, 1", s_t1, s_t0)
    a("s_mul_i32 s%d, s%d, 28", s_t1, s_t1)
    a("s_and_b32 s%d, s%d, 1", s_cp, s_t0)
    a("s_lshl_b32 s%d, s%d, 4", s_t0, s_cp)
    a("s_add_u32 s%d, s%d, s%d", s_t1, s_t1, s_t0)
    a("s_lshl_b32 s%d, s%d, 4", s_t0, s_ks)
    a("s_cmp_lt_u32 s%d, 112", s_ks)
    a("s_cselect_b32 s%d, s%d, s%d", s_t0, s_t0, s_t1)
    a("s_cselect_b32 s%d, 0, s%d", s_cp, s_cp)
    a("s_mul_i32 s%d, s%d, 896", s_t0, s_t0)
    for i in range(14):
        if i % 4 == 0:
            a("s_add_u32 m0, s%d, %d", s_ldsw, 1024 * i)
            if i: a("s_add_u32 s%d, s%d, 4096", s_t0, s_t0)
        a("buffer_load_dwordx4 v%d, s[%d:%d], s%d offen offset:%d lds", v_l16, sW, sW + 3, s_t0, 1024 * (i % 4))
    a("s_sub_u32 s%d, 0, s%d", s_pm + 1, s_cp)
    a("s_mov_b32 s%d, 0", s_pm)
    a("s_lshl_b32 s%d, s%d, 11", s_st, s_ks)
    a("s_add_u32 s%d, s%d, 0x%x", s_st, s_st, BF)
    a("s_waitcnt vmcnt(0)")
    for half in range(2):
        for nt in range(7 * half, 7 * half + 7):
            for h in range(2):
                a("ds_read_b64_tr_b16 %s, v%d offset:%d", vr(X0 + 4 * nt + 2 * h, 2), v_wa, h * 8 * 896 + 64 * nt)
        a("s_waitcnt lgkmcnt(0)")
    for nt in range(14):
        a("v_cndmask_b32 v%d, v%d, 0, s[%d:%d]", X0 + 4 * nt + 2, X0 + 4 * nt + 2, s_pm, s_pm + 1)
        a("v_cndmask_b32 v%d, v%d, 0, s[%d:%d]", X0 + 4 * nt + 3, X0 + 4 * nt + 3, s_pm, s_pm + 1)
        a("buffer_store_dwordx4 %s, v%d, s[%d:%d], s%d offen offset:%d", vr(X0 + 4 * nt, 4), v_l16, sWS, sWS + 3, s_st, 1024 * (nt & 1))
        if nt & 1: a("s_add_u32 s%d, s%d, %d", s_st, s_st, 144 * 2048)
    a("s_add_u32 s%d, s%d, 128", s_ks, s_ks)
    a("s_cmp_lt_u32 s%d, 144", s_ks)
    a("s_cbranch_scc1 K1_RL_LOOP")
    a.label("K1_END")
    a("s_endpgm")
    return a.l, kdesc("k1_kernel", 304, 256), "; @launch kernel=k1_kernel grid=(256,1,1) block=(256,1,1) lds=%d" % (4 * REG)

def k2():
    a = Asm()
    sWS = 8
    s_w, s_head, s_qb, s_t0, s_t1, s_kvb, s_i, s_off, s_mode, s_cnt = 12, 13, 14, 15, 16, 17, 18, 19, 20, 21
    s_hi = 22
    s_mask = 24
    s_bad = 26
    v_lane, v_l16, v_t = 1, 2, 4
    Q0 = 16
    O0 = 48
    S0 = 112
    P0 = 144
    KV0 = 160
    MX = 224
    def q(u, f): return vr(Q0 + 8 * u + 4 * f, 4)
    def o(u): return vr(O0 + 16 * u, 16)
    def kv(st, f): return vr(KV0 + 16 * st + 4 * f, 4)
    a.label("k2_kernel")
    a("s_cmp_ge_u32 s2, 256")
    a("s_cbranch_scc1 K2_END")
    a("s_load_dwordx2 s[4:5], s[0:1], 64")
    a("v_lshrrev_b32 v%d, 6, v0", v_t)
    a("v_and_b32 v%d, 63, v0", v_lane)
    a("v_readfirstlane_b32 s%d, v%d", s_w, v_t)
    a("v_lshlrev_b32 v%d, 4, v%d", v_l16, v_lane)
    a("s_and_b32 s%d, s2, 7", s_head)
    a("s_lshl_b32 s%d, s%d, 1", s_head, s_head)
    a("s_bfe_u32 s%d, s2, 0x10003", s_t0)
    a("s_add_u32 s%d, s%d, s%d", s_head, s_head, s_t0)
    a("s_lshr_b32 s%d, s2, 4", s_qb)
    a("s_mov_b32 s%d, 0", s_hi)
    a("s_mov_b32 s%d, -1", s_hi + 1)
    a("s_mov_b32 s%d, 0xffff0000", s_mask)
    a("s_mov_b32 s%d, 0", s_mode)
    a("s_lshl_b32 s%d, s%d, 2", s_kvb, s_head)
    a("s_add_u32 s%d, s%d, s%d", s_kvb, s_kvb, s_w)
    a("s_lshl_b32 s%d, s%d, 16", s_kvb, s_kvb)
    a("s_add_u32 s%d, s%d, 0x%x", s_kvb, s_kvb, KV)
    a("s_waitcnt lgkmcnt(0)")
    srd(a, sWS, 4, WS_END)
    def kvload(st, fr=(0, 1, 2, 3)):
        a("s_add_u32 s%d, s%d, s%d", s_off, s_i, s_qb)
        a("s_and_b32 s%d, s%d, 15", s_off, s_off)
        a("s_lshl_b32 s%d, s%d, 12", s_off, s_off)
        a("s_add_u32 s%d, s%d, s%d", s_off, s_off, s_kvb)
        for f in fr:
            a("buffer_load_dwordx4 %s, v%d, s[%d:%d], s%d offen offset:%d", kv(st, f), v_l16, sWS, sWS + 3, s_off, 1024 * f)
        a("s_add_u32 s%d, s%d, 1", s_i, s_i)
    a.label("K2_RESTART")
    a("s_lshl_b32 s%d, s%d, 4", s_t0, s_head)
    a("s_add_u32 s%d, s%d, s%d", s_t0, s_t0, s_qb)
    a("s_lshl_b32 s%d, s%d, 13", s_t0, s_t0)
    a("s_add_u32 s%d, s%d, 4096", s_t1, s_t0)
    a("s_mov_b32 s%d, 0", s_i)
    kvload(0)
    for u in range(4):
        for f in range(2):
            a("buffer_load_dwordx4 %s, v%d, s[%d:%d], s%d offen offset:%d", q(u, f), v_l16, sWS, sWS + 3, s_t0 if u < 2 else s_t1, 2048 * (u & 1) + 1024 * f)
    kvload(1); kvload(2)
    for u in range(4): a("v_mov_b32 v%d, 0xff800000", MX + u)
    a("s_waitcnt vmcnt(8)")
    def maxtile(st):
        for u in range(4):
            d = vr(O0 + 16 * u, 16)
            a("v_mfma_f32_32x32x16_bf16 %s, %s, %s, 0", d, kv(st, 0), q(u, 0))
            a("v_mfma_f32_32x32x16_bf16 %s, %s, %s, %s", d, kv(st, 1), q(u, 1), d)
        for u in range(4):
            for j in range(8):
                a("v_max3_f32 v%d, v%d, v%d, v%d", MX + u, O0 + 16 * u + 2 * j, O0 + 16 * u + 2 * j + 1, MX + u)
    maxtile(0)
    a("s_cmp_eq_u32 s%d, 0", s_mode)
    a("s_cbranch_scc1 K2_MAXDONE")
    a("s_mov_b32 s%d, 1", s_i)
    a.label("K2_MAXLOOP")
    kvload(3, (0, 1))
    a("s_waitcnt vmcnt(0)")
    maxtile(3)
    a("s_cmp_lt_u32 s%d, 16", s_i)
    a("s_cbranch_scc1 K2_MAXLOOP")
    a("s_mov_b32 s%d, 3", s_i)
    a.label("K2_MAXDONE")
    for u in range(4): a("v_mov_b32 v%d, v%d", v_t + u, MX + u)
    for u in range(4): a("v_permlane32_swap_b32 v%d, v%d", MX + u, v_t + u)
    for u in range(4): a("v_max_f32 v%d, v%d, v%d", MX + u, MX + u, v_t + u)
    a("s_lshl_b32 s%d, s%d, 10", s_t0, s_w)
    a("v_add_u32 v%d, s%d, v%d", v_t, s_t0, v_l16)
    a("ds_write_b128 v%d, %s", v_t, vr(MX, 4))
    a("s_waitcnt lgkmcnt(0)")
    a("s_barrier")
    for w in range(4):
        a("ds_read_b128 %s, v%d offset:%d", vr(S0 + 4 * w, 4), v_l16, 1024 * w)
    a("s_cmp_eq_u32 s%d, 0", s_mode)
    a("s_cselect_b32 s%d, %s, 0", s_t0, f32(OPT["bias"]))
    a("s_waitcnt lgkmcnt(0)")
    for u in range(4):
        a("v_max3_f32 v%d, v%d, v%d, v%d", MX + u, S0 + u, S0 + 4 + u, S0 + 8 + u)
        a("v_max_f32 v%d, v%d, v%d", MX + u, MX + u, S0 + 12 + u)
        a("v_sub_f32 v%d, -v%d, s%d" if False else "v_add_f32 v%d, s%d, v%d", MX + u, s_t0, MX + u)
    for u in range(4):
        m = MX + u; h0, h1, h2 = v_t, v_t + 1, v_t + 2
        a("v_sub_f32 v%d, 0, v%d", m, m)
        a("v_and_b32 v%d, s%d, v%d", h0, s_mask, m)
        a("v_sub_f32 v%d, v%d, v%d", m, m, h0)
        a("v_and_b32 v%d, s%d, v%d", h1, s_mask, m)
        a("v_sub_f32 v%d, v%d, v%d", m, m, h1)
        a("v_lshrrev_b32 v%d, 16, v%d", h0, h0)
        a("v_or_b32 v%d, v%d, v%d", h0, h0, h1)
        a("v_lshrrev_b32 v%d, 16, v%d", h2, m)
        a("v_cndmask_b32 v%d, v%d, v%d, s[%d:%d]", Q0 + 8 * u + 6, Q0 + 8 * u + 6, h0, s_hi, s_hi + 1)
        a("v_cndmask_b32 v%d, v%d, v%d, s[%d:%d]", Q0 + 8 * u + 7, Q0 + 8 * u + 7, h2, s_hi, s_hi + 1)
    for j in range(64): a("v_mov_b32 v%d, 0", O0 + j)
    def S(n): return S0 + 16 * (n & 1)
    def P(n): return P0 + 8 * (n & 1)
    def qk(n, f):
        i, u = n >> 2, n & 3
        d = vr(S(n), 16)
        return "v_mfma_f32_32x32x16_bf16 %s, %s, %s, %s" % (d, kv(i & 3, f), q(u, f), d if f else "0")
    def pv(n, f):
        i, u = n >> 2, n & 3
        return "v_mfma_f32_32x32x16_bf16 %s, %s, %s, %s" % (o(u), kv(i & 3, 2 + f), vr(P(n) + 4 * f, 4), o(u))
    def slot(n, first, last, loads):
        i, u = n >> 2, n & 3
        m = []
        if not last: m += [qk(n + 1, 0), qk(n + 1, 1)]
        else: m += [None, None]
        if not first: m += [pv(n - 1, 0), pv(n - 1, 1)]
        else: m += [None, None]
        if u == 3 and not last:
            a("s_waitcnt vmcnt(%d)", loads["wait"])
        for k in range(4):
            if m[k]: a(m[k])
            for j in range(4): a("v_exp_f32 v%d, v%d", S(n) + 4 * k + j, S(n) + 4 * k + j)
            if k > 0:
                for j in range(2):
                    a("v_cvt_pk_bf16_f32 v%d, v%d, v%d", P(n) + 2 * (k - 1) + j, S(n) + 4 * (k - 1) + 2 * j, S(n) + 4 * (k - 1) + 2 * j + 1)
            if k == 3 and u == 0 and loads["issue"]:
                kvload((i + 3) & 3)
        for j in range(2):
            a("v_cvt_pk_bf16_f32 v%d, v%d, v%d", P(n) + 6 + j, S(n) + 12 + 2 * j, S(n) + 12 + 2 * j + 1)
    a(qk(0, 0)); a(qk(0, 1))
    a("s_nop 7")
    def group(g, last_group):
        for n in range(16):
            i = n >> 2
            T = 4 * g + i
            issue = (not last_group) or i == 0
            if last_group: wait = {0: 8, 1: 4, 2: 0, 3: 0}[i]
            else: wait = 8
            slot(n, g == 0 and n == 0, last_group and n == 15, dict(issue=issue, wait=wait))
    group(0, False)
    a("s_mov_b32 s%d, 2", s_cnt)
    a.label("K2_LOOP")
    group(1, False)
    a("s_sub_u32 s%d, s%d, 1", s_cnt, s_cnt)
    a("s_cmp_lg_u32 s%d, 0", s_cnt)
    a("s_cbranch_scc1 K2_LOOP")
    group(3, True)
    a(pv(15, 0)); a(pv(15, 1))
    LB = 4096
    a("s_lshl_b32 s%d, s%d, 12", s_t0, s_w)
    a("v_add_u32 v%d, s%d, v%d", v_t, s_t0, v_l16)
    for u in range(4):
        for qd in range(4):
            a("ds_write_b128 v%d, %s offset:%d", v_t, vr(O0 + 16 * u + 4 * qd, 4), LB + u * 16384 + qd * 1024 - (0))
    a("s_lshl_b32 s%d, s%d, 14", s_t0, s_w)
    a("v_add_u32 v%d, s%d, v%d", v_t + 1, s_t0, v_l16)
    a("s_waitcnt lgkmcnt(0)")
    a("s_barrier")
    for w in range(4):
        for qd in range(4):
            a("ds_read_b128 %s, v%d offset:%d", vr(O0 + 16 * w + 4 * qd, 4), v_t + 1, LB + w * 4096 + qd * 1024)
        if w == 1: a("s_waitcnt lgkmcnt(0)")
    a("s_waitcnt lgkmcnt(0)")
    for j in range(16):
        a("v_add_f32 v%d, v%d, v%d", O0 + j, O0 + j, O0 + 16 + j)
        a("v_add_f32 v%d, v%d, v%d", O0 + 32 + j, O0 + 32 + j, O0 + 48 + j)
    for j in range(16):
        a("v_add_f32 v%d, v%d, v%d", O0 + j, O0 + j, O0 + 32 + j)
    a("v_mov_b32 v%d, v%d", v_t, O0 + 12)
    a("v_mov_b32 v%d, v%d", v_t + 1, O0 + 12)
    a("v_permlane32_swap_b32 v%d, v%d", v_t, v_t + 1)
    a("v_rcp_f32 v%d, v%d", v_t + 2, v_t + 1)
    a("v_maximum3_f32 v%d, abs(v%d), abs(v%d), abs(v%d)", v_t + 3, O0, O0 + 1, O0 + 2)
    for j in range(3, 15, 2):
        a("v_maximum3_f32 v%d, abs(v%d), abs(v%d), v%d", v_t + 3, O0 + j, O0 + j + 1, v_t + 3)
    a("v_maximum3_f32 v%d, abs(v%d), abs(v%d), v%d", v_t + 3, O0 + 15, O0 + 15, v_t + 3)
    a("v_mov_b32 v%d, 0x7e800000", v_t + 4)
    a("v_cmp_nlt_f32 s[%d:%d], v%d, v%d", s_bad, s_bad + 1, v_t + 3, v_t + 4)
    for j in range(16):
        a("v_mul_f32 v%d, v%d, v%d", O0 + j, O0 + j, v_t + 2)
    for jj in range(8):
        a("v_cvt_pk_bf16_f32 v%d, v%d, v%d", P0 + jj, O0 + 2 * jj, O0 + 2 * jj + 1)
    a("s_lshl_b32 s%d, s%d, 2", s_t0, s_qb)
    a("s_add_u32 s%d, s%d, s%d", s_t0, s_t0, s_w)
    a("s_lshr_b32 s%d, s%d, 1", s_t1, s_t0)
    a("s_mul_i32 s%d, s%d, 144", s_t1, s_t1)
    a("s_lshl_b32 s%d, s%d, 1", s_off, s_head)
    a("s_add_u32 s%d, s%d, s%d", s_t1, s_t1, s_off)
    a("s_add_u32 s%d, s%d, 112", s_t1, s_t1)
    a("s_lshl_b32 s%d, s%d, 1", s_t1, s_t1)
    a("s_and_b32 s%d, s%d, 1", s_t0, s_t0)
    a("s_add_u32 s%d, s%d, s%d", s_t1, s_t1, s_t0)
    a("s_lshl_b32 s%d, s%d, 10", s_t1, s_t1)
    a("s_add_u32 s%d, s%d, 0x%x", s_t1, s_t1, AF)
    for f in range(2):
        a("buffer_store_dwordx4 %s, v%d, s[%d:%d], s%d offen offset:%d", vr(P0 + 4 * f, 4), v_l16, sWS, sWS + 3, s_t1, 2048 * f)
    a("s_cmp_lg_u32 s%d, 0", s_mode)
    a("s_cbranch_scc1 K2_END")
    a("s_or_b32 s%d, s%d, s%d", s_t0, s_bad, s_bad + 1)
    a("v_mov_b32 v%d, s%d", v_t, s_t0)
    a("s_lshl_b32 s%d, s%d, 2", s_t1, s_w)
    a("v_mov_b32 v%d, s%d", v_t + 1, s_t1)
    a("ds_write_b32 v%d, v%d", v_t + 1, v_t)
    a("v_mov_b32 v%d, 0", v_t + 2)
    a("s_waitcnt lgkmcnt(0)")
    a("s_barrier")
    a("ds_read_b128 %s, v%d", vr(v_t + 4, 4), v_t + 2)
    a("s_waitcnt lgkmcnt(0)")
    a("v_or_b32 v%d, v%d, v%d", v_t + 4, v_t + 4, v_t + 5)
    a("v_or3_b32 v%d, v%d, v%d, v%d", v_t + 4, v_t + 4, v_t + 6, v_t + 7)
    a("v_readfirstlane_b32 s%d, v%d", s_t0, v_t + 4)
    a("s_nop 3")
    a("s_cmp_eq_u32 s%d, 0", s_t0)
    a("s_cbranch_scc1 K2_END")
    a("s_mov_b32 s%d, 1", s_mode)
    a("s_waitcnt vmcnt(0)")
    a("s_barrier")
    a("s_branch K2_RESTART")
    a.label("K2_END")
    a("s_endpgm")
    return a.l, kdesc("k2_kernel", 232, 232), "; @launch kernel=k2_kernel grid=(256,1,1) block=(256,1,1) lds=%d" % (LB + 65536)

def k3():
    a = Asm()
    sWS, sX, sO = 8, 12, 16
    s_w, s_rb, s_cb, s_t0, s_t1, s_ab, s_bb, s_k, s_oa, s_ob = 20, 21, 22, 23, 24, 25, 26, 27, 28, 29
    v_lane, v_l16, v_t = 1, 2, 4
    ACC = 16
    R0 = 80
    NR = 8
    a.label("k3_kernel")
    a("s_cmp_ge_u32 s2, 224")
    a("s_cbranch_scc1 K3_END")
    a("s_load_dwordx2 s[4:5], s[0:1], 64")
    a("s_load_dwordx2 s[6:7], s[0:1], 0")
    a("s_load_dwordx2 s[30:31], s[0:1], 48")
    a("v_lshrrev_b32 v%d, 6, v0", v_t)
    a("v_and_b32 v%d, 63, v0", v_lane)
    a("v_readfirstlane_b32 s%d, v%d", s_w, v_t)
    a("v_lshlrev_b32 v%d, 4, v%d", v_l16, v_lane)
    a("s_and_b32 s%d, s2, 7", s_rb)
    a("s_lshl_b32 s%d, s%d, 2", s_rb, s_rb)
    a("s_bfe_u32 s%d, s2, 0x20003", s_t0)
    a("s_add_u32 s%d, s%d, s%d", s_rb, s_rb, s_t0)
    a("s_lshr_b32 s%d, s2, 5", s_cb)
    a("s_mul_i32 s%d, s%d, 36", s_t0, s_w)
    a("s_mul_i32 s%d, s%d, 144", s_ab, s_rb)
    a("s_add_u32 s%d, s%d, s%d", s_ab, s_ab, s_t0)
    a("s_lshl_b32 s%d, s%d, 11", s_ab, s_ab)
    a("s_add_u32 s%d, s%d, 0x%x", s_ab, s_ab, AF)
    a("s_mul_i32 s%d, s%d, 144", s_bb, s_cb)
    a("s_add_u32 s%d, s%d, s%d", s_bb, s_bb, s_t0)
    a("s_lshl_b32 s%d, s%d, 11", s_bb, s_bb)
    a("s_add_u32 s%d, s%d, 0x%x", s_bb, s_bb, BF)
    a("s_mul_i32 s%d, s%d, 5", s_k, s_cb)
    a("s_and_b32 s%d, s%d, 3", s_t0, s_rb)
    a("s_mul_i32 s%d, s%d, 9", s_t0, s_t0)
    a("s_add_u32 s%d, s%d, s%d", s_k, s_k, s_t0)
    a("s_sub_u32 s%d, s%d, 36", s_t0, s_k)
    a("s_cmp_ge_u32 s%d, 36", s_k)
    a("s_cselect_b32 s%d, s%d, s%d", s_k, s_t0, s_k)
    a("s_lshl_b32 s%d, s%d, 11", s_k, s_k)
    a("s_waitcnt lgkmcnt(0)")
    srd(a, sWS, 4, WS_END); srd(a, sX, 6, XBYTES); srd(a, sO, 30, XBYTES)
    def load(st):
        a("s_add_u32 s%d, s%d, s%d", s_oa, s_ab, s_k)
        a("s_add_u32 s%d, s%d, s%d", s_ob, s_bb, s_k)
        for f in range(2):
            a("buffer_load_dwordx4 %s, v%d, s[%d:%d], s%d offen offset:%d", vr(R0 + 16 * st + 4 * f, 4), v_l16, sWS, sWS + 3, s_oa, 1024 * f)
        for f in range(2):
            a("buffer_load_dwordx4 %s, v%d, s[%d:%d], s%d offen offset:%d", vr(R0 + 16 * st + 8 + 4 * f, 4), v_l16, sWS, sWS + 3, s_ob, 1024 * f)
        a("s_add_u32 s%d, s%d, 2048", s_k, s_k)
        a("s_cmp_eq_u32 s%d, %d", s_k, 36 * 2048)
        a("s_cselect_b32 s%d, 0, s%d", s_k, s_k)
    for st in range(NR): load(st)
    v_xo = v_t + 1; XR = 208
    a("v_lshrrev_b32 v%d, 3, v0", v_t)
    a("v_mul_u32_u24 v%d, 896, v%d", v_xo, v_t)
    a("v_and_b32 v%d, 7, v0", v_t + 2)
    a("v_lshl_add_u32 v%d, v%d, 4, v%d", v_xo, v_t + 2, v_xo)
    a("s_mul_i32 s%d, s%d, %d", s_t0, s_rb, 64 * 896)
    a("s_lshl_b32 s%d, s%d, 7", s_t1, s_cb)
    a("s_add_u32 s%d, s%d, s%d", s_t0, s_t0, s_t1)
    a("s_add_u32 s%d, s%d, %d", s_t1, s_t0, 32 * 896)
    for k in range(36):
        st = k % NR
        rem = min(NR - 1, 35 - k)
        a("s_waitcnt vmcnt(%d)", 4 * rem + (2 if k >= 36 - NR + 1 else 0))
        for ct in range(2):
            for rt in range(2):
                d = vr(ACC + 16 * (2 * ct + rt), 16)
                a("v_mfma_f32_32x32x16_bf16 %s, %s, %s, %s", d, vr(R0 + 16 * st + 8 + 4 * ct, 4), vr(R0 + 16 * st + 4 * rt, 4), d if k else "0")
        if k + NR < 36: load(st)
        if k == 36 - NR:
            a("buffer_load_dwordx4 %s, v%d, s[%d:%d], s%d offen", vr(XR, 4), v_xo, sX, sX + 3, s_t0)
            a("buffer_load_dwordx4 %s, v%d, s[%d:%d], s%d offen", vr(XR + 4, 4), v_xo, sX, sX + 3, s_t1)
    RS = 272; WB = 64 * RS
    a("v_and_b32 v%d, 31, v%d", v_t + 2, v_lane)
    a("v_mul_u32_u24 v%d, %d, v%d", v_t + 2, RS, v_t + 2)
    a("v_lshrrev_b32 v%d, 5, v%d", v_t + 3, v_lane)
    a("v_lshl_add_u32 v%d, v%d, 4, v%d", v_t + 2, v_t + 3, v_t + 2)
    a("s_mul_i32 s%d, s%d, %d", s_k, s_w, WB)
    a("v_add_u32 v%d, s%d, v%d", v_t + 2, s_k, v_t + 2)
    for ct in range(2):
        for rt in range(2):
            for qd in range(4):
                a("ds_write_b128 v%d, %s offset:%d", v_t + 2, vr(ACC + 16 * (2 * ct + rt) + 4 * qd, 4), rt * 32 * RS + ct * 128 + qd * 32)
    a("v_mul_u32_u24 v%d, %d, v%d", v_t + 3, RS, v_t)
    a("v_and_b32 v%d, 7, v0", v_t + 4)
    a("v_lshl_add_u32 v%d, v%d, 5, v%d", v_t + 3, v_t + 4, v_t + 3)
    a("s_mov_b32 s%d, 0xffff0000", s_oa)
    a("s_waitcnt lgkmcnt(0)")
    a("s_barrier")
    for half in range(2):
        for w in range(4):
            for hh in range(2):
                a("ds_read_b128 %s, v%d offset:%d", vr(R0 + 32 * half + 8 * w + 4 * hh, 4), v_t + 3, w * WB + half * 32 * RS + hh * 16)
        a("s_waitcnt lgkmcnt(0)") if half == 1 else None
        if half == 0: a("s_waitcnt lgkmcnt(4)")
    a("s_waitcnt vmcnt(0)")
    for half in range(2):
        b = R0 + 32 * half
        for j in range(8):
            a("v_add_f32 v%d, v%d, v%d", b + j, b + j, b + 8 + j)
            a("v_add_f32 v%d, v%d, v%d", b + 16 + j, b + 16 + j, b + 24 + j)
        for jj in range(4):
            a("v_lshlrev_b32 v%d, 16, v%d", b + 8 + 2 * jj, XR + 4 * half + jj)
            a("v_and_b32 v%d, s%d, v%d", b + 9 + 2 * jj, s_oa, XR + 4 * half + jj)
        for j in range(8):
            a("v_add_f32 v%d, v%d, v%d", b + j, b + j, b + 16 + j)
        for j in range(8):
            a("v_add_f32 v%d, v%d, v%d", b + j, b + j, b + 8 + j)
        for jj in range(4):
            a("v_cvt_pk_bf16_f32 v%d, v%d, v%d", b + 24 + jj, b + 2 * jj, b + 2 * jj + 1)
        a("buffer_store_dwordx4 %s, v%d, s[%d:%d], s%d offen", vr(b + 24, 4), v_xo, sO, sO + 3, s_t1 if half else s_t0)
    a.label("K3_END")
    a("s_endpgm")
    return a.l, kdesc("k3_kernel", 216, 216), "; @launch kernel=k3_kernel grid=(224,1,1) block=(256,1,1) lds=%d" % (4 * WB)

def build(path, kernels):
    hdr = open("cdna_kernels/%s.s.ref" % NAME).read().split("\n")
    top = [l for l in hdr if l.startswith(";") and "@launch" not in l and "Override" not in l and "grid=ceil" not in l]
    parts = [k() for k in kernels]
    out = top + [p[2] for p in parts]
    out += ['.amdgcn_target "amdgcn-amd-amdhsa--gfx950"', ".text"]
    for p in parts:
        lines, added = fix(p[0])
        name = lines[0][:-1]
        out += [".globl " + name, ".p2align 8", ".type %s,@function" % name] + lines
        print(name, "instrs", len(lines), "nop states added", added)
    out += ['.section .rodata,"a"']
    for p in parts:
        out += [".p2align 6", p[1]]
    open(path, "w").write("\n".join(out) + "\n")

if __name__ == "__main__":
    for kv_ in sys.argv[2:]:
        k, v = kv_.split("="); OPT[k] = eval(v)
    build(sys.argv[1] if len(sys.argv) > 1 else "cdna_kernels/%s.s" % NAME, [k1, k2, k3])
```

```python
import sys, math
from asmlib import *

NAME = "parallel_sum__softmax_full_mha__dense_activation_relu__prompt"
QF, KV, AF, BF, WS_END = 0x000000, 0x200000, 0x600000, 0xF00000, 0x10F8000
XBYTES = 2048 * 448 * 2
OPT = dict(ln_double=True, bias=32.0, stamps=False)
STAMP = 0x2000000
def stamp(a, i):
    if OPT["stamps"]: a("%s s[%d:%d]", "s_memtime" if OPT.get("cyc") else "s_memrealtime", 80 + 2 * i, 81 + 2 * i)
def stamp_flush(a, kidx, n, ws_lo, s_w):
    if not OPT["stamps"]: return
    stamp(a, n)
    a("s_mov_b32 s72, s%d", ws_lo)
    a("s_mov_b32 s73, s%d", ws_lo + 1)
    a("s_mov_b32 s74, 0x10000000")
    a("s_mov_b32 s75, 0x00020000")
    a("s_lshl_b32 s76, s2, 3")
    a("s_add_u32 s76, s76, s%d", s_w)
    a("s_lshl_b32 s76, s76, 6")
    a("s_add_u32 s76, s76, 0x%x", STAMP + kidx * 256 * 8 * 64)
    a("v_mov_b32 v0, 0")
    a("s_waitcnt vmcnt(0) lgkmcnt(0)")
    stamp(a, n + 1)
    a("s_waitcnt lgkmcnt(0)")
    for i in range(n + 2):
        a("v_mov_b32 v1, s%d", 80 + 2 * i)
        a("buffer_store_dword v1, v0, s[72:75], s76 offen offset:%d", 4 * i)


import struct
def f32(x): return "0x%08x" % struct.unpack("<I", struct.pack("<f", x))[0]

def srd(a, d, base, nbytes):
    a("s_mov_b32 s%d, s%d", d, base)
    a("s_mov_b32 s%d, s%d", d + 1, base + 1)
    a("s_mov_b32 s%d, 0x%x", d + 2, nbytes)
    a("s_mov_b32 s%d, 0x00020000", d + 3)

def kdesc(name, vgpr, accum, sgpr=102):
    return """.amdhsa_kernel %s
  .amdhsa_next_free_vgpr %d
  .amdhsa_next_free_sgpr %d
  .amdhsa_accum_offset %d
  .amdhsa_group_segment_fixed_size 0
  .amdhsa_kernarg_size 72
  .amdhsa_user_sgpr_count 2
  .amdhsa_user_sgpr_kernarg_segment_ptr 1
  .amdhsa_system_sgpr_workgroup_id_x 1
.end_amdhsa_kernel
""" % (name, vgpr, sgpr, accum)

REG = 35840
SLOT = 7168
def k1():
    a = Asm()
    sX, sW, sWS = 8, 12, 16
    s_w, s_rb, s_cb, s_rot, s_rstr, s_colb = 20, 21, 22, 23, 24, 25
    s_xrow, s_t0, s_t1, s_ones, s_mask, s_ldsw, s_wk, s_cp = 26, 27, 28, 29, 30, 31, 32, 33
    s_hi = 34
    s_st = 36
    s_pm = 38
    v_lane, v_l16 = 1, 2
    v_woff = 3
    v_wa = 10
    v_m, v_r = 14, 15
    v_t = 16
    X0 = 32
    ACC0 = 144
    v_xoff = 144; v_xa = 148; v_sum = 152; v_sq = 154
    RING = 16
    def acc(t): return vr(ACC0 + 16 * t, 16) if t < 7 else ar(0, 16)

    a.label("k1_kernel")
    a("s_cmp_ge_u32 s2, 256")
    a("s_cbranch_scc1 K1_END")
    stamp(a, 0)
    a("s_load_dwordx4 s[40:43], s[0:1], 0")
    a("s_load_dwordx2 s[44:45], s[0:1], 16")
    a("s_load_dwordx4 s[48:51], s[0:1], 32")
    a("s_load_dwordx2 s[46:47], s[0:1], 64")
    a("v_lshrrev_b32 v%d, 6, v0", v_t)
    a("v_and_b32 v%d, 63, v0", v_lane)
    a("v_readfirstlane_b32 s%d, v%d", s_w, v_t)
    a("v_lshlrev_b32 v%d, 4, v%d", v_l16, v_lane)
    a("s_mov_b32 s%d, 0", s_hi)
    a("s_mov_b32 s%d, -1", s_hi + 1)
    v_g, v_ch, v_rr, v_c = v_t + 1, v_t + 2, v_t + 3, v_t + 4
    a("v_lshrrev_b32 v%d, 5, v%d", v_g, v_lane)
    a("v_bfe_u32 v%d, v%d, 4, 1", v_ch, v_lane)
    a("v_bfe_u32 v%d, v%d, 2, 2", v_rr, v_lane)
    a("v_and_b32 v%d, 3, v%d", v_c, v_lane)
    v_cb = v_t + 5
    a("v_lshlrev_b32 v%d, 5, v%d", v_cb, v_ch)
    a("v_lshl_add_u32 v%d, v%d, 3, v%d", v_cb, v_c, v_cb)
    a("s_waitcnt lgkmcnt(0)")
    srd(a, sWS, 46, WS_END)
    a("s_cmp_ge_u32 s2, 224")
    a("s_cbranch_scc1 K1_RELAY")
    a("s_and_b32 s%d, s2, 7", s_t0)
    a("s_lshr_b32 s%d, s2, 3", s_t1)
    a("s_and_b32 s%d, s%d, 3", s_rb, s_t0)
    a("s_lshl_b32 s%d, s%d, 2", s_rb, s_rb)
    a("s_and_b32 s%d, s%d, 3", s_cb, s_t1)
    a("s_add_u32 s%d, s%d, s%d", s_rb, s_rb, s_cb)
    a("s_lshr_b32 s%d, s%d, 2", s_cb, s_t0)
    a("s_mul_i32 s%d, s%d, 7", s_cb, s_cb)
    a("s_lshr_b32 s%d, s%d, 2", s_t1, s_t1)
    a("s_add_u32 s%d, s%d, s%d", s_cb, s_cb, s_t1)
    srd(a, sX, 40, XBYTES)
    a("s_cmp_lt_u32 s%d, 6", s_cb)
    a("s_cselect_b32 s%d, s42, s48", sW)
    a("s_cselect_b32 s%d, s43, s49", sW + 1)
    a("s_cselect_b32 s%d, 0x%x, 0x%x" % (sW + 2, 448 * 1344 * 2, 448 * 1344 * 2)) if False else None
    a("s_mov_b32 s%d, 0x%x", s_t0, 448 * 1344 * 2)
    a("s_cselect_b32 s%d, s%d, 0x%x", sW + 2, s_t0, 448 * 1792 * 2)
    a("s_mov_b32 s%d, 0x00020000", sW + 3)
    a("s_movk_i32 s%d, 2688", s_t0)
    a("s_cselect_b32 s%d, s%d, 3584", s_rstr, s_t0)
    a("s_sub_u32 s%d, s%d, 6", s_t0, s_cb)
    a("s_cmp_lt_u32 s%d, 6", s_cb)
    a("s_cselect_b32 s%d, s%d, s%d", s_colb, s_cb, s_t0)
    a("s_mul_i32 s%d, s%d, 448", s_colb, s_colb)
    a("s_add_u32 s%d, s%d, s%d", s_rot, s_rb, s_cb)
    for _ in range(4):
        a("s_sub_u32 s%d, s%d, 7", s_t0, s_rot)
        a("s_cmp_ge_u32 s%d, 7", s_rot)
        a("s_cselect_b32 s%d, s%d, s%d", s_rot, s_t0, s_rot)
    a("s_mov_b32 s%d, 0x3f803f80", s_ones)
    a("s_mov_b32 s%d, 0xffff0000", s_mask)
    a("s_mul_i32 s%d, s%d, %d", s_ldsw, s_w, REG)
    a("s_lshl_b32 s%d, s%d, 2", s_xrow, s_rb)
    a("s_add_u32 s%d, s%d, s%d", s_xrow, s_xrow, s_w)
    a("s_mul_i32 s%d, s%d, %d", s_xrow, s_xrow, 32 * 896)
    t0, t1, t2 = v_t + 6, v_t + 7, v_t + 8
    a("v_lshrrev_b32 v%d, 3, v%d", t0, v_lane)
    a("v_mul_u32_u24 v%d, 896, v%d", t0, t0)
    a("v_lshrrev_b32 v%d, 4, v%d", t1, v_lane)
    a("v_and_b32 v%d, 7, v%d", t2, v_lane)
    a("v_xor_b32 v%d, v%d, v%d", t1, t1, t2)
    a("v_lshl_add_u32 v%d, v%d, 4, v%d", v_xoff, t1, t0)
    a("v_xor_b32 v%d, 64, v%d", v_xoff + 1, v_xoff)
    a("v_add_u32 v%d, %d, v%d", v_xoff + 2, 2 * (7168 - 1024), v_xoff)
    a("v_add_u32 v%d, %d, v%d", v_xoff + 3, 3 * (7168 - 1024), v_xoff + 1)
    a("v_add_u32 v%d, %d, v%d", v_xoff + 1, 1 * (7168 - 1024), v_xoff + 1)
    def cp_next(first):
        if first:
            a("s_mov_b32 s%d, s%d", s_cp, s_rot)
        else:
            a("s_add_u32 s%d, s%d, 1", s_cp, s_cp)
            a("s_cmp_eq_u32 s%d, 7", s_cp)
            a("s_cselect_b32 s%d, 0, s%d", s_cp, s_cp)
    for p in range(7):
        cp_next(p == 0)
        a("s_lshl_b32 s%d, s%d, 7", s_t0, s_cp)
        a("s_add_u32 s%d, s%d, s%d", s_t0, s_t0, s_xrow)
        a("s_add_u32 m0, s%d, %d", s_ldsw, SLOT + 4096 * p)
        for i in range(4):
            a("buffer_load_dwordx4 v%d, s[%d:%d], s%d offen offset:%d lds", v_xoff + i, sX, sX + 3, s_t0, 1024 * i)
    for i in range(7):
        a("v_add_u32 v%d, %d, v%d", t0, 64 * i, v_lane)
        a("v_mul_u32_u24 v%d, 2341, v%d", t1, t0)
        a("v_lshrrev_b32 v%d, 16, v%d", t1, t1)
        a("v_mul_u32_u24 v%d, 28, v%d", t2, t1)
        a("v_sub_u32 v%d, v%d, v%d", t2, t0, t2)
        a("v_mul_lo_u32 v%d, v%d, s%d", t1, t1, s_rstr)
        a("v_lshl_add_u32 v%d, v%d, 4, v%d", v_woff + i, t2, t1)
        if i & 3:
            a("v_subrev_u32 v%d, %d, v%d", v_woff + i, 1024 * (i & 3), v_woff + i)
    a("s_lshl_b32 s%d, s%d, 4", s_wk, s_w)
    a("s_mul_i32 s%d, s%d, s%d", s_wk, s_wk, s_rstr)
    a("s_add_u32 s%d, s%d, s%d", s_wk, s_wk, s_colb)
    def wdma(p):
        cp_next(p == 0)
        slot = p if p < 5 else p - 5
        a("s_lshl_b32 s%d, s%d, 6", s_t0, s_cp)
        a("s_mul_i32 s%d, s%d, s%d", s_t0, s_t0, s_rstr)
        a("s_add_u32 s%d, s%d, s%d", s_t0, s_t0, s_wk)
        a("s_add_u32 m0, s%d, %d", s_ldsw, slot * SLOT)
        for i in range(7):
            if i == 4: a("s_add_u32 m0, s%d, %d", s_ldsw, slot * SLOT + 4096)
            a("buffer_load_dwordx4 v%d, s[%d:%d], s%d offen offset:%d lds", v_woff + i, sW, sW + 3, s_t0, 1024 * (i & 3))
    wdma(0)
    stamp(a, 1)
    a("v_and_b32 v%d, 31, v%d", t0, v_lane)
    a("v_bfe_u32 v%d, v%d, 1, 3", t1, v_lane)
    a("v_xor_b32 v%d, v%d, v%d", t1, t1, v_g)
    a("v_lshlrev_b32 v%d, 7, v%d", t0, t0)
    a("v_lshl_add_u32 v%d, v%d, 4, v%d", t0, t1, t0)
    for q in range(4):
        a("v_xor_b32 v%d, %d, v%d", t1, 32 * q, t0)
        a("v_add_u32 v%d, s%d, v%d", v_xa + q, s_ldsw, t1)
    a("v_lshl_add_u32 v%d, v%d, 3, v%d", t0, v_g, v_rr)
    a("v_mul_u32_u24 v%d, 448, v%d", t0, t0)
    a("v_add_u32 v%d, v%d, v%d", v_wa, t0, v_cb)
    for q in range(1, 4):
        a("v_add_u32 v%d, %d, v%d", v_wa + q, q * REG, v_wa)
    for i in range(4): a("v_mov_b32 v%d, 0", v_sum + i)
    def xread(p):
        for q in range(4):
            a("ds_read_b128 %s, v%d offset:%d", vr(X0 + 16 * p + 4 * q, 4), v_xa + q, SLOT + 4096 * p)
    def xstat(p):
        for j in range(16):
            x = X0 + 16 * p + j
            a("v_dot2c_f32_bf16 v%d, s%d, v%d", v_sum + (j & 1), s_ones, x)
            a("v_dot2c_f32_bf16 v%d, v%d, v%d", v_sq + (j & 1), x, x)
    for (ps, vm, wn) in (((0, 1), 27, 1), ((2, 3), 26, 2), ((4, 5), 25, 3), ((6,), 28, 4)):
        a("s_waitcnt vmcnt(%d)", vm)
        for p in ps: xread(p)
        a("s_waitcnt lgkmcnt(0)")
        wdma(wn)
        for p in ps: xstat(p)
    stamp(a, 2)
    a("v_add_f32 v%d, v%d, v%d", v_sum, v_sum, v_sum + 1)
    a("v_add_f32 v%d, v%d, v%d", v_sq, v_sq, v_sq + 1)
    a("v_mov_b32 v%d, v%d", v_sum + 1, v_sum)
    a("v_mov_b32 v%d, v%d", v_sq + 1, v_sq)
    a("v_permlane32_swap_b32 v%d, v%d", v_sum, v_sum + 1)
    a("v_permlane32_swap_b32 v%d, v%d", v_sq, v_sq + 1)
    a("v_add_f32 v%d, v%d, v%d", v_sum, v_sum, v_sum + 1)
    a("v_add_f32 v%d, v%d, v%d", v_sq, v_sq, v_sq + 1)
    a("v_mul_f32 v%d, %s, v%d", v_sum, f32(1.0 / 448), v_sum)
    a("v_mul_f32 v%d, %s, v%d", v_sq, f32(1.0 / 448), v_sq)
    a("v_fma_f32 v%d, -v%d, v%d, v%d", v_sq, v_sum, v_sum, v_sq)
    a("v_max_f32 v%d, 0, v%d", v_sq, v_sq)
    a("v_cvt_pk_bf16_f32 v%d, v%d, v%d", t0, v_sum, v_sq)
    a("v_lshlrev_b32 v%d, 16, v%d", v_m, t0)
    a("v_and_b32 v%d, s%d, v%d", t0, s_mask, t0)
    a("v_add_f32 v%d, %s, v%d", t0, f32(1e-5), t0)
    a("v_cvt_pk_bf16_f32 v%d, v%d, v%d", t0, t0, t0)
    a("v_and_b32 v%d, s%d, v%d", t0, s_mask, t0)
    a("v_sqrt_f32 v%d, v%d", t0, t0)
    a("v_cvt_pk_bf16_f32 v%d, v%d, v%d", t0, t0, t0)
    a("v_and_b32 v%d, s%d, v%d", t0, s_mask, t0)
    a("v_rcp_f32 v%d, v%d", v_r, t0)
    if not OPT["ln_double"]:
        a("v_mul_f32 v%d, v%d, v%d", v_m, v_m, v_r)
    def norm_ops(s):
        seqs = []
        for j in range(4):
            x = X0 + 4 * s + j; lo = v_t + 2 * j; hi = lo + 1
            if OPT["ln_double"]:
                seqs.append(["v_lshlrev_b32 v%d, 16, v%d" % (lo, x), "v_and_b32 v%d, s%d, v%d" % (hi, s_mask, x),
                             "v_sub_f32 v%d, v%d, v%d" % (lo, lo, v_m), "v_sub_f32 v%d, v%d, v%d" % (hi, hi, v_m),
                             "v_cvt_pk_bf16_f32 v%d, v%d, v%d" % (x, lo, hi),
                             "v_lshlrev_b32 v%d, 16, v%d" % (lo, x), "v_and_b32 v%d, s%d, v%d" % (hi, s_mask, x),
                             "v_mul_f32 v%d, v%d, v%d" % (lo, lo, v_r), "v_mul_f32 v%d, v%d, v%d" % (hi, hi, v_r),
                             "v_cvt_pk_bf16_f32 v%d, v%d, v%d" % (x, lo, hi)])
            else:
                seqs.append(["v_lshlrev_b32 v%d, 16, v%d" % (lo, x), "v_and_b32 v%d, s%d, v%d" % (hi, s_mask, x),
                             "v_fma_f32 v%d, v%d, v%d, -v%d" % (lo, lo, v_r, v_m), "v_fma_f32 v%d, v%d, v%d, -v%d" % (hi, hi, v_r, v_m),
                             "v_cvt_pk_bf16_f32 v%d, v%d, v%d" % (x, lo, hi)])
        out = []
        for k in range(len(seqs[0])):
            for j in range(4): out.append(seqs[j][k])
        return out
    for o in norm_ops(0): a(o)
    a("s_waitcnt vmcnt(28)")
    a("s_barrier")
    stamp(a, 3)
    a("s_cmp_ge_u32 s%d, 6", s_cb)
    a("s_cbranch_scc1 K1_FFN")
    a("s_cmp_ge_u32 s%d, 4", s_cb)
    a("s_cbranch_scc1 K1_V")

    LA = 4
    VM = {1: 21, 2: 14, 3: 14, 4: 14, 5: 7, 6: 0}
    def mainloop(T, tstride, swap):
        seq = [(s, t) for s in range(28) for t in range(T)]
        def rd(n):
            s, t = seq[n]
            p, q = s >> 2, s & 3
            slot = p if p < 5 else p - 5
            for h in range(2):
                a("ds_read_b64_tr_b16 %s, v%d offset:%d", ar(RING + 4 * (n % 8) + 2 * h, 2), v_wa + q, slot * SLOT + h * 1792 + tstride * t)
        for n in range(LA): rd(n)
        pend = []
        for n, (s, t) in enumerate(seq):
            if t == 0: pend = norm_ops(s + 1) if s + 1 < 28 else []
            nn = n + LA
            if nn < len(seq):
                s2, t2 = seq[nn]
                if t2 == 0 and (s2 & 3) == 0:
                    p2 = s2 >> 2
                    a("s_waitcnt vmcnt(%d)", VM[p2])
                    a("s_barrier")
                    if p2 in (2, 3): wdma(p2 + 3)
                rd(nn)
            outstanding = min(LA, len(seq) - 1 - n)
            a("s_waitcnt lgkmcnt(%d)", 2 * outstanding)
            wf = ar(RING + 4 * (n % 8), 4); xf = vr(X0 + 4 * s, 4)
            A, B = (xf, wf) if swap else (wf, xf)
            a("v_mfma_f32_32x32x16_bf16 %s, %s, %s, %s", acc(t), A, B, acc(t) if s else "0")
            k = -(-len(pend) // (T - t)) if t < T else 0
            for o in pend[:k]: a(o)
            pend = pend[k:]
    def getacc(t, j, tmp):
        if t < 7: return ACC0 + 16 * t + j
        a("v_accvgpr_read_b32 v%d, a%d", tmp, j)
        return tmp
    PK = X0
    def epilogue(T, kind):
        stamp(a, 4)
        epilogue_(T, kind)
        stamp_flush(a, 0, 5, 46, s_w)
    def epilogue_(T, kind):
        for t in range(T):
            pk = PK + 8 * t
            for jj in range(8):
                r0 = getacc(t, 2 * jj, v_t + 2 * (jj & 3)); r1 = getacc(t, 2 * jj + 1, v_t + 2 * (jj & 3) + 1)
                if kind == "q":
                    a("v_pk_mul_f32 %s, %s, %s", vr(r0, 2), vr(r0, 2), vr(v_m, 2))
                a("v_cvt_pk_bf16_f32 v%d, v%d, v%d", pk + jj, r0, r1)
                if kind == "h":
                    a("v_pk_max_i16 v%d, v%d, 0", pk + jj, pk + jj)
            if kind == "q":
                a("v_cndmask_b32 v%d, v%d, 0, s[%d:%d]", pk + 6, pk + 6, s_hi, s_hi + 1)
                a("v_cndmask_b32 v%d, v%d, 0, s[%d:%d]", pk + 7, pk + 7, s_hi, s_hi + 1)
            elif kind == "k":
                a("v_cndmask_b32 v%d, v%d, v%d, s[%d:%d]", pk + 6, pk + 6, v_m, s_hi, s_hi + 1)
                a("v_cndmask_b32 v%d, v%d, v%d, s[%d:%d]", pk + 7, pk + 7, v_r, s_hi, s_hi + 1)
            elif kind == "v":
                for jj in range(8):
                    a("v_cndmask_b32 v%d, v%d, v%d, s[%d:%d]", pk + jj, pk + jj, v_m, s_pm, s_pm + 1)
            fs = {"q": 1024, "k": 1024, "v": 1024, "h": 2048}[kind]
            ts = {"q": 131072, "k": 262144, "v": 262144, "h": 4096}[kind]
            for f in range(2):
                a("buffer_store_dwordx4 %s, v%d, s[%d:%d], s%d offen offset:%d", vr(pk + 4 * f, 4), v_l16, sWS, sWS + 3, s_st, fs * f)
            if t + 1 < T: a("s_add_u32 s%d, s%d, %d", s_st, s_st, ts)
    def rt_to(s_dst):
        a("s_lshl_b32 s%d, s%d, 2", s_dst, s_rb)
        a("s_add_u32 s%d, s%d, s%d", s_dst, s_dst, s_w)
    mainloop(8, 56, False)
    rt_to(s_t0)
    a("s_and_b32 s%d, s%d, 1", s_t1, s_cb)
    a("s_lshl_b32 s%d, s%d, 9", s_t1, s_t1)
    a("s_add_u32 s%d, s%d, s%d", s_t0, s_t0, s_t1)
    a("s_cmp_ge_u32 s%d, 2", s_cb)
    a("s_cbranch_scc1 K1_EPK")
    a("s_lshl_b32 s%d, s%d, 11", s_st, s_t0)
    c = 28 ** -0.5 * math.log2(math.e)
    a("v_mov_b32 v%d, %s", v_m, f32(c))
    a("v_mov_b32 v%d, %s", v_r, f32(c))
    epilogue(8, "q")
    a("s_endpgm")
    a.label("K1_EPK")
    a("s_lshl_b32 s%d, s%d, 12", s_st, s_t0)
    a("s_add_u32 s%d, s%d, 0x%x", s_st, s_st, KV)
    a("v_mov_b32 v%d, 0x3f803f80", v_m)
    a("v_mov_b32 v%d, 0x00003f80", v_r)
    epilogue(8, "k")
    a("s_endpgm")
    a.label("K1_V")
    mainloop(8, 56, True)
    rt_to(s_t0)
    a("s_and_b32 s%d, s%d, 1", s_t1, s_cb)
    a("s_lshl_b32 s%d, s%d, 9", s_t1, s_t1)
    a("s_add_u32 s%d, s%d, s%d", s_t0, s_t0, s_t1)
    a("s_lshl_b32 s%d, s%d, 12", s_st, s_t0)
    a("s_add_u32 s%d, s%d, 0x%x", s_st, s_st, KV + 2048)
    a("s_mov_b32 s%d, 0xf0000000", s_pm)
    a("s_mov_b32 s%d, 0xf0000000", s_pm + 1)
    a("s_mov_b32 s%d, 0x10000000", s_pm + 2)
    a("s_mov_b32 s%d, 0x10000000", s_pm + 3)
    a("v_mov_b32 v%d, 0x3f803f80", v_r)
    a("v_cndmask_b32 v%d, 0, v%d, s[%d:%d]", v_m, v_r, s_pm + 2, s_pm + 3)
    epilogue(8, "v")
    a("s_endpgm")
    a.label("K1_FFN")
    mainloop(7, 64, False)
    rt_to(s_t0)
    a("s_lshr_b32 s%d, s%d, 1", s_t1, s_t0)
    a("s_mul_i32 s%d, s%d, 144", s_t1, s_t1)
    a("s_sub_u32 s%d, s%d, 6", s_st, s_cb)
    a("s_mul_i32 s%d, s%d, 14", s_st, s_st)
    a("s_add_u32 s%d, s%d, s%d", s_st, s_st, s_t1)
    a("s_lshl_b32 s%d, s%d, 1", s_st, s_st)
    a("s_and_b32 s%d, s%d, 1", s_t0, s_t0)
    a("s_add_u32 s%d, s%d, s%d", s_st, s_st, s_t0)
    a("s_lshl_b32 s%d, s%d, 10", s_st, s_st)
    a("s_add_u32 s%d, s%d, 0x%x", s_st, s_st, AF)
    epilogue(7, "h")
    a("s_endpgm")
    a.label("K1_RELAY")
    s_ks = s_rb
    a("s_sub_u32 s%d, s2, 224", s_ks)
    a("s_lshl_b32 s%d, s%d, 2", s_ks, s_ks)
    a("s_add_u32 s%d, s%d, s%d", s_ks, s_ks, s_w)
    a("s_mul_i32 s%d, s%d, 14336", s_ldsw, s_w)
    a("v_lshl_add_u32 v%d, v%d, 2, v%d", t0, v_g, v_rr)
    a("v_mul_u32_u24 v%d, 896, v%d", t0, t0)
    a("v_add3_u32 v%d, v%d, v%d, s%d", v_wa, t0, v_cb, s_ldsw)
    a.label("K1_RL_LOOP")
    a("s_cmp_lt_u32 s%d, 112", s_ks)
    a("s_cselect_b32 s%d, s50, s44", sW)
    a("s_cselect_b32 s%d, s51, s45", sW + 1)
    a("s_mov_b32 s%d, 0x%x", s_t0, 1792 * 448 * 2)
    a("s_cselect_b32 s%d, s%d, 0x%x", sW + 2, s_t0, 448 * 448 * 2)
    a("s_mov_b32 s%d, 0x00020000", sW + 3)
    a("s_sub_u32 s%d, s%d, 112", s_t0, s_ks)
    a("s_lshr_b32 s%d, s%d, 1", s_t1, s_t0)
    a("s_mul_i32 s%d, s%d, 28", s_t1, s_t1)
    a("s_and_b32 s%d, s%d, 1", s_cp, s_t0)
    a("s_lshl_b32 s%d, s%d, 4", s_t0, s_cp)
    a("s_add_u32 s%d, s%d, s%d", s_t1, s_t1, s_t0)
    a("s_lshl_b32 s%d, s%d, 4", s_t0, s_ks)
    a("s_cmp_lt_u32 s%d, 112", s_ks)
    a("s_cselect_b32 s%d, s%d, s%d", s_t0, s_t0, s_t1)
    a("s_cselect_b32 s%d, 0, s%d", s_cp, s_cp)
    a("s_mul_i32 s%d, s%d, 896", s_t0, s_t0)
    for i in range(14):
        if i % 4 == 0:
            a("s_add_u32 m0, s%d, %d", s_ldsw, 1024 * i)
            if i: a("s_add_u32 s%d, s%d, 4096", s_t0, s_t0)
        a("buffer_load_dwordx4 v%d, s[%d:%d], s%d offen offset:%d lds", v_l16, sW, sW + 3, s_t0, 1024 * (i % 4))
    a("s_sub_u32 s%d, 0, s%d", s_pm + 1, s_cp)
    a("s_mov_b32 s%d, 0", s_pm)
    a("s_lshl_b32 s%d, s%d, 11", s_st, s_ks)
    a("s_add_u32 s%d, s%d, 0x%x", s_st, s_st, BF)
    a("s_waitcnt vmcnt(0)")
    for half in range(2):
        for nt in range(7 * half, 7 * half + 7):
            for h in range(2):
                a("ds_read_b64_tr_b16 %s, v%d offset:%d", vr(X0 + 4 * nt + 2 * h, 2), v_wa, h * 8 * 896 + 64 * nt)
        a("s_waitcnt lgkmcnt(0)")
    for nt in range(14):
        a("v_cndmask_b32 v%d, v%d, 0, s[%d:%d]", X0 + 4 * nt + 2, X0 + 4 * nt + 2, s_pm, s_pm + 1)
        a("v_cndmask_b32 v%d, v%d, 0, s[%d:%d]", X0 + 4 * nt + 3, X0 + 4 * nt + 3, s_pm, s_pm + 1)
        a("buffer_store_dwordx4 %s, v%d, s[%d:%d], s%d offen offset:%d", vr(X0 + 4 * nt, 4), v_l16, sWS, sWS + 3, s_st, 1024 * (nt & 1))
        if nt & 1: a("s_add_u32 s%d, s%d, %d", s_st, s_st, 144 * 2048)
    a("s_add_u32 s%d, s%d, 128", s_ks, s_ks)
    a("s_cmp_lt_u32 s%d, 144", s_ks)
    a("s_cbranch_scc1 K1_RL_LOOP")
    for i in range(1, 5): stamp(a, i)
    stamp_flush(a, 0, 5, 46, s_w)
    a.label("K1_END")
    a("s_endpgm")
    return a.l, kdesc("k1_kernel", 304, 256), "; @launch kernel=k1_kernel grid=(256,1,1) block=(256,1,1) lds=%d" % (4 * REG)

def k2():
    a = Asm()
    sWS = 8
    s_w, s_head, s_qb, s_t0, s_t1, s_kvb, s_i, s_off, s_mode, s_cnt = 12, 13, 14, 15, 16, 17, 18, 19, 20, 21
    s_hi = 22
    s_mask = 24
    s_bad = 26
    v_lane, v_l16, v_t = 1, 2, 4
    Q0 = 16
    O0 = 48
    S0 = 112
    P0 = 144
    KV0 = 160
    MX = 224
    def q(u, f): return vr(Q0 + 8 * u + 4 * f, 4)
    def o(u): return vr(O0 + 16 * u, 16)
    def kv(st, f): return vr(KV0 + 16 * st + 4 * f, 4)
    a.label("k2_kernel")
    a("s_cmp_ge_u32 s2, 256")
    a("s_cbranch_scc1 K2_END")
    stamp(a, 0)
    a("s_load_dwordx2 s[4:5], s[0:1], 64")
    a("v_lshrrev_b32 v%d, 6, v0", v_t)
    a("v_and_b32 v%d, 63, v0", v_lane)
    a("v_readfirstlane_b32 s%d, v%d", s_w, v_t)
    a("v_lshlrev_b32 v%d, 4, v%d", v_l16, v_lane)
    a("s_and_b32 s%d, s2, 7", s_head)
    a("s_lshl_b32 s%d, s%d, 1", s_head, s_head)
    a("s_bfe_u32 s%d, s2, 0x10003", s_t0)
    a("s_add_u32 s%d, s%d, s%d", s_head, s_head, s_t0)
    a("s_lshr_b32 s%d, s2, 4", s_qb)
    a("s_mov_b32 s%d, 0", s_hi)
    a("s_mov_b32 s%d, -1", s_hi + 1)
    a("s_mov_b32 s%d, 0xffff0000", s_mask)
    a("s_mov_b32 s%d, 0", s_mode)
    a("s_lshl_b32 s%d, s%d, 2", s_kvb, s_head)
    a("s_add_u32 s%d, s%d, s%d", s_kvb, s_kvb, s_w)
    a("s_lshl_b32 s%d, s%d, 16", s_kvb, s_kvb)
    a("s_add_u32 s%d, s%d, 0x%x", s_kvb, s_kvb, KV)
    a("s_waitcnt lgkmcnt(0)")
    srd(a, sWS, 4, WS_END)
    def kvload(st, fr=(0, 1, 2, 3)):
        a("s_add_u32 s%d, s%d, s%d", s_off, s_i, s_qb)
        a("s_and_b32 s%d, s%d, 15", s_off, s_off)
        a("s_lshl_b32 s%d, s%d, 12", s_off, s_off)
        a("s_add_u32 s%d, s%d, s%d", s_off, s_off, s_kvb)
        for f in fr:
            a("buffer_load_dwordx4 %s, v%d, s[%d:%d], s%d offen offset:%d", kv(st, f), v_l16, sWS, sWS + 3, s_off, 1024 * f)
        a("s_add_u32 s%d, s%d, 1", s_i, s_i)
    a.label("K2_RESTART")
    a("s_lshl_b32 s%d, s%d, 4", s_t0, s_head)
    a("s_add_u32 s%d, s%d, s%d", s_t0, s_t0, s_qb)
    a("s_lshl_b32 s%d, s%d, 13", s_t0, s_t0)
    a("s_add_u32 s%d, s%d, 4096", s_t1, s_t0)
    a("s_mov_b32 s%d, 0", s_i)
    kvload(0)
    for u in range(4):
        for f in range(2):
            a("buffer_load_dwordx4 %s, v%d, s[%d:%d], s%d offen offset:%d", q(u, f), v_l16, sWS, sWS + 3, s_t0 if u < 2 else s_t1, 2048 * (u & 1) + 1024 * f)
    kvload(1); kvload(2)
    for u in range(4): a("v_mov_b32 v%d, 0xff800000", MX + u)
    a("s_waitcnt vmcnt(8)")
    stamp(a, 1)
    def maxtile(st):
        for u in range(4):
            d = vr(O0 + 16 * u, 16)
            a("v_mfma_f32_32x32x16_bf16 %s, %s, %s, 0", d, kv(st, 0), q(u, 0))
            a("v_mfma_f32_32x32x16_bf16 %s, %s, %s, %s", d, kv(st, 1), q(u, 1), d)
        for u in range(4):
            for j in range(8):
                a("v_max3_f32 v%d, v%d, v%d, v%d", MX + u, O0 + 16 * u + 2 * j, O0 + 16 * u + 2 * j + 1, MX + u)
    maxtile(0)
    a("s_cmp_eq_u32 s%d, 0", s_mode)
    a("s_cbranch_scc1 K2_MAXDONE")
    a("s_mov_b32 s%d, 1", s_i)
    a.label("K2_MAXLOOP")
    kvload(3, (0, 1))
    a("s_waitcnt vmcnt(0)")
    maxtile(3)
    a("s_cmp_lt_u32 s%d, 16", s_i)
    a("s_cbranch_scc1 K2_MAXLOOP")
    a("s_mov_b32 s%d, 3", s_i)
    a.label("K2_MAXDONE")
    for u in range(4): a("v_mov_b32 v%d, v%d", v_t + u, MX + u)
    for u in range(4): a("v_permlane32_swap_b32 v%d, v%d", MX + u, v_t + u)
    for u in range(4): a("v_max_f32 v%d, v%d, v%d", MX + u, MX + u, v_t + u)
    a("s_lshl_b32 s%d, s%d, 10", s_t0, s_w)
    a("v_add_u32 v%d, s%d, v%d", v_t, s_t0, v_l16)
    a("ds_write_b128 v%d, %s", v_t, vr(MX, 4))
    a("s_waitcnt lgkmcnt(0)")
    a("s_barrier")
    for w in range(4):
        a("ds_read_b128 %s, v%d offset:%d", vr(S0 + 4 * w, 4), v_l16, 1024 * w)
    a("s_cmp_eq_u32 s%d, 0", s_mode)
    a("s_cselect_b32 s%d, %s, 0", s_t0, f32(OPT["bias"]))
    a("s_waitcnt lgkmcnt(0)")
    for u in range(4):
        a("v_max3_f32 v%d, v%d, v%d, v%d", MX + u, S0 + u, S0 + 4 + u, S0 + 8 + u)
        a("v_max_f32 v%d, v%d, v%d", MX + u, MX + u, S0 + 12 + u)
        a("v_sub_f32 v%d, -v%d, s%d" if False else "v_add_f32 v%d, s%d, v%d", MX + u, s_t0, MX + u)
    for u in range(4):
        m = MX + u; h0, h1, h2 = v_t, v_t + 1, v_t + 2
        a("v_sub_f32 v%d, 0, v%d", m, m)
        a("v_and_b32 v%d, s%d, v%d", h0, s_mask, m)
        a("v_sub_f32 v%d, v%d, v%d", m, m, h0)
        a("v_and_b32 v%d, s%d, v%d", h1, s_mask, m)
        a("v_sub_f32 v%d, v%d, v%d", m, m, h1)
        a("v_lshrrev_b32 v%d, 16, v%d", h0, h0)
        a("v_or_b32 v%d, v%d, v%d", h0, h0, h1)
        a("v_lshrrev_b32 v%d, 16, v%d", h2, m)
        a("v_cndmask_b32 v%d, v%d, v%d, s[%d:%d]", Q0 + 8 * u + 6, Q0 + 8 * u + 6, h0, s_hi, s_hi + 1)
        a("v_cndmask_b32 v%d, v%d, v%d, s[%d:%d]", Q0 + 8 * u + 7, Q0 + 8 * u + 7, h2, s_hi, s_hi + 1)
    for j in range(64): a("v_mov_b32 v%d, 0", O0 + j)
    def S(n): return S0 + 16 * (n & 1)
    def P(n): return P0 + 8 * (n & 1)
    def qk(n, f):
        i, u = n >> 2, n & 3
        d = vr(S(n), 16)
        return "v_mfma_f32_32x32x16_bf16 %s, %s, %s, %s" % (d, kv(i & 3, f), q(u, f), d if f else "0")
    def pv(n, f):
        i, u = n >> 2, n & 3
        return "v_mfma_f32_32x32x16_bf16 %s, %s, %s, %s" % (o(u), kv(i & 3, 2 + f), vr(P(n) + 4 * f, 4), o(u))
    def slot(n, first, last, loads):
        i, u = n >> 2, n & 3
        m = []
        if not last: m += [qk(n + 1, 0), qk(n + 1, 1)]
        else: m += [None, None]
        if not first: m += [pv(n - 1, 0), pv(n - 1, 1)]
        else: m += [None, None]
        if u == 3 and not last:
            a("s_waitcnt vmcnt(%d)", loads["wait"])
        for k in range(4):
            if m[k]: a(m[k])
            for j in range(4): a("v_exp_f32 v%d, v%d", S(n) + 4 * k + j, S(n) + 4 * k + j)
            if k > 0:
                for j in range(2):
                    a("v_cvt_pk_bf16_f32 v%d, v%d, v%d", P(n) + 2 * (k - 1) + j, S(n) + 4 * (k - 1) + 2 * j, S(n) + 4 * (k - 1) + 2 * j + 1)
            if k == 3 and u == 0 and loads["issue"]:
                kvload((i + 3) & 3)
        for j in range(2):
            a("v_cvt_pk_bf16_f32 v%d, v%d, v%d", P(n) + 6 + j, S(n) + 12 + 2 * j, S(n) + 12 + 2 * j + 1)
    stamp(a, 2)
    a(qk(0, 0)); a(qk(0, 1))
    a("s_nop 7")
    def group(g, last_group):
        for n in range(16):
            i = n >> 2
            T = 4 * g + i
            issue = (not last_group) or i == 0
            if last_group: wait = {0: 8, 1: 4, 2: 0, 3: 0}[i]
            else: wait = 8
            slot(n, g == 0 and n == 0, last_group and n == 15, dict(issue=issue, wait=wait))
    group(0, False)
    a("s_mov_b32 s%d, 2", s_cnt)
    a.label("K2_LOOP")
    group(1, False)
    a("s_sub_u32 s%d, s%d, 1", s_cnt, s_cnt)
    a("s_cmp_lg_u32 s%d, 0", s_cnt)
    a("s_cbranch_scc1 K2_LOOP")
    group(3, True)
    a(pv(15, 0)); a(pv(15, 1))
    stamp(a, 3)
    LB = 4096
    a("s_lshl_b32 s%d, s%d, 12", s_t0, s_w)
    a("v_add_u32 v%d, s%d, v%d", v_t, s_t0, v_l16)
    for u in range(4):
        for qd in range(4):
            a("ds_write_b128 v%d, %s offset:%d", v_t, vr(O0 + 16 * u + 4 * qd, 4), LB + u * 16384 + qd * 1024 - (0))
    a("s_lshl_b32 s%d, s%d, 14", s_t0, s_w)
    a("v_add_u32 v%d, s%d, v%d", v_t + 1, s_t0, v_l16)
    a("s_waitcnt lgkmcnt(0)")
    a("s_barrier")
    for w in range(4):
        for qd in range(4):
            a("ds_read_b128 %s, v%d offset:%d", vr(O0 + 16 * w + 4 * qd, 4), v_t + 1, LB + w * 4096 + qd * 1024)
        if w == 1: a("s_waitcnt lgkmcnt(0)")
    a("s_waitcnt lgkmcnt(0)")
    for j in range(16):
        a("v_add_f32 v%d, v%d, v%d", O0 + j, O0 + j, O0 + 16 + j)
        a("v_add_f32 v%d, v%d, v%d", O0 + 32 + j, O0 + 32 + j, O0 + 48 + j)
    for j in range(16):
        a("v_add_f32 v%d, v%d, v%d", O0 + j, O0 + j, O0 + 32 + j)
    a("v_mov_b32 v%d, v%d", v_t, O0 + 12)
    a("v_mov_b32 v%d, v%d", v_t + 1, O0 + 12)
    a("v_permlane32_swap_b32 v%d, v%d", v_t, v_t + 1)
    a("v_rcp_f32 v%d, v%d", v_t + 2, v_t + 1)
    a("v_maximum3_f32 v%d, abs(v%d), abs(v%d), abs(v%d)", v_t + 3, O0, O0 + 1, O0 + 2)
    for j in range(3, 15, 2):
        a("v_maximum3_f32 v%d, abs(v%d), abs(v%d), v%d", v_t + 3, O0 + j, O0 + j + 1, v_t + 3)
    a("v_maximum3_f32 v%d, abs(v%d), abs(v%d), v%d", v_t + 3, O0 + 15, O0 + 15, v_t + 3)
    a("v_mov_b32 v%d, 0x7e800000", v_t + 4)
    a("v_cmp_nlt_f32 s[%d:%d], v%d, v%d", s_bad, s_bad + 1, v_t + 3, v_t + 4)
    for j in range(16):
        a("v_mul_f32 v%d, v%d, v%d", O0 + j, O0 + j, v_t + 2)
    for jj in range(8):
        a("v_cvt_pk_bf16_f32 v%d, v%d, v%d", P0 + jj, O0 + 2 * jj, O0 + 2 * jj + 1)
    a("s_lshl_b32 s%d, s%d, 2", s_t0, s_qb)
    a("s_add_u32 s%d, s%d, s%d", s_t0, s_t0, s_w)
    a("s_lshr_b32 s%d, s%d, 1", s_t1, s_t0)
    a("s_mul_i32 s%d, s%d, 144", s_t1, s_t1)
    a("s_lshl_b32 s%d, s%d, 1", s_off, s_head)
    a("s_add_u32 s%d, s%d, s%d", s_t1, s_t1, s_off)
    a("s_add_u32 s%d, s%d, 112", s_t1, s_t1)
    a("s_lshl_b32 s%d, s%d, 1", s_t1, s_t1)
    a("s_and_b32 s%d, s%d, 1", s_t0, s_t0)
    a("s_add_u32 s%d, s%d, s%d", s_t1, s_t1, s_t0)
    a("s_lshl_b32 s%d, s%d, 10", s_t1, s_t1)
    a("s_add_u32 s%d, s%d, 0x%x", s_t1, s_t1, AF)
    for f in range(2):
        a("buffer_store_dwordx4 %s, v%d, s[%d:%d], s%d offen offset:%d", vr(P0 + 4 * f, 4), v_l16, sWS, sWS + 3, s_t1, 2048 * f)
    stamp(a, 4)
    if OPT["stamps"]:
        stamp_flush(a, 1, 5, 4, s_w)
        a("s_endpgm")
    a("s_cmp_lg_u32 s%d, 0", s_mode)
    a("s_cbranch_scc1 K2_END")
    a("s_or_b32 s%d, s%d, s%d", s_t0, s_bad, s_bad + 1)
    a("v_mov_b32 v%d, s%d", v_t, s_t0)
    a("s_lshl_b32 s%d, s%d, 2", s_t1, s_w)
    a("v_mov_b32 v%d, s%d", v_t + 1, s_t1)
    a("ds_write_b32 v%d, v%d", v_t + 1, v_t)
    a("v_mov_b32 v%d, 0", v_t + 2)
    a("s_waitcnt lgkmcnt(0)")
    a("s_barrier")
    a("ds_read_b128 %s, v%d", vr(v_t + 4, 4), v_t + 2)
    a("s_waitcnt lgkmcnt(0)")
    a("v_or_b32 v%d, v%d, v%d", v_t + 4, v_t + 4, v_t + 5)
    a("v_or3_b32 v%d, v%d, v%d, v%d", v_t + 4, v_t + 4, v_t + 6, v_t + 7)
    a("v_readfirstlane_b32 s%d, v%d", s_t0, v_t + 4)
    a("s_nop 3")
    a("s_cmp_eq_u32 s%d, 0", s_t0)
    a("s_cbranch_scc1 K2_END")
    a("s_mov_b32 s%d, 1", s_mode)
    a("s_waitcnt vmcnt(0)")
    a("s_barrier")
    a("s_branch K2_RESTART")
    a.label("K2_END")
    a("s_endpgm")
    return a.l, kdesc("k2_kernel", 232, 232), "; @launch kernel=k2_kernel grid=(256,1,1) block=(256,1,1) lds=%d" % (LB + 65536)

def k3():
    a = Asm()
    sWS, sX, sO = 8, 12, 16
    s_w, s_rb, s_cb, s_t0, s_t1, s_ab, s_bb, s_k, s_oa, s_ob = 20, 21, 22, 23, 24, 25, 26, 27, 28, 29
    v_lane, v_l16, v_t = 1, 2, 4
    ACC = 16
    R0 = 80
    NR = 8
    a.label("k3_kernel")
    a("s_cmp_ge_u32 s2, 224")
    a("s_cbranch_scc1 K3_END")
    stamp(a, 0)
    a("s_load_dwordx2 s[4:5], s[0:1], 64")
    a("s_load_dwordx2 s[6:7], s[0:1], 0")
    a("s_load_dwordx2 s[30:31], s[0:1], 48")
    a("v_lshrrev_b32 v%d, 6, v0", v_t)
    a("v_and_b32 v%d, 63, v0", v_lane)
    a("v_readfirstlane_b32 s%d, v%d", s_w, v_t)
    a("v_lshlrev_b32 v%d, 4, v%d", v_l16, v_lane)
    a("s_and_b32 s%d, s2, 7", s_rb)
    a("s_lshl_b32 s%d, s%d, 2", s_rb, s_rb)
    a("s_bfe_u32 s%d, s2, 0x20003", s_t0)
    a("s_add_u32 s%d, s%d, s%d", s_rb, s_rb, s_t0)
    a("s_lshr_b32 s%d, s2, 5", s_cb)
    a("s_mul_i32 s%d, s%d, 36", s_t0, s_w)
    a("s_mul_i32 s%d, s%d, 144", s_ab, s_rb)
    a("s_add_u32 s%d, s%d, s%d", s_ab, s_ab, s_t0)
    a("s_lshl_b32 s%d, s%d, 11", s_ab, s_ab)
    a("s_add_u32 s%d, s%d, 0x%x", s_ab, s_ab, AF)
    a("s_mul_i32 s%d, s%d, 144", s_bb, s_cb)
    a("s_add_u32 s%d, s%d, s%d", s_bb, s_bb, s_t0)
    a("s_lshl_b32 s%d, s%d, 11", s_bb, s_bb)
    a("s_add_u32 s%d, s%d, 0x%x", s_bb, s_bb, BF)
    a("s_mul_i32 s%d, s%d, 5", s_k, s_cb)
    a("s_and_b32 s%d, s%d, 3", s_t0, s_rb)
    a("s_mul_i32 s%d, s%d, 9", s_t0, s_t0)
    a("s_add_u32 s%d, s%d, s%d", s_k, s_k, s_t0)
    a("s_sub_u32 s%d, s%d, 36", s_t0, s_k)
    a("s_cmp_ge_u32 s%d, 36", s_k)
    a("s_cselect_b32 s%d, s%d, s%d", s_k, s_t0, s_k)
    a("s_lshl_b32 s%d, s%d, 11", s_k, s_k)
    a("s_waitcnt lgkmcnt(0)")
    srd(a, sWS, 4, WS_END); srd(a, sX, 6, XBYTES); srd(a, sO, 30, XBYTES)
    def load(st):
        a("s_add_u32 s%d, s%d, s%d", s_oa, s_ab, s_k)
        a("s_add_u32 s%d, s%d, s%d", s_ob, s_bb, s_k)
        for f in range(2):
            a("buffer_load_dwordx4 %s, v%d, s[%d:%d], s%d offen offset:%d", vr(R0 + 16 * st + 4 * f, 4), v_l16, sWS, sWS + 3, s_oa, 1024 * f)
        for f in range(2):
            a("buffer_load_dwordx4 %s, v%d, s[%d:%d], s%d offen offset:%d", vr(R0 + 16 * st + 8 + 4 * f, 4), v_l16, sWS, sWS + 3, s_ob, 1024 * f)
        a("s_add_u32 s%d, s%d, 2048", s_k, s_k)
        a("s_cmp_eq_u32 s%d, %d", s_k, 36 * 2048)
        a("s_cselect_b32 s%d, 0, s%d", s_k, s_k)
    for st in range(NR): load(st)
    v_xo = v_t + 1; XR = 208
    a("v_lshrrev_b32 v%d, 3, v0", v_t)
    a("v_mul_u32_u24 v%d, 896, v%d", v_xo, v_t)
    a("v_and_b32 v%d, 7, v0", v_t + 2)
    a("v_lshl_add_u32 v%d, v%d, 4, v%d", v_xo, v_t + 2, v_xo)
    a("s_mul_i32 s%d, s%d, %d", s_t0, s_rb, 64 * 896)
    a("s_lshl_b32 s%d, s%d, 7", s_t1, s_cb)
    a("s_add_u32 s%d, s%d, s%d", s_t0, s_t0, s_t1)
    a("s_add_u32 s%d, s%d, %d", s_t1, s_t0, 32 * 896)
    for k in range(36):
        st = k % NR
        rem = min(NR - 1, 35 - k)
        a("s_waitcnt vmcnt(%d)", 4 * rem + (2 if k >= 36 - NR + 1 else 0))
        if k == 0: stamp(a, 1)
        if k == 18: stamp(a, 2)
        for ct in range(2):
            for rt in range(2):
                d = vr(ACC + 16 * (2 * ct + rt), 16)
                a("v_mfma_f32_32x32x16_bf16 %s, %s, %s, %s", d, vr(R0 + 16 * st + 8 + 4 * ct, 4), vr(R0 + 16 * st + 4 * rt, 4), d if k else "0")
        if k + NR < 36: load(st)
        if k == 36 - NR:
            a("buffer_load_dwordx4 %s, v%d, s[%d:%d], s%d offen", vr(XR, 4), v_xo, sX, sX + 3, s_t0)
            a("buffer_load_dwordx4 %s, v%d, s[%d:%d], s%d offen", vr(XR + 4, 4), v_xo, sX, sX + 3, s_t1)
    stamp(a, 3)
    RS = 272; WB = 64 * RS
    a("v_and_b32 v%d, 31, v%d", v_t + 2, v_lane)
    a("v_mul_u32_u24 v%d, %d, v%d", v_t + 2, RS, v_t + 2)
    a("v_lshrrev_b32 v%d, 5, v%d", v_t + 3, v_lane)
    a("v_lshl_add_u32 v%d, v%d, 4, v%d", v_t + 2, v_t + 3, v_t + 2)
    a("s_mul_i32 s%d, s%d, %d", s_k, s_w, WB)
    a("v_add_u32 v%d, s%d, v%d", v_t + 2, s_k, v_t + 2)
    for ct in range(2):
        for rt in range(2):
            for qd in range(4):
                a("ds_write_b128 v%d, %s offset:%d", v_t + 2, vr(ACC + 16 * (2 * ct + rt) + 4 * qd, 4), rt * 32 * RS + ct * 128 + qd * 32)
    a("v_mul_u32_u24 v%d, %d, v%d", v_t + 3, RS, v_t)
    a("v_and_b32 v%d, 7, v0", v_t + 4)
    a("v_lshl_add_u32 v%d, v%d, 5, v%d", v_t + 3, v_t + 4, v_t + 3)
    a("s_mov_b32 s%d, 0xffff0000", s_oa)
    a("s_waitcnt lgkmcnt(0)")
    a("s_barrier")
    for half in range(2):
        for w in range(4):
            for hh in range(2):
                a("ds_read_b128 %s, v%d offset:%d", vr(R0 + 32 * half + 8 * w + 4 * hh, 4), v_t + 3, w * WB + half * 32 * RS + hh * 16)
        a("s_waitcnt lgkmcnt(0)") if half == 1 else None
        if half == 0: a("s_waitcnt lgkmcnt(4)")
    a("s_waitcnt vmcnt(0)")
    for half in range(2):
        b = R0 + 32 * half
        for j in range(8):
            a("v_add_f32 v%d, v%d, v%d", b + j, b + j, b + 8 + j)
            a("v_add_f32 v%d, v%d, v%d", b + 16 + j, b + 16 + j, b + 24 + j)
        for jj in range(4):
            a("v_lshlrev_b32 v%d, 16, v%d", b + 8 + 2 * jj, XR + 4 * half + jj)
            a("v_and_b32 v%d, s%d, v%d", b + 9 + 2 * jj, s_oa, XR + 4 * half + jj)
        for j in range(8):
            a("v_add_f32 v%d, v%d, v%d", b + j, b + j, b + 16 + j)
        for j in range(8):
            a("v_add_f32 v%d, v%d, v%d", b + j, b + j, b + 8 + j)
        if OPT.get("eps"):
            for j in range(8): a("v_mul_f32 v%d, %s, v%d", b + j, f32(1.0 + OPT["eps"]), b + j)
        for jj in range(4):
            a("v_cvt_pk_bf16_f32 v%d, v%d, v%d", b + 24 + jj, b + 2 * jj, b + 2 * jj + 1)
        a("buffer_store_dwordx4 %s, v%d, s[%d:%d], s%d offen", vr(b + 24, 4), v_xo, sO, sO + 3, s_t1 if half else s_t0)
    stamp(a, 4)
    stamp_flush(a, 2, 5, 4, s_w)
    a.label("K3_END")
    a("s_endpgm")
    return a.l, kdesc("k3_kernel", 216, 216), "; @launch kernel=k3_kernel grid=(224,1,1) block=(256,1,1) lds=%d" % (4 * WB)

def build(path, kernels):
    hdr = open("cdna_kernels/%s.s.ref" % NAME).read().split("\n")
    top = [l for l in hdr if l.startswith(";") and "@launch" not in l and "Override" not in l and "grid=ceil" not in l]
    parts = [k() for k in kernels]
    out = top + [p[2] for p in parts]
    out += ['.amdgcn_target "amdgcn-amd-amdhsa--gfx950"', ".text"]
    for p in parts:
        lines, added = fix(p[0])
        name = lines[0][:-1]
        out += [".globl " + name, ".p2align 8", ".type %s,@function" % name] + lines
        print(name, "instrs", len(lines), "nop states added", added)
    out += ['.section .rodata,"a"']
    for p in parts:
        out += [".p2align 6", p[1]]
    open(path, "w").write("\n".join(out) + "\n")

if __name__ == "__main__":
    for kv_ in sys.argv[2:]:
        k, v = kv_.split("="); OPT[k] = eval(v)
    build(sys.argv[1] if len(sys.argv) > 1 else "cdna_kernels/%s.s" % NAME, [k1, k2, k3])
```

```python
import sys, math, struct
from asmlib import *

NAME = "parallel_sum__softmax_full_mha__dense_activation_relu__prompt"
KN = NAME + "_kernel"
QF, KV, AF = 0x000000, 0x200000, 0x600000
FQ = 0xF00000
FH = FQ + 0x2000
FO = FH + 0x4000
WS_END = FO + 0x2000
XBYTES = 2048 * 448 * 2
OPT = dict(bias=32.0, stamps=False, flagstep=20, sleep=2, prioA=2)
STAMP = 0x2000000
SPIN_MAX = 1 << 17
K = 1024
def f32(x): return "0x%08x" % struct.unpack("<I", struct.pack("<f", x))[0]

def stamp(a, i):
    if OPT["stamps"]: a("%s s[%d:%d]", "s_memtime" if OPT.get("cyc") else "s_memrealtime", 72 + 2 * i, 73 + 2 * i)
NST = 12
def stamp_flush(a):
    if not OPT["stamps"]: return
    stamp(a, NST - 2)
    a("s_mov_b32 s64, s46\ns_mov_b32 s65, s47\ns_mov_b32 s66, 0x10000000\ns_mov_b32 s67, 0x00020000")
    a("s_lshl_b32 s68, s2, 3\ns_add_u32 s68, s68, s69\ns_lshl_b32 s68, s68, 6")
    a("s_add_u32 s68, s68, 0x%x", STAMP)
    a("v_mov_b32 v0, 0")
    a("s_waitcnt vmcnt(0) lgkmcnt(0)")
    stamp(a, NST - 1)
    a("s_waitcnt lgkmcnt(0)")
    for i in range(NST):
        a("v_mov_b32 v1, s%d", 72 + 2 * i)
        a("buffer_store_dword v1, v0, s[64:67], s68 offen offset:%d", 4 * i)

def srd(a, d, base, nbytes):
    a("s_mov_b32 s%d, s%d", d, base)
    a("s_mov_b32 s%d, s%d", d + 1, base + 1)
    a("s_mov_b32 s%d, 0x%x", d + 2, nbytes)
    a("s_mov_b32 s%d, 0x00020000", d + 3)

class VM:
    def __init__(self, a): self.a = a; self.ops = []; self.done = 0
    def issue(self, tag): self.ops.append(tag)
    def wait(self, tag):
        idx = max(i for i, t in enumerate(self.ops) if t == tag)
        if idx < self.done: return
        n = len(self.ops) - 1 - idx
        assert n <= 63, n
        self.a("s_waitcnt vmcnt(%d)", n); self.done = idx + 1
    def drain(self):
        self.a("s_waitcnt vmcnt(0)"); self.done = len(self.ops)

XST = 48 * K
P2A, P2A7 = 112 * K, 0
P2B, P2B7 = 8 * K, 56 * K
BST = 64 * K
CNT = 104 * K
MXA = 104 * K + 256
CA = 0
CB = 112 * K
LDS = 160 * K

def kernel():
    a = Asm()
    sWS, sX, sW, sW1, sDBG = 8, 12, 16, 20, 24
    s_w, s_rb, s_grp, s_rot, s_t0, s_t1, s_cp, s_mask = 28, 29, 30, 31, 32, 33, 34, 35
    s_hi = 36
    s_ex = 38
    s_spin, s_lb = 56, 57
    s_non = 58
    s_a, s_b, s_c, s_d = 60, 61, 62, 63
    s_e, s_f, s_g, s_h = 4, 5, 6, 7
    v_lane, v_l16 = 1, 2
    a.label(KN)
    a("s_cmp_ge_u32 s2, 256")
    a("s_cbranch_scc1 L_END")
    stamp(a, 0)
    a("s_load_dwordx4 s[40:43], s[0:1], 0")
    a("s_load_dwordx2 s[44:45], s[0:1], 16")
    a("s_load_dwordx4 s[48:51], s[0:1], 32")
    a("s_load_dwordx4 s[52:55], s[0:1], 48")
    a("s_load_dwordx2 s[46:47], s[0:1], 64")
    a("v_lshrrev_b32 v3, 6, v0")
    a("v_and_b32 v%d, 63, v0", v_lane)
    a("v_readfirstlane_b32 s%d, v3", s_w)
    a("v_lshlrev_b32 v%d, 4, v%d", v_l16, v_lane)
    a("s_mov_b32 s%d, 0", s_hi)
    a("s_mov_b32 s%d, -1", s_hi + 1)
    a("s_mov_b32 s%d, 0xffff0000", s_mask)
    a("s_and_b32 s%d, s2, 3", s_rb)
    a("s_lshl_b32 s%d, s%d, 2", s_rb, s_rb)
    a("s_bfe_u32 s%d, s2, 0x20003", s_t0)
    a("s_add_u32 s%d, s%d, s%d", s_rb, s_rb, s_t0)
    a("s_bfe_u32 s%d, s2, 0x10002", s_grp)
    a("s_lshl_b32 s%d, s%d, 3", s_grp, s_grp)
    a("s_lshr_b32 s%d, s2, 5", s_t0)
    a("s_add_u32 s%d, s%d, s%d", s_grp, s_grp, s_t0)
    a("s_bfe_u32 s%d, s2, 0x20003", s_rot)
    a("s_lshl_b32 s%d, s%d, 1", s_rot, s_rot)
    a("s_add_u32 s%d, s%d, s%d", s_rot, s_rot, s_t0)
    a("s_sub_u32 s%d, s%d, 7", s_t0, s_rot)
    a("s_cmp_ge_u32 s%d, 7", s_rot)
    a("s_cselect_b32 s%d, s%d, s%d", s_rot, s_t0, s_rot)
    a("s_lshl_b32 s%d, s%d, 2", s_t0, s_grp)
    a("s_sub_u32 s%d, s%d, 34", s_t0, s_t0)
    a("s_cmp_lt_u32 s%d, 12", s_grp)
    a("s_cselect_b32 s%d, s%d, s%d", s_lb, s_grp, s_t0)
    if OPT["stamps"]: a("s_mov_b32 s69, s%d", s_w)
    v_g, v_ch, v_rr, v_c = 4, 5, 6, 7
    a("v_lshrrev_b32 v%d, 5, v%d", v_g, v_lane)
    a("v_bfe_u32 v%d, v%d, 4, 1", v_ch, v_lane)
    a("v_bfe_u32 v%d, v%d, 2, 2", v_rr, v_lane)
    a("v_and_b32 v%d, 3, v%d", v_c, v_lane)
    v_trp = 8
    a("v_lshlrev_b32 v%d, 6, v%d", v_trp, v_rr)
    a("v_lshl_add_u32 v%d, v%d, 5, v%d", v_trp, v_ch, v_trp)
    a("v_lshl_add_u32 v%d, v%d, 3, v%d", v_trp, v_c, v_trp)
    def cp_next(first):
        if first: a("s_mov_b32 s%d, s%d", s_cp, s_rot)
        else:
            a("s_add_u32 s%d, s%d, 1", s_cp, s_cp)
            a("s_cmp_eq_u32 s%d, 7", s_cp)
            a("s_cselect_b32 s%d, 0, s%d", s_cp, s_cp)
    a("s_cmp_ge_u32 s%d, 4", s_w)
    a("s_cbranch_scc1 L_B")

    a("s_setprio %d", OPT["prioA"])
    v_b1a, v_b1b, v_b2a, v_b27, v_m, v_r = 9, 10, 11, 12, 14, 15
    v_t = 16
    v_non = 248
    X0, ACC, RING = 24, 136, 200
    v_xoff = ACC; v_xa = ACC + 4; v_sum = ACC + 8; v_sq = ACC + 10
    s_xrow, s_ldsw, s_ones, s_st, s_fl = s_a, s_b, s_c, s_d, s_e
    t0, t1, t2 = v_t, v_t + 1, v_t + 2
    a("s_lshl_b32 s%d, s%d, 2", s_xrow, s_rb)
    a("s_add_u32 s%d, s%d, s%d", s_f, s_xrow, s_w)
    a("s_mul_i32 s%d, s%d, %d", s_xrow, s_f, 32 * 896)
    a("s_mul_i32 s%d, s%d, 28672", s_ldsw, s_w)
    a("s_add_u32 s%d, s%d, %d", s_ldsw, s_ldsw, XST)
    a("v_lshrrev_b32 v%d, 3, v%d", t0, v_lane)
    a("v_mul_u32_u24 v%d, 896, v%d", t0, t0)
    a("v_lshrrev_b32 v%d, 4, v%d", t1, v_lane)
    a("v_and_b32 v%d, 7, v%d", t2, v_lane)
    a("v_xor_b32 v%d, v%d, v%d", t1, t1, t2)
    a("v_lshl_add_u32 v%d, v%d, 4, v%d", v_xoff, t1, t0)
    a("v_xor_b32 v%d, 64, v%d", v_xoff + 1, v_xoff)
    a("v_add_u32 v%d, %d, v%d", v_xoff + 2, 2 * (7168 - 1024), v_xoff)
    a("v_add_u32 v%d, %d, v%d", v_xoff + 3, 3 * (7168 - 1024), v_xoff + 1)
    a("v_add_u32 v%d, %d, v%d", v_xoff + 1, 1 * (7168 - 1024), v_xoff + 1)
    a("s_waitcnt lgkmcnt(0)")
    srd(a, sX, 40, XBYTES)
    for p in range(7):
        cp_next(p == 0)
        a("s_lshl_b32 s%d, s%d, 7", s_t0, s_cp)
        a("s_add_u32 s%d, s%d, s%d", s_t0, s_t0, s_xrow)
        a("s_add_u32 m0, s%d, %d", s_ldsw, 4096 * p)
        for i in range(4):
            a("buffer_load_dwordx4 v%d, s[%d:%d], s%d offen offset:%d lds", v_xoff + i, sX, sX + 3, s_t0, 1024 * i)
        if p == OPT.get("b0at", 4): a("s_barrier")
    stamp(a, 1)
    srd(a, sWS, 46, WS_END)
    srd(a, sDBG, 54, 256)
    a("s_mov_b32 s%d, 0x3f803f80", s_ones)
    a("v_and_b32 v%d, 31, v%d", t0, v_lane)
    a("v_bfe_u32 v%d, v%d, 1, 3", t1, v_lane)
    a("v_xor_b32 v%d, v%d, v%d", t1, t1, v_g)
    a("v_lshlrev_b32 v%d, 7, v%d", t0, t0)
    a("v_lshl_add_u32 v%d, v%d, 4, v%d", t0, t1, t0)
    for q in range(4):
        a("v_xor_b32 v%d, %d, v%d", t1, 32 * q, t0)
        a("v_add_u32 v%d, s%d, v%d", v_xa + q, s_ldsw, t1)
    a("v_lshl_add_u32 v%d, v%d, 11, v%d", v_b1a, v_g, v_trp)
    a("v_add_u32 v%d, 0x10000, v%d", v_b1b, v_b1a)
    a("v_lshl_add_u32 v%d, v%d, 10, v%d", v_b27, v_g, v_trp)
    a("v_add_u32 v%d, %d, v%d", v_b2a, P2A, v_b27)
    for i in range(4): a("v_mov_b32 v%d, 0", v_sum + i)
    def xread(p):
        for q in range(4):
            a("ds_read_b128 %s, v%d offset:%d", vr(X0 + 16 * p + 4 * q, 4), v_xa + q, 4096 * p)
    def xstat(p):
        for j in range(16):
            x = X0 + 16 * p + j
            a("v_dot2c_f32_bf16 v%d, s%d, v%d", v_sum + (j & 1), s_ones, x)
            a("v_dot2c_f32_bf16 v%d, v%d, v%d", v_sq + (j & 1), x, x)
    a("s_waitcnt vmcnt(24)")
    xread(0)
    for p in range(7):
        if p < 6:
            a("s_waitcnt vmcnt(%d)", 20 - 4 * p)
            xread(p + 1)
            a("s_waitcnt lgkmcnt(4)")
        else:
            a("s_waitcnt lgkmcnt(0)")
            a("s_barrier")
            stamp(a, 2)
            a("v_mov_b32 v%d, 0", t2)
            a("buffer_load_dwordx2 %s, v%d, s[%d:%d], 0 offen sc1", vr(v_non, 2), t2, sDBG, sDBG + 3)
        xstat(p)
    a("v_add_f32 v%d, v%d, v%d", v_sum, v_sum, v_sum + 1)
    a("v_add_f32 v%d, v%d, v%d", v_sq, v_sq, v_sq + 1)
    a("v_mov_b32 v%d, v%d", v_sum + 1, v_sum)
    a("v_mov_b32 v%d, v%d", v_sq + 1, v_sq)
    a("v_permlane32_swap_b32 v%d, v%d", v_sum, v_sum + 1)
    a("v_permlane32_swap_b32 v%d, v%d", v_sq, v_sq + 1)
    a("v_add_f32 v%d, v%d, v%d", v_sum, v_sum, v_sum + 1)
    a("v_add_f32 v%d, v%d, v%d", v_sq, v_sq, v_sq + 1)
    a("v_mul_f32 v%d, %s, v%d", v_sum, f32(1.0 / 448), v_sum)
    a("v_mul_f32 v%d, %s, v%d", v_sq, f32(1.0 / 448), v_sq)
    a("v_fma_f32 v%d, -v%d, v%d, v%d", v_sq, v_sum, v_sum, v_sq)
    a("v_max_f32 v%d, 0, v%d", v_sq, v_sq)
    a("v_cvt_pk_bf16_f32 v%d, v%d, v%d", t0, v_sum, v_sq)
    a("v_lshlrev_b32 v%d, 16, v%d", v_m, t0)
    a("v_and_b32 v%d, s%d, v%d", t0, s_mask, t0)
    a("v_add_f32 v%d, %s, v%d", t0, f32(1e-5), t0)
    a("v_cvt_pk_bf16_f32 v%d, v%d, v%d", t0, t0, t0)
    a("v_and_b32 v%d, s%d, v%d", t0, s_mask, t0)
    a("v_sqrt_f32 v%d, v%d", t0, t0)
    a("v_cvt_pk_bf16_f32 v%d, v%d, v%d", t0, t0, t0)
    a("v_and_b32 v%d, s%d, v%d", t0, s_mask, t0)
    a("v_rcp_f32 v%d, v%d", v_r, t0)
    a("v_mul_f32 v%d, v%d, v%d", v_m, v_m, v_r)
    def norm_ops(s):
        seqs = []
        for j in range(4):
            x = X0 + 4 * s + j; lo = v_t + 2 * j; hi = lo + 1
            seqs.append(["v_lshlrev_b32 v%d, 16, v%d" % (lo, x), "v_and_b32 v%d, s%d, v%d" % (hi, s_mask, x),
                         "v_fma_f32 v%d, v%d, v%d, -v%d" % (lo, lo, v_r, v_m), "v_fma_f32 v%d, v%d, v%d, -v%d" % (hi, hi, v_r, v_m),
                         "v_cvt_pk_bf16_f32 v%d, v%d, v%d" % (x, lo, hi)])
        return [seqs[j][k] for k in range(5) for j in range(4)]
    def acc(t): return vr(ACC + 16 * t, 16)
    def rd1(n):
        s, t = divmod(n, 4); p, q = divmod(s, 4)
        base, off = (v_b1a, p * 16384) if p < 4 else (v_b1b, (p - 4) * 16384)
        for h in range(2):
            a("ds_read_b64_tr_b16 %s, v%d offset:%d", vr(RING + 4 * (n % 8) + 2 * h, 2), base, off + q * 4096 + h * 1024 + t * 256)
    def rd2(n):
        s, t = divmod(n, 2); p, q = divmod(s, 4)
        base, off = (v_b2a, p * 8192) if p < 6 else (v_b27, 0)
        for h in range(2):
            a("ds_read_b64_tr_b16 %s, v%d offset:%d", vr(RING + 4 * (n % 8) + 2 * h, 2), base, off + q * 2048 + h * 512 + t * 256)
    a("s_barrier")
    for n in range(8): rd1(n)
    for o in norm_ops(0): a(o)
    stamp(a, 3)
    a("s_cmp_ge_u32 s%d, 8", s_grp)
    a("s_cbranch_scc0 L_P1N")
    a("s_cmp_lt_u32 s%d, 12", s_grp)
    a("s_cbranch_scc1 L_P1S")
    def pass1(swap):
        for s in range(28):
            pend = norm_ops(s + 1) if s < 27 else []
            if s % 4 == 2 and s < 26:
                a("s_barrier")
            a("s_waitcnt lgkmcnt(%d)", 8 if s < 27 else 0)
            for t in range(4):
                n = 4 * s + t
                wf = vr(RING + 4 * (n % 8), 4); xf = vr(X0 + 4 * s, 4)
                A, B = (xf, wf) if swap else (wf, xf)
                a("v_mfma_f32_32x32x16_bf16 %s, %s, %s, %s", acc(t), A, B, acc(t) if s else "0")
                if n + 8 < 112: rd1(n + 8)
                k = (6, 6, 5, 3)[t]
                for o in pend[:k]: a(o)
                pend = pend[k:]
    def p2_prologue():
        a("s_barrier")
        for n in range(8): rd2(n)
    def pack(t, kind):
        b = ACC + 16 * t
        for jj in range(8):
            if kind == "q":
                a("v_mul_f32 v%d, s%d, v%d", b + 2 * jj, s_t1, b + 2 * jj)
                a("v_mul_f32 v%d, s%d, v%d", b + 2 * jj + 1, s_t1, b + 2 * jj + 1)
            a("v_cvt_pk_bf16_f32 v%d, v%d, v%d", b + jj, b + 2 * jj, b + 2 * jj + 1)
            if kind == "h": a("v_pk_max_i16 v%d, v%d, 0", b + jj, b + jj)
        if kind == "q":
            a("v_cndmask_b32 v%d, v%d, 0, s[%d:%d]", b + 6, b + 6, s_hi, s_hi + 1)
            a("v_cndmask_b32 v%d, v%d, 0, s[%d:%d]", b + 7, b + 7, s_hi, s_hi + 1)
        elif kind == "k":
            a("v_cndmask_b32 v%d, v%d, v%d, s[%d:%d]", b + 6, b + 6, v_t, s_hi, s_hi + 1)
            a("v_cndmask_b32 v%d, v%d, v%d, s[%d:%d]", b + 7, b + 7, v_t + 1, s_hi, s_hi + 1)
        elif kind == "v":
            for jj in range(8):
                a("v_cndmask_b32 v%d, v%d, v%d, s[%d:%d]", b + jj, b + jj, v_t, s_ex, s_ex + 1)
    def epilogue(T, kind):
        fs = {"q": 1024, "k": 1024, "v": 1024, "h": 2048}[kind]
        ts = {"q": 131072, "k": 262144, "v": 262144, "h": 4096}[kind]
        for t in range(T):
            pack(t, kind)
            for f in range(2):
                a("buffer_store_dwordx4 %s, v%d, s[%d:%d], s%d offen offset:%d sc1", vr(ACC + 16 * t + 4 * f, 4), v_l16, sWS, sWS + 3, s_st, fs * f)
            if t + 1 < T: a("s_add_u32 s%d, s%d, %d", s_st, s_st, ts)
    def qkv_addr(shift, base):
        a("s_and_b32 s%d, s%d, 3", s_t0, s_grp)
        a("s_lshl_b32 s%d, s%d, 8", s_t0, s_t0)
        a("s_add_u32 s%d, s%d, s%d", s_t0, s_t0, s_f)
        a("s_lshl_b32 s%d, s%d, %d", s_st, s_t0, shift)
        if base: a("s_add_u32 s%d, s%d, 0x%x", s_st, s_st, base)
        a("s_lshl_b32 s%d, s%d, 6", s_fl, s_grp)
        a("s_add_u32 s%d, s%d, s%d", s_fl, s_fl, s_f)
        a("s_lshl_b32 s%d, s%d, 3", s_fl, s_fl)
        a("s_add_u32 s%d, s%d, 0x%x", s_fl, s_fl, FQ)
        a("s_mov_b32 s%d, 1", s_g)
    def h_addr(s_lbx, nfl):
        a("s_lshr_b32 s%d, s%d, 1", s_t0, s_f)
        a("s_and_b32 s%d, s%d, 1", s_t1, s_f)
        a("s_mul_i32 s%d, s%d, 36", s_st, s_t0)
        a("s_add_u32 s%d, s%d, s%d", s_st, s_st, s_lbx)
        a("s_lshl_b32 s%d, s%d, 3", s_st, s_st)
        a("s_add_u32 s%d, s%d, s%d", s_st, s_st, s_t1)
        a("s_lshl_b32 s%d, s%d, 10", s_st, s_st)
        a("s_add_u32 s%d, s%d, 0x%x", s_st, s_st, AF)
        a("s_lshl_b32 s%d, s%d, 5", s_fl, s_t0)
        a("s_add_u32 s%d, s%d, s%d", s_fl, s_fl, s_lbx)
        a("s_lshl_b32 s%d, s%d, 1", s_fl, s_fl)
        a("s_add_u32 s%d, s%d, s%d", s_fl, s_fl, s_t1)
        a("s_lshl_b32 s%d, s%d, 3", s_fl, s_fl)
        a("s_add_u32 s%d, s%d, 0x%x", s_fl, s_fl, FH)
        a("s_mov_b32 s%d, %d", s_g, (1 << nfl) - 1)
    a.label("L_P1N")
    pass1(False)
    stamp(a, 4)
    p2_prologue()
    a("s_cmp_ge_u32 s%d, 12", s_grp)
    a("s_cbranch_scc1 L_EH")
    a("s_cmp_ge_u32 s%d, 4", s_grp)
    a("s_cbranch_scc1 L_EK")
    qkv_addr(11, QF)
    a("s_mov_b32 s%d, %s", s_t1, f32(28 ** -0.5 * math.log2(math.e)))
    epilogue(4, "q")
    a("s_branch L_P2")
    a.label("L_EK")
    qkv_addr(12, KV)
    a("v_mov_b32 v%d, 0x3f803f80", v_t)
    a("v_mov_b32 v%d, 0x00003f80", v_t + 1)
    epilogue(4, "k")
    a("s_branch L_P2")
    a.label("L_EH")
    a("s_sub_u32 s%d, s%d, 2", s_h, s_lb)
    h_addr(s_h, 2)
    epilogue(4, "h")
    a("s_branch L_P2")
    a.label("L_P1S")
    pass1(True)
    stamp(a, 4)
    p2_prologue()
    qkv_addr(12, KV + 2048)
    a("s_mov_b32 s%d, 0x10000000", s_ex)
    a("s_mov_b32 s%d, 0x10000000", s_ex + 1)
    a("v_mov_b32 v%d, 0x3f803f80", v_t + 1)
    a("v_cndmask_b32 v%d, 0, v%d, s[%d:%d]", v_t, v_t + 1, s_ex, s_ex + 1)
    a("s_mov_b32 s%d, 0xf0000000", s_ex)
    a("s_mov_b32 s%d, 0xf0000000", s_ex + 1)
    epilogue(4, "v")
    nflag = [0]
    def put_flag():
        n = nflag[0]; nflag[0] += 1
        a("s_waitcnt vmcnt(0)")
        a("v_readfirstlane_b32 s%d, v%d", s_non, v_non)
        a("v_readfirstlane_b32 s%d, v%d", s_non + 1, v_non + 1)
        a("s_cmp_lg_u32 s%d, 0", s_non)
        a("s_cbranch_scc1 L_NOK%d" % n)
        a("s_mov_b32 s%d, %d", s_spin, SPIN_MAX)
        a("v_mov_b32 v%d, 0", 250)
        a.label("L_NSP%d" % n)
        a("buffer_load_dwordx2 %s, v250, s[%d:%d], 0 offen sc1", vr(v_non, 2), sDBG, sDBG + 3)
        a("s_sub_u32 s%d, s%d, 1", s_spin, s_spin)
        a("s_cbranch_scc1 L_NOK%d" % n)
        a("s_waitcnt vmcnt(0)")
        a("v_readfirstlane_b32 s%d, v%d", s_non, v_non)
        a("v_readfirstlane_b32 s%d, v%d", s_non + 1, v_non + 1)
        a("s_cmp_eq_u32 s%d, 0", s_non)
        a("s_cbranch_scc1 L_NSP%d" % n)
        a.label("L_NOK%d" % n)
        a("s_mov_b32 exec_lo, s%d", s_g)
        a("s_mov_b32 exec_hi, 0")
        a("buffer_store_dwordx2 %s, v%d, s[%d:%d], s%d offen sc1", vr(v_non, 2), v_l16, sWS, sWS + 3, s_fl)
        a("s_mov_b64 exec, -1")
    a.label("L_P2")
    stamp(a, 5)
    for s in range(28):
        if s == 8: a("s_barrier")
        if s == OPT["flagstep"]: put_flag()
        a("s_waitcnt lgkmcnt(%d)", min(12, 4 * (27 - s)))
        for t in range(2):
            n = 2 * s + t
            a("v_mfma_f32_32x32x16_bf16 %s, %s, %s, %s", acc(2 + t), vr(RING + 4 * (n % 8), 4), vr(X0 + 4 * s, 4), acc(2 + t) if s else "0")
            if n + 8 < 56: rd2(n + 8)
    h_addr(s_lb, 1)
    a("s_and_b32 s%d, s%d, 3", s_t0, s_lb)
    a("s_cmp_ge_u32 s%d, 12", s_grp)
    a("s_cselect_b32 s%d, s%d, 0", s_h, s_t0)
    a("s_cmp_eq_u32 s%d, 2", s_h)
    a("s_cbranch_scc0 L_P2E")
    a("v_subrev_u32 v%d, %d, v%d", v_b2a, P2A - P2B, v_b2a)
    a("v_add_u32 v%d, %d, v%d", v_b27, P2B7 - P2A7, v_b27)
    p2_prologue()
    a.label("L_P2E")
    for t in range(2):
        pack(2 + t, "h")
        for f in range(2):
            a("buffer_store_dwordx4 %s, v%d, s[%d:%d], s%d offen offset:%d sc1", vr(ACC + 32 + 16 * t + 4 * f, 4), v_l16, sWS, sWS + 3, s_st, 2048 * f)
        if t == 0: a("s_add_u32 s%d, s%d, 4096", s_st, s_st)
    a("s_add_u32 s%d, s%d, 1", s_lb, s_lb)
    a("s_cmp_eq_u32 s%d, 2", s_h)
    a("s_cbranch_scc1 L_P2")
    stamp(a, 6)

    s_head, s_qb, s_kvb, s_i, s_off, s_mode, s_cnt, s_tgt = s_rb, s_grp, s_a, s_b, s_c, s_d, s_rot, s_cp
    s_bad = 16
    Q0, KV0, P0, O0, S0, MX = 24, 56, 120, 136 + 0, 200, 232
    O0 = 136
    v_pa = 9
    def q(u, f): return vr(Q0 + 8 * u + 4 * f, 4)
    def o(u): return vr(O0 + 16 * u, 16)
    def kv(st, f): return vr(KV0 + 16 * st + 4 * f, 4)
    a("s_and_b32 s%d, s2, 7", s_head)
    a("s_lshl_b32 s%d, s%d, 1", s_head, s_head)
    a("s_bfe_u32 s%d, s2, 0x10003", s_t0)
    a("s_add_u32 s%d, s%d, s%d", s_head, s_head, s_t0)
    a("s_lshr_b32 s%d, s2, 4", s_qb)
    a("s_mov_b32 s%d, 0", s_mode)
    a("s_mov_b32 s%d, 0", s_tgt)
    a("s_lshl_b32 s%d, s%d, 2", s_kvb, s_head)
    a("s_add_u32 s%d, s%d, s%d", s_kvb, s_kvb, s_w)
    a("s_lshl_b32 s%d, s%d, 16", s_kvb, s_kvb)
    a("s_add_u32 s%d, s%d, 0x%x", s_kvb, s_kvb, KV)
    a("v_and_b32 v%d, 15, v%d", t0, v_lane)
    a("s_lshl_b32 s%d, s%d, 4", s_t0, s_w)
    a("v_add_u32 v%d, s%d, v%d", t0, s_t0, t0)
    a("v_add_u32 v%d, 1, v%d", t1, v_ch)
    a("v_lshl_add_u32 v%d, v%d, 8, v%d", t0, t1, t0)
    a("s_lshl_b32 s%d, s%d, 2", s_t0, s_qb)
    a("v_add_u32 v%d, s%d, v%d", t1, s_t0, v_c)
    a("v_cndmask_b32 v%d, v%d, v%d, s[%d:%d]", t0, t0, t1, s_hi, s_hi + 1)
    a("v_lshlrev_b32 v%d, 3, v%d", v_pa, t0)
    a("s_lshr_b32 s%d, s%d, 2", s_t1, s_head)
    a("s_lshl_b32 s%d, s%d, 9", s_t1, s_t1)
    a("s_add_u32 s%d, s%d, 0x%x", s_t1, s_t1, FQ)
    a("buffer_load_dwordx2 %s, v%d, s[%d:%d], s%d offen sc1", vr(10, 2), v_pa, sWS, sWS + 3, s_t1)
    put_flag()
    a("s_mov_b32 s%d, %d", s_spin, SPIN_MAX)
    a.label("L_AP")
    a("v_cmp_ne_u64 vcc, s[%d:%d], v[10:11]", s_non, s_non + 1)
    a("s_cbranch_vccz L_APX")
    a("s_sub_u32 s%d, s%d, 1", s_spin, s_spin)
    a("s_cbranch_scc1 L_APX")
    a("s_sleep %d", OPT["sleep"])
    a("buffer_load_dwordx2 %s, v%d, s[%d:%d], s%d offen sc1", vr(10, 2), v_pa, sWS, sWS + 3, s_t1)
    a("s_waitcnt vmcnt(0)")
    a("s_branch L_AP")
    a.label("L_APX")
    stamp(a, 7)
    def kvload(st, fr=(0, 1, 2, 3)):
        a("s_add_u32 s%d, s%d, s%d", s_off, s_i, s_qb)
        a("s_and_b32 s%d, s%d, 15", s_off, s_off)
        a("s_lshl_b32 s%d, s%d, 12", s_off, s_off)
        a("s_add_u32 s%d, s%d, s%d", s_off, s_off, s_kvb)
        for f in fr:
            a("buffer_load_dwordx4 %s, v%d, s[%d:%d], s%d offen offset:%d sc1", kv(st, f), v_l16, sWS, sWS + 3, s_off, 1024 * f)
        a("s_add_u32 s%d, s%d, 1", s_i, s_i)
    nsync = [0]
    def async_():
        n = nsync[0]; nsync[0] += 1
        a("v_mov_b32 v12, %d", CNT)
        a("v_mov_b32 v13, 1")
        a("s_add_u32 s%d, s%d, 4", s_tgt, s_tgt)
        a("s_waitcnt lgkmcnt(0)")
        a("s_mov_b64 exec, 1")
        a("ds_add_u32 v12, v13")
        a("s_mov_b64 exec, -1")
        a("s_mov_b32 s%d, %d", s_spin, SPIN_MAX)
        a.label("L_AS%d" % n)
        a("ds_read_b32 v13, v12")
        a("s_sub_u32 s%d, s%d, 1", s_spin, s_spin)
        a("s_cbranch_scc1 L_ASX%d" % n)
        a("s_waitcnt lgkmcnt(0)")
        a("v_readfirstlane_b32 s%d, v13", s_t0)
        a("s_cmp_lt_u32 s%d, s%d", s_t0, s_tgt)
        a("s_cbranch_scc1 L_AS%d" % n)
        a.label("L_ASX%d" % n)
    a.label("L_RESTART")
    a("s_lshl_b32 s%d, s%d, 4", s_t0, s_head)
    a("s_add_u32 s%d, s%d, s%d", s_t0, s_t0, s_qb)
    a("s_lshl_b32 s%d, s%d, 13", s_t0, s_t0)
    a("s_mov_b32 s%d, 0", s_i)
    kvload(0)
    for u in range(4):
        a("s_add_u32 s%d, s%d, %d", s_t1, s_w, u)
        a("s_and_b32 s%d, s%d, 3", s_t1, s_t1)
        a("s_lshl_b32 s%d, s%d, 11", s_t1, s_t1)
        a("s_add_u32 s%d, s%d, s%d", s_t1, s_t1, s_t0)
        for f in range(2):
            a("buffer_load_dwordx4 %s, v%d, s[%d:%d], s%d offen offset:%d sc1", q(u, f), v_l16, sWS, sWS + 3, s_t1, 1024 * f)
    kvload(1); kvload(2)
    for u in range(4): a("v_mov_b32 v%d, 0xff800000", MX + u)
    a("s_waitcnt vmcnt(8)")
    def maxtile(st):
        for u in range(4):
            d = vr(O0 + 16 * u, 16)
            a("v_mfma_f32_32x32x16_bf16 %s, %s, %s, 0", d, kv(st, 0), q(u, 0))
            a("v_mfma_f32_32x32x16_bf16 %s, %s, %s, %s", d, kv(st, 1), q(u, 1), d)
        for u in range(4):
            for j in range(8):
                a("v_max3_f32 v%d, v%d, v%d, v%d", MX + u, O0 + 16 * u + 2 * j, O0 + 16 * u + 2 * j + 1, MX + u)
    maxtile(0)
    a("s_cmp_eq_u32 s%d, 0", s_mode)
    a("s_cbranch_scc1 L_MAXDONE")
    a("s_mov_b32 s%d, 1", s_i)
    a.label("L_MAXLOOP")
    kvload(3, (0, 1))
    a("s_waitcnt vmcnt(0)")
    maxtile(3)
    a("s_cmp_lt_u32 s%d, 16", s_i)
    a("s_cbranch_scc1 L_MAXLOOP")
    a("s_mov_b32 s%d, 3", s_i)
    a.label("L_MAXDONE")
    for u in range(4): a("v_mov_b32 v%d, v%d", v_t + u, MX + u)
    for u in range(4): a("v_permlane32_swap_b32 v%d, v%d", MX + u, v_t + u)
    for u in range(4): a("v_max_f32 v%d, v%d, v%d", MX + u, MX + u, v_t + u)
    a("v_lshlrev_b32 v%d, 2, v%d", v_t + 4, v_lane)
    for u in range(4):
        a("s_add_u32 s%d, s%d, %d", s_t1, s_w, u)
        a("s_and_b32 s%d, s%d, 3", s_t1, s_t1)
        a("s_lshl_b32 s%d, s%d, 10", s_t1, s_t1)
        a("s_add_u32 s%d, s%d, %d", s_t1, s_t1, MXA)
        a("v_add_u32 v%d, s%d, v%d", v_t + u, s_t1, v_t + 4)
    a("s_lshl_b32 s%d, s%d, 8", s_t0, s_w)
    for u in range(4):
        a("v_add_u32 v%d, s%d, v%d", v_t + 5, s_t0, v_t + u)
        a("ds_write_b32 v%d, v%d", v_t + 5, MX + u)
    async_()
    for u in range(4):
        a("ds_read2_b32 %s, v%d offset0:0 offset1:64", vr(S0 + 4 * u, 2), v_t + u)
        a("ds_read2_b32 %s, v%d offset0:128 offset1:192", vr(S0 + 4 * u + 2, 2), v_t + u)
    a("s_cmp_eq_u32 s%d, 0", s_mode)
    a("s_cselect_b32 s%d, %s, 0", s_t0, f32(OPT["bias"]))
    a("s_waitcnt lgkmcnt(0)")
    for u in range(4):
        a("v_max3_f32 v%d, v%d, v%d, v%d", MX + u, S0 + 4 * u, S0 + 4 * u + 1, S0 + 4 * u + 2)
        a("v_max_f32 v%d, v%d, v%d", MX + u, MX + u, S0 + 4 * u + 3)
        a("v_add_f32 v%d, s%d, v%d", MX + u, s_t0, MX + u)
    for u in range(4):
        m = MX + u; h0, h1, h2 = v_t, v_t + 1, v_t + 2
        a("v_sub_f32 v%d, 0, v%d", m, m)
        a("v_and_b32 v%d, s%d, v%d", h0, s_mask, m)
        a("v_sub_f32 v%d, v%d, v%d", m, m, h0)
        a("v_and_b32 v%d, s%d, v%d", h1, s_mask, m)
        a("v_sub_f32 v%d, v%d, v%d", m, m, h1)
        a("v_lshrrev_b32 v%d, 16, v%d", h0, h0)
        a("v_or_b32 v%d, v%d, v%d", h0, h0, h1)
        a("v_lshrrev_b32 v%d, 16, v%d", h2, m)
        a("v_cndmask_b32 v%d, v%d, v%d, s[%d:%d]", Q0 + 8 * u + 6, Q0 + 8 * u + 6, h0, s_hi, s_hi + 1)
        a("v_cndmask_b32 v%d, v%d, v%d, s[%d:%d]", Q0 + 8 * u + 7, Q0 + 8 * u + 7, h2, s_hi, s_hi + 1)
    def S(n): return S0 + 16 * (n & 1)
    def P(n): return P0 + 8 * (n & 1)
    def qk(n, f):
        i, u = n >> 2, n & 3
        d = vr(S(n), 16)
        return "v_mfma_f32_32x32x16_bf16 %s, %s, %s, %s" % (d, kv(i & 3, f), q(u, f), d if f else "0")
    def pv(n, f, init=False):
        i, u = n >> 2, n & 3
        return "v_mfma_f32_32x32x16_bf16 %s, %s, %s, %s" % (o(u), kv(i & 3, 2 + f), vr(P(n) + 4 * f, 4), "0" if (init and f == 0) else o(u))
    def slot(n, g0, last, loads):
        i, u = n >> 2, n & 3
        m = [None, None] if last else [qk(n + 1, 0), qk(n + 1, 1)]
        m += [None, None] if (g0 and n == 0) else [pv(n - 1, 0, g0 and n <= 4), pv(n - 1, 1)]
        free = [[], [], [], []]
        if u == 2 and loads["wait"] is not None: free[3].append("s_waitcnt vmcnt(%d)" % loads["wait"])
        if loads["issue"]:
            st = (i + 3) & 3
            if u == 0:
                free[0].append("s_add_u32 s%d, s%d, s%d" % (s_off, s_i, s_qb))
                free[1].append("s_and_b32 s%d, s%d, 15" % (s_off, s_off))
                free[2].append("s_lshl_b32 s%d, s%d, 12" % (s_off, s_off))
                free[3].append("s_add_u32 s%d, s%d, s%d" % (s_off, s_off, s_kvb))
            if u == 1:
                ld = ["buffer_load_dwordx4 %s, v%d, s[%d:%d], s%d offen offset:%d sc1" % (kv(st, f), v_l16, sWS, sWS + 3, s_off, 1024 * f) for f in range(4)]
                free[0] += ld
                free[1].append("s_add_u32 s%d, s%d, 1" % (s_i, s_i))
        for k in range(4):
            if m[k]: a(m[k])
            for x in free[k]: a(x)
            for j in range(4): a("v_exp_f32 v%d, v%d", S(n) + 4 * k + j, S(n) + 4 * k + j)
            if k > 0:
                for j in range(2):
                    a("v_cvt_pk_bf16_f32 v%d, v%d, v%d", P(n) + 2 * (k - 1) + j, S(n) + 4 * (k - 1) + 2 * j, S(n) + 4 * (k - 1) + 2 * j + 1)
        for j in range(2):
            a("v_cvt_pk_bf16_f32 v%d, v%d, v%d", P(n) + 6 + j, S(n) + 12 + 2 * j, S(n) + 12 + 2 * j + 1)
    stamp(a, 8)
    a(qk(0, 0)); a(qk(0, 1))
    def group(g, last_group):
        for n in range(16):
            i = n >> 2
            issue = (not last_group) or i == 0
            wait = {0: 8, 1: 4, 2: 0, 3: None}[i] if last_group else 8
            slot(n, g == 0, last_group and n == 15, dict(issue=issue, wait=wait))
    group(0, False)
    a("s_mov_b32 s%d, 2", s_cnt)
    a.label("L_LOOP")
    group(1, False)
    a("s_sub_u32 s%d, s%d, 1", s_cnt, s_cnt)
    a("s_cmp_lg_u32 s%d, 0", s_cnt)
    a("s_cbranch_scc1 L_LOOP")
    group(3, True)
    a(pv(15, 0)); a(pv(15, 1))
    stamp(a, 9)
    for u in range(1, 4):
        a("s_add_u32 s%d, s%d, %d", s_t1, s_w, u)
        a("s_and_b32 s%d, s%d, 3", s_t1, s_t1)
        a("s_mul_i32 s%d, s%d, 12288", s_t1, s_t1)
        a("v_add_u32 v%d, s%d, v%d", v_t + u, s_t1, v_l16)
    for u in range(1, 4):
        for qd in range(4):
            a("ds_write_b128 v%d, %s offset:%d", v_t + u, vr(O0 + 16 * u + 4 * qd, 4), CA + (u - 1) * 4096 + qd * 1024)
    a("s_mul_i32 s%d, s%d, 12288", s_t1, s_w)
    a("v_add_u32 v%d, s%d, v%d", v_t, s_t1, v_l16)
    async_()
    for u in range(1, 4):
        for qd in range(4):
            a("ds_read_b128 %s, v%d offset:%d", vr(O0 + 16 * u + 4 * qd, 4), v_t, CA + (u - 1) * 4096 + qd * 1024)
    a("s_lshl_b32 s%d, s%d, 2", s_t0, s_qb)
    a("s_add_u32 s%d, s%d, s%d", s_t0, s_t0, s_w)
    a("s_lshr_b32 s%d, s%d, 1", s_t1, s_t0)
    a("s_lshl_b32 s%d, s%d, 4", s_fl, s_t1)
    a("s_add_u32 s%d, s%d, s%d", s_fl, s_fl, s_head)
    a("s_lshl_b32 s%d, s%d, 1", s_fl, s_fl)
    a("s_mul_i32 s%d, s%d, 144", s_t1, s_t1)
    a("s_lshl_b32 s%d, s%d, 1", s_off, s_head)
    a("s_add_u32 s%d, s%d, s%d", s_t1, s_t1, s_off)
    a("s_add_u32 s%d, s%d, 112", s_t1, s_t1)
    a("s_lshl_b32 s%d, s%d, 1", s_t1, s_t1)
    a("s_and_b32 s%d, s%d, 1", s_t0, s_t0)
    a("s_add_u32 s%d, s%d, s%d", s_t1, s_t1, s_t0)
    a("s_add_u32 s%d, s%d, s%d", s_fl, s_fl, s_t0)
    a("s_lshl_b32 s%d, s%d, 3", s_fl, s_fl)
    a("s_add_u32 s%d, s%d, 0x%x", s_fl, s_fl, FO)
    a("s_lshl_b32 s%d, s%d, 10", s_t1, s_t1)
    a("s_add_u32 s%d, s%d, 0x%x", s_t1, s_t1, AF)
    a("s_waitcnt lgkmcnt(8)")
    for j in range(16): a("v_add_f32 v%d, v%d, v%d", O0 + j, O0 + j, O0 + 16 + j)
    a("s_waitcnt lgkmcnt(0)")
    for j in range(16): a("v_add_f32 v%d, v%d, v%d", O0 + 32 + j, O0 + 32 + j, O0 + 48 + j)
    for j in (12,) + tuple(range(12)) + (13, 14, 15):
        a("v_add_f32 v%d, v%d, v%d", O0 + j, O0 + j, O0 + 32 + j)
        if j == 12:
            a("v_mov_b32 v%d, v%d", v_t, O0 + 12)
            a("v_mov_b32 v%d, v%d", v_t + 1, O0 + 12)
        if j == 2: a("v_permlane32_swap_b32 v%d, v%d", v_t, v_t + 1)
        if j == 5: a("v_rcp_f32 v%d, v%d", v_t + 2, v_t + 1)
    a("v_maximum3_f32 v%d, abs(v%d), abs(v%d), abs(v%d)", v_t + 3, O0, O0 + 1, O0 + 2)
    for j in range(3, 15, 2):
        a("v_maximum3_f32 v%d, abs(v%d), abs(v%d), v%d", v_t + 3, O0 + j, O0 + j + 1, v_t + 3)
    a("v_maximum3_f32 v%d, abs(v%d), abs(v%d), v%d", v_t + 3, O0 + 15, O0 + 15, v_t + 3)
    a("v_mov_b32 v%d, 0x7e800000", v_t + 4)
    a("v_cmp_nlt_f32 s[%d:%d], v%d, v%d", s_bad, s_bad + 1, v_t + 3, v_t + 4)
    for j in range(16):
        a("v_mul_f32 v%d, v%d, v%d", O0 + j, O0 + j, v_t + 2)
    for jj in range(8):
        a("v_cvt_pk_bf16_f32 v%d, v%d, v%d", P0 + jj, O0 + 2 * jj, O0 + 2 * jj + 1)
    a("s_or_b32 s%d, s%d, s%d", s_bad, s_bad, s_bad + 1)
    a("s_cmp_lg_u32 s%d, 0", s_mode)
    a("s_cselect_b32 s%d, 0, s%d", s_bad, s_bad)
    a("s_cmp_lg_u32 s%d, 0", s_bad)
    a("s_cbranch_scc1 L_NOPUB")
    a("s_cmp_eq_u32 s%d, 2", s_mode)
    a("s_cbranch_scc1 L_NOPUB")
    for f in range(2):
        a("buffer_store_dwordx4 %s, v%d, s[%d:%d], s%d offen offset:%d sc1", vr(P0 + 4 * f, 4), v_l16, sWS, sWS + 3, s_t1, 2048 * f)
    a("s_mov_b64 exec, 1")
    a("s_waitcnt vmcnt(0)")
    a("buffer_store_dwordx2 %s, v%d, s[%d:%d], s%d offen sc1", vr(v_non, 2), v_l16, sWS, sWS + 3, s_fl)
    a("s_mov_b64 exec, -1")
    a.label("L_NOPUB")
    a("s_cmp_lg_u32 s%d, 0", s_mode)
    a("s_cbranch_scc1 L_AEND")
    a("v_mov_b32 v%d, %d", v_t, CNT + 4)
    a("v_mov_b32 v%d, s%d", v_t + 1, s_bad)
    a("ds_or_b32 v%d, v%d", v_t, v_t + 1)
    async_()
    a("ds_read_b32 v%d, v%d", v_t + 1, v_t)
    a("s_waitcnt lgkmcnt(0)")
    a("v_readfirstlane_b32 s%d, v%d", s_t0, v_t + 1)
    a("s_cmp_eq_u32 s%d, 0", s_t0)
    a("s_cbranch_scc1 L_AEND")
    a("s_cmp_lg_u32 s%d, 0", s_bad)
    a("s_cselect_b32 s%d, 1, 2", s_mode)
    a("s_branch L_RESTART")
    a.label("L_AEND")
    stamp_flush(a)
    a("s_endpgm")

    a.label("L_B")
    sW2, sWO, sO = 12, 24, 24
    BACC, E0, NE, HR, NH = 16, 80, 18, 224, 4
    v_gd, v_hd, v_rw, v_sw, v_sr, v_a0, v_a1, v_xo, v_oo = 9, 10, 11, 12, 13, 14, 15, 3, 0
    s_rstr, s_gb, s_hb, s_rb64, s_cb, s_k, s_kr, s_ab = s_a, s_b, s_c, s_e, s_f, s_g, s_h, s_d
    a("s_and_b32 s%d, s%d, 3", s_w, s_w)
    a("s_and_b32 s%d, s2, 7", s_rb64)
    a("s_lshl_b32 s%d, s%d, 2", s_rb64, s_rb64)
    a("s_bfe_u32 s%d, s2, 0x20003", s_t0)
    a("s_add_u32 s%d, s%d, s%d", s_rb64, s_rb64, s_t0)
    a("s_lshr_b32 s%d, s2, 5", s_cb)
    a("s_cmp_lt_u32 s%d, 12", s_grp)
    a("s_movk_i32 s%d, 2688", s_t0)
    a("s_cselect_b32 s%d, s%d, 3584", s_rstr, s_t0)
    a("s_cselect_b32 s%d, 56, 64", s_t1)
    a("v_lshrrev_b32 v16, 4, v%d", v_lane)
    a("v_mul_lo_u32 v16, v16, s%d", s_t1)
    a("v_mul_lo_u32 v17, v%d, s%d", v_rr, s_rstr)
    a("v_lshl_add_u32 v%d, v%d, 4, v16", v_gd, v_c)
    a("v_add_u32 v%d, v%d, v17", v_gd, v_gd)
    a("s_mul_i32 s%d, s%d, 224", s_gb, s_grp)
    a("s_sub_u32 s%d, s%d, 2", s_t0, s_lb)
    a("s_lshl_b32 s%d, s%d, 7", s_t0, s_t0)
    a("s_cmp_lt_u32 s%d, 12", s_grp)
    a("s_cselect_b32 s%d, s%d, s%d", s_gb, s_gb, s_t0)
    a("s_lshl_b32 s%d, s%d, 4", s_t0, s_w)
    a("s_mul_i32 s%d, s%d, s%d", s_t1, s_t0, s_rstr)
    a("s_add_u32 s%d, s%d, s%d", s_gb, s_gb, s_t1)
    a("s_mul_i32 s%d, s%d, 3584", s_hb, s_t0)
    a("s_lshl_b32 s%d, s%d, 7", s_t0, s_lb)
    a("s_add_u32 s%d, s%d, s%d", s_hb, s_hb, s_t0)
    a("v_lshl_add_u32 v16, v%d, 2, v%d", v_g, v_rr)
    a("v_mul_u32_u24 v17, 3584, v16")
    a("v_lshlrev_b32 v18, 4, v%d", v_c)
    a("v_lshl_add_u32 v19, v%d, 6, v18", v_ch)
    a("v_add_u32 v%d, v17, v19", v_hd)
    a("v_mul_u32_u24 v17, 896, v16")
    a("s_lshr_b32 s%d, s%d, 1", s_t0, s_w)
    a("s_lshl_b32 s%d, s%d, 6", s_t0, s_t0)
    a("v_xor_b32 v19, s%d, v19", s_t0)
    a("v_add_u32 v%d, v17, v19", v_rw)
    a("s_mul_i32 s%d, s%d, 10240", s_t0, s_w)
    a("s_add_u32 s%d, s%d, %d", s_t0, s_t0, BST)
    a("v_add_u32 v%d, s%d, v%d", v_sw, s_t0, v_l16)
    a("v_lshl_add_u32 v%d, v%d, 9, v%d", v_sr, v_g, v_trp)
    a("v_add_u32 v%d, s%d, v%d", v_sr, s_t0, v_sr)
    a("s_mov_b32 s%d, s%d", 70, s_t0)
    a("s_lshl_b32 s%d, s%d, 2", s_k, s_cb)
    a("s_and_b32 s%d, s%d, 3", s_t0, s_rb64)
    a("s_mul_i32 s%d, s%d, 7", s_t0, s_t0)
    a("s_add_u32 s%d, s%d, s%d", s_k, s_k, s_t0)
    a("s_sub_u32 s%d, s%d, 28", s_t0, s_k)
    a("s_cmp_ge_u32 s%d, 28", s_k)
    a("s_cselect_b32 s%d, s%d, s%d", s_k, s_t0, s_k)
    a("s_mov_b32 s%d, s%d", s_kr, s_k)
    a("s_mul_i32 s%d, s%d, %d", 71, s_w, 28 * 16 * 896)
    a("s_lshl_b32 s%d, s%d, 7", s_t0, s_cb)
    a("s_add_u32 s71, s71, s%d", s_t0)
    a("s_waitcnt lgkmcnt(0)")
    a("s_cmp_lt_u32 s%d, 12", s_grp)
    a("s_cselect_b32 s%d, s42, s48", sW)
    a("s_cselect_b32 s%d, s43, s49", sW + 1)
    a("s_mov_b32 s%d, 0x%x", s_t0, 448 * 1344 * 2)
    a("s_cselect_b32 s%d, s%d, 0x%x", sW + 2, s_t0, 448 * 1792 * 2)
    a("s_mov_b32 s%d, 0x00020000", sW + 3)
    srd(a, sW1, 48, 448 * 1792 * 2)
    srd(a, sW2, 50, 1792 * 448 * 2)
    srd(a, sWS, 46, WS_END)
    srd(a, sDBG, 54, 256)
    a("s_or_b32 s%d, s2, s%d", s_t0, s_w)
    a("s_cmp_lg_u32 s%d, 0", s_t0)
    a("s_cbranch_scc1 L_BNW")
    a("s_memrealtime s[%d:%d]", s_non, s_non + 1)
    a("v_mov_b32 v18, 0")
    a("s_waitcnt lgkmcnt(0)")
    a("s_or_b32 s%d, s%d, 1", s_non, s_non)
    a("v_mov_b32 v16, s%d", s_non)
    a("v_mov_b32 v17, s%d", s_non + 1)
    a("s_mov_b64 exec, 1")
    a("buffer_store_dwordx2 v[16:17], v18, s[%d:%d], 0 offen sc1", sDBG, sDBG + 3)
    a("s_mov_b64 exec, -1")
    a.label("L_BNW")
    a("s_cmp_ge_u32 s%d, 12", s_grp)
    a("s_cbranch_scc1 L_B2")
    s_cp2 = 57
    def bprog(two):
        vm = VM(a)
        nraw = [0]
        def G(p):
            cp_next(p == 0)
            a("s_lshl_b32 s%d, s%d, 6", s_t0, s_cp)
            a("s_mul_i32 s%d, s%d, s%d", s_t0, s_t0, s_rstr)
            a("s_add_u32 s%d, s%d, s%d", s_t0, s_t0, s_gb)
            a("s_lshl_b32 s%d, s%d, 2", s_t1, s_rstr)
            a("s_lshl_b32 s%d, s%d, 12", s_ex, s_w)
            for i in range(4):
                a("s_add_u32 m0, s%d, %d", s_ex, p * 16384 + i * 1024)
                if i: a("s_add_u32 s%d, s%d, s%d", s_t0, s_t0, s_t1)
                a("buffer_load_dwordx4 v%d, s[%d:%d], s%d offen lds", v_gd, sW, sW + 3, s_t0); vm.issue(("G", p))
        def H(r, p):
            cp_next(p == 0)
            base = ((P2A, P2A7), (P2B, P2B7))[r]
            lds = base[0] + p * 8192 if p < 6 else base[1]
            a("s_mul_i32 s%d, s%d, %d", s_t0, s_cp, 64 * 3584)
            a("s_add_u32 s%d, s%d, s%d", s_t0, s_t0, s_hb)
            if r: a("s_add_u32 s%d, s%d, 128", s_t0, s_t0)
            a("s_lshl_b32 s%d, s%d, 11", s_ex, s_w)
            for i in range(2):
                a("s_add_u32 m0, s%d, %d", s_ex, lds + i * 1024)
                if i: a("s_add_u32 s%d, s%d, %d", s_t0, s_t0, 8 * 3584)
                a("buffer_load_dwordx4 v%d, s[%d:%d], s%d offen lds", v_hd, sW1, sW1 + 3, s_t0); vm.issue(("H", r, p))
        def kr_next():
            a("s_add_u32 s%d, s%d, 1", s_kr, s_kr)
            a("s_cmp_eq_u32 s%d, 28", s_kr)
            a("s_cselect_b32 s%d, 0, s%d", s_kr, s_kr)
        def R(cnt):
            for _ in range(cnt):
                e = nraw[0]
                if e >= NE: return
                nraw[0] += 1
                a("s_mul_i32 s%d, s%d, %d", s_t0, s_kr, 16 * 896)
                a("s_add_u32 s%d, s%d, s71", s_t0, s_t0)
                a("s_add_u32 s%d, s%d, %d", s_t1, s_t0, 8 * 896)
                a("buffer_load_dwordx4 %s, v%d, s[%d:%d], s%d offen", vr(E0 + 8 * e, 4), v_rw, sW2, sW2 + 3, s_t0); vm.issue(("R", e))
                a("buffer_load_dwordx4 %s, v%d, s[%d:%d], s%d offen", vr(E0 + 8 * e + 4, 4), v_rw, sW2, sW2 + 3, s_t1); vm.issue(("R", e))
                kr_next()
        bar = lambda: a("s_barrier")
        rp = OPT.get("rplan2" if two else "rplan1", (0, 0, 0, 2, 2, 2) if two else (1, 1, 2, 3, 3, 3))
        bar()
        G(0); G(1); G(2)
        bar()
        G(3); vm.wait(("G", 0)); bar()
        G(4); vm.wait(("G", 1)); bar()
        G(5); vm.wait(("G", 2)); bar()
        G(6); vm.wait(("G", 3)); bar()
        for p in range(3): H(0, p)
        R(rp[0]); vm.wait(("G", 4)); bar()
        for p in range(3, 7): H(0, p)
        R(rp[1]); vm.wait(("G", 5)); bar()
        if two:
            for p in range(3): H(1, p)
        R(rp[2]); vm.wait(("G", 6)); bar()
        if two:
            for p in range(3, 7): H(1, p)
        R(rp[3]); vm.wait(("H", 0, 2)); bar()
        a("v_mov_b32 v16, %d", CNT)
        a("v_mov_b32 v18, 0")
        a("v_mov_b32 v19, 0")
        a("ds_write_b64 v16, v[18:19]")
        R(rp[4]); vm.wait(("H", 0, 6))
        a("s_waitcnt lgkmcnt(0)")
        bar()
        if two:
            R(rp[5]); vm.wait(("H", 1, 2)); bar()
            R(2); vm.wait(("H", 1, 6)); bar()
        R(NE)
        return vm
    vm1 = bprog(False)
    a("s_branch L_BJ")
    a.label("L_B2")
    vm2 = bprog(True)
    a.label("L_BJ")
    stamp(a, 1)
    a("s_cmp_ge_u32 s%d, 7", s_cb)
    a("s_cbranch_scc1 L_BIDLE")
    vm = VM(a)
    for e in range(NE): vm.issue(("R", e)); vm.issue(("R", e))
    a("s_and_b32 s%d, s%d, 1", s_t0, s_w)
    a("s_lshl_b32 s%d, s%d, 10", s_t0, s_t0)
    a("v_add_u32 v%d, s%d, v%d", v_a0, s_t0, v_l16)
    a("v_xor_b32 v%d, 1024, v%d", v_a1, v_a0)
    a("v_and_b32 v%d, 31, v%d", v_xo, v_lane)
    a("v_mul_u32_u24 v%d, 896, v%d", v_xo, v_xo)
    a("v_lshl_add_u32 v%d, v%d, 4, v%d", v_oo, v_g, v_xo)
    a("v_lshl_add_u32 v%d, v%d, 3, v%d", v_xo, v_g, v_xo)
    s_xo = s_rstr
    a("s_lshl_b32 s%d, s%d, 1", s_xo, s_rb64)
    a("s_and_b32 s%d, s%d, 1", s_t0, s_w)
    a("s_add_u32 s%d, s%d, s%d", s_xo, s_xo, s_t0)
    a("s_mul_i32 s%d, s%d, %d", s_xo, s_xo, 32 * 896)
    a("s_lshl_b32 s%d, s%d, 1", s_t0, s_cb)
    a("s_lshr_b32 s%d, s%d, 1", s_t1, s_w)
    a("s_add_u32 s%d, s%d, s%d", s_t0, s_t0, s_t1)
    a("s_lshl_b32 s%d, s%d, 6", s_t0, s_t0)
    a("s_add_u32 s%d, s%d, s%d", s_xo, s_xo, s_t0)
    srd(a, sW, 40, XBYTES)
    for q4 in range(4):
        a("buffer_load_dwordx2 %s, v%d, s[%d:%d], s%d offen offset:%d", vr(HR + 2 * q4, 2), v_xo, sW, sW + 3, s_xo, 16 * q4); vm.issue("x")
    a("v_mov_b32 v16, 0")
    a("buffer_load_dwordx2 %s, v16, s[%d:%d], 0 offen sc1", vr(HR + 8, 2), sDBG, sDBG + 3); vm.issue("non")
    a("s_mul_i32 s%d, s%d, 28", s_t0, s_w)
    a("s_mul_i32 s%d, s%d, 144", s_ab, s_rb64)
    a("s_add_u32 s%d, s%d, s%d", s_ab, s_ab, s_t0)
    a("s_lshl_b32 s%d, s%d, 11", s_ab, s_ab)
    a("s_add_u32 s%d, s%d, 0x%x", s_ab, s_ab, AF)
    a("s_lshl_b32 s%d, s%d, 11", s_k, s_k)
    def trread(dst, slot):
        for ct in range(2):
            for h in range(2):
                a("ds_read_b64_tr_b16 %s, v%d offset:%d", vr(dst + 4 * ct + 2 * h, 2), v_sr, slot * 2048 + h * 1024 + ct * 256)
    for e in range(NE):
        vm.wait(("R", e))
        sl = e % 5
        for h in range(2):
            a("ds_write_b128 v%d, %s offset:%d", v_sw, vr(E0 + 8 * e + 4 * h, 4), sl * 2048 + h * 1024)
        trread(E0 + 8 * e, sl)
        a("s_waitcnt lgkmcnt(6)")
    stamp(a, 2)
    vm.wait("non")
    for jj in range(8):
        a("v_lshlrev_b32 v%d, 16, v%d", BACC + 2 * jj, HR + jj)
        a("v_and_b32 v%d, s%d, v%d", BACC + 2 * jj + 1, s_mask, HR + jj)
    a("v_readfirstlane_b32 s%d, v%d", s_non, HR + 8)
    a("v_readfirstlane_b32 s%d, v%d", s_non + 1, HR + 9)
    a("s_waitcnt lgkmcnt(0)")
    nlate = [0]
    def L():
        i = nlate[0]; nlate[0] += 1
        a("s_mul_i32 s%d, s%d, %d", s_t0, s_kr, 16 * 896)
        a("s_add_u32 s%d, s%d, s71", s_t0, s_t0)
        a("s_add_u32 s%d, s%d, %d", s_t1, s_t0, 8 * 896)
        for h in range(2):
            a("s_add_u32 m0, s70, %d", (i % 5) * 2048 + h * 1024)
            a("buffer_load_dwordx4 v%d, s[%d:%d], s%d offen lds", v_rw, sW2, sW2 + 3, s_t1 if h else s_t0); vm.issue(("L", i))
        a("s_add_u32 s%d, s%d, 1", s_kr, s_kr)
        a("s_cmp_eq_u32 s%d, 28", s_kr)
        a("s_cselect_b32 s%d, 0, s%d", s_kr, s_kr)
    for _ in range(5): L()
    npoll = [0]
    def poll(v_addr, s_base, with_nonce):
        n = npoll[0]; npoll[0] += 1
        a("s_mov_b32 s%d, %d", s_spin, SPIN_MAX)
        if with_nonce:
            a.label("L_BN%d" % n)
            a("s_cmp_lg_u32 s%d, 0", s_non)
            a("s_cbranch_scc1 L_BP%d" % n)
            a("buffer_load_dwordx2 %s, v%d, s[%d:%d], 0 offen sc1", vr(HR + 8, 2), HR + 10, sDBG, sDBG + 3)
            a("s_sub_u32 s%d, s%d, 1", s_spin, s_spin)
            a("s_cbranch_scc1 L_BPX%d" % n)
            a("s_waitcnt vmcnt(0)")
            a("v_readfirstlane_b32 s%d, v%d", s_non, HR + 8)
            a("v_readfirstlane_b32 s%d, v%d", s_non + 1, HR + 9)
            a("s_branch L_BN%d" % n)
        a.label("L_BP%d" % n)
        a("buffer_load_dwordx2 %s, v%d, s[%d:%d], s%d offen sc1", vr(HR + 8, 2), v_addr, sWS, sWS + 3, s_base)
        a("s_sub_u32 s%d, s%d, 1", s_spin, s_spin)
        a("s_cbranch_scc1 L_BPX%d" % n)
        a("s_waitcnt vmcnt(0)")
        a("v_cmp_ne_u64 vcc, s[%d:%d], %s", s_non, s_non + 1, vr(HR + 8, 2))
        a("s_cbranch_vccz L_BPX%d" % n)
        a("s_sleep %d", OPT["sleep"])
        a("s_branch L_BP%d" % n)
        a.label("L_BPX%d" % n)
        vm.done = len(vm.ops)
    a("v_min_u32 v%d, 13, v%d", HR + 11, v_lane)
    a("v_lshlrev_b32 v%d, 3, v%d", HR + 11, HR + 11)
    a("v_mov_b32 v%d, 0", HR + 10)
    a("s_lshl_b32 s%d, s%d, 5", s_gb, s_rb64)
    a("s_mul_i32 s%d, s%d, 7", s_t0, s_w)
    a("s_add_u32 s%d, s%d, s%d", s_gb, s_gb, s_t0)
    a("s_lshl_b32 s%d, s%d, 4", s_gb, s_gb)
    a("s_add_u32 s%d, s%d, 0x%x", s_gb, s_gb, FH)
    poll(HR + 11, s_gb, True)
    stamp(a, 3)
    def hload(k):
        a("s_add_u32 s%d, s%d, s%d", s_hb, s_ab, s_k)
        for f, v in ((0, v_a0), (1, v_a1)):
            a("buffer_load_dwordx4 %s, v%d, s[%d:%d], s%d offen sc1", vr(HR + 8 * (k % NH) + 4 * f, 4), v, sWS, sWS + 3, s_hb); vm.issue(("h", k))
        a("s_add_u32 s%d, s%d, 2048", s_k, s_k)
        a("s_cmp_eq_u32 s%d, %d", s_k, 28 * 2048)
        a("s_cselect_b32 s%d, 0, s%d", s_k, s_k)
    def mf(Areg, Breg, first):
        for ct in range(2):
            for rt in range(2):
                l = 2 * ct + rt
                d = vr(BACC + 16 * l, 16)
                a("v_mfma_f32_32x32x16_bf16 %s, %s, %s, %s", d, vr(Breg + 4 * ct, 4), vr(Areg + 4 * rt, 4), "0" if (first and l) else d)
    for k in range(NH): hload(k)
    NL = 28 - NE
    def WO(i):
        sl = (NL + i) % 5
        a("s_mul_i32 s%d, s%d, %d", s_t0, s_w, 112 * 896)
        a("s_lshl_b32 s%d, s%d, 7", s_t1, s_cb)
        a("s_add_u32 s%d, s%d, s%d", s_t0, s_t0, s_t1)
        a("s_add_u32 s%d, s%d, %d", s_t0, s_t0, (28 * (i >> 1) + 16 * (i & 1)) * 896)
        a("s_add_u32 s%d, s%d, %d", s_t1, s_t0, 8 * 896)
        for h in range(2):
            a("s_add_u32 m0, s70, %d", sl * 2048 + h * 1024)
            a("buffer_load_dwordx4 v%d, s[%d:%d], s%d offen lds", v_rw, sW1, sW1 + 3, s_t1 if h else s_t0); vm.issue(("L", NL + i))
    srd(a, sW1, 44, 448 * 448 * 2)
    nxt = 5
    for k in range(28):
        vm.wait(("h", k))
        if k >= NE: a("s_waitcnt lgkmcnt(0)")
        wreg = E0 + 8 * (k if k < NE else k - NE)
        mf(HR + 8 * (k % NH), wreg, k == 0)
        if k + NH < 28: hload(k + NH)
        if k < NL + 8:
            vm.wait(("L", k))
            trread(E0 + 8 * k, k % 5)
            if nxt < NL + 8:
                a("s_waitcnt lgkmcnt(0)")
                if nxt < NL: L()
                else: WO(nxt - NL)
                nxt += 1
        if k == 14: stamp(a, 4)
    stamp(a, 5)
    WO0 = E0 + 8 * NL
    for i in range(1, 8, 2):
        for ct in range(2):
            for r_ in (2, 3):
                rg = WO0 + 8 * i + 4 * ct + r_
                a("v_cndmask_b32 v%d, v%d, 0, s[%d:%d]", rg, rg, s_hi, s_hi + 1)
    a("v_and_b32 v%d, 7, v%d", HR + 11, v_lane)
    a("v_lshlrev_b32 v%d, 3, v%d", HR + 11, HR + 11)
    a("s_lshl_b32 s%d, s%d, 2", s_t0, s_rb64)
    a("s_add_u32 s%d, s%d, s%d", s_t0, s_t0, s_w)
    a("s_lshl_b32 s%d, s%d, 6", s_gb, s_t0)
    a("s_add_u32 s%d, s%d, 0x%x", s_gb, s_gb, FO)
    a("s_mul_i32 s%d, s%d, 20", s_t0, s_w)
    a("s_sub_u32 s%d, 112, s%d", s_t0, s_t0)
    a("s_lshl_b32 s%d, s%d, 11", s_t0, s_t0)
    a("s_add_u32 s%d, s%d, s%d", s_hb, s_ab, s_t0)
    srd(a, sW, 52, XBYTES)
    for l in range(1, 4):
        a("s_xor_b32 s%d, s%d, %d", s_t0, s_w, l)
        a("s_mul_i32 s%d, s%d, 12288", s_t0, s_t0)
        a("s_add_u32 s%d, s%d, %d", s_t0, s_t0, CB)
        a("v_add_u32 v%d, s%d, v%d", 8 + l, s_t0, v_l16)
    a("s_mul_i32 s%d, s%d, 12288", s_t0, s_w)
    a("s_add_u32 s%d, s%d, %d", s_t0, s_t0, CB)
    a("v_add_u32 v8, s%d, v%d", s_t0, v_l16)
    a("v_mov_b32 v12, %d", CNT)
    a("s_mov_b32 s%d, %d", s_spin, SPIN_MAX)
    a.label("L_BC")
    a("ds_read_b32 v13, v12")
    a("s_sub_u32 s%d, s%d, 1", s_spin, s_spin)
    a("s_cbranch_scc1 L_BCX")
    a("s_waitcnt lgkmcnt(0)")
    a("v_readfirstlane_b32 s%d, v13", s_t0)
    a("s_cmp_lt_u32 s%d, 4", s_t0)
    a("s_cbranch_scc1 L_BC")
    a.label("L_BCX")
    poll(HR + 11, s_gb, False)
    stamp(a, 6)
    OF = E0
    for i in range(8):
        for f, v in ((0, v_a0), (1, v_a1)):
            a("buffer_load_dwordx4 %s, v%d, s[%d:%d], s%d offen sc1", vr(OF + 8 * i + 4 * f, 4), v, sWS, sWS + 3, s_hb)
        if i < 7: a("s_add_u32 s%d, s%d, 2048", s_hb, s_hb)
    for i in range(8):
        a("s_waitcnt vmcnt(%d)", 2 * (7 - i))
        mf(OF + 8 * i, WO0 + 8 * i, False)
    stamp(a, 7)
    for l in range(1, 4):
        for qd in range(4):
            a("ds_write_b128 v%d, %s offset:%d", 8 + l, vr(BACC + 16 * l + 4 * qd, 4), (l - 1) * 4096 + qd * 1024)
    a("s_waitcnt lgkmcnt(0)")
    a("s_barrier")
    for l in range(1, 4):
        for qd in range(4):
            a("ds_read_b128 %s, v8 offset:%d", vr(BACC + 16 * l + 4 * qd, 4), (l - 1) * 4096 + qd * 1024)
    a("s_waitcnt lgkmcnt(8)")
    for j in range(16): a("v_add_f32 v%d, v%d, v%d", BACC + j, BACC + j, BACC + 16 + j)
    a("s_waitcnt lgkmcnt(0)")
    for j in range(16): a("v_add_f32 v%d, v%d, v%d", BACC + 32 + j, BACC + 32 + j, BACC + 48 + j)
    for j in range(16): a("v_add_f32 v%d, v%d, v%d", BACC + j, BACC + j, BACC + 32 + j)
    for jj in range(8):
        a("v_cvt_pk_bf16_f32 v%d, v%d, v%d", E0 + jj, BACC + 2 * jj, BACC + 2 * jj + 1)
    for p in range(2):
        a("v_permlane32_swap_b32 v%d, v%d", E0 + 4 * p, E0 + 4 * p + 2)
        a("v_permlane32_swap_b32 v%d, v%d", E0 + 4 * p + 1, E0 + 4 * p + 3)
    for p in range(2):
        a("buffer_store_dwordx4 %s, v%d, s[%d:%d], s%d offen offset:%d", vr(E0 + 4 * p, 4), v_oo, sW, sW + 3, s_xo, 32 * p)
    stamp(a, 8); stamp(a, 9)
    stamp_flush(a)
    a.label("L_BIDLE")
    a.label("L_END")
    a("s_endpgm")
    return a.l

def build(path):
    hdr = open("cdna_kernels/%s.s.ref" % NAME).read().split("\n")
    top = [l for l in hdr if l.startswith(";") and "@launch" not in l]
    lines, added = fix(kernel())
    print("instrs", len(lines), "nop states added", added)
    out = top + ["; @launch grid=(256,1,1) block=(512,1,1) lds=%d" % LDS]
    out += ['.amdgcn_target "amdgcn-amd-amdhsa--gfx950"', ".text", ".globl " + KN, ".p2align 8", ".type %s,@function" % KN] + lines
    out += ['.section .rodata,"a"', ".p2align 6", """.amdhsa_kernel %s
  .amdhsa_next_free_vgpr 256
  .amdhsa_next_free_sgpr 102
  .amdhsa_accum_offset 256
  .amdhsa_group_segment_fixed_size 0
  .amdhsa_kernarg_size 72
  .amdhsa_user_sgpr_count 2
  .amdhsa_user_sgpr_kernarg_segment_ptr 1
  .amdhsa_system_sgpr_workgroup_id_x 1
.end_amdhsa_kernel""" % KN]
    open(path, "w").write("\n".join(out) + "\n")

if __name__ == "__main__":
    for kv_ in sys.argv[2:]:
        k, v = kv_.split("="); OPT[k] = eval(v)
    build(sys.argv[1])
```

```python
import sys, math, struct
from asmlib import *

NAME = "parallel_sum__softmax_full_mha__dense_activation_relu__prompt"
KN = NAME + "_kernel"
KV, AF = 0x200000, 0x600000
FKV = 0x000000
FH = 0x20000
FO = 0x40000
WS_END = 0xF00000
XBYTES = 2048 * 448 * 2
OPT = dict(bias=64.0, stamps=False, sleep=8, prioA=2)
STAMP = 0x2000000
SPIN_MAX = 1 << 17
K = 1024
NST = 12
def f32(x): return "0x%08x" % struct.unpack("<I", struct.pack("<f", x))[0]

def stamp(a, i, grp="main"):
    if i not in (0, NST - 2, NST - 1) and grp != OPT.get("sgrp", "main"): return
    if OPT["stamps"]: a("%s s[%d:%d]", "s_memtime" if OPT.get("cyc") else "s_memrealtime", 76 + 2 * i, 77 + 2 * i)
def stamp_flush(a):
    if not OPT["stamps"]: return
    stamp(a, NST - 2)
    a("s_mov_b32 s64, s46\ns_mov_b32 s65, s47\ns_mov_b32 s66, 0x10000000\ns_mov_b32 s67, 0x00020000")
    a("s_lshl_b32 s68, s2, 3\ns_add_u32 s68, s68, s3\ns_lshl_b32 s68, s68, 6")
    a("s_add_u32 s68, s68, 0x%x", STAMP)
    a("v_mov_b32 v0, 0")
    a("s_waitcnt vmcnt(0) lgkmcnt(0)")
    stamp(a, NST - 1)
    a("s_waitcnt lgkmcnt(0)")
    for i in range(NST):
        a("v_mov_b32 v1, s%d", 76 + 2 * i)
        a("buffer_store_dword v1, v0, s[64:67], s68 offen offset:%d", 4 * i)

def srd(a, d, base, nbytes):
    a("s_mov_b32 s%d, s%d", d, base)
    a("s_mov_b32 s%d, s%d", d + 1, base + 1)
    a("s_mov_b32 s%d, 0x%x", d + 2, nbytes)
    a("s_mov_b32 s%d, 0x00020000", d + 3)

class VM:
    def __init__(self, a): self.a = a; self.ops = []; self.done = 0
    def issue(self, tag): self.ops.append(tag)
    def wait(self, tag):
        idx = max(i for i, t in enumerate(self.ops) if t == tag)
        if idx < self.done: return
        n = len(self.ops) - 1 - idx
        assert n <= 63, n
        self.a("s_waitcnt vmcnt(%d)", n); self.done = idx + 1

XST = 48 * K
HA = 84 * K
QX = 148 * K
CNT = 156 * K
BST = 48 * K
NSL = 4
CA = 0
CB = 84 * K
LDS = 160 * K
MF = "v_mfma_f32_32x32x16_bf16"

def kernel():
    a = Asm()
    sWS, sX, sW, sW1, sDBG = 8, 12, 16, 20, 24
    s_w, s_rb, s_c, s_rot, s_t0, s_t1, s_cp, s_mask = 28, 29, 30, 31, 32, 33, 34, 35
    s_hi, s_ex, s_spin, s_non = 36, 38, 56, 58
    v_lane, v_l16 = 1, 2
    a.label(KN)
    a("s_cmp_ge_u32 s2, 256")
    a("s_cbranch_scc1 L_END")
    stamp(a, 0)
    a("s_load_dwordx4 s[40:43], s[0:1], 0")
    a("s_load_dwordx2 s[44:45], s[0:1], 16")
    a("s_load_dwordx4 s[48:51], s[0:1], 32")
    a("s_load_dwordx4 s[52:55], s[0:1], 48")
    a("s_load_dwordx2 s[46:47], s[0:1], 64")
    a("v_lshrrev_b32 v3, 6, v0")
    a("v_and_b32 v%d, 63, v0", v_lane)
    a("v_readfirstlane_b32 s%d, v3", s_w)
    a("v_lshlrev_b32 v%d, 4, v%d", v_l16, v_lane)
    a("s_mov_b32 s%d, 0", s_hi)
    a("s_mov_b32 s%d, -1", s_hi + 1)
    a("s_mov_b32 s%d, 0xffff0000", s_mask)
    cb_ = OPT.get("cbits", 2)
    a("s_and_b32 s%d, s2, %d", s_c, (1 << (4 - cb_)) - 1)
    a("s_lshl_b32 s%d, s%d, %d", s_c, s_c, cb_)
    a("s_bfe_u32 s%d, s2, 0x%x", s_t0, (cb_ << 16) | 3)
    a("s_or_b32 s%d, s%d, s%d", s_c, s_c, s_t0)
    a("s_lshr_b32 s%d, s2, %d", s_rb, 3 + cb_)
    if cb_ > 1:
        a("s_bfe_u32 s%d, s2, 0x%x", s_t1, ((cb_ - 1) << 16) | (4 - cb_))
        a("s_lshl_b32 s%d, s%d, %d", s_t1, s_t1, 5 - cb_)
        a("s_or_b32 s%d, s%d, s%d", s_rb, s_rb, s_t1)
    a("s_mul_i32 s%d, s%d, %d", s_rot, s_t0, {1: 3, 2: 2, 3: 1}[cb_])
    a("s_add_u32 s%d, s%d, s%d", s_rot, s_rot, s_rb)
    a("s_mul_i32 s%d, s%d, 37", s_t0, s_rot)
    a("s_lshr_b32 s%d, s%d, 8", s_t0, s_t0)
    a("s_mul_i32 s%d, s%d, 7", s_t0, s_t0)
    a("s_sub_u32 s%d, s%d, s%d", s_rot, s_rot, s_t0)
    a("s_mov_b32 s3, s%d", s_w)
    v_g, v_ch, v_rr, v_c = 4, 5, 6, 7
    a("v_lshrrev_b32 v%d, 5, v%d", v_g, v_lane)
    a("v_bfe_u32 v%d, v%d, 4, 1", v_ch, v_lane)
    a("v_bfe_u32 v%d, v%d, 2, 2", v_rr, v_lane)
    a("v_and_b32 v%d, 3, v%d", v_c, v_lane)
    v_trp = 8
    a("v_lshlrev_b32 v%d, 6, v%d", v_trp, v_rr)
    a("v_lshl_add_u32 v%d, v%d, 5, v%d", v_trp, v_ch, v_trp)
    a("v_lshl_add_u32 v%d, v%d, 3, v%d", v_trp, v_c, v_trp)
    def nxt7(reg, first):
        if first: a("s_mov_b32 s%d, s%d", reg, s_rot)
        else:
            a("s_add_u32 s%d, s%d, 1", reg, reg)
            a("s_cmp_eq_u32 s%d, 7", reg)
            a("s_cselect_b32 s%d, 0, s%d", reg, reg)
    a("s_cmp_ge_u32 s%d, 4", s_w)
    a("s_cbranch_scc1 L_B")

    a("s_setprio %d", OPT["prioA"])
    v_b1a, v_b1b, v_b2a, v_b2b, v_m, v_r = 9, 10, 11, 12, 14, 15
    v_t = 16
    X0, ACC, RING, T2, QP = 24, 136, 200, 232, 240
    v_non, v_z, v_pa, v_pd = 248, 254, 255, 252
    v_xoff = ACC; v_xa = ACC + 4; v_sum = ACC + 8; v_sq = ACC + 10
    s_xrow, s_ldsw, s_ones, s_st = 60, 61, 62, 63
    s_fl, s_rt, s_state, s_allow = 4, 5, 6, 7
    s_kvb, s_i, s_off, s_mode, s_cnt, s_tgt, s_pb, s_hdone = 16, 17, 18, 19, 20, 21, 22, 23
    s_bad, s_sm, s_ret, s_skip, s_hfl = 64, 66, 68, 70, 71
    t0, t1, t2 = v_t, v_t + 1, v_t + 2
    a("s_lshl_b32 s%d, s%d, 2", s_rt, s_rb)
    a("s_add_u32 s%d, s%d, s%d", s_rt, s_rt, s_w)
    a("s_mul_i32 s%d, s%d, %d", s_xrow, s_rt, 32 * 896)
    a("s_mul_i32 s%d, s%d, 28672", s_ldsw, s_w)
    a("s_add_u32 s%d, s%d, %d", s_ldsw, s_ldsw, XST)
    a("v_lshrrev_b32 v%d, 3, v%d", t0, v_lane)
    a("v_mul_u32_u24 v%d, 896, v%d", t0, t0)
    a("v_lshrrev_b32 v%d, 4, v%d", t1, v_lane)
    a("v_and_b32 v%d, 7, v%d", t2, v_lane)
    a("v_xor_b32 v%d, v%d, v%d", t1, t1, t2)
    a("v_lshl_add_u32 v%d, v%d, 4, v%d", v_xoff, t1, t0)
    a("v_xor_b32 v%d, 64, v%d", v_xoff + 1, v_xoff)
    a("v_add_u32 v%d, %d, v%d", v_xoff + 2, 2 * (7168 - 1024), v_xoff)
    a("v_add_u32 v%d, %d, v%d", v_xoff + 3, 3 * (7168 - 1024), v_xoff + 1)
    a("v_add_u32 v%d, %d, v%d", v_xoff + 1, 1 * (7168 - 1024), v_xoff + 1)
    a("s_waitcnt lgkmcnt(0)")
    stamp(a, 1, "p0")
    srd(a, sX, 40, XBYTES)
    XD = OPT.get("xd", 5)
    def xissue(p):
        nxt7(s_cp, p == 0)
        a("s_lshl_b32 s%d, s%d, 7", s_t0, s_cp)
        a("s_add_u32 s%d, s%d, s%d", s_t0, s_t0, s_xrow)
        a("s_add_u32 m0, s%d, %d", s_ldsw, 4096 * p)
        for i in range(4):
            a("buffer_load_dwordx4 v%d, s[%d:%d], s%d offen offset:%d lds", v_xoff + i, sX, sX + 3, s_t0, 1024 * i)
        if p == OPT.get("b0at", 6):
            a("s_barrier")
            stamp(a, 2, "p0")
    XS = OPT.get("xs", 2)
    for p in range(XS): xissue(p)
    srd(a, sWS, 46, WS_END)
    srd(a, sDBG, 54, 256)
    a("s_mov_b32 s%d, 0x3f803f80", s_ones)
    a("v_and_b32 v%d, 31, v%d", t0, v_lane)
    a("v_bfe_u32 v%d, v%d, 1, 3", t1, v_lane)
    a("v_xor_b32 v%d, v%d, v%d", t1, t1, v_g)
    a("v_lshlrev_b32 v%d, 7, v%d", t0, t0)
    a("v_lshl_add_u32 v%d, v%d, 4, v%d", t0, t1, t0)
    for q in range(4):
        a("v_xor_b32 v%d, %d, v%d", t1, 32 * q, t0)
        a("v_add_u32 v%d, s%d, v%d", v_xa + q, s_ldsw, t1)
    a("v_mul_u32_u24 v%d, 1536, v%d", v_b1a, v_g)
    a("v_add_u32 v%d, v%d, v%d", v_b1a, v_b1a, v_trp)
    a("v_add_u32 v%d, %d, v%d", v_b1b, 48 * K, v_b1a)
    a("v_lshl_add_u32 v%d, v%d, 11, v%d", v_b2b, v_g, v_trp)
    a("v_add_u32 v%d, %d, v%d", v_b2a, HA, v_b2b)
    for i in range(4): a("v_mov_b32 v%d, 0", v_sum + i)
    a("s_mov_b32 s%d, 0", s_mode)
    a("s_mov_b32 s%d, 0", s_tgt)
    a("s_mov_b32 s%d, 0", s_state)
    a("s_mov_b32 s%d, 0", s_allow)
    a("s_mov_b32 s%d, 0", s_skip)
    a("s_cmp_ge_u32 s%d, 14", s_c)
    a("s_cselect_b32 s%d, 1, 0", s_hdone)
    a("s_lshl_b32 s%d, s%d, 2", s_kvb, s_c)
    a("s_add_u32 s%d, s%d, s%d", s_kvb, s_kvb, s_w)
    a("s_lshl_b32 s%d, s%d, 16", s_kvb, s_kvb)
    a("s_add_u32 s%d, s%d, 0x%x", s_kvb, s_kvb, KV)
    a("v_and_b32 v%d, 15, v%d", t0, v_lane)
    a("v_lshlrev_b32 v%d, 7, v%d", t0, t0)
    a("v_lshl_add_u32 v%d, v%d, 13, v%d", v_pa, v_ch, t0)
    a("s_and_b32 s%d, s%d, 14", s_pb, s_c)
    a("s_lshl_b32 s%d, s%d, 2", s_pb, s_pb)
    a("s_add_u32 s%d, s%d, s%d", s_pb, s_pb, s_w)
    a("s_lshl_b32 s%d, s%d, 11", s_pb, s_pb)
    a("v_mov_b32 v%d, 0", v_z)
    a("s_lshl_b32 s%d, s%d, 6", s_fl, s_c)
    a("s_add_u32 s%d, s%d, s%d", s_fl, s_fl, s_rt)
    a("s_lshl_b32 s%d, s%d, 7", s_fl, s_fl)
    a("s_and_b32 s%d, s%d, 1", s_t0, s_c)
    a("s_and_b32 s%d, s%d, 14", s_st, s_c)
    a("s_lshl_b32 s%d, s%d, 6", s_st, s_st)
    a("s_add_u32 s%d, s%d, s%d", s_st, s_st, s_rt)
    a("s_lshl_b32 s%d, s%d, 1", s_st, s_st)
    a("s_add_u32 s%d, s%d, s%d", s_st, s_st, s_t0)
    a("s_lshl_b32 s%d, s%d, 11", s_st, s_st)
    a("s_add_u32 s%d, s%d, 0x%x", s_st, s_st, KV)
    a("s_lshr_b32 s%d, s%d, 1", s_hfl, s_rt)
    a("s_lshl_b32 s%d, s%d, 4", s_hfl, s_hfl)
    a("s_add_u32 s%d, s%d, s%d", s_hfl, s_hfl, s_c)
    a("s_lshl_b32 s%d, s%d, 1", s_hfl, s_hfl)
    a("s_and_b32 s%d, s%d, 1", s_t0, s_rt)
    a("s_add_u32 s%d, s%d, s%d", s_hfl, s_hfl, s_t0)
    a("s_lshl_b32 s%d, s%d, 7", s_hfl, s_hfl)
    a("s_add_u32 s%d, s%d, 0x%x", s_hfl, s_hfl, FH)
    for p in range(XS, XD): xissue(p)
    stamp(a, 1); stamp(a, 3, "p0")
    def xread(p):
        for q in range(4):
            a("ds_read_b128 %s, v%d offset:%d", vr(X0 + 16 * p + 4 * q, 4), v_xa + q, 4096 * p)
    def xstat(p):
        for j in range(16):
            x = X0 + 16 * p + j
            a("v_dot2c_f32_bf16 v%d, s%d, v%d", v_sum + (j & 1), s_ones, x)
            a("v_dot2c_f32_bf16 v%d, v%d, v%d", v_sq + (j & 1), x, x)
    issued = XD
    for p in range(8):
        if p < 7:
            a("s_waitcnt vmcnt(%d)", 4 * (issued - 1 - p))
            if p == 0: stamp(a, 4, "p0")
            if p == 3: stamp(a, 5, "p0")
            if p == 6: stamp(a, 6, "p0")
            xread(p)
            if issued < 7: xissue(issued); issued += 1
        if p > 0:
            a("s_waitcnt lgkmcnt(%d)", 4 if p < 7 else 0)
            if p == 7:
                stamp(a, 2); stamp(a, 7, "p0")
            xstat(p - 1)
    a("v_add_f32 v%d, v%d, v%d", v_sum, v_sum, v_sum + 1)
    a("v_add_f32 v%d, v%d, v%d", v_sq, v_sq, v_sq + 1)
    a("v_mov_b32 v%d, v%d", v_sum + 1, v_sum)
    a("v_mov_b32 v%d, v%d", v_sq + 1, v_sq)
    a("v_permlane32_swap_b32 v%d, v%d", v_sum, v_sum + 1)
    a("v_permlane32_swap_b32 v%d, v%d", v_sq, v_sq + 1)
    a("v_add_f32 v%d, v%d, v%d", v_sum, v_sum, v_sum + 1)
    a("v_add_f32 v%d, v%d, v%d", v_sq, v_sq, v_sq + 1)
    a("v_mul_f32 v%d, %s, v%d", v_sum, f32(1.0 / 448), v_sum)
    a("v_mul_f32 v%d, %s, v%d", v_sq, f32(1.0 / 448), v_sq)
    a("v_fma_f32 v%d, -v%d, v%d, v%d", v_sq, v_sum, v_sum, v_sq)
    a("v_max_f32 v%d, 0, v%d", v_sq, v_sq)
    a("v_cvt_pk_bf16_f32 v%d, v%d, v%d", t0, v_sum, v_sq)
    a("v_lshlrev_b32 v%d, 16, v%d", v_m, t0)
    a("v_and_b32 v%d, s%d, v%d", t0, s_mask, t0)
    a("v_add_f32 v%d, %s, v%d", t0, f32(1e-5), t0)
    a("v_cvt_pk_bf16_f32 v%d, v%d, v%d", t0, t0, t0)
    a("v_and_b32 v%d, s%d, v%d", t0, s_mask, t0)
    a("v_sqrt_f32 v%d, v%d", t0, t0)
    a("v_cvt_pk_bf16_f32 v%d, v%d, v%d", t0, t0, t0)
    a("v_and_b32 v%d, s%d, v%d", t0, s_mask, t0)
    a("v_rcp_f32 v%d, v%d", v_r, t0)
    a("v_mul_f32 v%d, v%d, v%d", v_m, v_m, v_r)
    def norm_ops(s):
        seqs = []
        for j in range(4):
            x = X0 + 4 * s + j; lo = (v_t if s & 1 else T2) + 2 * j; hi = lo + 1
            seqs.append(["v_lshlrev_b32 v%d, 16, v%d" % (lo, x), "v_and_b32 v%d, s%d, v%d" % (hi, s_mask, x),
                         "v_fma_f32 v%d, v%d, v%d, -v%d" % (lo, lo, v_r, v_m), "v_fma_f32 v%d, v%d, v%d, -v%d" % (hi, hi, v_r, v_m),
                         "v_cvt_pk_bf16_f32 v%d, v%d, v%d" % (x, lo, hi)])
        return [seqs[j][k] for k in range(5) for j in range(4)]
    def acc(t): return vr(ACC + 16 * t, 16)
    def rd1(n):
        s, t = divmod(n, 3); p, q = divmod(s, 4)
        base, off = (v_b1a, p * 12288) if p < 4 else (v_b1b, (p - 4) * 12288)
        for h in range(2):
            a("ds_read_b64_tr_b16 %s, v%d offset:%d", vr(RING + 4 * (n % 8) + 2 * h, 2), base, off + q * 3072 + h * 768 + t * 256)
    def rd2(n):
        s, t = divmod(n, 4); p, q = divmod(s, 4)
        base, off = (v_b2a, p * 16384) if p < 4 else (v_b2b, (p - 4) * 16384)
        for h in range(2):
            a("ds_read_b64_tr_b16 %s, v%d offset:%d", vr(RING + 4 * (n % 8) + 2 * h, 2), base, off + q * 4096 + h * 1024 + t * 256)
    stamp(a, 8, "p0")
    a("s_barrier")
    stamp(a, 9, "p0")
    for n in range(7): rd1(n)
    a("buffer_load_dwordx2 %s, v%d, s[%d:%d], 0 offen sc1", vr(v_non, 2), v_z, sDBG, sDBG + 3)
    allnorm = [o for s_ in range(28) for o in norm_ops(s_)]
    for o in allnorm[:26]: a(o)
    stamp(a, 3)
    a("s_bitcmp1_b32 s%d, 0", s_c)
    a("s_cbranch_scc1 L_P1V")
    def pass1(swap):
        pos = 26
        for s in range(28):
            if s == 0: stamp(a, 1, "p1")
            if s % 4 == 1 and s < 25:
                if s in (1, 9, 17, 21): stamp(a, {1: 2, 9: 4, 17: 6, 21: 8}[s], "p1")
                a("s_barrier")
                if s in (1, 9, 17, 21): stamp(a, {1: 3, 9: 5, 17: 7, 21: 9}[s], "p1")
            a("s_waitcnt lgkmcnt(%d)", min(8, 6 * (27 - s)))
            for t in range(3):
                n = 3 * s + t
                wf = vr(RING + 4 * (n % 8), 4); xf = vr(X0 + 4 * s, 4)
                A, B = (xf, wf) if (swap and t < 2) else (wf, xf)
                a("%s %s, %s, %s, %s", MF, acc(t), A, B, acc(t) if s else "0")
                if n + 7 < 84: rd1(n + 7)
                k = (7, 7, 6)[t]
                for o in allnorm[pos:pos + k]: a(o)
                pos += k
    def pack(t, kind, dst=None):
        b = ACC + 16 * t
        d = b if dst is None else dst
        for jj in range(8):
            if kind == "q":
                a("v_mul_f32 v%d, s%d, v%d", b + 2 * jj, s_t1, b + 2 * jj)
                a("v_mul_f32 v%d, s%d, v%d", b + 2 * jj + 1, s_t1, b + 2 * jj + 1)
            a("v_cvt_pk_bf16_f32 v%d, v%d, v%d", d + jj, b + 2 * jj, b + 2 * jj + 1)
            if kind == "h": a("v_pk_max_i16 v%d, v%d, 0", d + jj, d + jj)
        if kind == "q":
            a("v_cndmask_b32 v%d, v%d, 0, s[%d:%d]", d + 6, d + 6, s_hi, s_hi + 1)
            a("v_cndmask_b32 v%d, v%d, 0, s[%d:%d]", d + 7, d + 7, s_hi, s_hi + 1)
        elif kind == "k":
            a("v_cndmask_b32 v%d, v%d, v%d, s[%d:%d]", d + 6, d + 6, v_t, s_hi, s_hi + 1)
            a("v_cndmask_b32 v%d, v%d, v%d, s[%d:%d]", d + 7, d + 7, v_t + 1, s_hi, s_hi + 1)
        elif kind == "v":
            for jj in range(8):
                a("v_cndmask_b32 v%d, v%d, v%d, s[%d:%d]", d + jj, d + jj, v_t, s_ex, s_ex + 1)
    def kv_epilogue(kind):
        for t in range(2):
            pack(t, kind)
            for f in range(2):
                a("buffer_store_dwordx4 %s, v%d, s[%d:%d], s%d offen offset:%d sc1", vr(ACC + 16 * t + 4 * f, 4), v_l16, sWS, sWS + 3, s_st, 1024 * f)
            if t == 0: a("s_add_u32 s%d, s%d, 262144", s_st, s_st)
    nn = [0]
    def get_nonce():
        n = nn[0]; nn[0] += 1
        a("s_waitcnt vmcnt(0)")
        a("s_mov_b32 s%d, %d", s_spin, SPIN_MAX)
        a.label("L_NSP%d" % n)
        a("v_readfirstlane_b32 s%d, v%d", s_non, v_non)
        a("v_readfirstlane_b32 s%d, v%d", s_non + 1, v_non + 1)
        a("s_cmp_lg_u32 s%d, 0", s_non)
        a("s_cbranch_scc1 L_NOK%d" % n)
        a("buffer_load_dwordx2 %s, v%d, s[%d:%d], 0 offen sc1", vr(v_non, 2), v_z, sDBG, sDBG + 3)
        a("s_sub_u32 s%d, s%d, 1", s_spin, s_spin)
        a("s_cbranch_scc1 L_NOK%d" % n)
        a("s_waitcnt vmcnt(0)")
        a("s_branch L_NSP%d" % n)
        a.label("L_NOK%d" % n)
        a("v_mov_b32 v%d, v%d", v_non + 2, v_non)
        a("v_mov_b32 v%d, v%d", v_non + 3, v_non + 1)
    pass1(False)
    stamp(a, 4); stamp(a, 1, "p2")
    a("v_mov_b32 v%d, 0x3f803f80", v_t)
    a("v_mov_b32 v%d, 0x00003f80", v_t + 1)
    get_nonce()
    kv_epilogue("k")
    a("s_branch L_EQ")
    a.label("L_P1V")
    pass1(True)
    stamp(a, 4); stamp(a, 1, "p2")
    a("s_mov_b32 s%d, 0x10000000", s_ex)
    a("s_mov_b32 s%d, 0x10000000", s_ex + 1)
    a("v_mov_b32 v%d, 0x3f803f80", v_t + 1)
    a("v_cndmask_b32 v%d, 0, v%d, s[%d:%d]", v_t, v_t + 1, s_ex, s_ex + 1)
    a("s_mov_b32 s%d, 0xf0000000", s_ex)
    a("s_mov_b32 s%d, 0xf0000000", s_ex + 1)
    get_nonce()
    kv_epilogue("v")
    a.label("L_EQ")
    stamp(a, 2, "p2")
    a("s_barrier")
    stamp(a, 3, "p2")
    for n in range(7): rd2(n)
    a("s_mov_b32 s%d, %s", s_t1, f32(28 ** -0.5 * math.log2(math.e)))
    pack(2, "q", QP)
    stamp(a, 5); stamp(a, 4, "p2")
    KV0, Q0, P0, O0, S0, MX = 24, 88, 120, 136, 200, 232
    def q(u, f): return vr(QP + 4 * f, 4) if u == 0 else vr(Q0 + 8 * u + 4 * f, 4)
    def qreg(u, r): return (QP if u == 0 else Q0 + 8 * u) + r
    def o(u): return vr(O0 + 16 * u, 16)
    def kv(st, f): return vr(KV0 + 16 * st + 4 * f, 4)
    def kvload(st, fr=(0, 1, 2, 3)):
        a("s_add_u32 s%d, s%d, s%d", s_off, s_i, s_rb)
        a("s_and_b32 s%d, s%d, 15", s_off, s_off)
        a("s_lshl_b32 s%d, s%d, 12", s_off, s_off)
        a("s_add_u32 s%d, s%d, s%d", s_off, s_off, s_kvb)
        for f in fr:
            a("buffer_load_dwordx4 %s, v%d, s[%d:%d], s%d offen offset:%d sc1", kv(st, f), v_l16, sWS, sWS + 3, s_off, 1024 * f)
        a("s_add_u32 s%d, s%d, 1", s_i, s_i)
    def kvflag():
        a("s_waitcnt vmcnt(0)")
        a("s_mov_b64 exec, 0xff")
        a("buffer_store_dwordx4 %s, v%d, s[%d:%d], s%d offen sc1", vr(v_non, 4), v_l16, sWS, sWS + 3, s_fl)
        a("s_mov_b64 exec, -1")
        a("s_mov_b32 s%d, 1", s_skip)
        stamp(a, 5, "p2")
    def pollld():
        a("buffer_load_dwordx2 %s, v%d, s[%d:%d], s%d offen sc1", vr(v_pd, 2), v_pa, sWS, sWS + 3, s_pb)
    a("s_cmp_ge_u32 s%d, 14", s_c)
    a("s_cbranch_scc0 L_P2")
    kvflag()
    a("s_barrier")
    a("s_waitcnt lgkmcnt(0)")
    pollld()
    a("s_branch L_SLOW")
    a.label("L_P2")
    FL = OPT.get("fl", 16)
    PS = OPT.get("ps", 21)
    stubs = []
    for s in range(28):
        if s % 4 == 0: stamp(a, 1 + s // 4, "p5")
        if s == 14: a("s_barrier")
        a("s_waitcnt lgkmcnt(%d)", 6 if s < 27 else 0)
        for t in range(4):
            n = 4 * s + t
            a("%s %s, %s, %s, %s", MF, acc(t), vr(RING + 4 * (n % 8), 4), vr(X0 + 4 * s, 4), acc(t) if s else "0")
            if n + 7 < 112: rd2(n + 7)
            if 2 <= s <= FL:
                if t == 0 and s < FL: a("s_getreg_b32 s%d, hwreg(HW_REG_IB_STS, 0, 4)", s_t0)
                if t == 1 and s < FL: a("s_or_b32 s%d, s%d, s%d", s_t0, s_t0, s_skip)
                if t == 1 and s == FL: a("s_cmp_lg_u32 s%d, 0", s_skip)
                if t == 2:
                    a("s_cbranch_scc0 L_STUB%d" % s); a.label("L_BACK%d" % s); stubs.append(s)
            if s == PS and t == 0: pollld()
    stamp(a, 7, "p2"); stamp(a, 1, "p3"); stamp(a, 8, "p5")
    a("s_lshr_b32 s%d, s%d, 1", s_t0, s_rt)
    a("s_mul_i32 s%d, s%d, 18", s_st, s_t0)
    a("s_add_u32 s%d, s%d, s%d", s_st, s_st, s_c)
    a("s_lshl_b32 s%d, s%d, 4", s_st, s_st)
    a("s_and_b32 s%d, s%d, 1", s_t1, s_rt)
    a("s_add_u32 s%d, s%d, s%d", s_st, s_st, s_t1)
    a("s_lshl_b32 s%d, s%d, 10", s_st, s_st)
    a("s_add_u32 s%d, s%d, 0x%x", s_st, s_st, AF)
    def check(n):
        a("s_waitcnt vmcnt(0)")
        a("v_cmp_ne_u64 vcc, s[%d:%d], %s", s_non, s_non + 1, vr(v_pd, 2))
        a("s_cbranch_vccnz L_CK%da" % n)
        a("s_mov_b32 s%d, 0", s_i)
        kvload(0); kvload(1); kvload(2)
        a("s_mov_b32 s%d, 3", s_state)
        stamp(a, 6, "p2")
        a("s_branch L_CK%db" % n)
        a.label("L_CK%da" % n)
        pollld()
        a.label("L_CK%db" % n)
    check(0)
    for t in range(4): pack(t, "h")
    a("s_cmp_eq_u32 s%d, 3", s_state)
    a("s_cbranch_scc1 L_CK1b")
    check(1)
    for t in range(4):
        for f in range(2):
            a("buffer_store_dwordx4 %s, v%d, s[%d:%d], s%d offen offset:%d sc1", vr(ACC + 16 * t + 4 * f, 4), v_l16, sWS, sWS + 3, s_st, 2048 * f)
        if t < 3: a("s_add_u32 s%d, s%d, 4096", s_st, s_st)
    stamp(a, 6); stamp(a, 8, "p2"); stamp(a, 2, "p3"); stamp(a, 9, "p5")
    a("s_cmp_eq_u32 s%d, 3", s_state)
    a("s_cbranch_scc0 L_SLOW")
    a("s_waitcnt vmcnt(16)")
    a("s_branch L_LOADED")
    for s_ in stubs:
        a.label("L_STUB%d" % s_)
        kvflag()
        a("s_branch L_BACK%d" % s_)
    a.label("L_SLOW")
    a("s_mov_b32 s%d, %d", s_spin, SPIN_MAX)
    a.label("L_AP")
    check(2)
    a("s_cmp_eq_u32 s%d, 3", s_state)
    a("s_cbranch_scc1 L_APX")
    a("s_sub_u32 s%d, s%d, 1", s_spin, s_spin)
    if OPT.get("sleepA", 0): a("s_sleep %d", OPT["sleepA"])
    a("s_cbranch_scc0 L_AP")
    a.label("L_APX")
    a("s_waitcnt vmcnt(0)")
    a.label("L_LOADED")
    stamp(a, 7); stamp(a, 9, "p2"); stamp(a, 3, "p3")
    nsync = [0]
    def async_():
        n = nsync[0]; nsync[0] += 1
        a("v_mov_b32 v12, %d", CNT)
        a("v_mov_b32 v13, 1")
        a("s_add_u32 s%d, s%d, 4", s_tgt, s_tgt)
        a("s_mov_b64 exec, 1")
        a("ds_add_u32 v12, v13")
        a("s_mov_b64 exec, -1")
        a("s_mov_b32 s%d, %d", s_spin, SPIN_MAX)
        a.label("L_AS%d" % n)
        a("ds_read_b32 v13, v12")
        a("s_sub_u32 s%d, s%d, 1", s_spin, s_spin)
        a("s_cbranch_scc1 L_ASX%d" % n)
        a("s_waitcnt lgkmcnt(0)")
        a("v_readfirstlane_b32 s%d, v13", s_t0)
        a("s_cmp_lt_u32 s%d, s%d", s_t0, s_tgt)
        a("s_cbranch_scc1 L_AS%d" % n)
        a.label("L_ASX%d" % n)
    def split_m(m, h0, h1, h2):
        a("v_sub_f32 v%d, 0, v%d", m, m)
        a("v_and_b32 v%d, s%d, v%d", h0, s_mask, m)
        a("v_sub_f32 v%d, v%d, v%d", m, m, h0)
        a("v_and_b32 v%d, s%d, v%d", h1, s_mask, m)
        a("v_sub_f32 v%d, v%d, v%d", m, m, h1)
        a("v_lshrrev_b32 v%d, 16, v%d", h0, h0)
        a("v_or_b32 v%d, v%d, v%d", h0, h0, h1)
        a("v_lshrrev_b32 v%d, 16, v%d", h2, m)
    def patch(u, h0, h2):
        a("v_cndmask_b32 v%d, v%d, %s, s[%d:%d]", qreg(u, 6), qreg(u, 6), h0, s_hi, s_hi + 1)
        a("v_cndmask_b32 v%d, v%d, %s, s[%d:%d]", qreg(u, 7), qreg(u, 7), h2, s_hi, s_hi + 1)
    a("%s %s, %s, %s, 0", MF, vr(S0, 16), kv(0, 0), q(0, 0))
    a("%s %s, %s, %s, %s", MF, vr(S0, 16), kv(0, 1), q(0, 1), vr(S0, 16))
    for u in range(4):
        a("s_add_u32 s%d, s%d, %d", s_t1, s_w, u)
        a("s_and_b32 s%d, s%d, 3", s_t1, s_t1)
        a("s_lshl_b32 s%d, s%d, 11", s_t1, s_t1)
        a("s_add_u32 s%d, s%d, %d", s_t1, s_t1, QX)
        a("v_add_u32 v%d, s%d, v%d", v_t + u, s_t1, v_l16)
    a("ds_write_b128 v%d, %s", v_t, q(0, 0))
    a("v_max3_f32 v%d, v%d, v%d, v%d", MX, S0, S0 + 1, S0 + 2)
    a("v_max3_f32 v%d, v%d, v%d, v%d", MX + 1, S0 + 3, S0 + 4, S0 + 5)
    for j in range(6, 14, 4):
        a("v_max3_f32 v%d, v%d, v%d, v%d", MX, S0 + j, S0 + j + 1, MX)
        a("v_max3_f32 v%d, v%d, v%d, v%d", MX + 1, S0 + j + 2, S0 + j + 3, MX + 1)
    a("v_max3_f32 v%d, v%d, v%d, v%d", MX, S0 + 14, S0 + 15, MX)
    a("v_max_f32 v%d, v%d, v%d", MX, MX, MX + 1)
    a("v_mov_b32 v%d, v%d", MX + 1, MX)
    a("v_permlane32_swap_b32 v%d, v%d", MX, MX + 1)
    a("v_max_f32 v%d, v%d, v%d", MX, MX, MX + 1)
    a("v_add_f32 v%d, %s, v%d", MX, f32(OPT["bias"]), MX)
    split_m(MX, MX + 2, MX + 1, MX + 3)
    patch(0, "v%d" % (MX + 2), "v%d" % (MX + 3))
    a("ds_write_b128 v%d, %s offset:1024", v_t, q(0, 1))
    stamp(a, 4, "p3")
    async_()
    stamp(a, 5, "p3")
    for u in range(1, 4):
        for f in range(2):
            a("ds_read_b128 %s, v%d offset:%d", q(u, f), v_t + u, 1024 * f)
    a("s_branch L_GO")
    a.label("L_RESTART")
    a("s_mov_b32 s%d, 0", s_i)
    kvload(0); kvload(1); kvload(2)
    for u in range(4):
        a("v_mov_b32 v%d, 0xff800000", MX + u)
        patch(u, "0", "0")
    a("s_mov_b32 s%d, 0", s_i)
    a.label("L_MAXLOOP")
    kvload(3, (0, 1))
    a("s_waitcnt vmcnt(0)")
    for u in range(4):
        a("%s %s, %s, %s, 0", MF, o(u), kv(3, 0), q(u, 0))
        a("%s %s, %s, %s, %s", MF, o(u), kv(3, 1), q(u, 1), o(u))
    for u in range(4):
        for j in range(8):
            a("v_max3_f32 v%d, v%d, v%d, v%d", MX + u, O0 + 16 * u + 2 * j, O0 + 16 * u + 2 * j + 1, MX + u)
    a("s_cmp_lt_u32 s%d, 16", s_i)
    a("s_cbranch_scc1 L_MAXLOOP")
    a("s_mov_b32 s%d, 3", s_i)
    for u in range(4): a("v_mov_b32 v%d, v%d", v_t + u, MX + u)
    for u in range(4): a("v_permlane32_swap_b32 v%d, v%d", MX + u, v_t + u)
    for u in range(4): a("v_max_f32 v%d, v%d, v%d", MX + u, MX + u, v_t + u)
    a("v_lshlrev_b32 v%d, 2, v%d", v_t + 4, v_lane)
    for u in range(4):
        a("s_add_u32 s%d, s%d, %d", s_t1, s_w, u)
        a("s_and_b32 s%d, s%d, 3", s_t1, s_t1)
        a("s_lshl_b32 s%d, s%d, 10", s_t1, s_t1)
        a("s_add_u32 s%d, s%d, %d", s_t1, s_t1, QX)
        a("v_add_u32 v%d, s%d, v%d", v_t + u, s_t1, v_t + 4)
    a("s_lshl_b32 s%d, s%d, 8", s_t0, s_w)
    for u in range(4):
        a("v_add_u32 v%d, s%d, v%d", v_t + 5, s_t0, v_t + u)
        a("ds_write_b32 v%d, v%d", v_t + 5, MX + u)
    async_()
    for u in range(4):
        a("ds_read2_b32 %s, v%d offset0:0 offset1:64", vr(S0 + 4 * u, 2), v_t + u)
        a("ds_read2_b32 %s, v%d offset0:128 offset1:192", vr(S0 + 4 * u + 2, 2), v_t + u)
    a("s_waitcnt lgkmcnt(0)")
    for u in range(4):
        a("v_max3_f32 v%d, v%d, v%d, v%d", MX + u, S0 + 4 * u, S0 + 4 * u + 1, S0 + 4 * u + 2)
        a("v_max_f32 v%d, v%d, v%d", MX + u, MX + u, S0 + 4 * u + 3)
    for u in range(4):
        split_m(MX + u, v_t, v_t + 1, v_t + 2)
        patch(u, "v%d" % v_t, "v%d" % (v_t + 2))
    a.label("L_GO")
    def S(n): return S0 + 16 * (n & 1)
    def P(n): return P0 + 8 * (n & 1)
    def qk(n, f):
        i, u = n >> 2, n & 3
        d = vr(S(n), 16)
        return "%s %s, %s, %s, %s" % (MF, d, kv(i & 3, f), q(u, f), d if f else "0")
    def pv(n, f, init=False):
        i, u = n >> 2, n & 3
        return "%s %s, %s, %s, %s" % (MF, o(u), kv(i & 3, 2 + f), vr(P(n) + 4 * f, 4), "0" if (init and f == 0) else o(u))
    PAT = OPT.get("pat", ((4, 0), (4, 2), (4, 2), (4, 4)))
    def slot(n, g0, last, loads):
        i, u = n >> 2, n & 3
        m = [None, None] if last else [qk(n + 1, 0), qk(n + 1, 1)]
        m += [None, None] if (g0 and n == 0) else [pv(n - 1, 0, g0 and n <= 4), pv(n - 1, 1)]
        free = [[], [], [], []]
        if u == 2 and loads["wait"] is not None: free[3].append("s_waitcnt vmcnt(%d)" % loads["wait"])
        if loads["issue"]:
            st = (i + 3) & 3
            if u == 0:
                free[0].append("s_add_u32 s%d, s%d, s%d" % (s_off, s_i, s_rb))
                free[1].append("s_and_b32 s%d, s%d, 15" % (s_off, s_off))
                free[2].append("s_lshl_b32 s%d, s%d, 12" % (s_off, s_off))
                free[3].append("s_add_u32 s%d, s%d, s%d" % (s_off, s_off, s_kvb))
            if u == 1:
                free[0] += ["buffer_load_dwordx4 %s, v%d, s[%d:%d], s%d offen offset:%d sc1" % (kv(st, f), v_l16, sWS, sWS + 3, s_off, 1024 * f) for f in range(4)]
                free[1].append("s_add_u32 s%d, s%d, 1" % (s_i, s_i))
        ne = nc = 0
        for k in range(4):
            if m[k]: a(m[k])
            for x in free[k]: a(x)
            if g0 and n == OPT.get("hfn", 10) and k == 3:
                a("s_cmp_lg_u32 s%d, 0", s_hdone)
                a("s_cbranch_scc1 L_HF")
                a("s_mov_b64 exec, 0xff")
                a("buffer_store_dwordx4 %s, v%d, s[%d:%d], s%d offen sc1", vr(v_non, 4), v_l16, sWS, sWS + 3, s_hfl)
                a("s_mov_b64 exec, -1")
                a("s_mov_b32 s%d, 1", s_hdone)
                a.label("L_HF")
            for j in range(PAT[k][0]):
                a("v_exp_f32 v%d, v%d", S(n) + ne, S(n) + ne); ne += 1
            for j in range(PAT[k][1]):
                assert 2 * nc + 1 < ne
                a("v_cvt_pk_bf16_f32 v%d, v%d, v%d", P(n) + nc, S(n) + 2 * nc, S(n) + 2 * nc + 1); nc += 1
        assert ne == 16 and nc == 8
    stamp(a, 8); stamp(a, 6, "p3")
    a(qk(0, 0)); a(qk(0, 1))
    a("s_waitcnt lgkmcnt(0)")
    def group(g, last_group):
        for n in range(16):
            i = n >> 2
            issue = (not last_group) or i == 0
            wait = {0: 8, 1: 4, 2: 0, 3: None}[i] if last_group else (16 if (g == 0 and i < OPT.get("hfn", 10) // 4) else 8)
            slot(n, g == 0, last_group and n == 15, dict(issue=issue, wait=wait))
    group(0, False)
    stamp(a, 7, "p3")
    a("s_mov_b32 s%d, 2", s_cnt)
    a.label("L_LOOP")
    group(1, False)
    a("s_sub_u32 s%d, s%d, 1", s_cnt, s_cnt)
    a("s_cmp_lg_u32 s%d, 0", s_cnt)
    a("s_cbranch_scc1 L_LOOP")
    stamp(a, 8, "p3")
    group(3, True)
    a(pv(15, 0)); a(pv(15, 1))
    stamp(a, 9); stamp(a, 9, "p3"); stamp(a, 1, "p4")
    for u in range(1, 4):
        a("s_add_u32 s%d, s%d, %d", s_t1, s_w, u)
        a("s_and_b32 s%d, s%d, 3", s_t1, s_t1)
        a("s_mul_i32 s%d, s%d, 12288", s_t1, s_t1)
        a("v_add_u32 v%d, s%d, v%d", v_t + u, s_t1, v_l16)
    for u in range(1, 4):
        for qd in range(4):
            a("ds_write_b128 v%d, %s offset:%d", v_t + u, vr(O0 + 16 * u + 4 * qd, 4), CA + (u - 1) * 4096 + qd * 1024)
    a("s_mul_i32 s%d, s%d, 12288", s_t1, s_w)
    a("v_add_u32 v%d, s%d, v%d", v_t, s_t1, v_l16)
    stamp(a, 2, "p4")
    async_()
    stamp(a, 3, "p4")
    for u in range(1, 4):
        for qd in range(4):
            a("ds_read_b128 %s, v%d offset:%d", vr(O0 + 16 * u + 4 * qd, 4), v_t, CA + (u - 1) * 4096 + qd * 1024)
    a("s_lshr_b32 s%d, s%d, 1", s_t1, s_rt)
    a("s_mul_i32 s%d, s%d, 72", s_t1, s_t1)
    a("s_add_u32 s%d, s%d, s%d", s_t1, s_t1, s_c)
    a("s_add_u32 s%d, s%d, 56", s_t1, s_t1)
    a("s_lshl_b32 s%d, s%d, 2", s_t1, s_t1)
    a("s_and_b32 s%d, s%d, 1", s_t0, s_rt)
    a("s_add_u32 s%d, s%d, s%d", s_t1, s_t1, s_t0)
    a("s_lshl_b32 s%d, s%d, 10", s_t1, s_t1)
    a("s_add_u32 s%d, s%d, 0x%x", s_t1, s_t1, AF)
    a("s_add_u32 s%d, s%d, 0x%x", s_fl, s_hfl, FO - FH)
    a("s_waitcnt lgkmcnt(8)")
    for j in range(16): a("v_add_f32 v%d, v%d, v%d", O0 + j, O0 + j, O0 + 16 + j)
    a("s_waitcnt lgkmcnt(0)")
    for j in range(16): a("v_add_f32 v%d, v%d, v%d", O0 + 32 + j, O0 + 32 + j, O0 + 48 + j)
    for j in (12,) + tuple(range(12)) + (13, 14, 15):
        a("v_add_f32 v%d, v%d, v%d", O0 + j, O0 + j, O0 + 32 + j)
        if j == 12:
            a("v_mov_b32 v%d, v%d", v_t, O0 + 12)
            a("v_mov_b32 v%d, v%d", v_t + 1, O0 + 12)
        if j == 2: a("v_permlane32_swap_b32 v%d, v%d", v_t, v_t + 1)
        if j == 5: a("v_rcp_f32 v%d, v%d", v_t + 2, v_t + 1)
    a("v_maximum3_f32 v%d, abs(v%d), abs(v%d), abs(v%d)", v_t + 3, O0, O0 + 1, O0 + 2)
    for j in range(3, 15, 2):
        a("v_maximum3_f32 v%d, abs(v%d), abs(v%d), v%d", v_t + 3, O0 + j, O0 + j + 1, v_t + 3)
    a("v_maximum3_f32 v%d, abs(v%d), abs(v%d), v%d", v_t + 3, O0 + 15, O0 + 15, v_t + 3)
    a("v_mov_b32 v%d, 0x7e800000", v_t + 4)
    a("v_cmp_nlt_f32 s[%d:%d], v%d, v%d", s_bad, s_bad + 1, v_t + 3, v_t + 4)
    for j in range(16):
        a("v_mul_f32 v%d, v%d, v%d", O0 + j, O0 + j, v_t + 2)
    for jj in range(8):
        a("v_cvt_pk_bf16_f32 v%d, v%d, v%d", P0 + jj, O0 + 2 * jj, O0 + 2 * jj + 1)
    stamp(a, 4, "p4")
    a("s_or_b32 s%d, s%d, s%d", s_bad, s_bad, s_bad + 1)
    a("s_cmp_lg_u32 s%d, 0", s_mode)
    a("s_cselect_b32 s%d, 0, s%d", s_bad, s_bad)
    a("s_cmp_lg_u32 s%d, 0", s_bad)
    a("s_cbranch_scc1 L_NOPUB")
    a("s_cmp_eq_u32 s%d, 2", s_mode)
    a("s_cbranch_scc1 L_NOPUB")
    for f in range(2):
        a("buffer_store_dwordx4 %s, v%d, s[%d:%d], s%d offen offset:%d sc1", vr(P0 + 4 * f, 4), v_l16, sWS, sWS + 3, s_t1, 2048 * f)
    a("s_mov_b64 exec, 0xff")
    stamp(a, 5, "p4")
    a("s_waitcnt vmcnt(0)")
    stamp(a, 6, "p4")
    a("buffer_store_dwordx4 %s, v%d, s[%d:%d], s%d offen sc1", vr(v_non, 4), v_l16, sWS, sWS + 3, s_fl)
    a("s_mov_b64 exec, -1")
    a.label("L_NOPUB")
    a("s_cmp_lg_u32 s%d, 0", s_mode)
    a("s_cbranch_scc1 L_AEND")
    a("v_mov_b32 v%d, %d", v_t, CNT + 4)
    a("v_mov_b32 v%d, s%d", v_t + 1, s_bad)
    a("ds_or_b32 v%d, v%d", v_t, v_t + 1)
    async_()
    a("ds_read_b32 v%d, v%d", v_t + 1, v_t)
    a("s_waitcnt lgkmcnt(0)")
    a("v_readfirstlane_b32 s%d, v%d", s_t0, v_t + 1)
    a("s_cmp_eq_u32 s%d, 0", s_t0)
    a("s_cbranch_scc1 L_AEND")
    a("s_cmp_lg_u32 s%d, 0", s_bad)
    a("s_cselect_b32 s%d, 1, 2", s_mode)
    a("s_branch L_RESTART")
    a.label("L_AEND")
    stamp_flush(a)
    a("s_endpgm")

    a.label("L_B")
    sW2 = 12
    NE = OPT.get("ne", 18)
    BACC, E0 = 16, 80
    HR = E0 + 8 * NE
    def wslot(i): return E0 + 8 * (i % NE)
    NH = (256 - HR) // 8
    v_gd = 20
    v_hd, v_rw, v_sw, v_sr, v_a0, v_a1, v_xo, v_oo = 10, 11, 12, 13, 14, 15, 3, 0
    s_xo, s_gb, s_hb, s_ab, s_rb64, s_cb, s_k, s_kr = 60, 61, 62, 63, 4, 5, 6, 7
    s_cph, s_stg, s_w2b = 57, 70, 71
    a("s_and_b32 s%d, s%d, 3", s_w, s_w)
    a("s_and_b32 s%d, s%d, 14", s_t0, s_c)
    a("s_mul_i32 s%d, s%d, 56", s_t0, s_t0)
    a("s_and_b32 s%d, s%d, 1", s_t1, s_c)
    a("s_add_u32 s%d, s%d, 1", s_t1, s_t1)
    a("s_mul_i32 s%d, s%d, 896", s_t1, s_t1)
    a("s_add_u32 s%d, s%d, s%d", s_t0, s_t0, s_t1)
    a("s_mul_i32 s%d, s%d, 56", s_t1, s_c)
    a("v_lshrrev_b32 v16, 4, v%d", v_lane)
    a("v_mov_b32 v24, s%d", s_t1)
    for i in range(3):
        a("v_add_u32 v17, %d, v16", 4 * i)
        a("v_mul_u32_u24 v18, 43, v17")
        a("v_lshrrev_b32 v18, 7, v18")
        a("v_mul_u32_u24 v19, 3, v18")
        a("v_sub_u32 v19, v17, v19")
        a("v_cmp_eq_u32 s[%d:%d], 2, v19", s_ex, s_ex + 1)
        a("v_mul_u32_u24 v19, 56, v19")
        a("v_add_u32 v19, s%d, v19", s_t0)
        a("v_cndmask_b32 v19, v19, v24, s[%d:%d]", s_ex, s_ex + 1)
        a("v_lshl_add_u32 v18, v18, 2, v%d", v_rr)
        a("v_mul_u32_u24 v18, 2688, v18")
        a("v_lshl_add_u32 v19, v%d, 4, v19", v_c)
        a("v_add_u32 v%d, v18, v19", v_gd + i)
        if i: a("v_subrev_u32 v%d, %d, v%d", v_gd + i, 1024 * i, v_gd + i)
    a("s_mul_i32 s%d, s%d, %d", s_gb, s_w, 16 * 2688)
    a("s_waitcnt lgkmcnt(0)")
    srd(a, sW, 42, 448 * 1344 * 2)
    vm = VM(a)
    def G(p):
        nxt7(s_cp, p == 0)
        a("s_mul_i32 s%d, s%d, %d", s_t0, s_cp, 64 * 2688)
        a("s_add_u32 s%d, s%d, s%d", s_t0, s_t0, s_gb)
        a("s_mul_i32 s%d, s%d, 3072", s_t1, s_w)
        a("s_add_u32 m0, s%d, %d", s_t1, p * 12288)
        for i in range(3):
            a("buffer_load_dwordx4 v%d, s[%d:%d], s%d offen offset:%d lds", v_gd + i, sW, sW + 3, s_t0, 1024 * i); vm.issue(("G", p))
    if OPT.get("g0first", False): G(0)
    if OPT.get("wq0", 0):
        a("s_lshr_b32 s%d, s2, 3", s_t0)
        a("s_lshl_b32 s%d, s%d, 2", s_t0, s_t0)
        a("s_add_u32 s%d, s%d, s%d", s_t0, s_t0, s_w)
        a("s_mul_i32 s%d, s%d, %d", s_t0, s_t0, 4 * 2688)
        a("s_lshr_b32 s%d, s%d, 2", s_t1, s_c)
        a("s_mul_i32 s%d, s%d, 224", s_t1, s_t1)
        a("s_add_u32 s%d, s%d, s%d", s_t0, s_t0, s_t1)
        a("v_min_u32 v17, 2, v%d", v_rr)
        a("v_mul_u32_u24 v17, 896, v17")
        a("v_mul_u32_u24 v18, 2688, v16")
        a("v_mul_u32_u24 v19, 76, v%d", v_c)
        a("v_add3_u32 v17, v17, v18, v19")
        a("buffer_load_dword v251, v17, s[%d:%d], s%d offen", sW, sW + 3, s_t0); vm.issue("pf")
    a("s_and_b32 s%d, s2, 3", s_rb64)
    a("s_lshl_b32 s%d, s%d, 3", s_rb64, s_rb64)
    a("s_bfe_u32 s%d, s2, 0x30003", s_t0)
    a("s_add_u32 s%d, s%d, s%d", s_rb64, s_rb64, s_t0)
    a("s_and_b32 s%d, s2, 4", s_cb)
    a("s_lshr_b32 s%d, s2, 6", s_t0)
    a("s_add_u32 s%d, s%d, s%d", s_cb, s_cb, s_t0)
    a("v_mul_u32_u24 v17, 3584, v%d", v_rr)
    a("v_lshl_add_u32 v17, v16, 6, v17")
    a("v_lshl_add_u32 v%d, v%d, 4, v17", v_hd, v_c)
    a("s_mul_i32 s%d, s%d, %d", s_hb, s_w, 16 * 3584)
    a("s_lshl_b32 s%d, s%d, 8", s_t0, s_c)
    a("s_add_u32 s%d, s%d, s%d", s_hb, s_hb, s_t0)
    a("s_cmp_ge_u32 s%d, 14", s_c)
    a("s_cselect_b32 s%d, 0x4000000, s%d", s_hb, s_hb)
    a("v_lshl_add_u32 v16, v%d, 2, v%d", v_g, v_rr)
    a("v_mul_u32_u24 v17, 896, v16")
    a("v_lshlrev_b32 v18, 4, v%d", v_c)
    a("v_lshl_add_u32 v19, v%d, 6, v18", v_ch)
    a("s_lshr_b32 s%d, s%d, 1", s_t0, s_w)
    a("s_lshl_b32 s%d, s%d, 6", s_t0, s_t0)
    a("v_xor_b32 v19, s%d, v19", s_t0)
    a("v_add_u32 v%d, v17, v19", v_rw)
    a("s_lshl_b32 s%d, s%d, 13", s_stg, s_w)
    a("s_add_u32 s%d, s%d, %d", s_stg, s_stg, BST)
    a("v_add_u32 v%d, s%d, v%d", v_sw, s_stg, v_l16)
    a("v_lshl_add_u32 v%d, v%d, 9, v%d", v_sr, v_g, v_trp)
    a("v_add_u32 v%d, s%d, v%d", v_sr, s_stg, v_sr)
    a("s_and_b32 s%d, s%d, 3", s_k, s_cb)
    a("s_mul_i32 s%d, s%d, 7", s_k, s_k)
    a("s_and_b32 s%d, s%d, 7", s_t0, s_rb64)
    a("s_mul_i32 s%d, s%d, 7", s_t0, s_t0)
    a("s_lshr_b32 s%d, s%d, 1", s_t0, s_t0)
    a("s_add_u32 s%d, s%d, s%d", s_k, s_k, s_t0)
    a("s_sub_u32 s%d, s%d, 28", s_t0, s_k)
    a("s_cmp_ge_u32 s%d, 28", s_k)
    a("s_cselect_b32 s%d, s%d, s%d", s_k, s_t0, s_k)
    a("s_mov_b32 s%d, s%d", s_kr, s_k)
    a("s_mul_i32 s%d, s%d, %d", s_w2b, s_w, 28 * 16 * 896)
    a("s_lshl_b32 s%d, s%d, 7", s_t0, s_cb)
    a("s_add_u32 s%d, s%d, s%d", s_w2b, s_w2b, s_t0)
    a("s_cmp_ge_u32 s%d, 7", s_cb)
    a("s_cselect_b32 s%d, 0x4000000, s%d", s_w2b, s_w2b)
    srd(a, sW1, 48, 448 * 1792 * 2)
    srd(a, sW2, 50, 1792 * 448 * 2)
    srd(a, sWS, 46, WS_END)
    srd(a, sDBG, 54, 256)
    a("s_or_b32 s%d, s2, s%d", s_t0, s_w)
    a("s_cmp_lg_u32 s%d, 0", s_t0)
    a("s_cbranch_scc1 L_BNW")
    a("s_memrealtime s[%d:%d]", s_non, s_non + 1)
    a("v_mov_b32 v18, 0")
    a("s_waitcnt lgkmcnt(0)")
    a("s_or_b32 s%d, s%d, 1", s_non, s_non)
    a("v_mov_b32 v16, s%d", s_non)
    a("v_mov_b32 v17, s%d", s_non + 1)
    a("s_mov_b64 exec, 1")
    a("buffer_store_dwordx2 v[16:17], v18, s[%d:%d], 0 offen sc1", sDBG, sDBG + 3)
    a("s_mov_b64 exec, -1")
    a.label("L_BNW")
    def prefetch():
        if OPT.get("codepf", True):
            a("s_getpc_b64 s[%d:%d]", s_ex, s_ex + 1)
            a.label("L_PC")
            a("s_lshr_b32 s%d, s2, 3", s_t0)
            a("s_lshl_b32 s%d, s%d, 2", s_t0, s_t0)
            a("s_add_u32 s%d, s%d, s%d", s_t0, s_t0, s_w)
            a("s_cmp_ge_u32 s%d, (L_END-%s)/1024", s_t0, KN)
            a("s_cbranch_scc1 L_NOCPF")
            a("s_lshl_b32 s%d, s%d, 10", s_t0, s_t0)
            a("s_sub_u32 s%d, s%d, L_PC-%s", s_ex, s_ex, KN)
            a("s_subb_u32 s%d, s%d, 0", s_ex + 1, s_ex + 1)
            a("s_add_u32 s%d, s%d, s%d", s_ex, s_ex, s_t0)
            a("s_addc_u32 s%d, s%d, 0", s_ex + 1, s_ex + 1)
            a("v_mov_b32 v17, s%d", s_ex + 1)
            a("v_add_co_u32 v16, vcc, s%d, v%d", s_ex, v_l16)
            a("v_addc_co_u32 v17, vcc, 0, v17, vcc")
            a("global_load_dwordx4 v[252:255], v[16:17], off")
            a.label("L_NOCPF")
        if OPT.get("wpf", True):
            a("s_lshl_b32 s%d, s2, 2", s_t0)
            a("s_add_u32 s%d, s%d, s%d", s_t0, s_t0, s_w)
            a("s_lshl_b32 s%d, s%d, 10", s_t0, s_t0)
            a("s_sub_u32 s%d, 0x%x, s%d", s_t1, 2047 * 1024, s_t0)
            a("buffer_load_dwordx4 v[232:235], v%d, s[%d:%d], s%d offen", v_l16, sW1, sW1 + 3, s_t0); vm.issue("pf")
            a("buffer_load_dwordx4 v[236:239], v%d, s[%d:%d], s%d offen", v_l16, sW1, sW1 + 3, s_t1); vm.issue("pf")
    def prefetch2():
        if OPT.get("wpf", True):
            a("s_lshl_b32 s%d, s2, 2", s_t0)
            a("s_add_u32 s%d, s%d, s%d", s_t0, s_t0, s_w)
            a("s_lshl_b32 s%d, s%d, 10", s_t0, s_t0)
            a("s_add_u32 s%d, s%d, 0x100000", s_t1, s_t0)
            a("buffer_load_dwordx4 v[224:227], v%d, s[%d:%d], s%d offen", v_l16, sW2, sW2 + 3, s_t0); vm.issue("pf")
            a("buffer_load_dwordx4 v[228:231], v%d, s[%d:%d], s%d offen", v_l16, sW2, sW2 + 3, s_t1); vm.issue("pf")
            srd(a, 64, 44, 448 * 448 * 2)
            a("s_sub_u32 s%d, 0x%x, s%d", s_t1, 1023 * 1024, s_t0)
            a("buffer_load_dwordx4 v[240:243], v%d, s[64:67], s%d offen", v_l16, s_t1); vm.issue("pf")
    def H(p):
        nxt7(s_cph, p == 0)
        lds = HA + p * 16384 if p < 4 else (p - 4) * 16384
        a("s_mul_i32 s%d, s%d, %d", s_t0, s_cph, 64 * 3584)
        a("s_add_u32 s%d, s%d, s%d", s_t0, s_t0, s_hb)
        a("s_lshl_b32 s%d, s%d, 12", s_t1, s_w)
        for i in range(4):
            a("s_add_u32 m0, s%d, %d", s_t1, lds + i * 1024)
            if i: a("s_add_u32 s%d, s%d, %d", s_t0, s_t0, 4 * 3584)
            a("buffer_load_dwordx4 v%d, s[%d:%d], s%d offen lds", v_hd, sW1, sW1 + 3, s_t0); vm.issue(("H", p))
    nraw = [0]
    def waddr():
        a("s_mul_i32 s%d, s%d, %d", s_t0, s_kr, 16 * 896)
        a("s_add_u32 s%d, s%d, s%d", s_t0, s_t0, s_w2b)
        a("s_add_u32 s%d, s%d, %d", s_t1, s_t0, 8 * 896)
        a("s_add_u32 s%d, s%d, 1", s_kr, s_kr)
        a("s_cmp_eq_u32 s%d, 28", s_kr)
        a("s_cselect_b32 s%d, 0, s%d", s_kr, s_kr)
    def R(cnt):
        for _ in range(cnt):
            e = nraw[0]
            if e >= NE: return
            nraw[0] += 1
            waddr()
            a("buffer_load_dwordx4 %s, v%d, s[%d:%d], s%d offen", vr(E0 + 8 * e, 4), v_rw, sW2, sW2 + 3, s_t0); vm.issue(("R", e))
            a("buffer_load_dwordx4 %s, v%d, s[%d:%d], s%d offen", vr(E0 + 8 * e + 4, 4), v_rw, sW2, sW2 + 3, s_t1); vm.issue(("R", e))
    bar = lambda: a("s_barrier")
    rp = OPT.get("rplan", (0, 0, 0))
    bar()
    if not OPT.get("g0first", False): G(0)
    G(1); G(2); G(3)
    prefetch()
    vm.wait(("G", 0)); bar()
    a("v_mov_b32 v16, %d", CNT)
    a("v_mov_b32 v18, 0")
    a("v_mov_b32 v19, 0")
    a("ds_write_b64 v16, v[18:19]")
    G(4); vm.wait(("G", 1)); bar()
    G(5); G(6); vm.wait(("G", 2)); bar()
    H(0); H(1); vm.wait(("G", 3)); bar()
    H(2); H(3); vm.wait(("G", 4)); bar()
    H(4); H(5); vm.wait(("G", 5)); bar()
    H(6); prefetch2(); R(rp[0]); vm.wait(("G", 6)); bar()
    R(rp[1]); vm.wait(("H", 3))
    a("s_waitcnt lgkmcnt(0)")
    bar()
    R(rp[2]); vm.wait(("H", 6)); bar()
    stamp(a, 1)
    a("s_cmp_ge_u32 s%d, 7", s_cb)
    a("s_cbranch_scc1 L_END")
    a("s_and_b32 s%d, s%d, 1", s_t0, s_w)
    a("s_lshl_b32 s%d, s%d, 10", s_t0, s_t0)
    a("v_add_u32 v%d, s%d, v%d", v_a0, s_t0, v_l16)
    a("v_xor_b32 v%d, 1024, v%d", v_a1, v_a0)
    a("v_and_b32 v%d, 31, v%d", v_xo, v_lane)
    a("v_mul_u32_u24 v%d, 896, v%d", v_xo, v_xo)
    a("v_lshl_add_u32 v%d, v%d, 4, v%d", v_oo, v_g, v_xo)
    a("v_lshl_add_u32 v%d, v%d, 3, v%d", v_xo, v_g, v_xo)
    a("s_lshl_b32 s%d, s%d, 1", s_xo, s_rb64)
    a("s_and_b32 s%d, s%d, 1", s_t0, s_w)
    a("s_add_u32 s%d, s%d, s%d", s_xo, s_xo, s_t0)
    a("s_mul_i32 s%d, s%d, %d", s_xo, s_xo, 32 * 896)
    a("s_lshl_b32 s%d, s%d, 1", s_t0, s_cb)
    a("s_lshr_b32 s%d, s%d, 1", s_t1, s_w)
    a("s_add_u32 s%d, s%d, s%d", s_t0, s_t0, s_t1)
    a("s_lshl_b32 s%d, s%d, 6", s_t0, s_t0)
    a("s_add_u32 s%d, s%d, s%d", s_xo, s_xo, s_t0)
    srd(a, sW, 40, XBYTES)
    a("s_mul_i32 s%d, s%d, 28", s_t0, s_w)
    a("s_mul_i32 s%d, s%d, 144", s_ab, s_rb64)
    a("s_add_u32 s%d, s%d, s%d", s_ab, s_ab, s_t0)
    a("s_lshl_b32 s%d, s%d, 11", s_ab, s_ab)
    a("s_add_u32 s%d, s%d, 0x%x", s_ab, s_ab, AF)
    a("s_lshl_b32 s%d, s%d, 11", s_k, s_k)
    def trread(dst, slot):
        for ct in range(2):
            for h in range(2):
                a("ds_read_b64_tr_b16 %s, v%d offset:%d", vr(dst + 4 * ct + 2 * h, 2), v_sr, slot * 2048 + h * 1024 + ct * 256)
    RD = OPT.get("rd", 1)
    for e in range(NE):
        while nraw[0] < NE and nraw[0] <= e + RD: R(1)
        if e == NE - 1:
            for q4 in range(4):
                a("buffer_load_dwordx2 %s, v%d, s[%d:%d], s%d offen offset:%d", vr(HR + 2 * q4, 2), v_xo, sW, sW + 3, s_xo, 16 * q4); vm.issue("x")
            a("v_mov_b32 v%d, 0", HR + 10)
            a("buffer_load_dwordx2 %s, v%d, s[%d:%d], 0 offen sc1", vr(HR + 8, 2), HR + 10, sDBG, sDBG + 3); vm.issue("non")
        vm.wait(("R", e))
        sl = e % NSL
        for h in range(2):
            a("ds_write_b128 v%d, %s offset:%d", v_sw, vr(E0 + 8 * e + 4 * h, 4), sl * 2048 + h * 1024)
        trread(E0 + 8 * e, sl)
        a("s_waitcnt lgkmcnt(6)")
    stamp(a, 2)
    vm.wait("non")
    for jj in range(8):
        a("v_lshlrev_b32 v%d, 16, v%d", BACC + 2 * jj, HR + jj)
        a("v_and_b32 v%d, s%d, v%d", BACC + 2 * jj + 1, s_mask, HR + jj)
    a("v_readfirstlane_b32 s%d, v%d", s_non, HR + 8)
    a("v_readfirstlane_b32 s%d, v%d", s_non + 1, HR + 9)
    a("s_waitcnt lgkmcnt(0)")
    NL = 28 - NE
    def L(i):
        if i < NL:
            waddr(); sr_ = sW2
        else:
            k_ = i - NL; sr_ = sW1
            a("s_mul_i32 s%d, s%d, %d", s_t0, s_w, 112 * 896)
            a("s_lshl_b32 s%d, s%d, 7", s_t1, s_cb)
            a("s_add_u32 s%d, s%d, s%d", s_t0, s_t0, s_t1)
            a("s_add_u32 s%d, s%d, %d", s_t0, s_t0, (28 * (k_ >> 1) + 16 * (k_ & 1)) * 896)
            a("s_add_u32 s%d, s%d, %d", s_t1, s_t0, 8 * 896)
        for h in range(2):
            a("s_add_u32 m0, s%d, %d", s_stg, (i % NSL) * 2048 + h * 1024)
            a("buffer_load_dwordx4 v%d, s[%d:%d], s%d offen lds", v_rw, sr_, sr_ + 3, s_t1 if h else s_t0); vm.issue(("L", i))
    npoll = [0]
    def poll(v_addr, s_base, with_nonce, slp):
        n = npoll[0]; npoll[0] += 1
        a("s_mov_b32 s%d, %d", s_spin, SPIN_MAX)
        if with_nonce:
            a.label("L_BN%d" % n)
            a("s_cmp_lg_u32 s%d, 0", s_non)
            a("s_cbranch_scc1 L_BP%d" % n)
            a("buffer_load_dwordx2 %s, v%d, s[%d:%d], 0 offen sc1", vr(HR + 8, 2), HR + 10, sDBG, sDBG + 3)
            a("s_sub_u32 s%d, s%d, 1", s_spin, s_spin)
            a("s_cbranch_scc1 L_BPX%d" % n)
            a("s_waitcnt vmcnt(0)")
            a("v_readfirstlane_b32 s%d, v%d", s_non, HR + 8)
            a("v_readfirstlane_b32 s%d, v%d", s_non + 1, HR + 9)
            a("s_branch L_BN%d" % n)
        a.label("L_BP%d" % n)
        a("buffer_load_dwordx2 %s, v%d, s[%d:%d], s%d offen sc1", vr(HR + 8, 2), v_addr, sWS, sWS + 3, s_base)
        a("s_sub_u32 s%d, s%d, 1", s_spin, s_spin)
        a("s_cbranch_scc1 L_BPX%d" % n)
        a("s_waitcnt vmcnt(0)")
        a("v_cmp_ne_u64 vcc, s[%d:%d], %s", s_non, s_non + 1, vr(HR + 8, 2))
        a("s_cbranch_vccz L_BPX%d" % n)
        if slp: a("s_sleep %d", slp)
        a("s_branch L_BP%d" % n)
        a.label("L_BPX%d" % n)
        vm.done = len(vm.ops)
    a("v_and_b32 v9, 7, v%d", v_lane)
    a("v_lshlrev_b32 v9, 7, v9")
    a("s_lshl_b32 s%d, s%d, 12", s_gb, s_rb64)
    a("s_mul_i32 s%d, s%d, 7", s_t0, s_w)
    a("s_lshr_b32 s%d, s%d, 1", s_t0, s_t0)
    a("s_lshl_b32 s%d, s%d, 8", s_t0, s_t0)
    a("s_add_u32 s%d, s%d, s%d", s_cph, s_gb, s_t0)
    a("s_add_u32 s%d, s%d, 0x%x", s_cph, s_cph, FH)
    srd(a, sW1, 44, 448 * 448 * 2)
    PL = OPT.get("prel", 0)
    for i in range(PL): L(i)
    poll(9, s_cph, True, OPT["sleep"])
    stamp(a, 3)
    def hload(k):
        a("s_add_u32 s%d, s%d, s%d", s_hb, s_ab, s_k)
        for f, v in ((0, v_a0), (1, v_a1)):
            a("buffer_load_dwordx4 %s, v%d, s[%d:%d], s%d offen sc1", vr(HR + 8 * (k % NH) + 4 * f, 4), v, sWS, sWS + 3, s_hb); vm.issue(("h", k))
        a("s_add_u32 s%d, s%d, 2048", s_k, s_k)
        a("s_cmp_eq_u32 s%d, %d", s_k, 28 * 2048)
        a("s_cselect_b32 s%d, 0, s%d", s_k, s_k)
    def mf(Areg, Breg, first):
        for ct in range(2):
            for rt in range(2):
                l = 2 * ct + rt
                d = vr(BACC + 16 * l, 16)
                a("%s %s, %s, %s, %s", MF, d, vr(Breg + 4 * ct, 4), vr(Areg + 4 * rt, 4), "0" if (first and l) else d)
    for k in range(NH - 1): hload(k)
    nl = PL
    def mf1(Areg, Breg, first, l):
        ct, rt = l >> 1, l & 1
        d = vr(BACC + 16 * l, 16)
        a("%s %s, %s, %s, %s", MF, d, vr(Breg + 4 * ct, 4), vr(Areg + 4 * rt, 4), "0" if (first and l) else d)
    for k in range(28):
        vm.wait(("h", k))
        wreg = wslot(k)
        hreg = HR + 8 * (k % NH)
        j = k - (NSL - PL) if PL < NSL else k - 1
        mf1(hreg, wreg, k == 0, 0)
        if k + NH - 1 < 28: hload(k + NH - 1)
        mf1(hreg, wreg, k == 0, 1)
        if 0 <= j < NL + 8:
            vm.wait(("L", j))
            trread(wslot(NE + j), j % NSL)
        mf1(hreg, wreg, k == 0, 2)
        mf1(hreg, wreg, k == 0, 3)
        if 0 <= j < NL + 8: a("s_waitcnt lgkmcnt(0)")
        if nl < NL + 8 and nl - NSL <= j:
            L(nl); nl += 1
        if k == 14: stamp(a, 4)
    stamp(a, 5)
    assert nl == NL + 8
    used = {wslot(28 + i) for i in range(8)}
    OFB = [r_ for r_ in range(E0, 256, 8) if r_ not in used and r_ != HR + 8][:8]
    for i in range(1, 8, 2):
        for ct in range(2):
            for r_ in (2, 3):
                rg = wslot(28 + i) + 4 * ct + r_
                a("v_cndmask_b32 v%d, v%d, 0, s[%d:%d]", rg, rg, s_hi, s_hi + 1)
    a("s_lshl_b32 s%d, s%d, 10", s_t0, s_w)
    a("s_add_u32 s%d, s%d, s%d", s_gb, s_gb, s_t0)
    a("s_add_u32 s%d, s%d, 0x%x", s_gb, s_gb, FO)
    a("s_mul_i32 s%d, s%d, 20", s_t0, s_w)
    a("s_sub_u32 s%d, 112, s%d", s_t0, s_t0)
    a("s_lshl_b32 s%d, s%d, 11", s_t0, s_t0)
    a("s_add_u32 s%d, s%d, s%d", s_hb, s_ab, s_t0)
    srd(a, sW, 52, XBYTES)
    RA = 4
    for l in range(4):
        a("s_xor_b32 s%d, s%d, %d", s_t0, s_w, l)
        a("s_mul_i32 s%d, s%d, 12288", s_t0, s_t0)
        a("s_add_u32 s%d, s%d, %d", s_t0, s_t0, CB)
        a("v_add_u32 v%d, s%d, v%d", RA + l, s_t0, v_l16)
    a("v_mov_b32 v12, %d", CNT)
    a("s_mov_b32 s%d, %d", s_spin, SPIN_MAX)
    a.label("L_BC")
    a("ds_read_b32 v13, v12")
    a("s_sub_u32 s%d, s%d, 1", s_spin, s_spin)
    a("s_cbranch_scc1 L_BCX")
    a("s_waitcnt lgkmcnt(0)")
    a("v_readfirstlane_b32 s%d, v13", s_t0)
    a("s_cmp_lt_u32 s%d, 4", s_t0)
    a("s_cbranch_scc1 L_BC")
    a.label("L_BCX")
    poll(9, s_gb, False, OPT.get("sleepo", 2))
    stamp(a, 6)
    for i in range(8):
        for f, v in ((0, v_a0), (1, v_a1)):
            a("buffer_load_dwordx4 %s, v%d, s[%d:%d], s%d offen sc1", vr(OFB[i] + 4 * f, 4), v, sWS, sWS + 3, s_hb)
        if i < 7: a("s_add_u32 s%d, s%d, 2048", s_hb, s_hb)
    for i in range(8):
        a("s_waitcnt vmcnt(%d)", 2 * (7 - i))
        mf(OFB[i], wslot(28 + i), False)
    stamp(a, 7)
    for l in range(1, 4):
        for qd in range(4):
            a("ds_write_b128 v%d, %s offset:%d", RA + l, vr(BACC + 16 * l + 4 * qd, 4), (l - 1) * 4096 + qd * 1024)
    a("s_waitcnt lgkmcnt(0)")
    a("s_barrier")
    for l in range(1, 4):
        for qd in range(4):
            a("ds_read_b128 %s, v%d offset:%d", vr(BACC + 16 * l + 4 * qd, 4), RA, (l - 1) * 4096 + qd * 1024)
    a("s_waitcnt lgkmcnt(8)")
    for j in range(16): a("v_add_f32 v%d, v%d, v%d", BACC + j, BACC + j, BACC + 16 + j)
    a("s_waitcnt lgkmcnt(0)")
    for j in range(16): a("v_add_f32 v%d, v%d, v%d", BACC + 32 + j, BACC + 32 + j, BACC + 48 + j)
    for j in range(16): a("v_add_f32 v%d, v%d, v%d", BACC + j, BACC + j, BACC + 32 + j)
    for jj in range(8):
        a("v_cvt_pk_bf16_f32 v%d, v%d, v%d", E0 + jj, BACC + 2 * jj, BACC + 2 * jj + 1)
    for p in range(2):
        a("v_permlane32_swap_b32 v%d, v%d", E0 + 4 * p, E0 + 4 * p + 2)
        a("v_permlane32_swap_b32 v%d, v%d", E0 + 4 * p + 1, E0 + 4 * p + 3)
    for p in range(2):
        a("buffer_store_dwordx4 %s, v%d, s[%d:%d], s%d offen offset:%d", vr(E0 + 4 * p, 4), v_oo, sW, sW + 3, s_xo, 32 * p)
    stamp(a, 8); stamp(a, 9)
    stamp_flush(a)
    a.label("L_END")
    a("s_endpgm")
    return a.l

def build(path):
    hdr = open("cdna_kernels/%s.s.ref" % NAME).read().split("\n")
    top = [l for l in hdr if l.startswith(";") and "@launch" not in l]
    lines, added = fix(kernel())
    print("instrs", len(lines), "nop states added", added)
    out = top + ["; @launch grid=(256,1,1) block=(512,1,1) lds=%d" % LDS]
    out += ['.amdgcn_target "amdgcn-amd-amdhsa--gfx950"', ".text", ".globl " + KN, ".p2align 8", ".type %s,@function" % KN] + lines
    out += ['.section .rodata,"a"', ".p2align 6", """.amdhsa_kernel %s
  .amdhsa_next_free_vgpr 256
  .amdhsa_next_free_sgpr 102
  .amdhsa_accum_offset 256
  .amdhsa_group_segment_fixed_size 0
  .amdhsa_kernarg_size 72
  .amdhsa_user_sgpr_count 2
  .amdhsa_user_sgpr_kernarg_segment_ptr 1
  .amdhsa_system_sgpr_workgroup_id_x 1
.end_amdhsa_kernel""" % KN]
    open(path, "w").write("\n".join(out) + "\n")

if __name__ == "__main__":
    for kv_ in sys.argv[2:]:
        k, v = kv_.split("=", 1); OPT[k] = eval(v)
    build(sys.argv[1])
```

```python
import sys, math, struct
from asmlib import *

NAME = "parallel_sum__softmax_full_mha__dense_activation_relu__prompt"
KN = NAME + "_kernel"
QF, KV, AF = 0x000000, 0x200000, 0x600000
FQ = 0xF00000
FH = FQ + 0x2000
FO = FH + 0x4000
WS_END = FO + 0x2000
XBYTES = 2048 * 448 * 2
OPT = dict(bias=32.0, stamps=False, flagstep=20, sleep=2, prioA=2)
STAMP = 0x2000000
SPIN_MAX = 1 << 17
K = 1024
NST = 12
def f32(x): return "0x%08x" % struct.unpack("<I", struct.pack("<f", x))[0]

def stamp(a, i, grp="main"):
    if i not in (0, NST - 2, NST - 1) and grp != OPT.get("sgrp", "main"): return
    if OPT["stamps"]: a("%s s[%d:%d]", "s_memtime" if OPT.get("cyc") else "s_memrealtime", 72 + 2 * i, 73 + 2 * i)
def stamp_flush(a):
    if not OPT["stamps"]: return
    stamp(a, NST - 2)
    a("s_mov_b32 s64, s46\ns_mov_b32 s65, s47\ns_mov_b32 s66, 0x10000000\ns_mov_b32 s67, 0x00020000")
    a("s_lshl_b32 s68, s2, 3\ns_add_u32 s68, s68, s69\ns_lshl_b32 s68, s68, 6")
    a("s_add_u32 s68, s68, 0x%x", STAMP)
    a("v_mov_b32 v0, 0")
    a("s_waitcnt vmcnt(0) lgkmcnt(0)")
    stamp(a, NST - 1)
    a("s_waitcnt lgkmcnt(0)")
    for i in range(NST):
        a("v_mov_b32 v1, s%d", 72 + 2 * i)
        a("buffer_store_dword v1, v0, s[64:67], s68 offen offset:%d", 4 * i)

def srd(a, d, base, nbytes):
    a("s_mov_b32 s%d, s%d", d, base)
    a("s_mov_b32 s%d, s%d", d + 1, base + 1)
    a("s_mov_b32 s%d, 0x%x", d + 2, nbytes)
    a("s_mov_b32 s%d, 0x00020000", d + 3)

class VM:
    def __init__(self, a): self.a = a; self.ops = []; self.done = 0
    def issue(self, tag): self.ops.append(tag)
    def wait(self, tag):
        idx = max(i for i, t in enumerate(self.ops) if t == tag)
        if idx < self.done: return
        n = len(self.ops) - 1 - idx
        assert n <= 63, n
        self.a("s_waitcnt vmcnt(%d)", n); self.done = idx + 1
    def drain(self):
        self.a("s_waitcnt vmcnt(0)"); self.done = len(self.ops)

XST = 48 * K
P2A, P2A7 = 112 * K, 0
P2B, P2B7 = 8 * K, 56 * K
BST = 64 * K
CNT = 104 * K
MXA = 104 * K + 256
CA = 0
CB = 112 * K
LDS = 160 * K

def kernel():
    a = Asm()
    sWS, sX, sW, sW1, sDBG = 8, 12, 16, 20, 24
    s_w, s_rb, s_grp, s_rot, s_t0, s_t1, s_cp, s_mask = 28, 29, 30, 31, 32, 33, 34, 35
    s_hi = 36
    s_ex = 38
    s_spin, s_lb = 56, 57
    s_non = 58
    s_a, s_b, s_c, s_d = 60, 61, 62, 63
    s_e, s_f, s_g, s_h = 4, 5, 6, 7
    v_lane, v_l16 = 1, 2
    a.label(KN)
    a("s_cmp_ge_u32 s2, 256")
    a("s_cbranch_scc1 L_END")
    stamp(a, 0)
    a("s_load_dwordx4 s[40:43], s[0:1], 0")
    a("s_load_dwordx2 s[44:45], s[0:1], 16")
    a("s_load_dwordx4 s[48:51], s[0:1], 32")
    a("s_load_dwordx4 s[52:55], s[0:1], 48")
    a("s_load_dwordx2 s[46:47], s[0:1], 64")
    a("v_lshrrev_b32 v3, 6, v0")
    a("v_and_b32 v%d, 63, v0", v_lane)
    a("v_readfirstlane_b32 s%d, v3", s_w)
    a("v_lshlrev_b32 v%d, 4, v%d", v_l16, v_lane)
    a("s_mov_b32 s%d, 0", s_hi)
    a("s_mov_b32 s%d, -1", s_hi + 1)
    a("s_mov_b32 s%d, 0xffff0000", s_mask)
    a("s_and_b32 s%d, s2, 3", s_rb)
    a("s_lshl_b32 s%d, s%d, 2", s_rb, s_rb)
    a("s_bfe_u32 s%d, s2, 0x20003", s_t0)
    a("s_add_u32 s%d, s%d, s%d", s_rb, s_rb, s_t0)
    a("s_bfe_u32 s%d, s2, 0x10002", s_grp)
    a("s_lshl_b32 s%d, s%d, 3", s_grp, s_grp)
    a("s_lshr_b32 s%d, s2, 5", s_t0)
    a("s_add_u32 s%d, s%d, s%d", s_grp, s_grp, s_t0)
    a("s_bfe_u32 s%d, s2, 0x20003", s_rot)
    a("s_lshl_b32 s%d, s%d, 1", s_rot, s_rot)
    a("s_add_u32 s%d, s%d, s%d", s_rot, s_rot, s_t0)
    a("s_sub_u32 s%d, s%d, 7", s_t0, s_rot)
    a("s_cmp_ge_u32 s%d, 7", s_rot)
    a("s_cselect_b32 s%d, s%d, s%d", s_rot, s_t0, s_rot)
    a("s_lshl_b32 s%d, s%d, 2", s_t0, s_grp)
    a("s_sub_u32 s%d, s%d, 34", s_t0, s_t0)
    a("s_cmp_lt_u32 s%d, 12", s_grp)
    a("s_cselect_b32 s%d, s%d, s%d", s_lb, s_grp, s_t0)
    if OPT["stamps"]: a("s_mov_b32 s69, s%d", s_w)
    v_g, v_ch, v_rr, v_c = 4, 5, 6, 7
    a("v_lshrrev_b32 v%d, 5, v%d", v_g, v_lane)
    a("v_bfe_u32 v%d, v%d, 4, 1", v_ch, v_lane)
    a("v_bfe_u32 v%d, v%d, 2, 2", v_rr, v_lane)
    a("v_and_b32 v%d, 3, v%d", v_c, v_lane)
    v_trp = 8
    a("v_lshlrev_b32 v%d, 6, v%d", v_trp, v_rr)
    a("v_lshl_add_u32 v%d, v%d, 5, v%d", v_trp, v_ch, v_trp)
    a("v_lshl_add_u32 v%d, v%d, 3, v%d", v_trp, v_c, v_trp)
    def cp_next(first):
        if first: a("s_mov_b32 s%d, s%d", s_cp, s_rot)
        else:
            a("s_add_u32 s%d, s%d, 1", s_cp, s_cp)
            a("s_cmp_eq_u32 s%d, 7", s_cp)
            a("s_cselect_b32 s%d, 0, s%d", s_cp, s_cp)
    a("s_cmp_ge_u32 s%d, 4", s_w)
    a("s_cbranch_scc1 L_B")

    a("s_setprio %d", OPT["prioA"])
    v_b1a, v_b1b, v_b2a, v_b27, v_m, v_r = 9, 10, 11, 12, 14, 15
    v_t = 16
    v_non = 248
    X0, ACC, RING = 24, 136, 200
    v_xoff = ACC; v_xa = ACC + 4; v_sum = ACC + 8; v_sq = ACC + 10
    s_xrow, s_ldsw, s_ones, s_st, s_fl = s_a, s_b, s_c, s_d, s_e
    t0, t1, t2 = v_t, v_t + 1, v_t + 2
    a("s_lshl_b32 s%d, s%d, 2", s_xrow, s_rb)
    a("s_add_u32 s%d, s%d, s%d", s_f, s_xrow, s_w)
    a("s_mul_i32 s%d, s%d, %d", s_xrow, s_f, 32 * 896)
    a("s_mul_i32 s%d, s%d, 28672", s_ldsw, s_w)
    a("s_add_u32 s%d, s%d, %d", s_ldsw, s_ldsw, XST)
    a("v_lshrrev_b32 v%d, 3, v%d", t0, v_lane)
    a("v_mul_u32_u24 v%d, 896, v%d", t0, t0)
    a("v_lshrrev_b32 v%d, 4, v%d", t1, v_lane)
    a("v_and_b32 v%d, 7, v%d", t2, v_lane)
    a("v_xor_b32 v%d, v%d, v%d", t1, t1, t2)
    a("v_lshl_add_u32 v%d, v%d, 4, v%d", v_xoff, t1, t0)
    a("v_xor_b32 v%d, 64, v%d", v_xoff + 1, v_xoff)
    a("v_add_u32 v%d, %d, v%d", v_xoff + 2, 2 * (7168 - 1024), v_xoff)
    a("v_add_u32 v%d, %d, v%d", v_xoff + 3, 3 * (7168 - 1024), v_xoff + 1)
    a("v_add_u32 v%d, %d, v%d", v_xoff + 1, 1 * (7168 - 1024), v_xoff + 1)
    a("s_waitcnt lgkmcnt(0)")
    stamp(a, 1, "p0")
    srd(a, sX, 40, XBYTES)
    for p in range(7):
        cp_next(p == 0)
        a("s_lshl_b32 s%d, s%d, 7", s_t0, s_cp)
        a("s_add_u32 s%d, s%d, s%d", s_t0, s_t0, s_xrow)
        a("s_add_u32 m0, s%d, %d", s_ldsw, 4096 * p)
        for i in range(4):
            a("buffer_load_dwordx4 v%d, s[%d:%d], s%d offen offset:%d lds", v_xoff + i, sX, sX + 3, s_t0, 1024 * i)
        if p == OPT.get("b0at", 4):
            a("s_barrier")
            stamp(a, 2, "p0")
    stamp(a, 1); stamp(a, 3, "p0")
    srd(a, sWS, 46, WS_END)
    srd(a, sDBG, 54, 256)
    a("s_mov_b32 s%d, 0x3f803f80", s_ones)
    a("v_and_b32 v%d, 31, v%d", t0, v_lane)
    a("v_bfe_u32 v%d, v%d, 1, 3", t1, v_lane)
    a("v_xor_b32 v%d, v%d, v%d", t1, t1, v_g)
    a("v_lshlrev_b32 v%d, 7, v%d", t0, t0)
    a("v_lshl_add_u32 v%d, v%d, 4, v%d", t0, t1, t0)
    for q in range(4):
        a("v_xor_b32 v%d, %d, v%d", t1, 32 * q, t0)
        a("v_add_u32 v%d, s%d, v%d", v_xa + q, s_ldsw, t1)
    a("v_lshl_add_u32 v%d, v%d, 11, v%d", v_b1a, v_g, v_trp)
    a("v_add_u32 v%d, 0x10000, v%d", v_b1b, v_b1a)
    a("v_lshl_add_u32 v%d, v%d, 10, v%d", v_b27, v_g, v_trp)
    a("v_add_u32 v%d, %d, v%d", v_b2a, P2A, v_b27)
    for i in range(4): a("v_mov_b32 v%d, 0", v_sum + i)
    def xread(p):
        for q in range(4):
            a("ds_read_b128 %s, v%d offset:%d", vr(X0 + 16 * p + 4 * q, 4), v_xa + q, 4096 * p)
    def xstat(p):
        for j in range(16):
            x = X0 + 16 * p + j
            a("v_dot2c_f32_bf16 v%d, s%d, v%d", v_sum + (j & 1), s_ones, x)
            a("v_dot2c_f32_bf16 v%d, v%d, v%d", v_sq + (j & 1), x, x)
    a("s_waitcnt vmcnt(24)")
    stamp(a, 4, "p0")
    xread(0)
    for p in range(7):
        if p < 6:
            a("s_waitcnt vmcnt(%d)", 20 - 4 * p)
            if p == 2: stamp(a, 5, "p0")
            if p == 5: stamp(a, 6, "p0")
            xread(p + 1)
            a("s_waitcnt lgkmcnt(4)")
        else:
            a("s_waitcnt lgkmcnt(0)")
            a("s_barrier")
            stamp(a, 2); stamp(a, 7, "p0")
            a("v_mov_b32 v%d, 0", t2)
            a("buffer_load_dwordx2 %s, v%d, s[%d:%d], 0 offen sc1", vr(v_non, 2), t2, sDBG, sDBG + 3)
        xstat(p)
    a("v_add_f32 v%d, v%d, v%d", v_sum, v_sum, v_sum + 1)
    a("v_add_f32 v%d, v%d, v%d", v_sq, v_sq, v_sq + 1)
    a("v_mov_b32 v%d, v%d", v_sum + 1, v_sum)
    a("v_mov_b32 v%d, v%d", v_sq + 1, v_sq)
    a("v_permlane32_swap_b32 v%d, v%d", v_sum, v_sum + 1)
    a("v_permlane32_swap_b32 v%d, v%d", v_sq, v_sq + 1)
    a("v_add_f32 v%d, v%d, v%d", v_sum, v_sum, v_sum + 1)
    a("v_add_f32 v%d, v%d, v%d", v_sq, v_sq, v_sq + 1)
    a("v_mul_f32 v%d, %s, v%d", v_sum, f32(1.0 / 448), v_sum)
    a("v_mul_f32 v%d, %s, v%d", v_sq, f32(1.0 / 448), v_sq)
    a("v_fma_f32 v%d, -v%d, v%d, v%d", v_sq, v_sum, v_sum, v_sq)
    a("v_max_f32 v%d, 0, v%d", v_sq, v_sq)
    a("v_cvt_pk_bf16_f32 v%d, v%d, v%d", t0, v_sum, v_sq)
    a("v_lshlrev_b32 v%d, 16, v%d", v_m, t0)
    a("v_and_b32 v%d, s%d, v%d", t0, s_mask, t0)
    a("v_add_f32 v%d, %s, v%d", t0, f32(1e-5), t0)
    a("v_cvt_pk_bf16_f32 v%d, v%d, v%d", t0, t0, t0)
    a("v_and_b32 v%d, s%d, v%d", t0, s_mask, t0)
    a("v_sqrt_f32 v%d, v%d", t0, t0)
    a("v_cvt_pk_bf16_f32 v%d, v%d, v%d", t0, t0, t0)
    a("v_and_b32 v%d, s%d, v%d", t0, s_mask, t0)
    a("v_rcp_f32 v%d, v%d", v_r, t0)
    a("v_mul_f32 v%d, v%d, v%d", v_m, v_m, v_r)
    def norm_ops(s):
        seqs = []
        for j in range(4):
            x = X0 + 4 * s + j; lo = v_t + 2 * j; hi = lo + 1
            seqs.append(["v_lshlrev_b32 v%d, 16, v%d" % (lo, x), "v_and_b32 v%d, s%d, v%d" % (hi, s_mask, x),
                         "v_fma_f32 v%d, v%d, v%d, -v%d" % (lo, lo, v_r, v_m), "v_fma_f32 v%d, v%d, v%d, -v%d" % (hi, hi, v_r, v_m),
                         "v_cvt_pk_bf16_f32 v%d, v%d, v%d" % (x, lo, hi)])
        return [seqs[j][k] for k in range(5) for j in range(4)]
    def acc(t): return vr(ACC + 16 * t, 16)
    def rd1(n):
        s, t = divmod(n, 4); p, q = divmod(s, 4)
        base, off = (v_b1a, p * 16384) if p < 4 else (v_b1b, (p - 4) * 16384)
        for h in range(2):
            a("ds_read_b64_tr_b16 %s, v%d offset:%d", vr(RING + 4 * (n % 8) + 2 * h, 2), base, off + q * 4096 + h * 1024 + t * 256)
    def rd2(n):
        s, t = divmod(n, 2); p, q = divmod(s, 4)
        base, off = (v_b2a, p * 8192) if p < 6 else (v_b27, 0)
        for h in range(2):
            a("ds_read_b64_tr_b16 %s, v%d offset:%d", vr(RING + 4 * (n % 8) + 2 * h, 2), base, off + q * 2048 + h * 512 + t * 256)
    stamp(a, 8, "p0")
    a("s_barrier")
    stamp(a, 9, "p0")
    for n in range(8): rd1(n)
    for o in norm_ops(0): a(o)
    stamp(a, 3)
    a("s_cmp_ge_u32 s%d, 8", s_grp)
    a("s_cbranch_scc0 L_P1N")
    a("s_cmp_lt_u32 s%d, 12", s_grp)
    a("s_cbranch_scc1 L_P1S")
    def pass1(swap):
        for s in range(28):
            pend = norm_ops(s + 1) if s < 27 else []
            if s == 0: stamp(a, 1, "p1")
            if s % 4 == 2 and s < 26:
                if s in (2, 10, 18, 22): stamp(a, {2: 2, 10: 4, 18: 6, 22: 8}[s], "p1")
                if not OPT.get("nobar"): a("s_barrier")
                if s in (2, 10, 18, 22): stamp(a, {2: 3, 10: 5, 18: 7, 22: 9}[s], "p1")
            a("s_waitcnt lgkmcnt(%d)", 8 if s < 27 else 0)
            for t in range(4):
                n = 4 * s + t
                wf = vr(RING + 4 * (n % 8), 4); xf = vr(X0 + 4 * s, 4)
                A, B = (xf, wf) if swap else (wf, xf)
                a("v_mfma_f32_32x32x16_bf16 %s, %s, %s, %s", acc(t), A, B, acc(t) if s else "0")
                if n + 8 < 112: rd1(n + 8)
                k = (6, 6, 5, 3)[t]
                for o in pend[:k]: a(o)
                pend = pend[k:]
    def p2_prologue():
        stamp(a, 1, "p2")
        a("s_barrier")
        stamp(a, 2, "p2")
        for n in range(8): rd2(n)
    def pack(t, kind):
        b = ACC + 16 * t
        for jj in range(8):
            if kind == "q":
                a("v_mul_f32 v%d, s%d, v%d", b + 2 * jj, s_t1, b + 2 * jj)
                a("v_mul_f32 v%d, s%d, v%d", b + 2 * jj + 1, s_t1, b + 2 * jj + 1)
            a("v_cvt_pk_bf16_f32 v%d, v%d, v%d", b + jj, b + 2 * jj, b + 2 * jj + 1)
            if kind == "h": a("v_pk_max_i16 v%d, v%d, 0", b + jj, b + jj)
        if kind == "q":
            a("v_cndmask_b32 v%d, v%d, 0, s[%d:%d]", b + 6, b + 6, s_hi, s_hi + 1)
            a("v_cndmask_b32 v%d, v%d, 0, s[%d:%d]", b + 7, b + 7, s_hi, s_hi + 1)
        elif kind == "k":
            a("v_cndmask_b32 v%d, v%d, v%d, s[%d:%d]", b + 6, b + 6, v_t, s_hi, s_hi + 1)
            a("v_cndmask_b32 v%d, v%d, v%d, s[%d:%d]", b + 7, b + 7, v_t + 1, s_hi, s_hi + 1)
        elif kind == "v":
            for jj in range(8):
                a("v_cndmask_b32 v%d, v%d, v%d, s[%d:%d]", b + jj, b + jj, v_t, s_ex, s_ex + 1)
    def epilogue(T, kind):
        fs = {"q": 1024, "k": 1024, "v": 1024, "h": 2048}[kind]
        ts = {"q": 131072, "k": 262144, "v": 262144, "h": 4096}[kind]
        for t in range(T):
            pack(t, kind)
            for f in range(2):
                a("buffer_store_dwordx4 %s, v%d, s[%d:%d], s%d offen offset:%d sc1", vr(ACC + 16 * t + 4 * f, 4), v_l16, sWS, sWS + 3, s_st, fs * f)
            if t + 1 < T: a("s_add_u32 s%d, s%d, %d", s_st, s_st, ts)
    def qkv_addr(shift, base):
        a("s_and_b32 s%d, s%d, 3", s_t0, s_grp)
        a("s_lshl_b32 s%d, s%d, 8", s_t0, s_t0)
        a("s_add_u32 s%d, s%d, s%d", s_t0, s_t0, s_f)
        a("s_lshl_b32 s%d, s%d, %d", s_st, s_t0, shift)
        if base: a("s_add_u32 s%d, s%d, 0x%x", s_st, s_st, base)
        a("s_lshl_b32 s%d, s%d, 6", s_fl, s_grp)
        a("s_add_u32 s%d, s%d, s%d", s_fl, s_fl, s_f)
        a("s_lshl_b32 s%d, s%d, 3", s_fl, s_fl)
        a("s_add_u32 s%d, s%d, 0x%x", s_fl, s_fl, FQ)
        a("s_mov_b32 s%d, 1", s_g)
    def h_addr(s_lbx, nfl):
        a("s_lshr_b32 s%d, s%d, 1", s_t0, s_f)
        a("s_and_b32 s%d, s%d, 1", s_t1, s_f)
        a("s_mul_i32 s%d, s%d, 36", s_st, s_t0)
        a("s_add_u32 s%d, s%d, s%d", s_st, s_st, s_lbx)
        a("s_lshl_b32 s%d, s%d, 3", s_st, s_st)
        a("s_add_u32 s%d, s%d, s%d", s_st, s_st, s_t1)
        a("s_lshl_b32 s%d, s%d, 10", s_st, s_st)
        a("s_add_u32 s%d, s%d, 0x%x", s_st, s_st, AF)
        a("s_lshl_b32 s%d, s%d, 5", s_fl, s_t0)
        a("s_add_u32 s%d, s%d, s%d", s_fl, s_fl, s_lbx)
        a("s_lshl_b32 s%d, s%d, 1", s_fl, s_fl)
        a("s_add_u32 s%d, s%d, s%d", s_fl, s_fl, s_t1)
        a("s_lshl_b32 s%d, s%d, 3", s_fl, s_fl)
        a("s_add_u32 s%d, s%d, 0x%x", s_fl, s_fl, FH)
        a("s_mov_b32 s%d, %d", s_g, (1 << nfl) - 1)
    a.label("L_P1N")
    pass1(False)
    stamp(a, 4)
    p2_prologue()
    a("s_cmp_ge_u32 s%d, 12", s_grp)
    a("s_cbranch_scc1 L_EH")
    a("s_cmp_ge_u32 s%d, 4", s_grp)
    a("s_cbranch_scc1 L_EK")
    qkv_addr(11, QF)
    a("s_mov_b32 s%d, %s", s_t1, f32(28 ** -0.5 * math.log2(math.e)))
    epilogue(4, "q")
    a("s_branch L_P2")
    a.label("L_EK")
    qkv_addr(12, KV)
    a("v_mov_b32 v%d, 0x3f803f80", v_t)
    a("v_mov_b32 v%d, 0x00003f80", v_t + 1)
    epilogue(4, "k")
    a("s_branch L_P2")
    a.label("L_EH")
    a("s_sub_u32 s%d, s%d, 2", s_h, s_lb)
    h_addr(s_h, 2)
    epilogue(4, "h")
    a("s_branch L_P2")
    a.label("L_P1S")
    pass1(True)
    stamp(a, 4)
    p2_prologue()
    qkv_addr(12, KV + 2048)
    a("s_mov_b32 s%d, 0x10000000", s_ex)
    a("s_mov_b32 s%d, 0x10000000", s_ex + 1)
    a("v_mov_b32 v%d, 0x3f803f80", v_t + 1)
    a("v_cndmask_b32 v%d, 0, v%d, s[%d:%d]", v_t, v_t + 1, s_ex, s_ex + 1)
    a("s_mov_b32 s%d, 0xf0000000", s_ex)
    a("s_mov_b32 s%d, 0xf0000000", s_ex + 1)
    epilogue(4, "v")
    nflag = [0]
    def put_flag():
        n = nflag[0]; nflag[0] += 1
        a("s_waitcnt vmcnt(0)")
        a("v_readfirstlane_b32 s%d, v%d", s_non, v_non)
        a("v_readfirstlane_b32 s%d, v%d", s_non + 1, v_non + 1)
        a("s_cmp_lg_u32 s%d, 0", s_non)
        a("s_cbranch_scc1 L_NOK%d" % n)
        a("s_mov_b32 s%d, %d", s_spin, SPIN_MAX)
        a("v_mov_b32 v%d, 0", 250)
        a.label("L_NSP%d" % n)
        a("buffer_load_dwordx2 %s, v250, s[%d:%d], 0 offen sc1", vr(v_non, 2), sDBG, sDBG + 3)
        a("s_sub_u32 s%d, s%d, 1", s_spin, s_spin)
        a("s_cbranch_scc1 L_NOK%d" % n)
        a("s_waitcnt vmcnt(0)")
        a("v_readfirstlane_b32 s%d, v%d", s_non, v_non)
        a("v_readfirstlane_b32 s%d, v%d", s_non + 1, v_non + 1)
        a("s_cmp_eq_u32 s%d, 0", s_non)
        a("s_cbranch_scc1 L_NSP%d" % n)
        a.label("L_NOK%d" % n)
        a("s_mov_b32 exec_lo, s%d", s_g)
        a("s_mov_b32 exec_hi, 0")
        a("buffer_store_dwordx2 %s, v%d, s[%d:%d], s%d offen sc1", vr(v_non, 2), v_l16, sWS, sWS + 3, s_fl)
        a("s_mov_b64 exec, -1")
    a.label("L_P2")
    stamp(a, 5); stamp(a, 3, "p2")
    for s in range(28):
        if s == 8:
            stamp(a, 4, "p2")
            a("s_barrier")
            stamp(a, 5, "p2")
        if s == OPT["flagstep"]:
            stamp(a, 6, "p2")
            put_flag()
            stamp(a, 7, "p2")
        a("s_waitcnt lgkmcnt(%d)", min(12, 4 * (27 - s)))
        for t in range(2):
            n = 2 * s + t
            a("v_mfma_f32_32x32x16_bf16 %s, %s, %s, %s", acc(2 + t), vr(RING + 4 * (n % 8), 4), vr(X0 + 4 * s, 4), acc(2 + t) if s else "0")
            if n + 8 < 56: rd2(n + 8)
    stamp(a, 8, "p2")
    h_addr(s_lb, 1)
    a("s_and_b32 s%d, s%d, 3", s_t0, s_lb)
    a("s_cmp_ge_u32 s%d, 12", s_grp)
    a("s_cselect_b32 s%d, s%d, 0", s_h, s_t0)
    a("s_cmp_eq_u32 s%d, 2", s_h)
    a("s_cbranch_scc0 L_P2E")
    a("v_subrev_u32 v%d, %d, v%d", v_b2a, P2A - P2B, v_b2a)
    a("v_add_u32 v%d, %d, v%d", v_b27, P2B7 - P2A7, v_b27)
    p2_prologue()
    a.label("L_P2E")
    for t in range(2):
        pack(2 + t, "h")
        for f in range(2):
            a("buffer_store_dwordx4 %s, v%d, s[%d:%d], s%d offen offset:%d sc1", vr(ACC + 32 + 16 * t + 4 * f, 4), v_l16, sWS, sWS + 3, s_st, 2048 * f)
        if t == 0: a("s_add_u32 s%d, s%d, 4096", s_st, s_st)
    a("s_add_u32 s%d, s%d, 1", s_lb, s_lb)
    a("s_cmp_eq_u32 s%d, 2", s_h)
    a("s_cbranch_scc1 L_P2")
    stamp(a, 6); stamp(a, 9, "p2"); stamp(a, 1, "p3")

    s_head, s_qb, s_kvb, s_i, s_off, s_mode, s_cnt, s_tgt = s_rb, s_grp, s_a, s_b, s_c, s_d, s_rot, s_cp
    s_bad = 16
    Q0, KV0, P0, O0, S0, MX = 24, 56, 120, 136 + 0, 200, 232
    O0 = 136
    v_pa = 9
    def q(u, f): return vr(Q0 + 8 * u + 4 * f, 4)
    def o(u): return vr(O0 + 16 * u, 16)
    def kv(st, f): return vr(KV0 + 16 * st + 4 * f, 4)
    a("s_and_b32 s%d, s2, 7", s_head)
    a("s_lshl_b32 s%d, s%d, 1", s_head, s_head)
    a("s_bfe_u32 s%d, s2, 0x10003", s_t0)
    a("s_add_u32 s%d, s%d, s%d", s_head, s_head, s_t0)
    a("s_lshr_b32 s%d, s2, 4", s_qb)
    a("s_mov_b32 s%d, 0", s_mode)
    a("s_mov_b32 s%d, 0", s_tgt)
    a("s_lshl_b32 s%d, s%d, 2", s_kvb, s_head)
    a("s_add_u32 s%d, s%d, s%d", s_kvb, s_kvb, s_w)
    a("s_lshl_b32 s%d, s%d, 16", s_kvb, s_kvb)
    a("s_add_u32 s%d, s%d, 0x%x", s_kvb, s_kvb, KV)
    a("v_and_b32 v%d, 15, v%d", t0, v_lane)
    a("s_lshl_b32 s%d, s%d, 4", s_t0, s_w)
    a("v_add_u32 v%d, s%d, v%d", t0, s_t0, t0)
    a("v_add_u32 v%d, 1, v%d", t1, v_ch)
    a("v_lshl_add_u32 v%d, v%d, 8, v%d", t0, t1, t0)
    a("s_lshl_b32 s%d, s%d, 2", s_t0, s_qb)
    a("v_add_u32 v%d, s%d, v%d", t1, s_t0, v_c)
    a("v_cndmask_b32 v%d, v%d, v%d, s[%d:%d]", t0, t0, t1, s_hi, s_hi + 1)
    a("v_lshlrev_b32 v%d, 3, v%d", v_pa, t0)
    a("s_lshr_b32 s%d, s%d, 2", s_t1, s_head)
    a("s_lshl_b32 s%d, s%d, 9", s_t1, s_t1)
    a("s_add_u32 s%d, s%d, 0x%x", s_t1, s_t1, FQ)
    a("buffer_load_dwordx2 %s, v%d, s[%d:%d], s%d offen sc1", vr(10, 2), v_pa, sWS, sWS + 3, s_t1)
    put_flag()
    stamp(a, 2, "p3")
    a("s_mov_b32 s%d, %d", s_spin, SPIN_MAX)
    a.label("L_AP")
    a("v_cmp_ne_u64 vcc, s[%d:%d], v[10:11]", s_non, s_non + 1)
    a("s_cbranch_vccz L_APX")
    a("s_sub_u32 s%d, s%d, 1", s_spin, s_spin)
    a("s_cbranch_scc1 L_APX")
    a("s_sleep %d", OPT["sleep"])
    a("buffer_load_dwordx2 %s, v%d, s[%d:%d], s%d offen sc1", vr(10, 2), v_pa, sWS, sWS + 3, s_t1)
    a("s_waitcnt vmcnt(0)")
    a("s_branch L_AP")
    a.label("L_APX")
    stamp(a, 7); stamp(a, 3, "p3")
    def kvload(st, fr=(0, 1, 2, 3)):
        a("s_add_u32 s%d, s%d, s%d", s_off, s_i, s_qb)
        a("s_and_b32 s%d, s%d, 15", s_off, s_off)
        a("s_lshl_b32 s%d, s%d, 12", s_off, s_off)
        a("s_add_u32 s%d, s%d, s%d", s_off, s_off, s_kvb)
        for f in fr:
            a("buffer_load_dwordx4 %s, v%d, s[%d:%d], s%d offen offset:%d sc1", kv(st, f), v_l16, sWS, sWS + 3, s_off, 1024 * f)
        a("s_add_u32 s%d, s%d, 1", s_i, s_i)
    nsync = [0]
    def async_():
        n = nsync[0]; nsync[0] += 1
        a("v_mov_b32 v12, %d", CNT)
        a("v_mov_b32 v13, 1")
        a("s_add_u32 s%d, s%d, 4", s_tgt, s_tgt)
        a("s_waitcnt lgkmcnt(0)")
        a("s_mov_b64 exec, 1")
        a("ds_add_u32 v12, v13")
        a("s_mov_b64 exec, -1")
        a("s_mov_b32 s%d, %d", s_spin, SPIN_MAX)
        a.label("L_AS%d" % n)
        a("ds_read_b32 v13, v12")
        a("s_sub_u32 s%d, s%d, 1", s_spin, s_spin)
        a("s_cbranch_scc1 L_ASX%d" % n)
        a("s_waitcnt lgkmcnt(0)")
        a("v_readfirstlane_b32 s%d, v13", s_t0)
        a("s_cmp_lt_u32 s%d, s%d", s_t0, s_tgt)
        a("s_cbranch_scc1 L_AS%d" % n)
        a.label("L_ASX%d" % n)
    a.label("L_RESTART")
    a("s_lshl_b32 s%d, s%d, 4", s_t0, s_head)
    a("s_add_u32 s%d, s%d, s%d", s_t0, s_t0, s_qb)
    a("s_lshl_b32 s%d, s%d, 13", s_t0, s_t0)
    a("s_mov_b32 s%d, 0", s_i)
    kvload(0)
    for u in range(4):
        a("s_add_u32 s%d, s%d, %d", s_t1, s_w, u)
        a("s_and_b32 s%d, s%d, 3", s_t1, s_t1)
        a("s_lshl_b32 s%d, s%d, 11", s_t1, s_t1)
        a("s_add_u32 s%d, s%d, s%d", s_t1, s_t1, s_t0)
        for f in range(2):
            a("buffer_load_dwordx4 %s, v%d, s[%d:%d], s%d offen offset:%d sc1", q(u, f), v_l16, sWS, sWS + 3, s_t1, 1024 * f)
    kvload(1); kvload(2)
    for u in range(4): a("v_mov_b32 v%d, 0xff800000", MX + u)
    stamp(a, 4, "p3")
    a("s_waitcnt vmcnt(8)")
    stamp(a, 5, "p3")
    def maxtile(st):
        for u in range(4):
            d = vr(O0 + 16 * u, 16)
            a("v_mfma_f32_32x32x16_bf16 %s, %s, %s, 0", d, kv(st, 0), q(u, 0))
            a("v_mfma_f32_32x32x16_bf16 %s, %s, %s, %s", d, kv(st, 1), q(u, 1), d)
        for u in range(4):
            for j in range(8):
                a("v_max3_f32 v%d, v%d, v%d, v%d", MX + u, O0 + 16 * u + 2 * j, O0 + 16 * u + 2 * j + 1, MX + u)
    maxtile(0)
    a("s_cmp_eq_u32 s%d, 0", s_mode)
    a("s_cbranch_scc1 L_MAXDONE")
    a("s_mov_b32 s%d, 1", s_i)
    a.label("L_MAXLOOP")
    kvload(3, (0, 1))
    a("s_waitcnt vmcnt(0)")
    maxtile(3)
    a("s_cmp_lt_u32 s%d, 16", s_i)
    a("s_cbranch_scc1 L_MAXLOOP")
    a("s_mov_b32 s%d, 3", s_i)
    a.label("L_MAXDONE")
    for u in range(4): a("v_mov_b32 v%d, v%d", v_t + u, MX + u)
    for u in range(4): a("v_permlane32_swap_b32 v%d, v%d", MX + u, v_t + u)
    for u in range(4): a("v_max_f32 v%d, v%d, v%d", MX + u, MX + u, v_t + u)
    a("v_lshlrev_b32 v%d, 2, v%d", v_t + 4, v_lane)
    for u in range(4):
        a("s_add_u32 s%d, s%d, %d", s_t1, s_w, u)
        a("s_and_b32 s%d, s%d, 3", s_t1, s_t1)
        a("s_lshl_b32 s%d, s%d, 10", s_t1, s_t1)
        a("s_add_u32 s%d, s%d, %d", s_t1, s_t1, MXA)
        a("v_add_u32 v%d, s%d, v%d", v_t + u, s_t1, v_t + 4)
    a("s_lshl_b32 s%d, s%d, 8", s_t0, s_w)
    for u in range(4):
        a("v_add_u32 v%d, s%d, v%d", v_t + 5, s_t0, v_t + u)
        a("ds_write_b32 v%d, v%d", v_t + 5, MX + u)
    stamp(a, 6, "p3")
    async_()
    stamp(a, 7, "p3")
    for u in range(4):
        a("ds_read2_b32 %s, v%d offset0:0 offset1:64", vr(S0 + 4 * u, 2), v_t + u)
        a("ds_read2_b32 %s, v%d offset0:128 offset1:192", vr(S0 + 4 * u + 2, 2), v_t + u)
    a("s_cmp_eq_u32 s%d, 0", s_mode)
    a("s_cselect_b32 s%d, %s, 0", s_t0, f32(OPT["bias"]))
    a("s_waitcnt lgkmcnt(0)")
    for u in range(4):
        a("v_max3_f32 v%d, v%d, v%d, v%d", MX + u, S0 + 4 * u, S0 + 4 * u + 1, S0 + 4 * u + 2)
        a("v_max_f32 v%d, v%d, v%d", MX + u, MX + u, S0 + 4 * u + 3)
        a("v_add_f32 v%d, s%d, v%d", MX + u, s_t0, MX + u)
    for u in range(4):
        m = MX + u; h0, h1, h2 = v_t, v_t + 1, v_t + 2
        a("v_sub_f32 v%d, 0, v%d", m, m)
        a("v_and_b32 v%d, s%d, v%d", h0, s_mask, m)
        a("v_sub_f32 v%d, v%d, v%d", m, m, h0)
        a("v_and_b32 v%d, s%d, v%d", h1, s_mask, m)
        a("v_sub_f32 v%d, v%d, v%d", m, m, h1)
        a("v_lshrrev_b32 v%d, 16, v%d", h0, h0)
        a("v_or_b32 v%d, v%d, v%d", h0, h0, h1)
        a("v_lshrrev_b32 v%d, 16, v%d", h2, m)
        a("v_cndmask_b32 v%d, v%d, v%d, s[%d:%d]", Q0 + 8 * u + 6, Q0 + 8 * u + 6, h0, s_hi, s_hi + 1)
        a("v_cndmask_b32 v%d, v%d, v%d, s[%d:%d]", Q0 + 8 * u + 7, Q0 + 8 * u + 7, h2, s_hi, s_hi + 1)
    def S(n): return S0 + 16 * (n & 1)
    def P(n): return P0 + 8 * (n & 1)
    def qk(n, f):
        i, u = n >> 2, n & 3
        d = vr(S(n), 16)
        return "v_mfma_f32_32x32x16_bf16 %s, %s, %s, %s" % (d, kv(i & 3, f), q(u, f), d if f else "0")
    def pv(n, f, init=False):
        i, u = n >> 2, n & 3
        return "v_mfma_f32_32x32x16_bf16 %s, %s, %s, %s" % (o(u), kv(i & 3, 2 + f), vr(P(n) + 4 * f, 4), "0" if (init and f == 0) else o(u))
    def slot(n, g0, last, loads):
        i, u = n >> 2, n & 3
        m = [None, None] if last else [qk(n + 1, 0), qk(n + 1, 1)]
        m += [None, None] if (g0 and n == 0) else [pv(n - 1, 0, g0 and n <= 4), pv(n - 1, 1)]
        free = [[], [], [], []]
        if u == 2 and loads["wait"] is not None: free[3].append("s_waitcnt vmcnt(%d)" % loads["wait"])
        if loads["issue"]:
            st = (i + 3) & 3
            if u == 0:
                free[0].append("s_add_u32 s%d, s%d, s%d" % (s_off, s_i, s_qb))
                free[1].append("s_and_b32 s%d, s%d, 15" % (s_off, s_off))
                free[2].append("s_lshl_b32 s%d, s%d, 12" % (s_off, s_off))
                free[3].append("s_add_u32 s%d, s%d, s%d" % (s_off, s_off, s_kvb))
            if u == 1:
                ld = ["buffer_load_dwordx4 %s, v%d, s[%d:%d], s%d offen offset:%d sc1" % (kv(st, f), v_l16, sWS, sWS + 3, s_off, 1024 * f) for f in range(4)]
                free[0] += ld
                free[1].append("s_add_u32 s%d, s%d, 1" % (s_i, s_i))
        for k in range(4):
            if m[k]: a(m[k])
            for x in free[k]: a(x)
            for j in range(4): a("v_exp_f32 v%d, v%d", S(n) + 4 * k + j, S(n) + 4 * k + j)
            if k > 0:
                for j in range(2):
                    a("v_cvt_pk_bf16_f32 v%d, v%d, v%d", P(n) + 2 * (k - 1) + j, S(n) + 4 * (k - 1) + 2 * j, S(n) + 4 * (k - 1) + 2 * j + 1)
        for j in range(2):
            a("v_cvt_pk_bf16_f32 v%d, v%d, v%d", P(n) + 6 + j, S(n) + 12 + 2 * j, S(n) + 12 + 2 * j + 1)
    stamp(a, 8); stamp(a, 8, "p3")
    a(qk(0, 0)); a(qk(0, 1))
    def group(g, last_group):
        for n in range(16):
            i = n >> 2
            issue = (not last_group) or i == 0
            wait = {0: 8, 1: 4, 2: 0, 3: None}[i] if last_group else 8
            slot(n, g == 0, last_group and n == 15, dict(issue=issue, wait=wait))
    group(0, False)
    a("s_mov_b32 s%d, 2", s_cnt)
    a.label("L_LOOP")
    group(1, False)
    a("s_sub_u32 s%d, s%d, 1", s_cnt, s_cnt)
    a("s_cmp_lg_u32 s%d, 0", s_cnt)
    a("s_cbranch_scc1 L_LOOP")
    group(3, True)
    a(pv(15, 0)); a(pv(15, 1))
    stamp(a, 9); stamp(a, 9, "p3"); stamp(a, 1, "p4")
    for u in range(1, 4):
        a("s_add_u32 s%d, s%d, %d", s_t1, s_w, u)
        a("s_and_b32 s%d, s%d, 3", s_t1, s_t1)
        a("s_mul_i32 s%d, s%d, 12288", s_t1, s_t1)
        a("v_add_u32 v%d, s%d, v%d", v_t + u, s_t1, v_l16)
    for u in range(1, 4):
        for qd in range(4):
            a("ds_write_b128 v%d, %s offset:%d", v_t + u, vr(O0 + 16 * u + 4 * qd, 4), CA + (u - 1) * 4096 + qd * 1024)
    a("s_mul_i32 s%d, s%d, 12288", s_t1, s_w)
    a("v_add_u32 v%d, s%d, v%d", v_t, s_t1, v_l16)
    stamp(a, 2, "p4")
    async_()
    stamp(a, 3, "p4")
    for u in range(1, 4):
        for qd in range(4):
            a("ds_read_b128 %s, v%d offset:%d", vr(O0 + 16 * u + 4 * qd, 4), v_t, CA + (u - 1) * 4096 + qd * 1024)
    a("s_lshl_b32 s%d, s%d, 2", s_t0, s_qb)
    a("s_add_u32 s%d, s%d, s%d", s_t0, s_t0, s_w)
    a("s_lshr_b32 s%d, s%d, 1", s_t1, s_t0)
    a("s_lshl_b32 s%d, s%d, 4", s_fl, s_t1)
    a("s_add_u32 s%d, s%d, s%d", s_fl, s_fl, s_head)
    a("s_lshl_b32 s%d, s%d, 1", s_fl, s_fl)
    a("s_mul_i32 s%d, s%d, 144", s_t1, s_t1)
    a("s_lshl_b32 s%d, s%d, 1", s_off, s_head)
    a("s_add_u32 s%d, s%d, s%d", s_t1, s_t1, s_off)
    a("s_add_u32 s%d, s%d, 112", s_t1, s_t1)
    a("s_lshl_b32 s%d, s%d, 1", s_t1, s_t1)
    a("s_and_b32 s%d, s%d, 1", s_t0, s_t0)
    a("s_add_u32 s%d, s%d, s%d", s_t1, s_t1, s_t0)
    a("s_add_u32 s%d, s%d, s%d", s_fl, s_fl, s_t0)
    a("s_lshl_b32 s%d, s%d, 3", s_fl, s_fl)
    a("s_add_u32 s%d, s%d, 0x%x", s_fl, s_fl, FO)
    a("s_lshl_b32 s%d, s%d, 10", s_t1, s_t1)
    a("s_add_u32 s%d, s%d, 0x%x", s_t1, s_t1, AF)
    a("s_waitcnt lgkmcnt(8)")
    for j in range(16): a("v_add_f32 v%d, v%d, v%d", O0 + j, O0 + j, O0 + 16 + j)
    a("s_waitcnt lgkmcnt(0)")
    for j in range(16): a("v_add_f32 v%d, v%d, v%d", O0 + 32 + j, O0 + 32 + j, O0 + 48 + j)
    for j in (12,) + tuple(range(12)) + (13, 14, 15):
        a("v_add_f32 v%d, v%d, v%d", O0 + j, O0 + j, O0 + 32 + j)
        if j == 12:
            a("v_mov_b32 v%d, v%d", v_t, O0 + 12)
            a("v_mov_b32 v%d, v%d", v_t + 1, O0 + 12)
        if j == 2: a("v_permlane32_swap_b32 v%d, v%d", v_t, v_t + 1)
        if j == 5: a("v_rcp_f32 v%d, v%d", v_t + 2, v_t + 1)
    a("v_maximum3_f32 v%d, abs(v%d), abs(v%d), abs(v%d)", v_t + 3, O0, O0 + 1, O0 + 2)
    for j in range(3, 15, 2):
        a("v_maximum3_f32 v%d, abs(v%d), abs(v%d), v%d", v_t + 3, O0 + j, O0 + j + 1, v_t + 3)
    a("v_maximum3_f32 v%d, abs(v%d), abs(v%d), v%d", v_t + 3, O0 + 15, O0 + 15, v_t + 3)
    a("v_mov_b32 v%d, 0x7e800000", v_t + 4)
    a("v_cmp_nlt_f32 s[%d:%d], v%d, v%d", s_bad, s_bad + 1, v_t + 3, v_t + 4)
    for j in range(16):
        a("v_mul_f32 v%d, v%d, v%d", O0 + j, O0 + j, v_t + 2)
    for jj in range(8):
        a("v_cvt_pk_bf16_f32 v%d, v%d, v%d", P0 + jj, O0 + 2 * jj, O0 + 2 * jj + 1)
    stamp(a, 4, "p4")
    a("s_or_b32 s%d, s%d, s%d", s_bad, s_bad, s_bad + 1)
    a("s_cmp_lg_u32 s%d, 0", s_mode)
    a("s_cselect_b32 s%d, 0, s%d", s_bad, s_bad)
    a("s_cmp_lg_u32 s%d, 0", s_bad)
    a("s_cbranch_scc1 L_NOPUB")
    a("s_cmp_eq_u32 s%d, 2", s_mode)
    a("s_cbranch_scc1 L_NOPUB")
    for f in range(2):
        a("buffer_store_dwordx4 %s, v%d, s[%d:%d], s%d offen offset:%d sc1", vr(P0 + 4 * f, 4), v_l16, sWS, sWS + 3, s_t1, 2048 * f)
    a("s_mov_b64 exec, 1")
    stamp(a, 5, "p4")
    a("s_waitcnt vmcnt(0)")
    stamp(a, 6, "p4")
    a("buffer_store_dwordx2 %s, v%d, s[%d:%d], s%d offen sc1", vr(v_non, 2), v_l16, sWS, sWS + 3, s_fl)
    a("s_mov_b64 exec, -1")
    a.label("L_NOPUB")
    a("s_cmp_lg_u32 s%d, 0", s_mode)
    a("s_cbranch_scc1 L_AEND")
    a("v_mov_b32 v%d, %d", v_t, CNT + 4)
    a("v_mov_b32 v%d, s%d", v_t + 1, s_bad)
    a("ds_or_b32 v%d, v%d", v_t, v_t + 1)
    async_()
    a("ds_read_b32 v%d, v%d", v_t + 1, v_t)
    a("s_waitcnt lgkmcnt(0)")
    a("v_readfirstlane_b32 s%d, v%d", s_t0, v_t + 1)
    a("s_cmp_eq_u32 s%d, 0", s_t0)
    a("s_cbranch_scc1 L_AEND")
    a("s_cmp_lg_u32 s%d, 0", s_bad)
    a("s_cselect_b32 s%d, 1, 2", s_mode)
    a("s_branch L_RESTART")
    a.label("L_AEND")
    stamp_flush(a)
    a("s_endpgm")

    a.label("L_B")
    sW2, sWO, sO = 12, 24, 24
    if OPT.get("codepf", True):
        a("s_getpc_b64 s[%d:%d]", s_ex, s_ex + 1)
        a.label("L_PC")
        a("s_lshr_b32 s%d, s2, 3", s_t0)
        a("s_lshl_b32 s%d, s%d, 2", s_t0, s_t0)
        a("s_add_u32 s%d, s%d, s%d", s_t0, s_t0, s_w)
        a("s_sub_u32 s%d, s%d, 4", s_t0, s_t0)
        a("s_cmp_ge_u32 s%d, (L_END-%s)/1024", s_t0, KN)
        a("s_cbranch_scc1 L_NOCPF")
        a("s_lshl_b32 s%d, s%d, 10", s_t0, s_t0)
        a("s_sub_u32 s%d, s%d, L_PC-%s", s_ex, s_ex, KN)
        a("s_subb_u32 s%d, s%d, 0", s_ex + 1, s_ex + 1)
        a("s_add_u32 s%d, s%d, s%d", s_ex, s_ex, s_t0)
        a("s_addc_u32 s%d, s%d, 0", s_ex + 1, s_ex + 1)
        a("v_mov_b32 v17, s%d", s_ex + 1)
        a("v_add_co_u32 v16, vcc, s%d, v%d", s_ex, v_l16)
        a("v_addc_co_u32 v17, vcc, 0, v17, vcc")
        a("global_load_dwordx4 v[252:255], v[16:17], off")
        a.label("L_NOCPF")
    BACC, E0, NE, HR, NH = 16, 80, 18, 224, 4
    v_gd, v_hd, v_rw, v_sw, v_sr, v_a0, v_a1, v_xo, v_oo = 9, 10, 11, 12, 13, 14, 15, 3, 0
    s_rstr, s_gb, s_hb, s_rb64, s_cb, s_k, s_kr, s_ab = s_a, s_b, s_c, s_e, s_f, s_g, s_h, s_d
    a("s_and_b32 s%d, s%d, 3", s_w, s_w)
    a("s_and_b32 s%d, s2, 7", s_rb64)
    a("s_lshl_b32 s%d, s%d, 2", s_rb64, s_rb64)
    a("s_bfe_u32 s%d, s2, 0x20003", s_t0)
    a("s_add_u32 s%d, s%d, s%d", s_rb64, s_rb64, s_t0)
    a("s_lshr_b32 s%d, s2, 5", s_cb)
    a("s_cmp_lt_u32 s%d, 12", s_grp)
    a("s_movk_i32 s%d, 2688", s_t0)
    a("s_cselect_b32 s%d, s%d, 3584", s_rstr, s_t0)
    a("s_cselect_b32 s%d, 56, 64", s_t1)
    a("v_lshrrev_b32 v16, 4, v%d", v_lane)
    a("v_mul_lo_u32 v16, v16, s%d", s_t1)
    a("v_mul_lo_u32 v17, v%d, s%d", v_rr, s_rstr)
    a("v_lshl_add_u32 v%d, v%d, 4, v16", v_gd, v_c)
    a("v_add_u32 v%d, v%d, v17", v_gd, v_gd)
    a("s_mul_i32 s%d, s%d, 224", s_gb, s_grp)
    a("s_sub_u32 s%d, s%d, 2", s_t0, s_lb)
    a("s_lshl_b32 s%d, s%d, 7", s_t0, s_t0)
    a("s_cmp_lt_u32 s%d, 12", s_grp)
    a("s_cselect_b32 s%d, s%d, s%d", s_gb, s_gb, s_t0)
    a("s_lshl_b32 s%d, s%d, 4", s_t0, s_w)
    a("s_mul_i32 s%d, s%d, s%d", s_t1, s_t0, s_rstr)
    a("s_add_u32 s%d, s%d, s%d", s_gb, s_gb, s_t1)
    a("s_mul_i32 s%d, s%d, 3584", s_hb, s_t0)
    a("s_lshl_b32 s%d, s%d, 7", s_t0, s_lb)
    a("s_add_u32 s%d, s%d, s%d", s_hb, s_hb, s_t0)
    a("v_lshl_add_u32 v16, v%d, 2, v%d", v_g, v_rr)
    a("v_mul_u32_u24 v17, 3584, v16")
    a("v_lshlrev_b32 v18, 4, v%d", v_c)
    a("v_lshl_add_u32 v19, v%d, 6, v18", v_ch)
    a("v_add_u32 v%d, v17, v19", v_hd)
    a("v_mul_u32_u24 v17, 896, v16")
    a("s_lshr_b32 s%d, s%d, 1", s_t0, s_w)
    a("s_lshl_b32 s%d, s%d, 6", s_t0, s_t0)
    a("v_xor_b32 v19, s%d, v19", s_t0)
    a("v_add_u32 v%d, v17, v19", v_rw)
    a("s_mul_i32 s%d, s%d, 10240", s_t0, s_w)
    a("s_add_u32 s%d, s%d, %d", s_t0, s_t0, BST)
    a("v_add_u32 v%d, s%d, v%d", v_sw, s_t0, v_l16)
    a("v_lshl_add_u32 v%d, v%d, 9, v%d", v_sr, v_g, v_trp)
    a("v_add_u32 v%d, s%d, v%d", v_sr, s_t0, v_sr)
    a("s_mov_b32 s%d, s%d", 70, s_t0)
    a("s_lshl_b32 s%d, s%d, 2", s_k, s_cb)
    a("s_and_b32 s%d, s%d, 3", s_t0, s_rb64)
    a("s_mul_i32 s%d, s%d, 7", s_t0, s_t0)
    a("s_add_u32 s%d, s%d, s%d", s_k, s_k, s_t0)
    a("s_sub_u32 s%d, s%d, 28", s_t0, s_k)
    a("s_cmp_ge_u32 s%d, 28", s_k)
    a("s_cselect_b32 s%d, s%d, s%d", s_k, s_t0, s_k)
    a("s_mov_b32 s%d, s%d", s_kr, s_k)
    a("s_mul_i32 s%d, s%d, %d", 71, s_w, 28 * 16 * 896)
    a("s_lshl_b32 s%d, s%d, 7", s_t0, s_cb)
    a("s_add_u32 s71, s71, s%d", s_t0)
    a("s_waitcnt lgkmcnt(0)")
    a("s_cmp_lt_u32 s%d, 12", s_grp)
    a("s_cselect_b32 s%d, s42, s48", sW)
    a("s_cselect_b32 s%d, s43, s49", sW + 1)
    a("s_mov_b32 s%d, 0x%x", s_t0, 448 * 1344 * 2)
    a("s_cselect_b32 s%d, s%d, 0x%x", sW + 2, s_t0, 448 * 1792 * 2)
    a("s_mov_b32 s%d, 0x00020000", sW + 3)
    srd(a, sW1, 48, 448 * 1792 * 2)
    srd(a, sW2, 50, 1792 * 448 * 2)
    srd(a, sWS, 46, WS_END)
    srd(a, sDBG, 54, 256)
    if OPT.get("wpf", True):
        a("s_lshl_b32 s%d, s2, 2", s_t0)
        a("s_add_u32 s%d, s%d, s%d", s_t0, s_t0, s_w)
        a("s_lshl_b32 s%d, s%d, 10", s_t0, s_t0)
        a("s_sub_u32 s%d, 0x%x, s%d", s_t1, 2047 * 1024, s_t0)
        srd(a, 64, 42, 448 * 1344 * 2)
        a("buffer_load_dwordx4 v[80:83], v%d, s[64:67], s%d offen", v_l16, s_t0)
        a("buffer_load_dwordx4 v[84:87], v%d, s[%d:%d], s%d offen", v_l16, sW1, sW1 + 3, s_t0)
        a("buffer_load_dwordx4 v[88:91], v%d, s[64:67], s%d offen", v_l16, s_t1)
        a("buffer_load_dwordx4 v[92:95], v%d, s[%d:%d], s%d offen", v_l16, sW1, sW1 + 3, s_t1)
        srd(a, 96, 44, 448 * 448 * 2)
        a("s_add_u32 s%d, s%d, 0x100000", s_t1, s_t0)
        a("buffer_load_dwordx4 v[96:99], v%d, s[%d:%d], s%d offen", v_l16, sW2, sW2 + 3, s_t0)
        a("buffer_load_dwordx4 v[100:103], v%d, s[%d:%d], s%d offen", v_l16, sW2, sW2 + 3, s_t1)
        a("s_sub_u32 s%d, 0x%x, s%d", s_t1, 1023 * 1024, s_t0)
        a("buffer_load_dwordx4 v[104:107], v%d, s[96:99], s%d offen", v_l16, s_t1)
    a("s_or_b32 s%d, s2, s%d", s_t0, s_w)
    a("s_cmp_lg_u32 s%d, 0", s_t0)
    a("s_cbranch_scc1 L_BNW")
    a("s_memrealtime s[%d:%d]", s_non, s_non + 1)
    a("v_mov_b32 v18, 0")
    a("s_waitcnt lgkmcnt(0)")
    a("s_or_b32 s%d, s%d, 1", s_non, s_non)
    a("v_mov_b32 v16, s%d", s_non)
    a("v_mov_b32 v17, s%d", s_non + 1)
    a("s_mov_b64 exec, 1")
    a("buffer_store_dwordx2 v[16:17], v18, s[%d:%d], 0 offen sc1", sDBG, sDBG + 3)
    a("s_mov_b64 exec, -1")
    a.label("L_BNW")
    a("s_cmp_ge_u32 s%d, 12", s_grp)
    a("s_cbranch_scc1 L_B2")
    s_cp2 = 57
    def bprog(two):
        vm = VM(a)
        nraw = [0]
        def G(p):
            cp_next(p == 0)
            a("s_lshl_b32 s%d, s%d, 6", s_t0, s_cp)
            a("s_mul_i32 s%d, s%d, s%d", s_t0, s_t0, s_rstr)
            a("s_add_u32 s%d, s%d, s%d", s_t0, s_t0, s_gb)
            a("s_lshl_b32 s%d, s%d, 2", s_t1, s_rstr)
            a("s_lshl_b32 s%d, s%d, 12", s_ex, s_w)
            for i in range(4):
                a("s_add_u32 m0, s%d, %d", s_ex, p * 16384 + i * 1024)
                if i: a("s_add_u32 s%d, s%d, s%d", s_t0, s_t0, s_t1)
                a("buffer_load_dwordx4 v%d, s[%d:%d], s%d offen lds", v_gd, sW, sW + 3, s_t0); vm.issue(("G", p))
        def H(r, p):
            cp_next(p == 0)
            base = ((P2A, P2A7), (P2B, P2B7))[r]
            lds = base[0] + p * 8192 if p < 6 else base[1]
            a("s_mul_i32 s%d, s%d, %d", s_t0, s_cp, 64 * 3584)
            a("s_add_u32 s%d, s%d, s%d", s_t0, s_t0, s_hb)
            if r: a("s_add_u32 s%d, s%d, 128", s_t0, s_t0)
            a("s_lshl_b32 s%d, s%d, 11", s_ex, s_w)
            for i in range(2):
                a("s_add_u32 m0, s%d, %d", s_ex, lds + i * 1024)
                if i: a("s_add_u32 s%d, s%d, %d", s_t0, s_t0, 8 * 3584)
                a("buffer_load_dwordx4 v%d, s[%d:%d], s%d offen lds", v_hd, sW1, sW1 + 3, s_t0); vm.issue(("H", r, p))
        def kr_next():
            a("s_add_u32 s%d, s%d, 1", s_kr, s_kr)
            a("s_cmp_eq_u32 s%d, 28", s_kr)
            a("s_cselect_b32 s%d, 0, s%d", s_kr, s_kr)
        def R(cnt):
            for _ in range(cnt):
                e = nraw[0]
                if e >= NE: return
                nraw[0] += 1
                a("s_mul_i32 s%d, s%d, %d", s_t0, s_kr, 16 * 896)
                a("s_add_u32 s%d, s%d, s71", s_t0, s_t0)
                a("s_add_u32 s%d, s%d, %d", s_t1, s_t0, 8 * 896)
                a("buffer_load_dwordx4 %s, v%d, s[%d:%d], s%d offen", vr(E0 + 8 * e, 4), v_rw, sW2, sW2 + 3, s_t0); vm.issue(("R", e))
                a("buffer_load_dwordx4 %s, v%d, s[%d:%d], s%d offen", vr(E0 + 8 * e + 4, 4), v_rw, sW2, sW2 + 3, s_t1); vm.issue(("R", e))
                kr_next()
        bar = lambda: a("s_barrier")
        rp = OPT.get("rplan2" if two else "rplan1", (0, 0, 0, 2, 2, 2) if two else (1, 1, 2, 3, 3, 3))
        bar()
        G(0); G(1); G(2)
        bar()
        G(3); vm.wait(("G", 0)); bar()
        G(4); vm.wait(("G", 1)); bar()
        G(5); vm.wait(("G", 2)); bar()
        G(6); vm.wait(("G", 3)); bar()
        for p in range(3): H(0, p)
        R(rp[0]); vm.wait(("G", 4)); bar()
        for p in range(3, 7): H(0, p)
        R(rp[1]); vm.wait(("G", 5)); bar()
        if two:
            for p in range(3): H(1, p)
        R(rp[2]); vm.wait(("G", 6)); bar()
        if two:
            for p in range(3, 7): H(1, p)
        R(rp[3]); vm.wait(("H", 0, 2)); bar()
        a("v_mov_b32 v16, %d", CNT)
        a("v_mov_b32 v18, 0")
        a("v_mov_b32 v19, 0")
        a("ds_write_b64 v16, v[18:19]")
        R(rp[4]); vm.wait(("H", 0, 6))
        a("s_waitcnt lgkmcnt(0)")
        bar()
        if two:
            R(rp[5]); vm.wait(("H", 1, 2)); bar()
            R(2); vm.wait(("H", 1, 6)); bar()
        R(NE)
        return vm
    vm1 = bprog(False)
    a("s_branch L_BJ")
    a.label("L_B2")
    vm2 = bprog(True)
    a.label("L_BJ")
    stamp(a, 1)
    a("s_cmp_ge_u32 s%d, 7", s_cb)
    a("s_cbranch_scc1 L_BIDLE")
    vm = VM(a)
    for e in range(NE): vm.issue(("R", e)); vm.issue(("R", e))
    a("s_and_b32 s%d, s%d, 1", s_t0, s_w)
    a("s_lshl_b32 s%d, s%d, 10", s_t0, s_t0)
    a("v_add_u32 v%d, s%d, v%d", v_a0, s_t0, v_l16)
    a("v_xor_b32 v%d, 1024, v%d", v_a1, v_a0)
    a("v_and_b32 v%d, 31, v%d", v_xo, v_lane)
    a("v_mul_u32_u24 v%d, 896, v%d", v_xo, v_xo)
    a("v_lshl_add_u32 v%d, v%d, 4, v%d", v_oo, v_g, v_xo)
    a("v_lshl_add_u32 v%d, v%d, 3, v%d", v_xo, v_g, v_xo)
    s_xo = s_rstr
    a("s_lshl_b32 s%d, s%d, 1", s_xo, s_rb64)
    a("s_and_b32 s%d, s%d, 1", s_t0, s_w)
    a("s_add_u32 s%d, s%d, s%d", s_xo, s_xo, s_t0)
    a("s_mul_i32 s%d, s%d, %d", s_xo, s_xo, 32 * 896)
    a("s_lshl_b32 s%d, s%d, 1", s_t0, s_cb)
    a("s_lshr_b32 s%d, s%d, 1", s_t1, s_w)
    a("s_add_u32 s%d, s%d, s%d", s_t0, s_t0, s_t1)
    a("s_lshl_b32 s%d, s%d, 6", s_t0, s_t0)
    a("s_add_u32 s%d, s%d, s%d", s_xo, s_xo, s_t0)
    srd(a, sW, 40, XBYTES)
    for q4 in range(4):
        a("buffer_load_dwordx2 %s, v%d, s[%d:%d], s%d offen offset:%d", vr(HR + 2 * q4, 2), v_xo, sW, sW + 3, s_xo, 16 * q4); vm.issue("x")
    a("v_mov_b32 v16, 0")
    a("buffer_load_dwordx2 %s, v16, s[%d:%d], 0 offen sc1", vr(HR + 8, 2), sDBG, sDBG + 3); vm.issue("non")
    a("s_mul_i32 s%d, s%d, 28", s_t0, s_w)
    a("s_mul_i32 s%d, s%d, 144", s_ab, s_rb64)
    a("s_add_u32 s%d, s%d, s%d", s_ab, s_ab, s_t0)
    a("s_lshl_b32 s%d, s%d, 11", s_ab, s_ab)
    a("s_add_u32 s%d, s%d, 0x%x", s_ab, s_ab, AF)
    a("s_lshl_b32 s%d, s%d, 11", s_k, s_k)
    def trread(dst, slot):
        for ct in range(2):
            for h in range(2):
                a("ds_read_b64_tr_b16 %s, v%d offset:%d", vr(dst + 4 * ct + 2 * h, 2), v_sr, slot * 2048 + h * 1024 + ct * 256)
    for e in range(NE):
        vm.wait(("R", e))
        sl = e % 5
        for h in range(2):
            a("ds_write_b128 v%d, %s offset:%d", v_sw, vr(E0 + 8 * e + 4 * h, 4), sl * 2048 + h * 1024)
        trread(E0 + 8 * e, sl)
        a("s_waitcnt lgkmcnt(6)")
    stamp(a, 2)
    vm.wait("non")
    for jj in range(8):
        a("v_lshlrev_b32 v%d, 16, v%d", BACC + 2 * jj, HR + jj)
        a("v_and_b32 v%d, s%d, v%d", BACC + 2 * jj + 1, s_mask, HR + jj)
    a("v_readfirstlane_b32 s%d, v%d", s_non, HR + 8)
    a("v_readfirstlane_b32 s%d, v%d", s_non + 1, HR + 9)
    a("s_waitcnt lgkmcnt(0)")
    nlate = [0]
    def L():
        i = nlate[0]; nlate[0] += 1
        a("s_mul_i32 s%d, s%d, %d", s_t0, s_kr, 16 * 896)
        a("s_add_u32 s%d, s%d, s71", s_t0, s_t0)
        a("s_add_u32 s%d, s%d, %d", s_t1, s_t0, 8 * 896)
        for h in range(2):
            a("s_add_u32 m0, s70, %d", (i % 5) * 2048 + h * 1024)
            a("buffer_load_dwordx4 v%d, s[%d:%d], s%d offen lds", v_rw, sW2, sW2 + 3, s_t1 if h else s_t0); vm.issue(("L", i))
        a("s_add_u32 s%d, s%d, 1", s_kr, s_kr)
        a("s_cmp_eq_u32 s%d, 28", s_kr)
        a("s_cselect_b32 s%d, 0, s%d", s_kr, s_kr)
    for _ in range(5): L()
    npoll = [0]
    def poll(v_addr, s_base, with_nonce):
        n = npoll[0]; npoll[0] += 1
        a("s_mov_b32 s%d, %d", s_spin, SPIN_MAX)
        if with_nonce:
            a.label("L_BN%d" % n)
            a("s_cmp_lg_u32 s%d, 0", s_non)
            a("s_cbranch_scc1 L_BP%d" % n)
            a("buffer_load_dwordx2 %s, v%d, s[%d:%d], 0 offen sc1", vr(HR + 8, 2), HR + 10, sDBG, sDBG + 3)
            a("s_sub_u32 s%d, s%d, 1", s_spin, s_spin)
            a("s_cbranch_scc1 L_BPX%d" % n)
            a("s_waitcnt vmcnt(0)")
            a("v_readfirstlane_b32 s%d, v%d", s_non, HR + 8)
            a("v_readfirstlane_b32 s%d, v%d", s_non + 1, HR + 9)
            a("s_branch L_BN%d" % n)
        a.label("L_BP%d" % n)
        a("buffer_load_dwordx2 %s, v%d, s[%d:%d], s%d offen sc1", vr(HR + 8, 2), v_addr, sWS, sWS + 3, s_base)
        a("s_sub_u32 s%d, s%d, 1", s_spin, s_spin)
        a("s_cbranch_scc1 L_BPX%d" % n)
        a("s_waitcnt vmcnt(0)")
        a("v_cmp_ne_u64 vcc, s[%d:%d], %s", s_non, s_non + 1, vr(HR + 8, 2))
        a("s_cbranch_vccz L_BPX%d" % n)
        a("s_sleep %d", OPT["sleep"])
        a("s_branch L_BP%d" % n)
        a.label("L_BPX%d" % n)
        vm.done = len(vm.ops)
    a("v_min_u32 v%d, 13, v%d", HR + 11, v_lane)
    a("v_lshlrev_b32 v%d, 3, v%d", HR + 11, HR + 11)
    a("v_mov_b32 v%d, 0", HR + 10)
    a("s_lshl_b32 s%d, s%d, 5", s_gb, s_rb64)
    a("s_mul_i32 s%d, s%d, 7", s_t0, s_w)
    a("s_add_u32 s%d, s%d, s%d", s_gb, s_gb, s_t0)
    a("s_lshl_b32 s%d, s%d, 4", s_gb, s_gb)
    a("s_add_u32 s%d, s%d, 0x%x", s_gb, s_gb, FH)
    poll(HR + 11, s_gb, True)
    stamp(a, 3)
    def hload(k):
        a("s_add_u32 s%d, s%d, s%d", s_hb, s_ab, s_k)
        for f, v in ((0, v_a0), (1, v_a1)):
            a("buffer_load_dwordx4 %s, v%d, s[%d:%d], s%d offen sc1", vr(HR + 8 * (k % NH) + 4 * f, 4), v, sWS, sWS + 3, s_hb); vm.issue(("h", k))
        a("s_add_u32 s%d, s%d, 2048", s_k, s_k)
        a("s_cmp_eq_u32 s%d, %d", s_k, 28 * 2048)
        a("s_cselect_b32 s%d, 0, s%d", s_k, s_k)
    def mf(Areg, Breg, first):
        for ct in range(2):
            for rt in range(2):
                l = 2 * ct + rt
                d = vr(BACC + 16 * l, 16)
                a("v_mfma_f32_32x32x16_bf16 %s, %s, %s, %s", d, vr(Breg + 4 * ct, 4), vr(Areg + 4 * rt, 4), "0" if (first and l) else d)
    for k in range(NH): hload(k)
    NL = 28 - NE
    def WO(i):
        sl = (NL + i) % 5
        a("s_mul_i32 s%d, s%d, %d", s_t0, s_w, 112 * 896)
        a("s_lshl_b32 s%d, s%d, 7", s_t1, s_cb)
        a("s_add_u32 s%d, s%d, s%d", s_t0, s_t0, s_t1)
        a("s_add_u32 s%d, s%d, %d", s_t0, s_t0, (28 * (i >> 1) + 16 * (i & 1)) * 896)
        a("s_add_u32 s%d, s%d, %d", s_t1, s_t0, 8 * 896)
        for h in range(2):
            a("s_add_u32 m0, s70, %d", sl * 2048 + h * 1024)
            a("buffer_load_dwordx4 v%d, s[%d:%d], s%d offen lds", v_rw, sW1, sW1 + 3, s_t1 if h else s_t0); vm.issue(("L", NL + i))
    srd(a, sW1, 44, 448 * 448 * 2)
    nxt = 5
    for k in range(28):
        vm.wait(("h", k))
        if k >= NE: a("s_waitcnt lgkmcnt(0)")
        wreg = E0 + 8 * (k if k < NE else k - NE)
        mf(HR + 8 * (k % NH), wreg, k == 0)
        if k + NH < 28: hload(k + NH)
        if k < NL + 8:
            vm.wait(("L", k))
            trread(E0 + 8 * k, k % 5)
            if nxt < NL + 8:
                a("s_waitcnt lgkmcnt(0)")
                if nxt < NL: L()
                else: WO(nxt - NL)
                nxt += 1
        if k == 14: stamp(a, 4)
    stamp(a, 5)
    WO0 = E0 + 8 * NL
    for i in range(1, 8, 2):
        for ct in range(2):
            for r_ in (2, 3):
                rg = WO0 + 8 * i + 4 * ct + r_
                a("v_cndmask_b32 v%d, v%d, 0, s[%d:%d]", rg, rg, s_hi, s_hi + 1)
    a("v_and_b32 v%d, 7, v%d", HR + 11, v_lane)
    a("v_lshlrev_b32 v%d, 3, v%d", HR + 11, HR + 11)
    a("s_lshl_b32 s%d, s%d, 2", s_t0, s_rb64)
    a("s_add_u32 s%d, s%d, s%d", s_t0, s_t0, s_w)
    a("s_lshl_b32 s%d, s%d, 6", s_gb, s_t0)
    a("s_add_u32 s%d, s%d, 0x%x", s_gb, s_gb, FO)
    a("s_mul_i32 s%d, s%d, 20", s_t0, s_w)
    a("s_sub_u32 s%d, 112, s%d", s_t0, s_t0)
    a("s_lshl_b32 s%d, s%d, 11", s_t0, s_t0)
    a("s_add_u32 s%d, s%d, s%d", s_hb, s_ab, s_t0)
    srd(a, sW, 52, XBYTES)
    for l in range(1, 4):
        a("s_xor_b32 s%d, s%d, %d", s_t0, s_w, l)
        a("s_mul_i32 s%d, s%d, 12288", s_t0, s_t0)
        a("s_add_u32 s%d, s%d, %d", s_t0, s_t0, CB)
        a("v_add_u32 v%d, s%d, v%d", 8 + l, s_t0, v_l16)
    a("s_mul_i32 s%d, s%d, 12288", s_t0, s_w)
    a("s_add_u32 s%d, s%d, %d", s_t0, s_t0, CB)
    a("v_add_u32 v8, s%d, v%d", s_t0, v_l16)
    a("v_mov_b32 v12, %d", CNT)
    a("s_mov_b32 s%d, %d", s_spin, SPIN_MAX)
    a.label("L_BC")
    a("ds_read_b32 v13, v12")
    a("s_sub_u32 s%d, s%d, 1", s_spin, s_spin)
    a("s_cbranch_scc1 L_BCX")
    a("s_waitcnt lgkmcnt(0)")
    a("v_readfirstlane_b32 s%d, v13", s_t0)
    a("s_cmp_lt_u32 s%d, 4", s_t0)
    a("s_cbranch_scc1 L_BC")
    a.label("L_BCX")
    poll(HR + 11, s_gb, False)
    stamp(a, 6)
    OF = E0
    for i in range(8):
        for f, v in ((0, v_a0), (1, v_a1)):
            a("buffer_load_dwordx4 %s, v%d, s[%d:%d], s%d offen sc1", vr(OF + 8 * i + 4 * f, 4), v, sWS, sWS + 3, s_hb)
        if i < 7: a("s_add_u32 s%d, s%d, 2048", s_hb, s_hb)
    for i in range(8):
        a("s_waitcnt vmcnt(%d)", 2 * (7 - i))
        mf(OF + 8 * i, WO0 + 8 * i, False)
    stamp(a, 7)
    for l in range(1, 4):
        for qd in range(4):
            a("ds_write_b128 v%d, %s offset:%d", 8 + l, vr(BACC + 16 * l + 4 * qd, 4), (l - 1) * 4096 + qd * 1024)
    a("s_waitcnt lgkmcnt(0)")
    a("s_barrier")
    for l in range(1, 4):
        for qd in range(4):
            a("ds_read_b128 %s, v8 offset:%d", vr(BACC + 16 * l + 4 * qd, 4), (l - 1) * 4096 + qd * 1024)
    a("s_waitcnt lgkmcnt(8)")
    for j in range(16): a("v_add_f32 v%d, v%d, v%d", BACC + j, BACC + j, BACC + 16 + j)
    a("s_waitcnt lgkmcnt(0)")
    for j in range(16): a("v_add_f32 v%d, v%d, v%d", BACC + 32 + j, BACC + 32 + j, BACC + 48 + j)
    for j in range(16): a("v_add_f32 v%d, v%d, v%d", BACC + j, BACC + j, BACC + 32 + j)
    for jj in range(8):
        a("v_cvt_pk_bf16_f32 v%d, v%d, v%d", E0 + jj, BACC + 2 * jj, BACC + 2 * jj + 1)
    for p in range(2):
        a("v_permlane32_swap_b32 v%d, v%d", E0 + 4 * p, E0 + 4 * p + 2)
        a("v_permlane32_swap_b32 v%d, v%d", E0 + 4 * p + 1, E0 + 4 * p + 3)
    for p in range(2):
        a("buffer_store_dwordx4 %s, v%d, s[%d:%d], s%d offen offset:%d", vr(E0 + 4 * p, 4), v_oo, sW, sW + 3, s_xo, 32 * p)
    stamp(a, 8); stamp(a, 9)
    stamp_flush(a)
    a.label("L_BIDLE")
    a.label("L_END")
    a("s_endpgm")
    return a.l

def build(path):
    hdr = open("cdna_kernels/%s.s.ref" % NAME).read().split("\n")
    top = [l for l in hdr if l.startswith(";") and "@launch" not in l]
    lines, added = fix(kernel())
    print("instrs", len(lines), "nop states added", added)
    out = top + ["; @launch grid=(256,1,1) block=(512,1,1) lds=%d" % LDS]
    out += ['.amdgcn_target "amdgcn-amd-amdhsa--gfx950"', ".text", ".globl " + KN, ".p2align 8", ".type %s,@function" % KN] + lines
    out += ['.section .rodata,"a"', ".p2align 6", """.amdhsa_kernel %s
  .amdhsa_next_free_vgpr 256
  .amdhsa_next_free_sgpr 102
  .amdhsa_accum_offset 256
  .amdhsa_group_segment_fixed_size 0
  .amdhsa_kernarg_size 72
  .amdhsa_user_sgpr_count 2
  .amdhsa_user_sgpr_kernarg_segment_ptr 1
  .amdhsa_system_sgpr_workgroup_id_x 1
.end_amdhsa_kernel""" % KN]
    open(path, "w").write("\n".join(out) + "\n")

if __name__ == "__main__":
    for kv_ in sys.argv[2:]:
        k, v = kv_.split("="); OPT[k] = eval(v)
    build(sys.argv[1])
```

```python
import sys, math, struct
from asmlib import *

NAME = "parallel_sum__softmax_full_mha__dense_activation_relu__prompt"
KN = NAME + "_kernel"
KV, AF = 0x200000, 0x600000
FKV = 0x000000
FH = 0x8000
FO = 0x10000
WS_END = 0xF00000
XBYTES = 2048 * 448 * 2
OPT = dict(bias=64.0, stamps=False, sleep=2, prioA=2, rd=3, ne=16, pfa=99, pfb=99, iplan=(1,1,1,2,1,1,3), prioB1=0, prioA1=2, pat=((3,0),(3,0),(2,2),(8,6)))
STAMP = 0x2000000
SPIN_MAX = 1 << 17
K = 1024
NST = 12
def f32(x): return "0x%08x" % struct.unpack("<I", struct.pack("<f", x))[0]

def stamp(a, i, grp="main"):
    if i not in (0, NST - 2, NST - 1) and grp != OPT.get("sgrp", "main"): return
    if OPT["stamps"]: a("%s s[%d:%d]", "s_memtime" if OPT.get("cyc") else "s_memrealtime", 76 + 2 * i, 77 + 2 * i)
def stamp_flush(a):
    if not OPT["stamps"]: return
    stamp(a, NST - 2)
    a("s_mov_b32 s64, s46\ns_mov_b32 s65, s47\ns_mov_b32 s66, 0x10000000\ns_mov_b32 s67, 0x00020000")
    a("s_lshl_b32 s68, s2, 3\ns_add_u32 s68, s68, s3\ns_lshl_b32 s68, s68, 6")
    a("s_add_u32 s68, s68, 0x%x", STAMP)
    a("v_mov_b32 v0, 0")
    a("s_waitcnt vmcnt(0) lgkmcnt(0)")
    stamp(a, NST - 1)
    a("s_waitcnt lgkmcnt(0)")
    for i in range(NST):
        a("v_mov_b32 v1, s%d", 76 + 2 * i)
        a("buffer_store_dword v1, v0, s[64:67], s68 offen offset:%d", 4 * i)

def srd(a, d, base, nbytes):
    a("s_mov_b32 s%d, s%d", d, base)
    a("s_mov_b32 s%d, s%d", d + 1, base + 1)
    a("s_mov_b32 s%d, 0x%x", d + 2, nbytes)
    a("s_mov_b32 s%d, 0x00020000", d + 3)

class VM:
    def __init__(self, a): self.a = a; self.ops = []; self.done = 0
    def issue(self, tag): self.ops.append(tag)
    def wait(self, tag):
        idx = max(i for i, t in enumerate(self.ops) if t == tag)
        if idx < self.done: return
        n = len(self.ops) - 1 - idx
        assert n <= 63, n
        self.a("s_waitcnt vmcnt(%d)", n); self.done = idx + 1

SL = 24 * K
def slot_of(n): return (n % 6) * SL
RB = 149 * K
CNT = 150 * K
QX = 152 * K
KVS = 48 * K
KVS2 = (20 * K, 44 * K, 140 * K, 144 * K)
HO = 80 * K
CV = 112 * K
NSL = 8
def sloff(j): return (j & 3) * 2048 + ((j >> 2) & 1) * 32768
CA = 0
LDS = 160 * K
MF = "v_mfma_f32_32x32x16_bf16"

def kernel():
    a = Asm()
    sWS, sX, sW, sW1, sDBG = 8, 12, 16, 20, 24
    s_w, s_rb, s_c, s_rot, s_t0, s_t1, s_cp, s_mask = 28, 29, 30, 31, 32, 33, 34, 35
    s_hi, s_ex, s_spin, s_non = 36, 38, 56, 58
    v_lane, v_l16 = 1, 2
    a.label(KN)
    a("s_cmp_ge_u32 s2, 256")
    a("s_cbranch_scc1 L_END")
    stamp(a, 0)
    a("s_load_dwordx4 s[40:43], s[0:1], 0")
    a("s_load_dwordx2 s[44:45], s[0:1], 16")
    a("s_load_dwordx4 s[48:51], s[0:1], 32")
    a("s_load_dwordx4 s[52:55], s[0:1], 48")
    a("s_load_dwordx2 s[46:47], s[0:1], 64")
    a("v_lshrrev_b32 v3, 6, v0")
    a("v_and_b32 v%d, 63, v0", v_lane)
    a("v_readfirstlane_b32 s%d, v3", s_w)
    a("v_lshlrev_b32 v%d, 4, v%d", v_l16, v_lane)
    a("s_mov_b32 s%d, 0", s_hi)
    a("s_mov_b32 s%d, -1", s_hi + 1)
    a("s_mov_b32 s%d, 0xffff0000", s_mask)
    cb_ = OPT.get("cbits", 2)
    a("s_and_b32 s%d, s2, %d", s_c, (1 << (4 - cb_)) - 1)
    a("s_lshl_b32 s%d, s%d, %d", s_c, s_c, cb_)
    a("s_bfe_u32 s%d, s2, 0x%x", s_t0, (cb_ << 16) | 3)
    a("s_or_b32 s%d, s%d, s%d", s_c, s_c, s_t0)
    a("s_lshr_b32 s%d, s2, %d", s_rb, 3 + cb_)
    if cb_ > 1:
        a("s_bfe_u32 s%d, s2, 0x%x", s_t1, ((cb_ - 1) << 16) | (4 - cb_))
        a("s_lshl_b32 s%d, s%d, %d", s_t1, s_t1, 5 - cb_)
        a("s_or_b32 s%d, s%d, s%d", s_rb, s_rb, s_t1)
    a("s_mul_i32 s%d, s%d, %d", s_rot, s_t0, {1: 3, 2: 2, 3: 1}[cb_])
    a("s_add_u32 s%d, s%d, s%d", s_rot, s_rot, s_rb)
    a("s_mul_i32 s%d, s%d, 37", s_t0, s_rot)
    a("s_lshr_b32 s%d, s%d, 8", s_t0, s_t0)
    a("s_mul_i32 s%d, s%d, 7", s_t0, s_t0)
    a("s_sub_u32 s%d, s%d, s%d", s_rot, s_rot, s_t0)
    a("s_mov_b32 s3, s%d", s_w)
    v_g, v_ch, v_rr, v_c = 4, 5, 6, 7
    a("v_lshrrev_b32 v%d, 5, v%d", v_g, v_lane)
    a("v_bfe_u32 v%d, v%d, 4, 1", v_ch, v_lane)
    a("v_bfe_u32 v%d, v%d, 2, 2", v_rr, v_lane)
    a("v_and_b32 v%d, 3, v%d", v_c, v_lane)
    v_trp = 8
    a("v_lshlrev_b32 v%d, 6, v%d", v_trp, v_rr)
    a("v_lshl_add_u32 v%d, v%d, 5, v%d", v_trp, v_ch, v_trp)
    a("v_lshl_add_u32 v%d, v%d, 3, v%d", v_trp, v_c, v_trp)
    def nxt7(reg, first):
        if first: a("s_mov_b32 s%d, s%d", reg, s_rot)
        else:
            a("s_add_u32 s%d, s%d, 1", reg, reg)
            a("s_cmp_eq_u32 s%d, 7", reg)
            a("s_cselect_b32 s%d, 0, s%d", reg, reg)
    def kvs2_base(dst):
        a("s_mul_i32 s%d, s%d, %d", dst, s_w, 24 * K)
        a("s_add_u32 s%d, s%d, %d", dst, dst, 20 * K)
        a("s_lshl_b32 s%d, s%d, 12", s_t1, s_w)
        a("s_add_u32 s%d, s%d, %d", s_t1, s_t1, 132 * K)
        a("s_cmp_ge_u32 s%d, 2", s_w)
        a("s_cselect_b32 s%d, s%d, s%d", dst, s_t1, dst)
    a("s_cmp_ge_u32 s%d, 4", s_w)
    a("s_cbranch_scc0 L_A")
    mark_a = len(a.l)
    a.label("L_A")

    a("s_setprio %d", OPT.get("prioA1", 0))
    a("v_lshlrev_b32 v16, 2, v%d", v_lane)
    a("v_add_u32 v16, %d, v16", CNT)
    a("v_mov_b32 v17, 0")
    a("ds_write_b32 v16, v17")
    if OPT.get("codepf", True):
        a("s_getpc_b64 s[%d:%d]", s_ex, s_ex + 1)
        a.label("L_PC")
        a("s_lshr_b32 s%d, s2, 3", s_t0)
        a("s_lshl_b32 s%d, s%d, 5", s_t1, s_w)
        a("s_add_u32 s%d, s%d, s%d", s_t0, s_t0, s_t1)
        a("s_cmp_ge_u32 s%d, (L_END-%s)/1024", s_t0, KN)
        a("s_cbranch_scc1 L_NOCPF")
        a("s_lshl_b32 s%d, s%d, 10", s_t0, s_t0)
        a("s_sub_u32 s%d, s%d, L_PC-%s", s_ex, s_ex, KN)
        a("s_subb_u32 s%d, s%d, 0", s_ex + 1, s_ex + 1)
        a("s_add_u32 s%d, s%d, s%d", s_ex, s_ex, s_t0)
        a("s_addc_u32 s%d, s%d, 0", s_ex + 1, s_ex + 1)
        a("v_mov_b32 v17, s%d", s_ex + 1)
        a("v_add_co_u32 v16, vcc, s%d, v%d", s_ex, v_l16)
        a("v_addc_co_u32 v17, vcc, 0, v17, vcc")
        a("global_load_dword v254, v[16:17], off")
        a.label("L_NOCPF")
    v_xa, v_gb, v_hb, v_qb, v_r = 9, 13, 14, 15, 6
    v_gw, v_hw, v_qw, C2, v_csw = 5, 13, 3, 8, 0
    v_t = 16
    XE = 20
    X0, ACC, RING = 24, 136, 216
    v_non, v_z, v_pa, v_pd = 248, 254, 255, 252
    T4 = ACC + 64
    v_sum, v_sq, v_cs = T4, T4 + 2, T4 + 4
    WE = T4 + 8
    s_ones, s_st = 62, 63
    s_fl, s_rt, s_state = 4, 5, 6
    s_kvb, s_i, s_off, s_mode, s_cnt, s_tgt, s_pb, s_hdone = 16, 17, 18, 19, 20, 21, 22, 23
    s_bad, s_skip, s_hfl = 64, 70, 71
    t0, t1, t2 = v_t, v_t + 1, v_t + 2
    a("s_lshl_b32 s%d, s%d, 2", s_rt, s_rb)
    a("s_add_u32 s%d, s%d, s%d", s_rt, s_rt, s_w)
    a("s_mov_b32 s%d, 0x3f803f80", s_ones)
    a("v_and_b32 v%d, 31, v%d", t0, v_lane)
    a("v_bfe_u32 v%d, v%d, 1, 3", t1, v_lane)
    a("v_xor_b32 v%d, v%d, v%d", t1, t1, v_g)
    a("v_lshlrev_b32 v%d, 7, v%d", t0, t0)
    a("v_lshl_add_u32 v%d, v%d, 4, v%d", t0, t1, t0)
    a("s_lshl_b32 s%d, s%d, 12", s_t0, s_w)
    for q in range(4):
        a("v_xor_b32 v%d, %d, v%d", t1, 32 * q, t0)
        a("v_add_u32 v%d, s%d, v%d", v_xa + q, s_t0, t1)
    a("v_lshl_add_u32 v%d, v%d, 10, v%d", v_gb, v_g, v_trp)
    a("v_lshl_add_u32 v%d, v%d, 11, v%d", v_hb, v_g, v_trp)
    a("v_lshl_add_u32 v%d, v%d, 9, v%d", v_qb, v_g, v_trp)
    for r_ in (v_sum, v_sq, v_cs, v_cs + 1): a("v_mov_b32 v%d, 0", r_)
    a("s_mov_b32 s%d, 0", s_mode)
    a("s_mov_b32 s%d, 0", s_tgt)
    a("s_lshl_b32 s%d, s%d, 2", s_kvb, s_c)
    a("s_add_u32 s%d, s%d, s%d", s_kvb, s_kvb, s_w)
    a("s_lshl_b32 s%d, s%d, 16", s_kvb, s_kvb)
    a("s_add_u32 s%d, s%d, 0x%x", s_kvb, s_kvb, KV)
    v_ko, v_ks, v_ks2, v_ho, v_tag, v_tg = 248, 249, 250, 251, 252, 253
    a("s_lshl_b32 s%d, s%d, 13", s_t0, s_w)
    a("v_add_u32 v%d, s%d, v%d", v_ks, s_t0, v_l16)
    a("v_add_u32 v%d, %d, v%d", v_ho, HO, v_ks)
    a("v_add_u32 v%d, %d, v%d", v_ks, KVS, v_ks)
    kvs2_base(s_t0)
    a("v_add_u32 v%d, s%d, v%d", v_ks2, s_t0, v_l16)
    a("s_lshl_b32 s%d, s%d, 2", s_t0, s_w)
    a("s_add_u32 s%d, s%d, %d", s_t0, s_t0, CNT + 16)
    a("v_mov_b32 v%d, s%d", v_tag, s_t0)
    a("v_and_b32 v%d, 31, v%d", t0, v_lane)
    a("v_mov_b32 v%d, v%d", t1, t0)
    for th in (11, 14, 25):
        a("v_cmp_le_u32 vcc, %d, v%d", th, t0)
        a("v_addc_co_u32 v%d, vcc, 0, v%d, vcc", t1, t1)
    a("v_and_b32 v%d, 1, v%d", t2, t0)
    a("v_lshlrev_b32 v%d, 2, v%d", t2, t2)
    a("v_bfe_u32 v%d, v%d, 1, 1", t2 + 1, t0)
    a("v_lshl_add_u32 v%d, v%d, 4, v%d", t2, t2 + 1, t2)
    a("v_add_u32 v%d, 11, v%d", t2, t2)
    a("s_mov_b32 s%d, 0xf0000000", s_ex)
    a("s_mov_b32 s%d, 0xf0000000", s_ex + 1)
    a("v_cndmask_b32 v%d, v%d, v%d, s[%d:%d]", t1, t1, t2, s_ex, s_ex + 1)
    a("s_bitcmp1_b32 s%d, 0", s_c)
    a("s_cselect_b32 s%d, -1, 0", s_bad)
    a("s_mov_b32 s%d, s%d", s_bad + 1, s_bad)
    a("v_cndmask_b32 v%d, v%d, v%d, s[%d:%d]", t1, t0, t1, s_bad, s_bad + 1)
    a("v_lshl_add_u32 v%d, v%d, 5, v%d", t1, v_g, t1)
    a("s_lshl_b32 s%d, s%d, 12", s_t0, s_w)
    a("v_lshl_add_u32 v%d, v%d, 4, s%d", v_ko, t1, s_t0)
    v_q4 = 255
    a("v_lshlrev_b32 v%d, 2, v%d", v_q4, v_c)
    a("v_add_u32 v%d, %d, v%d", v_q4, CNT, v_q4)
    a("s_lshl_b32 s%d, s%d, 11", s_t0, s_w)
    a("v_add_u32 v%d, s%d, v%d", v_gw, s_t0, v_gb)
    a("s_lshl_b32 s%d, s%d, 2", s_t0, s_w)
    a("s_add_u32 s%d, s%d, %d", s_t0, s_t0, QX)
    a("v_add_u32 v%d, s%d, v%d", v_csw, s_t0, v_l16)
    a("s_waitcnt lgkmcnt(0)")
    stamp(a, 1, "p0")
    srd(a, sWS, 46, WS_END)
    def acc(t): return vr(ACC + 16 * t, 16)
    spins = []
    def peek(off): a("ds_read_b32 v%d, v%d offset:%d", v_tg, v_q4, off)
    def need(off, thr):
        n = len(spins); spins.append((off, thr))
        a("v_cmp_gt_u32 vcc, %d, v%d", thr, v_tg)
        a("s_cbranch_vccnz L_SP%d" % n)
        a.label("L_SPB%d" % n)
    def post(off, val, tmp):
        a("v_mov_b32 v%d, %d", tmp, val)
        a("ds_write_b32 v%d, v%d offset:%d", v_tag, tmp, off - 16)
    def wset(p): return (ACC + 32) if p % 2 == 0 else RING
    win = {"x": 0, "h": 0, "c": 0}
    def setwin(kind, n):
        wdw = (slot_of(n) // (2 * SL)) * 2 * SL
        d = wdw - win[kind]
        if d:
            for r_ in {"x": [v_xa + q for q in range(4)] + [v_gb, v_gw], "h": [v_hb, v_qb], "c": [v_hw, v_qw]}[kind]:
                if d > 0: a("v_add_u32 v%d, %d, v%d", r_, d, r_)
                else: a("v_subrev_u32 v%d, %d, v%d", r_, -d, r_)
            win[kind] = wdw
        return slot_of(n) - wdw
    def rd1(p, q, off):
        a("ds_read_b128 %s, v%d offset:%d", vr(X0 + 16 * p + 4 * q, 4), v_xa + q, off)
        for t in range(2):
            for h in range(2):
                a("ds_read_b64_tr_b16 %s, v%d offset:%d", vr(wset(p) + 8 * q + 4 * t + 2 * h, 2), v_gb, off + 16384 + q * 2048 + h * 512 + t * 256)
    def rdc(off):
        for t in range(2):
            for h in range(2):
                a("ds_read_b64_tr_b16 %s, v%d offset:%d", vr(WE + 4 * t + 2 * h, 2), v_gw, off + 16384 + h * 512 + t * 256)
    def cs_pack(src, off, ta, tb):
        return ["v_and_b32 v%d, s%d, v%d" % (ta, s_mask, src), "v_sub_f32 v%d, v%d, v%d" % (tb, src, ta),
                "v_lshrrev_b32 v%d, 16, v%d" % (ta, ta), "v_and_or_b32 v%d, v%d, s%d, v%d" % (src, tb, s_mask, ta),
                "ds_write_b32 v%d, v%d offset:%d" % (v_csw, src, off)]
    def split3(m, h0, h1, h2, neg):
        o = []
        if neg: o.append("v_sub_f32 v%d, 0, v%d" % (m, m))
        o += ["v_and_b32 v%d, s%d, v%d" % (h0, s_mask, m), "v_sub_f32 v%d, v%d, v%d" % (m, m, h0),
              "v_and_b32 v%d, s%d, v%d" % (h1, s_mask, m), "v_sub_f32 v%d, v%d, v%d" % (m, m, h1),
              "v_lshrrev_b32 v%d, 16, v%d" % (h0, h0), "v_or_b32 v%d, v%d, v%d" % (h0, h0, h1), "v_lshrrev_b32 v%d, 16, v%d" % (h2, m)]
        return o
    def finalize_ops(swap):
        st = ["v_mov_b32 v%d, v%d" % (v_sum + 1, v_sum), "v_mov_b32 v%d, v%d" % (v_sq + 1, v_sq), None, None,
              "v_permlane32_swap_b32 v%d, v%d" % (v_sum, v_sum + 1), "v_permlane32_swap_b32 v%d, v%d" % (v_sq, v_sq + 1),
              "v_add_f32 v%d, v%d, v%d" % (v_sum, v_sum, v_sum + 1), "v_add_f32 v%d, v%d, v%d" % (v_sq, v_sq, v_sq + 1),
              "v_mul_f32 v%d, %s, v%d" % (v_sum, f32(1.0 / 448), v_sum), "v_mul_f32 v%d, %s, v%d" % (v_sq, f32(1.0 / 448), v_sq),
              "v_fma_f32 v%d, -v%d, v%d, v%d" % (v_sq, v_sum, v_sum, v_sq), "v_max_f32 v%d, 0, v%d" % (v_sq, v_sq),
              "v_cvt_pk_bf16_f32 v%d, v%d, v%d" % (t0, v_sq, v_sq), "v_and_b32 v%d, s%d, v%d" % (t0, s_mask, t0),
              "v_add_f32 v%d, %s, v%d" % (t0, f32(1e-5), t0), "v_cvt_pk_bf16_f32 v%d, v%d, v%d" % (t0, t0, t0),
              "v_and_b32 v%d, s%d, v%d" % (t0, s_mask, t0), "v_sqrt_f32 v%d, v%d" % (t0, t0), None,
              "v_cvt_pk_bf16_f32 v%d, v%d, v%d" % (t0, t0, t0), "v_and_b32 v%d, s%d, v%d" % (t0, s_mask, t0),
              "v_rcp_f32 v%d, v%d" % (v_r, t0), None]
        if swap:
            st += ["ds_write_b32 v%d, v%d" % (t2, v_r)] + ["ds_read_b128 %s, v%d offset:%d" % (vr(RING + 4 * k, 4), t2 + 1, 32 * k) for k in range(4)]
        st += ["v_cvt_pk_bf16_f32 v%d, -v%d, -v%d" % (XE + k, v_sum, v_sum) for k in range(4)]
        st += ["v_mov_b32 v%d, v%d" % (v_r + 1, v_r), "v_add_u32 v%d, %d, v%d" % (t1, QX, v_l16)]
        return [o for o in st if o]
    def pass1(swap):
        win["x"] = 0
        a("s_barrier")
        stamp(a, 3); stamp(a, 1, "p1")
        rdc(0)
        for q in range(4): rd1(0, q, 0)
        if swap:
            a("s_lshl_b32 s%d, s%d, 7", s_t0, s_w)
            a("s_add_u32 s%d, s%d, %d", s_t0, s_t0, RB)
            a("v_and_b32 v%d, 31, v%d", t2, v_lane)
            a("v_lshl_add_u32 v%d, v%d, 2, s%d", t2, t2, s_t0)
            a("v_lshl_add_u32 v%d, v%d, 4, s%d", t2 + 1, v_g, s_t0)
        for p in range(7):
            for q in range(4):
                a("s_waitcnt lgkmcnt(%d)", 5 * (3 - q))
                if q == 0:
                    for j in range(4):
                        for t in range(2):
                            a("v_dot2c_f32_bf16 v%d, s%d, v%d", v_cs + t, s_ones, WE + 4 * t + j)
                for j in range(4):
                    x = X0 + 16 * p + 4 * q + j
                    a("v_dot2c_f32_bf16 v%d, s%d, v%d", v_sum, s_ones, x)
                    a("v_dot2c_f32_bf16 v%d, v%d, v%d", v_sq, x, x)
                if q == 0 and p == 6:
                    for t in range(2):
                        for o_ in cs_pack(v_cs + t, 5120 + 1024 * t, t0, t1): a(o_)
                    post(48, 1, t0)
            fin = finalize_ops(swap) if p == 6 else []
            off = setwin("x", p + 1) if p < 6 else None
            for m in range(8):
                q, t = m >> 1, m & 1
                wf = vr(wset(p) + 8 * q + 4 * t, 4); xf = vr(X0 + 16 * p + 4 * q, 4)
                A, B = (xf, wf) if swap else (wf, xf)
                first = (p == 0 and q == 0)
                a("%s %s, %s, %s, %s", MF, acc(t), A, B, "0" if first else acc(t))
                if p < 6:
                    if m == 3:
                        a("s_barrier")
                        rdc(off)
                        stamp(a, 2 + p, "p1")
                    if m >= 4: rd1(p + 1, m - 4, off)
                else:
                    if m == 0: peek(48)
                    k = 6 if m < 5 else len(fin)
                    for o in fin[:k]: a(o)
                    fin = fin[k:]
                    if m == 6:
                        a("s_waitcnt lgkmcnt(0)")
                        need(48, 1)
                        for t_ in range(2): a("ds_read_b128 %s, v%d offset:%d", vr(WE + 4 * t_, 4), t1, 5120 + 1024 * t_)
        a("s_waitcnt lgkmcnt(0)")
        for t in range(2):
            wf = vr(WE + 4 * t, 4); xf = vr(XE, 4)
            A, B = (xf, wf) if swap else (wf, xf)
            a("%s %s, %s, %s, %s", MF, acc(t), A, B, acc(t))
        stamp(a, 8, "p1")
    def pack(t, kind, rreg=None):
        b = ACC + 16 * t
        for jj in range(8):
            a("v_pk_mul_f32 %s, %s, %s", vr(b + 2 * jj, 2), vr(b + 2 * jj, 2), vr((RING + 2 * jj) if kind == "v" else v_r, 2))
            a("v_cvt_pk_bf16_f32 v%d, v%d, v%d", b + jj, b + 2 * jj, b + 2 * jj + 1)
            if kind == "h": a("v_pk_max_i16 v%d, v%d, 0", b + jj, b + jj)
        if kind == "q":
            a("v_cndmask_b32 v%d, v%d, 0, s[%d:%d]", b + 6, b + 6, s_hi, s_hi + 1)
            a("v_cndmask_b32 v%d, v%d, 0, s[%d:%d]", b + 7, b + 7, s_hi, s_hi + 1)
        elif kind == "k":
            a("v_cndmask_b32 v%d, v%d, v%d, s[%d:%d]", b + 6, b + 6, v_t, s_hi, s_hi + 1)
            a("v_cndmask_b32 v%d, v%d, v%d, s[%d:%d]", b + 7, b + 7, v_t + 1, s_hi, s_hi + 1)
        elif kind == "v":
            for jj in range(8):
                a("v_cndmask_b32 v%d, v%d, v%d, s[%d:%d]", b + jj, b + jj, v_t, s_ex, s_ex + 1)
    def kv_epilogue(kind):
        for t in range(2):
            pack(t, kind, "v%d" % v_r)
            for f in range(2):
                a("ds_write_b128 v%d, %s offset:%d", v_ko, vr(ACC + 16 * t + 4 * f, 4), 2048 * t + 1024 * f)
    a("s_bitcmp1_b32 s%d, 0", s_c)
    a("s_cbranch_scc1 L_P1V")
    pass1(False)
    stamp(a, 4); stamp(a, 1, "p2")
    a("v_mov_b32 v%d, 0x3f803f80", v_t)
    a("v_mov_b32 v%d, 0x00003f80", v_t + 1)
    kv_epilogue("k")
    a("s_branch L_EQ")
    a.label("L_P1V")
    pass1(True)
    stamp(a, 4); stamp(a, 1, "p2")
    a("v_mov_b32 v%d, 0x3f803f80", v_t)
    kv_epilogue("v")
    a.label("L_EQ")
    stamp(a, 2, "p2"); stamp(a, 9, "p1")
    NPB = 0
    a("s_waitcnt vmcnt(0) lgkmcnt(0)")
    a("s_barrier")
    stamp(a, 3, "p2")
    class LG:
        def __init__(s_): s_.ops = []; s_.done = 0
        def issue(s_, tag): s_.ops.append(tag)
        def wait(s_, tag):
            idx = max(i for i, t_ in enumerate(s_.ops) if t_ == tag)
            if idx < s_.done: return
            n_ = min(15, len(s_.ops) - 1 - idx)
            a("s_waitcnt lgkmcnt(%d)", n_); s_.done = len(s_.ops) - n_
    lg = LG()
    def rdw(dst, kind, p, qoff, t, tag):
        off = setwin(kind, 7 + p)
        hb, qb = (v_hb, v_qb) if kind == "h" else (v_hw, v_qw)
        for h in range(2):
            if t < 4: a("ds_read_b64_tr_b16 %s, v%d offset:%d", vr(dst + 2 * h, 2), hb, off + qoff + h * 1024 + t * 256)
            else: a("ds_read_b64_tr_b16 %s, v%d offset:%d", vr(dst + 2 * h, 2), qb, off + qoff + 4096 + h * 256)
            lg.issue(tag)
    def rd2(n):
        s, t = divmod(n, 5); p, q = divmod(s, 4)
        rdw(RING + 4 * (n % 8), "h", p, q * 5120, t, n)
    for n in range(7): rd2(n)
    a("s_mul_i32 s%d, s%d, 5120", s_t0, s_w)
    a("v_add_u32 v%d, s%d, v%d", v_hw, s_t0, v_hb)
    a("v_add_u32 v%d, s%d, v%d", v_qw, s_t0, v_qb)
    for t in range(5): a("v_mov_b32 v%d, 0", C2 + t)
    stamp(a, 5); stamp(a, 4, "p2")
    KV0, Q0, P0, O0, S0, QP, MX = 24, 88, 120, 136, 216, 200, 208
    CSF = 72
    def q(u, f): return vr(QP + 4 * f, 4) if u == 3 else vr(Q0 + 8 * u + 4 * f, 4)
    def qreg(u, r): return (QP if u == 3 else Q0 + 8 * u) + r
    def qtile(dst, u):
        a("s_add_u32 s%d, s%d, %d", dst, s_w, u + 1)
        a("s_and_b32 s%d, s%d, 3", dst, dst)
    def o(u): return vr(O0 + 16 * u, 16)
    def kv(st, f): return vr(KV0 + 16 * st + 4 * f, 4)
    def kvload(st, fr=(0, 1, 2, 3)):
        a("s_add_u32 s%d, s%d, s%d", s_off, s_i, s_rb)
        a("s_and_b32 s%d, s%d, 15", s_off, s_off)
        a("s_lshl_b32 s%d, s%d, 12", s_off, s_off)
        a("s_add_u32 s%d, s%d, s%d", s_off, s_off, s_kvb)
        for f in fr:
            a("buffer_load_dwordx4 %s, v%d, s[%d:%d], s%d offen offset:%d sc1", kv(st, f), v_l16, sWS, sWS + 3, s_off, 1024 * f)
        a("s_add_u32 s%d, s%d, 1", s_i, s_i)
    NJ = 140
    barjobs = {20 * p - 7: p + 1 for p in (3, 5)}
    cs_step = {4: 0, 6: 1, 8: 2, 12: 3, 16: 4, 20: 5, 22: 6}
    CF = [X0, X0 + 4, X0 + 8, X0 + 12, v_t]
    pend = []
    for s in range(28):
        if s % 4 == 0: stamp(a, 1 + s // 4, "p5")
        for t in range(5):
            n = 5 * s + t
            if t == 2 and (s - 1) in cs_step:
                lg.wait(("c", s - 1, 4))
                for j in range(4):
                    for t_ in range(5):
                        a("v_dot2c_f32_bf16 v%d, s%d, v%d", C2 + t_, s_ones, CF[t_] + j)
                if cs_step[s - 1] == 6:
                    for t_ in range(5): pend += cs_pack(C2 + t_, 1024 * t_, v_t, v_t + 1)
            if t in (0, 3): lg.wait(n + (2 if t == 0 else 1))
            a("%s %s, %s, %s, %s", MF, acc(t), vr(RING + 4 * (n % 8), 4), vr(X0 + 4 * s, 4), acc(t) if s else "0")
            if n in barjobs:
                lg.wait(("pk", n)); need(64, 8 + barjobs[n])
            if n + 7 < NJ: rd2(n + 7)
            if s in cs_step: rdw(CF[t], "c", cs_step[s], 0, t, ("c", s, t))
            if n + 6 in barjobs: peek(64); lg.issue(("pk", n + 6))
            if n in (28, 81): post(80, 8 if n == 28 else 11, 254); lg.issue("post")
            if pend:
                for o_ in pend[:5]:
                    a(o_)
                lg.issue("csw"); pend = pend[5:]
                if not pend:
                    post(48, 2, 254); lg.issue("post")
                    a("v_add_u32 v%d, %d, v%d", v_t + 2, QX, v_l16)
            if s == 24 and t == 3: peek(80); lg.issue("pk80")
            if s == 25 and t == 3: lg.wait("pk80"); need(80, 11); peek(48); lg.issue("pk48")
            if s == 26 and t == 3: lg.wait("pk48"); need(48, 2)
            if n >= 134 and n < 139:
                a("ds_read_b128 %s, v%d offset:%d", vr(CSF + 4 * (n - 134), 4), v_t + 2, 1024 * (n - 134)); lg.issue("csf")
            if n == 134: a("ds_read_b32 v%d, v%d", v_tg, v_tag); lg.issue("tg")
    a("s_waitcnt lgkmcnt(0)")
    for t in range(5):
        a("%s %s, %s, %s, %s", MF, acc(t), vr(CSF + 4 * t, 4), vr(XE, 4), acc(t))
    stamp(a, 7, "p2"); stamp(a, 1, "p3"); stamp(a, 8, "p5")
    a("s_setprio %d", OPT["prioA"])
    def kvreads():
        for st in range(3):
            for f in range(4):
                if st < 2: a("ds_read_b128 %s, v%d offset:%d", kv(st, f), v_ks, 4096 * st + 1024 * f)
                else: a("ds_read_b128 %s, v%d offset:%d", kv(st, f), v_ks2, 1024 * f)
    a("v_readfirstlane_b32 s%d, v%d", s_state, v_tg)
    a("s_mov_b32 s%d, 3", s_i)
    a("s_cmp_eq_u32 s%d, 0", s_state)
    a("s_cbranch_scc1 L_NK")
    kvreads()
    a.label("L_NK")
    for t in range(4):
        pack(t, "h")
        for f in range(2):
            a("ds_write_b128 v%d, %s offset:%d", v_ho, vr(ACC + 16 * t + 4 * f, 4), 2048 * t + 1024 * f)
    a("v_mov_b32 v%d, 1", t0)
    a("ds_write_b32 v%d, v%d offset:16", v_tag, t0)
    stamp(a, 6); stamp(a, 8, "p2"); stamp(a, 2, "p3"); stamp(a, 9, "p5")
    a("v_mul_f32 v%d, %s, v%d", v_r, f32(28 ** -0.5 * math.log2(math.e)), v_r)
    a("v_mov_b32 v%d, v%d", v_r + 1, v_r)
    pack(4, "q")
    a("s_cmp_lg_u32 s%d, 0", s_state)
    a("s_cbranch_scc1 L_LOADED")
    a("s_mov_b32 s%d, %d", s_spin, SPIN_MAX * 8)
    a.label("L_AP")
    a("ds_read_b32 v%d, v%d", v_tg, v_tag)
    a("s_sub_u32 s%d, s%d, 1", s_spin, s_spin)
    a("s_cbranch_scc1 L_APX")
    a("s_waitcnt lgkmcnt(0)")
    a("v_readfirstlane_b32 s%d, v%d", s_state, v_tg)
    a("s_cmp_eq_u32 s%d, 0", s_state)
    a("s_cbranch_scc1 L_AP")
    a.label("L_APX")
    kvreads()
    a.label("L_LOADED")
    a("s_waitcnt lgkmcnt(0)")
    stamp(a, 7); stamp(a, 9, "p2"); stamp(a, 3, "p3")
    nsync = [0]
    def async_():
        n = nsync[0]; nsync[0] += 1
        a("v_mov_b32 v12, %d", CNT)
        a("v_mov_b32 v13, 1")
        a("s_add_u32 s%d, s%d, 4", s_tgt, s_tgt)
        a("s_mov_b64 exec, 1")
        a("ds_add_u32 v12, v13")
        a("s_mov_b64 exec, -1")
        a("s_mov_b32 s%d, %d", s_spin, SPIN_MAX)
        a.label("L_AS%d" % n)
        a("ds_read_b32 v13, v12")
        a("s_sub_u32 s%d, s%d, 1", s_spin, s_spin)
        a("s_cbranch_scc1 L_ASX%d" % n)
        a("s_waitcnt lgkmcnt(0)")
        a("v_readfirstlane_b32 s%d, v13", s_t0)
        a("s_cmp_lt_u32 s%d, s%d", s_t0, s_tgt)
        a("s_cbranch_scc1 L_AS%d" % n)
        a.label("L_ASX%d" % n)
    def split_m(m, h0, h1, h2):
        for o_ in split3(m, h0, h1, h2, True): a(o_)
    def patch(u, h0, h2):
        a("v_cndmask_b32 v%d, v%d, %s, s[%d:%d]", qreg(u, 6), qreg(u, 6), h0, s_hi, s_hi + 1)
        a("v_cndmask_b32 v%d, v%d, %s, s[%d:%d]", qreg(u, 7), qreg(u, 7), h2, s_hi, s_hi + 1)
    a("%s %s, %s, %s, 0", MF, vr(S0, 16), kv(0, 0), q(3, 0))
    a("%s %s, %s, %s, %s", MF, vr(S0, 16), kv(0, 1), q(3, 1), vr(S0, 16))
    for u in range(4):
        qtile(s_t1, u)
        a("s_lshl_b32 s%d, s%d, 13", s_t1, s_t1)
        a("s_add_u32 s%d, s%d, %d", s_t1, s_t1, KVS)
        a("v_add_u32 v%d, s%d, v%d", v_t + u, s_t1, v_l16)
    a("ds_write_b128 v%d, %s", v_t + 3, q(3, 0))
    a("v_max3_f32 v%d, v%d, v%d, v%d", MX, S0, S0 + 1, S0 + 2)
    a("v_max3_f32 v%d, v%d, v%d, v%d", MX + 1, S0 + 3, S0 + 4, S0 + 5)
    for j in range(6, 14, 4):
        a("v_max3_f32 v%d, v%d, v%d, v%d", MX, S0 + j, S0 + j + 1, MX)
        a("v_max3_f32 v%d, v%d, v%d, v%d", MX + 1, S0 + j + 2, S0 + j + 3, MX + 1)
    a("v_max3_f32 v%d, v%d, v%d, v%d", MX, S0 + 14, S0 + 15, MX)
    a("v_max_f32 v%d, v%d, v%d", MX, MX, MX + 1)
    a("v_mov_b32 v%d, v%d", MX + 1, MX)
    a("v_permlane32_swap_b32 v%d, v%d", MX, MX + 1)
    a("v_max_f32 v%d, v%d, v%d", MX, MX, MX + 1)
    a("v_add_f32 v%d, %s, v%d", MX, f32(OPT["bias"]), MX)
    split_m(MX, MX + 2, MX + 1, MX + 3)
    patch(3, "v%d" % (MX + 2), "v%d" % (MX + 3))
    a("ds_write_b128 v%d, %s offset:1024", v_t + 3, q(3, 1))
    stamp(a, 4, "p3")
    async_()
    stamp(a, 5, "p3")
    for u in range(3):
        for f in range(2):
            a("ds_read_b128 %s, v%d offset:%d", q(u, f), v_t + u, 1024 * f)
    a("s_branch L_GO")
    a.label("L_RESTART")
    a("s_mov_b32 s%d, 0", s_i)
    kvload(0); kvload(1); kvload(2)
    for u in range(4):
        a("v_mov_b32 v%d, 0xff800000", MX + u)
        patch(u, "0", "0")
    a("s_mov_b32 s%d, 0", s_i)
    a.label("L_MAXLOOP")
    kvload(3, (0, 1))
    a("s_waitcnt vmcnt(0)")
    for u in range(4):
        a("%s %s, %s, %s, 0", MF, o(u), kv(3, 0), q(u, 0))
        a("%s %s, %s, %s, %s", MF, o(u), kv(3, 1), q(u, 1), o(u))
    for u in range(4):
        for j in range(8):
            a("v_max3_f32 v%d, v%d, v%d, v%d", MX + u, O0 + 16 * u + 2 * j, O0 + 16 * u + 2 * j + 1, MX + u)
    a("s_cmp_lt_u32 s%d, 16", s_i)
    a("s_cbranch_scc1 L_MAXLOOP")
    a("s_mov_b32 s%d, 3", s_i)
    for u in range(4): a("v_mov_b32 v%d, v%d", v_t + u, MX + u)
    for u in range(4): a("v_permlane32_swap_b32 v%d, v%d", MX + u, v_t + u)
    for u in range(4): a("v_max_f32 v%d, v%d, v%d", MX + u, MX + u, v_t + u)
    a("v_lshlrev_b32 v%d, 2, v%d", v_t + 4, v_lane)
    for u in range(4):
        qtile(s_t1, u)
        a("s_lshl_b32 s%d, s%d, 10", s_t1, s_t1)
        a("s_add_u32 s%d, s%d, %d", s_t1, s_t1, QX)
        a("v_add_u32 v%d, s%d, v%d", v_t + u, s_t1, v_t + 4)
    a("s_lshl_b32 s%d, s%d, 8", s_t0, s_w)
    for u in range(4):
        a("v_add_u32 v%d, s%d, v%d", v_t + 5, s_t0, v_t + u)
        a("ds_write_b32 v%d, v%d", v_t + 5, MX + u)
    async_()
    for u in range(4):
        a("ds_read2_b32 %s, v%d offset0:0 offset1:64", vr(S0 + 4 * u, 2), v_t + u)
        a("ds_read2_b32 %s, v%d offset0:128 offset1:192", vr(S0 + 4 * u + 2, 2), v_t + u)
    a("s_waitcnt lgkmcnt(0)")
    for u in range(4):
        a("v_max3_f32 v%d, v%d, v%d, v%d", MX + u, S0 + 4 * u, S0 + 4 * u + 1, S0 + 4 * u + 2)
        a("v_max_f32 v%d, v%d, v%d", MX + u, MX + u, S0 + 4 * u + 3)
    for u in range(4):
        split_m(MX + u, v_t, v_t + 1, v_t + 2)
        patch(u, "v%d" % v_t, "v%d" % (v_t + 2))
    a.label("L_GO")
    def S(n): return S0 + 16 * (n & 1)
    def P(n): return P0 + 8 * (n & 1)
    cur = {"g0": False}
    def uo(n):
        return ((n + 3) & 3) if (cur["g0"] and 0 <= n < 4) else (n & 3)
    def qk(n, f):
        i, u = n >> 2, uo(n)
        d = vr(S(n), 16)
        return "%s %s, %s, %s, %s" % (MF, d, kv(i & 3, f), q(u, f), d if f else "0")
    def pv(n, f, init=False):
        i, u = n >> 2, uo(n)
        return "%s %s, %s, %s, %s" % (MF, o(u), kv(i & 3, 2 + f), vr(P(n) + 4 * f, 4), "0" if (init and f == 0) else o(u))
    def cwrite(u, qd): return "ds_write_b128 v%d, %s offset:%d" % (v_t + u, vr(O0 + 16 * u + 4 * qd, 4), CA + u * 4096 + qd * 1024)
    PAT = OPT.get("pat", ((4, 0), (4, 2), (4, 2), (4, 4)))
    def slot(n, g0, last, loads):
        i, u = n >> 2, n & 3
        m = [None, None] if last else [qk(n + 1, 0), qk(n + 1, 1)]
        m += [None, None] if (g0 and n == 0) else [pv(n - 1, 0, g0 and n <= 4), pv(n - 1, 1)]
        free = [[], [], [], []]
        if u == 2 and loads["wait"] is not None: free[3].append("s_waitcnt vmcnt(%d)" % loads["wait"])
        if loads["issue"]:
            st = (i + 3) & 3
            if u == 0:
                free[0].append("s_add_u32 s%d, s%d, s%d" % (s_off, s_i, s_rb))
                free[1].append("s_and_b32 s%d, s%d, 15" % (s_off, s_off))
                free[2].append("s_lshl_b32 s%d, s%d, 12" % (s_off, s_off))
                free[3].append("s_add_u32 s%d, s%d, s%d" % (s_off, s_off, s_kvb))
            if u == 1:
                free[0] += ["buffer_load_dwordx4 %s, v%d, s[%d:%d], s%d offen offset:%d sc1" % (kv(st, f), v_l16, sWS, sWS + 3, s_off, 1024 * f) for f in range(4)]
                free[1].append("s_add_u32 s%d, s%d, 1" % (s_i, s_i))
        if loads["lastg"] and n >= 14:
            for k in range(4): free[k].append(cwrite(n - 14, k))
        ne = nc = 0
        for k in range(4):
            if m[k]: a(m[k])
            for x in free[k]: a(x)
            for j in range(PAT[k][0]):
                a("v_exp_f32 v%d, v%d", S(n) + ne, S(n) + ne); ne += 1
            for j in range(PAT[k][1]):
                assert 2 * nc + 1 < ne
                a("v_cvt_pk_bf16_f32 v%d, v%d, v%d", P(n) + nc, S(n) + 2 * nc, S(n) + 2 * nc + 1); nc += 1
        assert ne == 16 and nc == 8
    stamp(a, 8); stamp(a, 6, "p3")
    cur["g0"] = True
    a(qk(0, 0)); a(qk(0, 1))
    a("s_waitcnt lgkmcnt(0)")
    for u in range(4):
        qtile(s_t1, u)
        a("s_mul_i32 s%d, s%d, 12288", s_t1, s_t1)
        a("v_add_u32 v%d, s%d, v%d", v_t + u, s_t1, v_l16)
    def group(g, last_group):
        cur["g0"] = (g == 0)
        for n in range(16):
            i = n >> 2
            issue = (not last_group) or i == 0
            wait = {0: 8, 1: 4, 2: 0, 3: None}[i] if last_group else (None if (g == 0 and i < 2) else 8)
            slot(n, g == 0, last_group and n == 15, dict(issue=issue, wait=wait, lastg=last_group))
    group(0, False)
    stamp(a, 7, "p3")
    a("s_mov_b32 s%d, 2", s_cnt)
    a.label("L_LOOP")
    group(1, False)
    a("s_sub_u32 s%d, s%d, 1", s_cnt, s_cnt)
    a("s_cmp_lg_u32 s%d, 0", s_cnt)
    a("s_cbranch_scc1 L_LOOP")
    stamp(a, 8, "p3")
    group(3, True)
    a(pv(15, 0)); a(cwrite(2, 0)); a(cwrite(2, 1)); a(pv(15, 1)); a(cwrite(2, 2)); a(cwrite(2, 3))
    stamp(a, 9); stamp(a, 9, "p3"); stamp(a, 1, "p4")
    stamp(a, 2, "p4")
    async_()
    stamp(a, 3, "p4")
    for u in range(3):
        for qd in range(4):
            a("ds_read_b128 %s, v%d offset:%d", vr(O0 + 16 * u + 4 * qd, 4), v_t + 3, CA + u * 4096 + qd * 1024)
    a("s_lshr_b32 s%d, s%d, 1", s_t1, s_rt)
    a("s_mul_i32 s%d, s%d, 72", s_t1, s_t1)
    a("s_add_u32 s%d, s%d, s%d", s_t1, s_t1, s_c)
    a("s_add_u32 s%d, s%d, 56", s_t1, s_t1)
    a("s_lshl_b32 s%d, s%d, 2", s_t1, s_t1)
    a("s_and_b32 s%d, s%d, 1", s_t0, s_rt)
    a("s_add_u32 s%d, s%d, s%d", s_t1, s_t1, s_t0)
    a("s_lshl_b32 s%d, s%d, 10", s_t1, s_t1)
    a("s_add_u32 s%d, s%d, 0x%x", s_t1, s_t1, AF)
    a("s_waitcnt lgkmcnt(8)")
    for j in range(16): a("v_add_f32 v%d, v%d, v%d", O0 + j, O0 + j, O0 + 48 + j)
    a("s_waitcnt lgkmcnt(0)")
    for j in range(16): a("v_add_f32 v%d, v%d, v%d", O0 + 16 + j, O0 + 16 + j, O0 + 32 + j)
    for j in (7,) + tuple(x for x in range(16) if x != 7):
        a("v_add_f32 v%d, v%d, v%d", O0 + j, O0 + j, O0 + 16 + j)
        if j == 0: a("v_rcp_f32 v%d, v%d", v_t + 2, O0 + 7)
    a("v_maximum3_f32 v%d, abs(v%d), abs(v%d), abs(v%d)", v_t + 3, O0, O0 + 1, O0 + 2)
    for j in range(3, 15, 2):
        a("v_maximum3_f32 v%d, abs(v%d), abs(v%d), v%d", v_t + 3, O0 + j, O0 + j + 1, v_t + 3)
    a("v_maximum3_f32 v%d, abs(v%d), abs(v%d), v%d", v_t + 3, O0 + 15, O0 + 15, v_t + 3)
    a("v_mov_b32 v%d, 0x7e800000", v_t + 4)
    a("v_cmp_nlt_f32 s[%d:%d], v%d, v%d", s_bad, s_bad + 1, v_t + 3, v_t + 4)
    for j in range(16):
        a("v_mul_f32 v%d, v%d, v%d", O0 + j, O0 + j, v_t + 2)
    for jj in range(8):
        a("v_cvt_pk_bf16_f32 v%d, v%d, v%d", P0 + jj, O0 + 2 * jj, O0 + 2 * jj + 1)
    stamp(a, 4, "p4")
    a("s_or_b32 s%d, s%d, s%d", s_bad, s_bad, s_bad + 1)
    a("s_cmp_lg_u32 s%d, 0", s_mode)
    a("s_cselect_b32 s%d, 0, s%d", s_bad, s_bad)
    a("s_cmp_lg_u32 s%d, 0", s_bad)
    a("s_cbranch_scc1 L_NOPUB")
    a("s_cmp_eq_u32 s%d, 2", s_mode)
    a("s_cbranch_scc1 L_NOPUB")
    for f in range(2):
        a("buffer_store_dwordx4 %s, v%d, s[%d:%d], s%d offen offset:%d sc1", vr(P0 + 4 * f, 4), v_l16, sWS, sWS + 3, s_t1, 2048 * f)
    stamp(a, 5, "p4")
    a.label("L_NOPUB")
    a("s_cmp_lg_u32 s%d, 0", s_mode)
    a("s_cbranch_scc1 L_AEND")
    a("v_mov_b32 v%d, %d", v_t, CNT + 4)
    a("v_mov_b32 v%d, s%d", v_t + 1, s_bad)
    a("ds_or_b32 v%d, v%d", v_t, v_t + 1)
    async_()
    a("ds_read_b32 v%d, v%d", v_t + 1, v_t)
    a("s_waitcnt lgkmcnt(0)")
    a("v_readfirstlane_b32 s%d, v%d", s_t0, v_t + 1)
    a("s_cmp_eq_u32 s%d, 0", s_t0)
    a("s_cbranch_scc1 L_AEND")
    a("s_cmp_lg_u32 s%d, 0", s_bad)
    a("s_cselect_b32 s%d, 1, 2", s_mode)
    a("s_branch L_RESTART")
    a.label("L_AEND")
    stamp_flush(a)
    a("s_endpgm")
    for n, (off, thr) in enumerate(spins):
        a.label("L_SP%d" % n)
        a("s_mov_b32 s%d, %d", s_spin, SPIN_MAX * 8)
        a.label("L_SPL%d" % n)
        peek(off)
        a("s_sub_u32 s%d, s%d, 1", s_spin, s_spin)
        a("s_cbranch_scc1 L_SPB%d" % n)
        a("s_waitcnt lgkmcnt(0)")
        a("v_cmp_gt_u32 vcc, %d, v%d", thr, v_tg)
        a("s_cbranch_vccnz L_SPL%d" % n)
        a("s_branch L_SPB%d" % n)

    mark_b = len(a.l)
    a("s_setprio %d", OPT.get("prioB1", 1))
    sW2 = 12
    NE = OPT.get("ne", 18)
    BACC, E0 = 16, 80
    HR = E0 + 8 * NE
    def wslot(i): return E0 + 8 * (i % NE)
    NH = (256 - HR) // 8
    v_xoff, v_gd, v_hd, v_qd, v_ch_, v_cq = 24, 28, 30, 34, 35, 36
    CF, CT, CA5 = 40, 60, 64
    v_rw, v_sw, v_sr, v_a0, v_a1, v_xo, v_oo = 11, 12, 13, 14, 15, 3, 0
    v_cr, v_rw2 = 10, 8
    NON, ZR, TB = 36, 40, 44
    s_xo, s_gb, s_hb, s_ab, s_rb64, s_cb, s_k, s_kr = 60, 61, 62, 63, 4, 5, 6, 7
    s_cph, s_stg, s_w2b, s_xrow, s_qb_ = 57, 70, 71, 68, 69
    sXX = 72
    a("s_and_b32 s%d, s%d, 3", s_w, s_w)
    a("s_lshl_b32 s%d, s%d, 2", s_xrow, s_rb)
    a("s_add_u32 s%d, s%d, s%d", s_xrow, s_xrow, s_w)
    a("s_mul_i32 s%d, s%d, %d", s_xrow, s_xrow, 32 * 896)
    a("v_lshrrev_b32 v17, 3, v%d", v_lane)
    a("v_mul_u32_u24 v17, 896, v17")
    a("v_lshrrev_b32 v16, 4, v%d", v_lane)
    a("v_and_b32 v19, 7, v%d", v_lane)
    a("v_xor_b32 v18, v16, v19")
    a("v_lshl_add_u32 v%d, v18, 4, v17", v_xoff)
    a("v_xor_b32 v%d, 64, v%d", v_xoff + 1, v_xoff)
    a("v_add_u32 v%d, %d, v%d", v_xoff + 2, 2 * (7168 - 1024), v_xoff)
    a("v_add_u32 v%d, %d, v%d", v_xoff + 3, 3 * (7168 - 1024), v_xoff + 1)
    a("v_add_u32 v%d, %d, v%d", v_xoff + 1, 1 * (7168 - 1024), v_xoff + 1)
    a("v_lshl_add_u32 v17, v%d, 2, v%d", v_g, v_rr)
    a("v_mul_u32_u24 v17, 2688, v17")
    a("v_mul_u32_u24 v18, 56, v%d", v_ch)
    a("v_lshl_add_u32 v18, v%d, 4, v18", v_c)
    a("v_add_u32 v%d, v17, v18", v_gd)
    a("v_add_u32 v%d, %d, v%d", v_gd + 1, 8 * 2688 - 1024, v_gd)
    a("s_and_b32 s%d, s%d, 14", s_t0, s_c)
    a("s_mul_i32 s%d, s%d, 56", s_t0, s_t0)
    a("s_and_b32 s%d, s%d, 1", s_t1, s_c)
    a("s_add_u32 s%d, s%d, 1", s_t1, s_t1)
    a("s_mul_i32 s%d, s%d, 896", s_t1, s_t1)
    a("s_add_u32 s%d, s%d, s%d", s_t0, s_t0, s_t1)
    a("s_mul_i32 s%d, s%d, %d", s_qb_, s_w, 16 * 2688)
    a("s_add_u32 s%d, s%d, s%d", s_gb, s_qb_, s_t0)
    a("s_waitcnt lgkmcnt(0)")
    srd(a, sXX, 40, XBYTES)
    srd(a, sW, 42, 448 * 1344 * 2)
    vm = VM(a)
    def I(n):
        if n < 7:
            nxt7(s_cp, n == 0)
            a("s_lshl_b32 s%d, s%d, 7", s_t0, s_cp)
            a("s_add_u32 s%d, s%d, s%d", s_t0, s_t0, s_xrow)
            a("s_lshl_b32 s%d, s%d, 12", s_t1, s_w)
            a("s_add_u32 m0, s%d, %d", s_t1, slot_of(n))
            for i in range(4):
                a("buffer_load_dwordx4 v%d, s[%d:%d], s%d offen offset:%d lds", v_xoff + i, sXX, sXX + 3, s_t0, 1024 * i); vm.issue(n)
            a("s_mul_i32 s%d, s%d, %d", s_t0, s_cp, 64 * 2688)
            a("s_add_u32 s%d, s%d, s%d", s_t0, s_t0, s_gb)
            a("s_lshl_b32 s%d, s%d, 11", s_t1, s_w)
            a("s_add_u32 m0, s%d, %d", s_t1, slot_of(n) + 16384)
            for i in range(2):
                a("buffer_load_dwordx4 v%d, s[%d:%d], s%d offen offset:%d lds", v_gd + i, sW, sW + 3, s_t0, 1024 * i); vm.issue(n)
        else:
            nxt7(s_cp, n == 7)
            a("s_mul_i32 s%d, s%d, %d", s_t0, s_cp, 64 * 3584)
            a("s_add_u32 s%d, s%d, s%d", s_t0, s_t0, s_hb)
            a("s_mul_i32 s%d, s%d, 5120", s_t1, s_w)
            a("s_add_u32 m0, s%d, %d", s_t1, slot_of(n))
            for i in range(4):
                a("buffer_load_dwordx4 v%d, s[%d:%d], s%d offen offset:%d lds", v_hd + i, sW1, sW1 + 3, s_t0, 1024 * i); vm.issue(n)
            a("s_mul_i32 s%d, s%d, %d", s_t0, s_cp, 64 * 2688)
            a("s_add_u32 s%d, s%d, s%d", s_t0, s_t0, s_qb_)
            a("s_add_u32 m0, s%d, %d", s_t1, slot_of(n) + 4096)
            a("buffer_load_dwordx4 v%d, s[%d:%d], s%d offen lds", v_qd, sW, sW + 3, s_t0); vm.issue(n)
    LEAD = OPT.get("lead", 3)
    for n in range(2): I(n)
    a("s_and_b32 s%d, s2, 3", s_rb64)
    a("s_lshl_b32 s%d, s%d, 3", s_rb64, s_rb64)
    a("s_bfe_u32 s%d, s2, 0x30003", s_t0)
    a("s_add_u32 s%d, s%d, s%d", s_rb64, s_rb64, s_t0)
    a("s_and_b32 s%d, s2, 4", s_cb)
    a("s_lshr_b32 s%d, s2, 6", s_t0)
    a("s_add_u32 s%d, s%d, s%d", s_cb, s_cb, s_t0)
    a("v_mul_u32_u24 v17, 3584, v%d", v_rr)
    a("v_lshl_add_u32 v17, v16, 6, v17")
    a("v_lshl_add_u32 v%d, v%d, 4, v17", v_hd, v_c)
    for i in range(1, 4): a("v_add_u32 v%d, %d, v%d", v_hd + i, i * (4 * 3584 - 1024), v_hd)
    a("s_mul_i32 s%d, s%d, %d", s_hb, s_w, 16 * 3584)
    a("s_lshl_b32 s%d, s%d, 8", s_t0, s_c)
    a("s_add_u32 s%d, s%d, s%d", s_hb, s_hb, s_t0)
    a("s_cmp_ge_u32 s%d, 14", s_c)
    a("s_cselect_b32 s%d, 0x4000000, s%d", s_hb, s_hb)
    a("v_lshrrev_b32 v17, 2, v%d", v_lane)
    a("v_mul_u32_u24 v17, 2688, v17")
    a("v_lshl_add_u32 v%d, v%d, 4, v17", v_qd, v_c)
    a("s_mul_i32 s%d, s%d, 56", s_t0, s_c)
    a("s_add_u32 s%d, s%d, s%d", s_qb_, s_qb_, s_t0)
    a("v_lshl_add_u32 v16, v%d, 2, v%d", v_g, v_rr)
    a("v_mul_u32_u24 v17, 896, v16")
    a("v_lshlrev_b32 v18, 4, v%d", v_c)
    a("v_lshl_add_u32 v19, v%d, 6, v18", v_ch)
    a("s_lshr_b32 s%d, s%d, 1", s_t0, s_w)
    a("s_lshl_b32 s%d, s%d, 6", s_t0, s_t0)
    a("v_xor_b32 v19, s%d, v19", s_t0)
    a("v_add_u32 v%d, v17, v19", v_rw)
    a("s_lshl_b32 s%d, s%d, 13", s_stg, s_w)
    a("s_add_u32 s%d, s%d, %d", s_stg, s_stg, HO)
    a("s_mov_b32 s%d, s%d", s_t0, s_stg)
    a("v_add_u32 v%d, s%d, v%d", v_sw, s_t0, v_l16)
    a("v_lshl_add_u32 v%d, v%d, 9, v%d", v_sr, v_g, v_trp)
    a("v_add_u32 v%d, s%d, v%d", v_cr, s_t0, v_sr)
    a("v_add_u32 v%d, s%d, v%d", v_sr, s_stg, v_sr)
    a("v_mul_u32_u24 v17, 896, v%d", v_g)
    a("v_sub_u32 v%d, v%d, v17", v_rw2, v_rw)
    a("s_and_b32 s%d, s%d, 3", s_k, s_cb)
    a("s_mul_i32 s%d, s%d, 7", s_k, s_k)
    a("s_and_b32 s%d, s%d, 7", s_t0, s_rb64)
    a("s_mul_i32 s%d, s%d, 7", s_t0, s_t0)
    a("s_lshr_b32 s%d, s%d, 1", s_t0, s_t0)
    a("s_add_u32 s%d, s%d, s%d", s_k, s_k, s_t0)
    a("s_sub_u32 s%d, s%d, 28", s_t0, s_k)
    a("s_cmp_ge_u32 s%d, 28", s_k)
    a("s_cselect_b32 s%d, s%d, s%d", s_k, s_t0, s_k)
    a("s_mov_b32 s%d, s%d", s_kr, s_k)
    a("s_mul_i32 s%d, s%d, %d", s_w2b, s_w, 28 * 16 * 896)
    a("s_lshl_b32 s%d, s%d, 7", s_t0, s_cb)
    a("s_add_u32 s%d, s%d, s%d", s_w2b, s_w2b, s_t0)
    a("s_cmp_ge_u32 s%d, 7", s_cb)
    a("s_cselect_b32 s%d, 0x4000000, s%d", s_w2b, s_w2b)
    srd(a, sW1, 48, 448 * 1792 * 2)
    srd(a, sW2, 50, 1792 * 448 * 2)
    srd(a, sWS, 46, WS_END)
    srd(a, sDBG, 54, 256)
    a("s_or_b32 s%d, s2, s%d", s_t0, s_w)
    a("s_cmp_lg_u32 s%d, 0", s_t0)
    a("s_cbranch_scc1 L_BNW")
    a("s_memrealtime s[%d:%d]", s_non, s_non + 1)
    a("v_mov_b32 v18, 0")
    a("s_waitcnt lgkmcnt(0)")
    a("s_or_b32 s%d, s%d, 1", s_non, s_non)
    a("v_mov_b32 v16, s%d", s_non)
    a("v_mov_b32 v17, s%d", s_non + 1)
    a("s_mov_b64 exec, 1")
    a("buffer_store_dwordx2 v[16:17], v18, s[%d:%d], 0 offen sc1", sDBG, sDBG + 3)
    a("s_mov_b64 exec, -1")
    a.label("L_BNW")
    def prefetch():
        if OPT.get("wpf", True):
            a("s_lshl_b32 s%d, s2, 2", s_t0)
            a("s_add_u32 s%d, s%d, s%d", s_t0, s_t0, s_w)
            a("s_lshl_b32 s%d, s%d, 10", s_t0, s_t0)
            a("s_sub_u32 s%d, 0x%x, s%d", s_t1, 2047 * 1024, s_t0)
            a("buffer_load_dwordx4 v[232:235], v%d, s[%d:%d], s%d offen", v_l16, sW1, sW1 + 3, s_t0); vm.issue("pf")
            a("buffer_load_dwordx4 v[236:239], v%d, s[%d:%d], s%d offen", v_l16, sW1, sW1 + 3, s_t1); vm.issue("pf")
    def prefetch2():
        if OPT.get("wpf", True):
            a("s_lshl_b32 s%d, s2, 2", s_t0)
            a("s_add_u32 s%d, s%d, s%d", s_t0, s_t0, s_w)
            a("s_lshl_b32 s%d, s%d, 10", s_t0, s_t0)
            a("s_add_u32 s%d, s%d, 0x100000", s_t1, s_t0)
            a("buffer_load_dwordx4 v[224:227], v%d, s[%d:%d], s%d offen", v_l16, sW2, sW2 + 3, s_t0); vm.issue("pf")
            a("buffer_load_dwordx4 v[228:231], v%d, s[%d:%d], s%d offen", v_l16, sW2, sW2 + 3, s_t1); vm.issue("pf")
            srd(a, 72, 44, 448 * 448 * 2)
            a("s_sub_u32 s%d, 0x%x, s%d", s_t1, 1023 * 1024, s_t0)
            a("buffer_load_dwordx4 v[240:243], v%d, s[72:75], s%d offen", v_l16, s_t1); vm.issue("pf")
    nraw = [0]
    def waddr():
        a("s_mul_i32 s%d, s%d, %d", s_t0, s_kr, 16 * 896)
        a("s_add_u32 s%d, s%d, s%d", s_t0, s_t0, s_w2b)
        a("s_add_u32 s%d, s%d, %d", s_t1, s_t0, 8 * 896)
        a("s_add_u32 s%d, s%d, 1", s_kr, s_kr)
        a("s_cmp_eq_u32 s%d, 28", s_kr)
        a("s_cselect_b32 s%d, 0, s%d", s_kr, s_kr)
    def R(cnt):
        for _ in range(cnt):
            e = nraw[0]
            if e >= NE: return
            nraw[0] += 1
            waddr()
            a("buffer_load_dwordx4 %s, v%d, s[%d:%d], s%d offen", vr(E0 + 8 * e, 4), v_rw, sW2, sW2 + 3, s_t0); vm.issue(("R", e))
            a("buffer_load_dwordx4 %s, v%d, s[%d:%d], s%d offen", vr(E0 + 8 * e + 4, 4), v_rw, sW2, sW2 + 3, s_t1); vm.issue(("R", e))
    bar = lambda: a("s_barrier")
    rp = OPT.get("rplan", (0, 6))
    npoll = [0]
    def poll(v_addr, s_base, slp, dst):
        n = npoll[0]; npoll[0] += 1
        a("s_mov_b32 s%d, %d", s_spin, SPIN_MAX)
        a.label("L_BP%d" % n)
        a("buffer_load_dwordx2 %s, v%d, s[%d:%d], s%d offen sc1", vr(dst, 2), v_addr, sWS, sWS + 3, s_base)
        a("s_sub_u32 s%d, s%d, 1", s_spin, s_spin)
        a("s_cbranch_scc1 L_BPX%d" % n)
        a("s_waitcnt vmcnt(0)")
        a("v_cmp_ne_u64 vcc, s[%d:%d], %s", s_non, s_non + 1, vr(dst, 2))
        a("s_cbranch_vccz L_BPX%d" % n)
        if slp: a("s_sleep %d", slp)
        a("s_branch L_BP%d" % n)
        a.label("L_BPX%d" % n)
        vm.done = len(vm.ops)
    nls = [0]
    def ldswait(addr_off, thr, slp=0):
        n = nls[0]; nls[0] += 1
        a("s_mov_b32 s%d, %d", s_spin, SPIN_MAX * 8)
        a.label("L_BL%d" % n)
        a("ds_read_b32 v%d, v%d offset:%d", addr_off[2], addr_off[0], addr_off[1])
        a("s_sub_u32 s%d, s%d, 1", s_spin, s_spin)
        a("s_cbranch_scc1 L_BLX%d" % n)
        a("s_waitcnt lgkmcnt(0)")
        a("v_readfirstlane_b32 s%d, v%d", s_t0, addr_off[2])
        a("s_cmp_ge_u32 s%d, %d", s_t0, thr)
        a("s_cbranch_scc1 L_BLX%d" % n)
        if slp: a("s_sleep %d", slp)
        a("s_branch L_BL%d" % n)
        a.label("L_BLX%d" % n)
    nfs = [0]
    def flagst(s_addr):
        n = nfs[0]; nfs[0] += 1
        a("v_mov_b32 v22, %d", CNT + 96 + 4 * n)
        a("v_mov_b32 v23, 1")
        a("s_mov_b64 exec, 1")
        a("ds_add_rtn_u32 v23, v22, v23")
        a("s_mov_b64 exec, -1")
        a("s_waitcnt lgkmcnt(0)")
        a("v_readfirstlane_b32 s%d, v23", s_t0)
        a("s_cmp_lg_u32 s%d, 3", s_t0)
        a("s_cbranch_scc1 L_FS%d" % n)
        a("s_mov_b64 exec, 0xff")
        a("buffer_store_dwordx4 %s, v%d, s[%d:%d], s%d offen sc1", vr(NON, 4), v_l16, sWS, sWS + 3, s_addr)
        a("s_mov_b64 exec, -1")
        a.label("L_FS%d" % n)
    for i in range(4): a("v_mov_b32 v%d, 0", ZR + i)
    s_rt, s_p, s_q, s_r = 64, 65, 66, 67
    a("s_lshl_b32 s%d, s%d, 2", s_t0, s_w)
    a("s_add_u32 s%d, s%d, %d", s_t0, s_t0, CNT + 16)
    a("v_mov_b32 v19, s%d", s_t0)
    a("v_lshlrev_b32 v35, 2, v%d", v_c)
    a("v_add_u32 v35, %d, v35", CNT)
    def landed(n):
        vm.wait(n)
        a("v_mov_b32 v21, %d", n + 1)
        a("ds_write_b32 v19, v21 offset:48")
    npg = [0]
    def prg(thr, off=80):
        n = npg[0]; npg[0] += 1
        a("s_mov_b32 s%d, %d", s_spin, SPIN_MAX * 8)
        a.label("L_PG%d" % n)
        a("ds_read_b32 v21, v35 offset:%d", off)
        a("s_sub_u32 s%d, s%d, 1", s_spin, s_spin)
        a("s_cbranch_scc1 L_PGX%d" % n)
        a("s_waitcnt lgkmcnt(0)")
        a("v_cmp_gt_u32 vcc, %d, v21", thr)
        a("s_cbranch_vccz L_PGX%d" % n)
        a("s_sleep 2")
        a("s_branch L_PG%d" % n)
        a.label("L_PGX%d" % n)
    nxt = 2
    plan = OPT["iplan"]
    for n in range(7):
        vm.wait(n); bar()
        for _ in range(plan[n]):
            assert nxt - 5 <= n
            I(nxt); nxt += 1
        if n == OPT["pfb"]: prefetch2()
        if n == 3:
            a("buffer_load_dwordx2 %s, v%d, s[%d:%d], 0 offen sc1", vr(NON, 2), ZR, sDBG, sDBG + 3); vm.issue("non")
    assert nxt >= 10
    def trread(dst, base, off):
        for ct in range(2):
            for h in range(2):
                a("ds_read_b64_tr_b16 %s, v%d offset:%d", vr(dst + 4 * ct + 2 * h, 2), base, off + h * 1024 + ct * 256)
    ncv = [0]
    def convert(cnt):
        for _ in range(cnt):
            e = ncv[0]
            if e >= nraw[0]: return
            ncv[0] += 1
            vm.wait(("R", e))
            for h in range(2):
                a("ds_write_b128 v%d, %s offset:%d", v_sw, vr(E0 + 8 * e + 4 * h, 4), h * 1024)
            trread(E0 + 8 * e, v_cr, 0)
            a("s_waitcnt lgkmcnt(6)")
    a("s_lshl_b32 s%d, s%d, 2", s_rt, s_rb)
    a("s_add_u32 s%d, s%d, s%d", s_rt, s_rt, s_w)
    a("s_and_b32 s%d, s%d, 14", s_p, s_c)
    a("s_lshl_b32 s%d, s%d, 6", s_p, s_p)
    a("s_add_u32 s%d, s%d, s%d", s_p, s_p, s_rt)
    a("s_lshl_b32 s%d, s%d, 1", s_p, s_p)
    a("s_and_b32 s%d, s%d, 1", s_t0, s_c)
    a("s_add_u32 s%d, s%d, s%d", s_p, s_p, s_t0)
    a("s_lshl_b32 s%d, s%d, 11", s_p, s_p)
    a("s_add_u32 s%d, s%d, 0x%x", s_p, s_p, KV)
    a("s_add_u32 s%d, s%d, 262144", s_q, s_p)
    a("s_lshr_b32 s%d, s%d, 1", s_r, s_rt)
    a("s_mul_i32 s%d, s%d, 72", s_r, s_r)
    a("s_add_u32 s%d, s%d, s%d", s_r, s_r, s_c)
    a("s_add_u32 s%d, s%d, 56", s_r, s_r)
    a("s_lshl_b32 s%d, s%d, 2", s_r, s_r)
    a("s_and_b32 s%d, s%d, 1", s_t0, s_rt)
    a("s_add_u32 s%d, s%d, s%d", s_r, s_r, s_t0)
    a("s_lshl_b32 s%d, s%d, 10", s_r, s_r)
    a("s_add_u32 s%d, s%d, 0x%x", s_r, s_r, AF)
    a("s_lshl_b32 s%d, s%d, 12", s_t0, s_w)
    a("v_add_u32 v16, s%d, v%d", s_t0, v_l16)
    vm.wait(9)
    a("s_mov_b32 s%d, %d", s_spin, SPIN_MAX)
    a.label("L_BN")
    a("v_readfirstlane_b32 s%d, v%d", s_non, NON)
    a("v_readfirstlane_b32 s%d, v%d", s_non + 1, NON + 1)
    a("s_cmp_lg_u32 s%d, 0", s_non)
    a("s_cbranch_scc1 L_BNX")
    a("buffer_load_dwordx2 %s, v%d, s[%d:%d], 0 offen sc1", vr(NON, 2), ZR, sDBG, sDBG + 3)
    a("s_sub_u32 s%d, s%d, 1", s_spin, s_spin)
    a("s_cbranch_scc1 L_BNX")
    a("s_waitcnt vmcnt(0)")
    a("s_branch L_BN")
    a.label("L_BNX")
    a("v_mov_b32 v%d, v%d", NON + 2, NON)
    a("v_mov_b32 v%d, v%d", NON + 3, NON + 1)
    bar()
    stamp(a, 2, "b1"); stamp(a, 1, "b2")
    for i in range(4): a("ds_read_b128 %s, v16 offset:%d", vr(TB + 4 * i, 4), 1024 * i)
    for i in range(4):
        a("s_waitcnt lgkmcnt(%d)", 3 - i)
        a("buffer_store_dwordx4 %s, v%d, s[%d:%d], s%d offen offset:%d sc1", vr(TB + 4 * i, 4), v_l16, sWS, sWS + 3, s_q if i >> 1 else s_p, 1024 * (i & 1)); vm.issue("kv")
    rp = OPT.get("rplan", (0, 2, 2, 2))
    while nxt < 12: I(nxt); nxt += 1
    landed(11)
    a("s_lshl_b32 s%d, s%d, 4", s_p, s_c)
    a("s_add_u32 s%d, s%d, s%d", s_p, s_p, s_rb)
    a("s_lshl_b32 s%d, s%d, 7", s_p, s_p)
    a("s_lshl_b32 s%d, s%d, 4", s_q, s_rb)
    a("s_add_u32 s%d, s%d, s%d", s_q, s_q, s_c)
    a("s_lshl_b32 s%d, s%d, 7", s_q, s_q)
    a("s_add_u32 s%d, s%d, 0x%x", s_xo, s_q, FO)
    a("s_add_u32 s%d, s%d, 0x%x", s_q, s_q, FH)
    stamp(a, 2, "b2")
    vm.wait("kv")
    stamp(a, 3, "b2")
    flagst(s_p)
    stamp(a, 5, "b1"); stamp(a, 4, "b2")
    prg(12, 64)
    I(12)
    prg(8); I(13)
    stamp(a, 5, "b2")
    for f in range(2):
        a("buffer_store_dwordx4 %s, v%d, s[%d:%d], s%d offen offset:%d sc1", vr(ZR, 4), v_l16, sWS, sWS + 3, s_r, 2048 * f); vm.issue("oz")
    if OPT["pfb"] == 99: prefetch2()
    a("v_lshlrev_b32 v16, 7, v%d", v_c)
    a("v_bfe_u32 v17, v%d, 2, 1", v_lane)
    a("v_lshl_add_u32 v16, v17, 11, v16")
    a("s_and_b32 s%d, s%d, 14", s_p, s_c)
    a("s_lshl_b32 s%d, s%d, 2", s_p, s_p)
    a("s_add_u32 s%d, s%d, s%d", s_p, s_p, s_w)
    a("s_lshl_b32 s%d, s%d, 9", s_p, s_p)
    a("s_lshl_b32 s%d, s%d, 2", s_r, s_c)
    a("s_add_u32 s%d, s%d, s%d", s_r, s_r, s_w)
    a("s_lshl_b32 s%d, s%d, 16", s_r, s_r)
    a("s_add_u32 s%d, s%d, 0x%x", s_r, s_r, KV)
    a("s_lshl_b32 s%d, s%d, 13", s_t0, s_w)
    a("v_add_u32 v17, s%d, v%d", s_t0, v_l16)
    kvs2_base(s_t0)
    a("v_add_u32 v18, s%d, v%d", s_t0, v_l16)
    a("v_add_u32 v20, %d, v17", HO)
    R(rp[1])
    stamp(a, 6, "b2")
    landed(13)
    R(rp[2])
    vm.wait("oz"); flagst(s_xo)
    stamp(a, 7, "b2")
    KB = [TB + 4 * i for i in range(9)] + [24, 28, ZR]
    def kbloads(count):
        for st in range(3):
            a("s_add_u32 s%d, s%d, %d", s_t0, s_rb, st)
            a("s_and_b32 s%d, s%d, 15", s_t0, s_t0)
            a("s_lshl_b32 s%d, s%d, 12", s_t0, s_t0)
            a("s_add_u32 s%d, s%d, s%d", s_t0, s_t0, s_r)
            for f in range(4):
                a("buffer_load_dwordx4 %s, v%d, s[%d:%d], s%d offen offset:%d sc1", vr(KB[4 * st + f], 4), v_l16, sWS, sWS + 3, s_t0, 1024 * f)
                if count: vm.issue(("kb", 4 * st + f))
    poll(16, s_p, OPT.get("sleepk", 2), 22)
    stamp(a, 8, "b2")
    kbloads(True)
    stamp(a, 9, "b2")
    stamp(a, 1); stamp(a, 1, "b1")
    R(rp[3])
    prg(11)
    for i in range(12):
        vm.wait(("kb", i))
        if i < 8: a("ds_write_b128 v17, %s offset:%d", vr(KB[i], 4), KVS + 1024 * i)
        else: a("ds_write_b128 v18, %s offset:%d", vr(KB[i], 4), 1024 * (i - 8))
        if i % 2 == 1: R(1)
    a("v_mov_b32 v21, 1")
    a("ds_write_b32 v19, v21")
    stamp(a, 3, "b1")
    R(NE)
    a("s_lshr_b32 s%d, s%d, 1", s_t0, s_rt)
    a("s_mul_i32 s%d, s%d, 18", s_p, s_t0)
    a("s_add_u32 s%d, s%d, s%d", s_p, s_p, s_c)
    a("s_lshl_b32 s%d, s%d, 4", s_p, s_p)
    a("s_and_b32 s%d, s%d, 1", s_t1, s_rt)
    a("s_add_u32 s%d, s%d, s%d", s_p, s_p, s_t1)
    a("s_lshl_b32 s%d, s%d, 10", s_p, s_p)
    a("s_add_u32 s%d, s%d, 0x%x", s_p, s_p, AF)
    a("s_cmp_ge_u32 s%d, 14", s_c)
    a("s_cselect_b32 s%d, 0x4000000, s%d", s_p, s_p)
    ldswait((19, 16, 21), 1, 1)
    if OPT.get("prioBh") is not None: a("s_setprio %d", OPT["prioBh"])
    stamp(a, 4, "b1")
    for i in range(8): a("ds_read_b128 %s, v20 offset:%d", vr(TB + 4 * i, 4), 1024 * i)
    for i in range(8):
        a("s_waitcnt lgkmcnt(%d)", 7 - i)
        a("buffer_store_dwordx4 %s, v%d, s[%d:%d], s%d offen offset:%d sc1", vr(TB + 4 * i, 4), v_l16, sWS, sWS + 3, s_p, 2048 * (i & 1)); vm.issue("hs")
        if i & 1 and i < 7: a("s_add_u32 s%d, s%d, 4096", s_p, s_p)
    convert(OPT.get("cvh", 5))
    vm.wait("hs"); flagst(s_q)
    stamp(a, 6, "b1")
    a("s_setprio %d", OPT.get("prioB2", 0))
    a("s_cmp_ge_u32 s%d, 7", s_cb)
    a("s_cbranch_scc1 L_END")
    a("s_and_b32 s%d, s%d, 1", s_t0, s_w)
    a("s_lshl_b32 s%d, s%d, 10", s_t0, s_t0)
    a("v_add_u32 v%d, s%d, v%d", v_a0, s_t0, v_l16)
    a("v_xor_b32 v%d, 1024, v%d", v_a1, v_a0)
    a("v_and_b32 v%d, 31, v%d", v_xo, v_lane)
    a("v_mul_u32_u24 v%d, 896, v%d", v_xo, v_xo)
    a("v_lshl_add_u32 v%d, v%d, 4, v%d", v_oo, v_g, v_xo)
    a("v_lshl_add_u32 v%d, v%d, 3, v%d", v_xo, v_g, v_xo)
    a("s_lshl_b32 s%d, s%d, 1", s_xo, s_rb64)
    a("s_and_b32 s%d, s%d, 1", s_t0, s_w)
    a("s_add_u32 s%d, s%d, s%d", s_xo, s_xo, s_t0)
    a("s_mul_i32 s%d, s%d, %d", s_xo, s_xo, 32 * 896)
    a("s_lshl_b32 s%d, s%d, 1", s_t0, s_cb)
    a("s_lshr_b32 s%d, s%d, 1", s_t1, s_w)
    a("s_add_u32 s%d, s%d, s%d", s_t0, s_t0, s_t1)
    a("s_lshl_b32 s%d, s%d, 6", s_t0, s_t0)
    a("s_add_u32 s%d, s%d, s%d", s_xo, s_xo, s_t0)
    srd(a, sW, 40, XBYTES)
    a("s_mul_i32 s%d, s%d, 28", s_t0, s_w)
    a("s_mul_i32 s%d, s%d, 144", s_ab, s_rb64)
    a("s_add_u32 s%d, s%d, s%d", s_ab, s_ab, s_t0)
    a("s_lshl_b32 s%d, s%d, 11", s_ab, s_ab)
    a("s_add_u32 s%d, s%d, 0x%x", s_ab, s_ab, AF)
    a("s_lshl_b32 s%d, s%d, 11", s_k, s_k)
    for q4 in range(4):
        a("buffer_load_dwordx2 %s, v%d, s[%d:%d], s%d offen offset:%d", vr(HR + 2 * q4, 2), v_xo, sW, sW + 3, s_xo, 16 * q4); vm.issue("x")
    convert(NE)
    stamp(a, 2)
    vm.wait("x")
    for jj in range(8):
        a("v_lshlrev_b32 v%d, 16, v%d", BACC + 2 * jj, HR + jj)
        a("v_and_b32 v%d, s%d, v%d", BACC + 2 * jj + 1, s_mask, HR + jj)
    a("s_waitcnt lgkmcnt(0)")
    NL = 28 - NE
    def L(i):
        if OPT.get("noBload"): vm.issue(("L", i)); vm.done = len(vm.ops); return
        if i < NL:
            waddr(); sr_ = sW2
        else:
            k_ = i - NL; sr_ = sW1
            a("s_mul_i32 s%d, s%d, %d", s_t0, s_w, 112 * 896)
            a("s_lshl_b32 s%d, s%d, 7", s_t1, s_cb)
            a("s_add_u32 s%d, s%d, s%d", s_t0, s_t0, s_t1)
            a("s_add_u32 s%d, s%d, %d", s_t0, s_t0, (28 * (k_ >> 1) + 14 * (k_ & 1)) * 896)
            a("s_add_u32 s%d, s%d, %d", s_t1, s_t0, 8 * 896)
        for h in range(2):
            a("s_add_u32 m0, s%d, %d", s_stg, sloff(i) + h * 1024)
            a("buffer_load_dwordx4 v%d, s[%d:%d], s%d offen lds", v_rw2 if (h and i >= NL) else v_rw, sr_, sr_ + 3, s_t1 if h else s_t0); vm.issue(("L", i))
    a("v_lshlrev_b32 v9, 7, v%d", v_c)
    a("s_lshr_b32 s%d, s%d, 1", s_gb, s_rb64)
    a("s_lshl_b32 s%d, s%d, 11", s_gb, s_gb)
    a("s_mul_i32 s%d, s%d, 7", s_t0, s_w)
    a("s_lshr_b32 s%d, s%d, 1", s_t0, s_t0)
    a("s_lshl_b32 s%d, s%d, 7", s_t0, s_t0)
    a("s_add_u32 s%d, s%d, s%d", s_cph, s_gb, s_t0)
    a("s_add_u32 s%d, s%d, 0x%x", s_cph, s_cph, FH)
    a("s_lshl_b32 s%d, s%d, 9", s_t1, s_w)
    a("s_sub_u32 s%d, s%d, s%d", s_t1, s_t1, s_t0)
    a("s_add_u32 s%d, s%d, 0x%x", s_t1, s_t1, FO - FH)
    a("v_bfe_u32 v%d, v%d, 2, 1", HR + 10, v_lane)
    a("v_mul_lo_u32 v%d, v%d, s%d", HR + 10, HR + 10, s_t1)
    a("v_add_u32 v9, v9, v%d", HR + 10)
    srd(a, sW1, 44, 448 * 448 * 2)
    PL = OPT.get("prel", 8)
    a("v_mov_b32 v12, %d", CNT)
    ldswait((12, 0, 10), 4, 1)
    for i in range(PL): L(i)
    poll(9, s_cph, OPT["sleep"], HR + 8)
    stamp(a, 3)
    def hload(k):
        if OPT.get("noBload"): vm.issue(("h", k)); vm.done = len(vm.ops); return
        a("s_add_u32 s%d, s%d, s%d", s_hb, s_ab, s_k)
        for f, v in ((0, v_a0), (1, v_a1)):
            a("buffer_load_dwordx4 %s, v%d, s[%d:%d], s%d offen sc1", vr(HR + 8 * (k % NH) + 4 * f, 4), v, sWS, sWS + 3, s_hb); vm.issue(("h", k))
        a("s_add_u32 s%d, s%d, 2048", s_k, s_k)
        a("s_cmp_eq_u32 s%d, %d", s_k, 28 * 2048)
        a("s_cselect_b32 s%d, 0, s%d", s_k, s_k)
    def mf(Areg, Breg, first):
        for ct in range(2):
            for rt in range(2):
                l = 2 * ct + rt
                d = vr(BACC + 16 * l, 16)
                a("%s %s, %s, %s, %s", MF, d, vr(Breg + 4 * ct, 4), vr(Areg + 4 * rt, 4), "0" if (first and l) else d)
    for k in range(NH - 1): hload(k)
    nl = PL
    def mf1(Areg, Breg, first, l):
        if OPT.get("noBmfma"): return
        ct, rt = l >> 1, l & 1
        d = vr(BACC + 16 * l, 16)
        tog = OPT.get("tog", 0)
        if tog and l != 3: a("s_setprio 0")
        a("%s %s, %s, %s, %s", MF, d, vr(Breg + 4 * ct, 4), vr(Areg + 4 * rt, 4), "0" if (first and l) else d)
        if tog and l != 2: a("s_setprio 3")
    for k in range(28):
        vm.wait(("h", k))
        wreg = wslot(k)
        hreg = HR + 8 * (k % NH)
        j = k - (NSL - PL) if PL < NSL else k - 1
        mf1(hreg, wreg, k == 0, 0)
        if k + NH - 1 < 28: hload(k + NH - 1)
        mf1(hreg, wreg, k == 0, 1)
        if 0 <= j < NL + 8:
            vm.wait(("L", j))
            trread(wslot(NE + j), v_sr, sloff(j))
        mf1(hreg, wreg, k == 0, 2)
        mf1(hreg, wreg, k == 0, 3)
        if 0 <= j < NL + 8: a("s_waitcnt lgkmcnt(0)")
        if nl < NL + 8 and nl - NSL <= j:
            L(nl); nl += 1
        if k == 14: stamp(a, 4)
    stamp(a, 5)
    a("v_mov_b32 v13, 1")
    a("s_mov_b64 exec, 1")
    a("ds_add_u32 v12, v13 offset:8")
    a("s_mov_b64 exec, -1")
    assert nl == NL + 8
    used = {wslot(28 + i) for i in range(8)}
    OFB = [r_ for r_ in range(E0, 256, 8) if r_ not in used and r_ != HR + 8][:8]
    for i in range(8):
        for ct in range(2):
            rg = wslot(28 + i) + 4 * ct + 3
            a("v_and_b32 v%d, 0xffff, v%d", rg, rg)
    a("s_lshl_b32 s%d, s%d, 10", s_t0, s_w)
    a("s_add_u32 s%d, s%d, s%d", s_gb, s_gb, s_t0)
    a("s_add_u32 s%d, s%d, 0x%x", s_gb, s_gb, FO)
    a("s_mul_i32 s%d, s%d, 20", s_t0, s_w)
    a("s_sub_u32 s%d, 112, s%d", s_t0, s_t0)
    a("s_lshl_b32 s%d, s%d, 11", s_t0, s_t0)
    a("s_add_u32 s%d, s%d, s%d", s_hb, s_ab, s_t0)
    srd(a, sW, 52, XBYTES)
    RA = 4
    for l in range(4):
        a("s_xor_b32 s%d, s%d, %d", s_t0, s_w, l)
        a("s_cmp_ge_u32 s%d, 2", s_t0)
        a("s_cselect_b32 s%d, %d, %d", s_t1, 96 * K, 48 * K) if False else None
        a("s_mul_i32 s%d, s%d, 12288", s_t0, s_t0)
        a("s_cselect_b32 s%d, %d, 0", s_t1, 48 * K)
        a("s_add_u32 s%d, s%d, s%d", s_t0, s_t0, s_t1)
        a("s_add_u32 s%d, s%d, %d", s_t0, s_t0, 48 * K)
        a("v_add_u32 v%d, s%d, v%d", RA + l, s_t0, v_l16)
    ldswait((12, 0, 13), OPT.get("ogate", 8), 2)
    a("v_and_b32 v9, 7, v%d", v_lane)
    a("v_lshrrev_b32 v10, 1, v9")
    a("v_and_b32 v9, 1, v9")
    a("v_lshlrev_b32 v9, 10, v9")
    a("v_lshl_add_u32 v9, v10, 12, v9")
    a("s_mov_b32 s%d, 0x10000", s_t1)
    a("s_mov_b32 s%d, %d", s_spin, SPIN_MAX)
    a.label("L_SN")
    a("buffer_load_dword v10, v9, s[%d:%d], s%d offen offset:%d sc1", sWS, sWS + 3, s_hb, 2048 + 1020)
    a("s_sub_u32 s%d, s%d, 1", s_spin, s_spin)
    a("s_cbranch_scc1 L_SNX")
    a("s_waitcnt vmcnt(0)")
    a("v_cmp_gt_u32 vcc, s%d, v10", s_t1)
    a("s_cbranch_vccz L_SNX")
    if OPT.get("sleeps", 1): a("s_sleep %d", OPT.get("sleeps", 1))
    a("s_branch L_SN")
    a.label("L_SNX")
    stamp(a, 6)
    def oloads(h0):
        for hd in range(h0, 4):
            for f2 in range(2):
                a("s_add_u32 s%d, s%d, %d", s_t0, s_hb, (2 * hd + f2) * 2048)
                for f, v in ((0, v_a0), (1, v_a1)):
                    a("buffer_load_dwordx4 %s, v%d, s[%d:%d], s%d offen sc1", vr(OFB[2 * hd + f2] + 4 * f, 4), v, sWS, sWS + 3, s_t0)
    a("s_mov_b32 s%d, %d", s_spin, SPIN_MAX)
    a("s_mov_b32 s%d, 0x10000", s_t1)
    oloads(0)
    for hd in range(4):
        a.label("L_OW%d" % hd)
        a("s_waitcnt vmcnt(%d)", 4 * (3 - hd))
        a("v_min3_u32 v10, v%d, v%d, v%d", OFB[2 * hd] + 3, OFB[2 * hd] + 7, OFB[2 * hd + 1] + 3)
        a("v_min_u32 v10, v10, v%d", OFB[2 * hd + 1] + 7)
        a("v_cmp_gt_u32 vcc, s%d, v10", s_t1)
        a("s_cbranch_vccnz L_OR%d" % hd)
        a.label("L_OK%d" % hd)
        for f2 in range(2): mf(OFB[2 * hd + f2], wslot(28 + 2 * hd + f2), False)
    stamp(a, 7)
    ldswait((12, 8, 13), 4)
    for l in range(1, 4):
        for qd in range(4):
            a("ds_write_b128 v%d, %s offset:%d", RA + l, vr(BACC + 16 * l + 4 * qd, 4), (l - 1) * 4096 + qd * 1024)
    a("s_waitcnt lgkmcnt(0)")
    a("s_barrier")
    for l in range(1, 4):
        for qd in range(4):
            a("ds_read_b128 %s, v%d offset:%d", vr(BACC + 16 * l + 4 * qd, 4), RA, (l - 1) * 4096 + qd * 1024)
    a("s_waitcnt lgkmcnt(8)")
    for j in range(16): a("v_add_f32 v%d, v%d, v%d", BACC + j, BACC + j, BACC + 16 + j)
    a("s_waitcnt lgkmcnt(0)")
    for j in range(16): a("v_add_f32 v%d, v%d, v%d", BACC + 32 + j, BACC + 32 + j, BACC + 48 + j)
    for j in range(16): a("v_add_f32 v%d, v%d, v%d", BACC + j, BACC + j, BACC + 32 + j)
    for jj in range(8):
        a("v_cvt_pk_bf16_f32 v%d, v%d, v%d", E0 + jj, BACC + 2 * jj, BACC + 2 * jj + 1)
    for p in range(2):
        a("v_permlane32_swap_b32 v%d, v%d", E0 + 4 * p, E0 + 4 * p + 2)
        a("v_permlane32_swap_b32 v%d, v%d", E0 + 4 * p + 1, E0 + 4 * p + 3)
    for p in range(2):
        a("buffer_store_dwordx4 %s, v%d, s[%d:%d], s%d offen offset:%d", vr(E0 + 4 * p, 4), v_oo, sW, sW + 3, s_xo, 32 * p)
    stamp(a, 8); stamp(a, 9)
    stamp_flush(a)
    a("s_endpgm")
    for hd in range(4):
        a.label("L_OR%d" % hd)
        a("s_sub_u32 s%d, s%d, 1", s_spin, s_spin)
        a("s_cbranch_scc1 L_OK%d" % hd)
        a("s_waitcnt vmcnt(0)")
        if OPT.get("sleepo", 0): a("s_sleep %d", OPT["sleepo"])
        oloads(hd)
        a("s_branch L_OW%d" % hd)
    l = a.l
    return l[:mark_a] + l[mark_b:] + l[mark_a:mark_b] + ["L_END:", "    s_endpgm"]

def build(path):
    hdr = open("cdna_kernels/%s.s.ref" % NAME).read().split("\n")
    top = [l for l in hdr if l.startswith(";") and "@launch" not in l]
    lines, added = fix(kernel())
    print("instrs", len(lines), "nop states added", added)
    out = top + ["; @launch grid=(256,1,1) block=(512,1,1) lds=%d" % LDS]
    out += ['.amdgcn_target "amdgcn-amd-amdhsa--gfx950"', ".text", ".globl " + KN, ".p2align 8", ".type %s,@function" % KN] + lines
    out += ['.section .rodata,"a"', ".p2align 6", """.amdhsa_kernel %s
  .amdhsa_next_free_vgpr 256
  .amdhsa_next_free_sgpr 102
  .amdhsa_accum_offset 256
  .amdhsa_group_segment_fixed_size 0
  .amdhsa_kernarg_size 72
  .amdhsa_user_sgpr_count 2
  .amdhsa_user_sgpr_kernarg_segment_ptr 1
  .amdhsa_system_sgpr_workgroup_id_x 1
.end_amdhsa_kernel""" % KN]
    open(path, "w").write("\n".join(out) + "\n")

if __name__ == "__main__":
    for kv_ in sys.argv[2:]:
        k, v = kv_.split("=", 1); OPT[k] = eval(v)
    build(sys.argv[1])
```

```python
import sys, math, struct
from asmlib import *

NAME = "parallel_sum__softmax_full_mha__dense_activation_relu__prompt"
KN = NAME + "_kernel"
KV, AF = 0x200000, 0x600000
FKV = 0x000000
FH = 0x8000
FO = 0x10000
WS_END = 0xF00000
XBYTES = 2048 * 448 * 2
OPT = dict(bias=64.0, stamps=False, sleep=2, prioA=2, rd=3, ne=16, pfa=99, pfb=99, iplan=(1,1,1,2,1,1,3), prioB1=0, prioA1=2, pat=((3,0),(3,0),(2,2),(8,6)))
STAMP = 0x2000000
SPIN_MAX = 1 << 17
K = 1024
NST = 12
def f32(x): return "0x%08x" % struct.unpack("<I", struct.pack("<f", x))[0]

def stamp(a, i, grp="main"):
    if i not in (0, NST - 2, NST - 1) and grp != OPT.get("sgrp", "main"): return
    if OPT["stamps"]: a("%s s[%d:%d]", "s_memtime" if OPT.get("cyc") else "s_memrealtime", 76 + 2 * i, 77 + 2 * i)
def stamp_flush(a):
    if not OPT["stamps"]: return
    stamp(a, NST - 2)
    a("s_mov_b32 s64, s46\ns_mov_b32 s65, s47\ns_mov_b32 s66, 0x10000000\ns_mov_b32 s67, 0x00020000")
    a("s_lshl_b32 s68, s2, 3\ns_add_u32 s68, s68, s3\ns_lshl_b32 s68, s68, 6")
    a("s_add_u32 s68, s68, 0x%x", STAMP)
    a("v_mov_b32 v0, 0")
    a("s_waitcnt vmcnt(0) lgkmcnt(0)")
    stamp(a, NST - 1)
    a("s_waitcnt lgkmcnt(0)")
    for i in range(NST):
        a("v_mov_b32 v1, s%d", 76 + 2 * i)
        a("buffer_store_dword v1, v0, s[64:67], s68 offen offset:%d", 4 * i)

def srd(a, d, base, nbytes):
    a("s_mov_b32 s%d, s%d", d, base)
    a("s_mov_b32 s%d, s%d", d + 1, base + 1)
    a("s_mov_b32 s%d, 0x%x", d + 2, nbytes)
    a("s_mov_b32 s%d, 0x00020000", d + 3)

class VM:
    def __init__(self, a): self.a = a; self.ops = []; self.done = 0
    def issue(self, tag): self.ops.append(tag)
    def wait(self, tag):
        idx = max(i for i, t in enumerate(self.ops) if t == tag)
        if idx < self.done: return
        n = len(self.ops) - 1 - idx
        assert n <= 63, n
        self.a("s_waitcnt vmcnt(%d)", n); self.done = idx + 1

SL = 24 * K
def slot_of(n): return (n % 6) * SL
RB = 149 * K
CNT = 150 * K
QX = 152 * K
KVS = 48 * K
KVS2 = (20 * K, 44 * K, 140 * K, 144 * K)
HO = 80 * K
CV = 112 * K
NSL = 8
def sloff(j): return (j & 3) * 2048 + ((j >> 2) & 1) * 32768
CA = 0
LDS = 160 * K
MF = "v_mfma_f32_32x32x16_bf16"

def kernel():
    a = Asm()
    sWS, sX, sW, sW1, sDBG = 8, 12, 16, 20, 24
    s_w, s_rb, s_c, s_rot, s_t0, s_t1, s_cp, s_mask = 28, 29, 30, 31, 32, 33, 34, 35
    s_hi, s_ex, s_spin, s_non = 36, 38, 56, 58
    v_lane, v_l16 = 1, 2
    a.label(KN)
    a("s_cmp_ge_u32 s2, 256")
    a("s_cbranch_scc1 L_END")
    stamp(a, 0)
    a("s_load_dwordx4 s[40:43], s[0:1], 0")
    a("s_load_dwordx2 s[44:45], s[0:1], 16")
    a("s_load_dwordx4 s[48:51], s[0:1], 32")
    a("s_load_dwordx4 s[52:55], s[0:1], 48")
    a("s_load_dwordx2 s[46:47], s[0:1], 64")
    a("v_lshrrev_b32 v3, 6, v0")
    a("v_and_b32 v%d, 63, v0", v_lane)
    a("v_readfirstlane_b32 s%d, v3", s_w)
    a("v_lshlrev_b32 v%d, 4, v%d", v_l16, v_lane)
    a("s_mov_b32 s%d, 0", s_hi)
    a("s_mov_b32 s%d, -1", s_hi + 1)
    a("s_mov_b32 s%d, 0xffff0000", s_mask)
    cb_ = OPT.get("cbits", 2)
    a("s_and_b32 s%d, s2, %d", s_c, (1 << (4 - cb_)) - 1)
    a("s_lshl_b32 s%d, s%d, %d", s_c, s_c, cb_)
    a("s_bfe_u32 s%d, s2, 0x%x", s_t0, (cb_ << 16) | 3)
    a("s_or_b32 s%d, s%d, s%d", s_c, s_c, s_t0)
    a("s_lshr_b32 s%d, s2, %d", s_rb, 3 + cb_)
    if cb_ > 1:
        a("s_bfe_u32 s%d, s2, 0x%x", s_t1, ((cb_ - 1) << 16) | (4 - cb_))
        a("s_lshl_b32 s%d, s%d, %d", s_t1, s_t1, 5 - cb_)
        a("s_or_b32 s%d, s%d, s%d", s_rb, s_rb, s_t1)
    a("s_mul_i32 s%d, s%d, %d", s_rot, s_t0, {1: 3, 2: 2, 3: 1}[cb_])
    a("s_add_u32 s%d, s%d, s%d", s_rot, s_rot, s_rb)
    a("s_mul_i32 s%d, s%d, 37", s_t0, s_rot)
    a("s_lshr_b32 s%d, s%d, 8", s_t0, s_t0)
    a("s_mul_i32 s%d, s%d, 7", s_t0, s_t0)
    a("s_sub_u32 s%d, s%d, s%d", s_rot, s_rot, s_t0)
    a("s_mov_b32 s3, s%d", s_w)
    v_g, v_ch, v_rr, v_c = 4, 5, 6, 7
    a("v_lshrrev_b32 v%d, 5, v%d", v_g, v_lane)
    a("v_bfe_u32 v%d, v%d, 4, 1", v_ch, v_lane)
    a("v_bfe_u32 v%d, v%d, 2, 2", v_rr, v_lane)
    a("v_and_b32 v%d, 3, v%d", v_c, v_lane)
    v_trp = 8
    a("v_lshlrev_b32 v%d, 6, v%d", v_trp, v_rr)
    a("v_lshl_add_u32 v%d, v%d, 5, v%d", v_trp, v_ch, v_trp)
    a("v_lshl_add_u32 v%d, v%d, 3, v%d", v_trp, v_c, v_trp)
    def nxt7(reg, first):
        if first: a("s_mov_b32 s%d, s%d", reg, s_rot)
        else:
            a("s_add_u32 s%d, s%d, 1", reg, reg)
            a("s_cmp_eq_u32 s%d, 7", reg)
            a("s_cselect_b32 s%d, 0, s%d", reg, reg)
    def kvs2_base(dst):
        a("s_mul_i32 s%d, s%d, %d", dst, s_w, 24 * K)
        a("s_add_u32 s%d, s%d, %d", dst, dst, 20 * K)
        a("s_lshl_b32 s%d, s%d, 12", s_t1, s_w)
        a("s_add_u32 s%d, s%d, %d", s_t1, s_t1, 132 * K)
        a("s_cmp_ge_u32 s%d, 2", s_w)
        a("s_cselect_b32 s%d, s%d, s%d", dst, s_t1, dst)
    a("s_cmp_ge_u32 s%d, 4", s_w)
    a("s_cbranch_scc0 L_A")
    mark_a = len(a.l)
    a.label("L_A")

    a("s_setprio %d", OPT.get("prioA1", 0))
    a("v_lshlrev_b32 v16, 2, v%d", v_lane)
    a("v_add_u32 v16, %d, v16", CNT)
    a("v_mov_b32 v17, 0")
    a("ds_write_b32 v16, v17")
    if OPT.get("codepf", True):
        a("s_getpc_b64 s[%d:%d]", s_ex, s_ex + 1)
        a.label("L_PC")
        a("s_lshr_b32 s%d, s2, 3", s_t0)
        a("s_lshl_b32 s%d, s%d, 5", s_t1, s_w)
        a("s_add_u32 s%d, s%d, s%d", s_t0, s_t0, s_t1)
        a("s_cmp_ge_u32 s%d, (L_END-%s)/1024", s_t0, KN)
        a("s_cbranch_scc1 L_NOCPF")
        a("s_lshl_b32 s%d, s%d, 10", s_t0, s_t0)
        a("s_sub_u32 s%d, s%d, L_PC-%s", s_ex, s_ex, KN)
        a("s_subb_u32 s%d, s%d, 0", s_ex + 1, s_ex + 1)
        a("s_add_u32 s%d, s%d, s%d", s_ex, s_ex, s_t0)
        a("s_addc_u32 s%d, s%d, 0", s_ex + 1, s_ex + 1)
        a("v_mov_b32 v17, s%d", s_ex + 1)
        a("v_add_co_u32 v16, vcc, s%d, v%d", s_ex, v_l16)
        a("v_addc_co_u32 v17, vcc, 0, v17, vcc")
        a("global_load_dword v254, v[16:17], off")
        a.label("L_NOCPF")
    v_xa, v_gb, v_hb, v_qb, v_r = 9, 13, 14, 15, 6
    v_gw, v_hw, v_qw, C2, v_csw = 5, 13, 3, 8, 0
    v_t = 16
    XE = 20
    X0, ACC, RING = 24, 136, 216
    v_non, v_z, v_pa, v_pd = 248, 254, 255, 252
    T4 = ACC + 64
    v_sum, v_sq, v_cs = T4, T4 + 2, T4 + 4
    WE = T4 + 8
    s_ones, s_st = 62, 63
    s_fl, s_rt, s_state = 4, 5, 6
    s_kvb, s_i, s_off, s_mode, s_cnt, s_tgt, s_pb, s_hdone = 16, 17, 18, 19, 20, 21, 22, 23
    s_bad, s_skip, s_hfl = 64, 70, 71
    t0, t1, t2 = v_t, v_t + 1, v_t + 2
    a("s_lshl_b32 s%d, s%d, 2", s_rt, s_rb)
    a("s_add_u32 s%d, s%d, s%d", s_rt, s_rt, s_w)
    a("s_mov_b32 s%d, 0x3f803f80", s_ones)
    a("v_and_b32 v%d, 31, v%d", t0, v_lane)
    a("v_bfe_u32 v%d, v%d, 1, 3", t1, v_lane)
    a("v_xor_b32 v%d, v%d, v%d", t1, t1, v_g)
    a("v_lshlrev_b32 v%d, 7, v%d", t0, t0)
    a("v_lshl_add_u32 v%d, v%d, 4, v%d", t0, t1, t0)
    a("s_lshl_b32 s%d, s%d, 12", s_t0, s_w)
    for q in range(4):
        a("v_xor_b32 v%d, %d, v%d", t1, 32 * q, t0)
        a("v_add_u32 v%d, s%d, v%d", v_xa + q, s_t0, t1)
    a("v_lshl_add_u32 v%d, v%d, 10, v%d", v_gb, v_g, v_trp)
    a("v_lshl_add_u32 v%d, v%d, 11, v%d", v_hb, v_g, v_trp)
    a("v_lshl_add_u32 v%d, v%d, 9, v%d", v_qb, v_g, v_trp)
    for r_ in (v_sum, v_sq, v_cs, v_cs + 1): a("v_mov_b32 v%d, 0", r_)
    a("s_mov_b32 s%d, 0", s_mode)
    a("s_mov_b32 s%d, 0", s_tgt)
    a("s_lshl_b32 s%d, s%d, 2", s_kvb, s_c)
    a("s_add_u32 s%d, s%d, s%d", s_kvb, s_kvb, s_w)
    a("s_lshl_b32 s%d, s%d, 16", s_kvb, s_kvb)
    a("s_add_u32 s%d, s%d, 0x%x", s_kvb, s_kvb, KV)
    v_ko, v_ks, v_ks2, v_ho, v_tag, v_tg = 248, 249, 250, 251, 252, 253
    a("s_lshl_b32 s%d, s%d, 13", s_t0, s_w)
    a("v_add_u32 v%d, s%d, v%d", v_ks, s_t0, v_l16)
    a("v_add_u32 v%d, %d, v%d", v_ho, HO, v_ks)
    a("v_add_u32 v%d, %d, v%d", v_ks, KVS, v_ks)
    kvs2_base(s_t0)
    a("v_add_u32 v%d, s%d, v%d", v_ks2, s_t0, v_l16)
    a("s_lshl_b32 s%d, s%d, 2", s_t0, s_w)
    a("s_add_u32 s%d, s%d, %d", s_t0, s_t0, CNT + 16)
    a("v_mov_b32 v%d, s%d", v_tag, s_t0)
    a("v_and_b32 v%d, 31, v%d", t0, v_lane)
    a("v_mov_b32 v%d, v%d", t1, t0)
    for th in (11, 14, 25):
        a("v_cmp_le_u32 vcc, %d, v%d", th, t0)
        a("v_addc_co_u32 v%d, vcc, 0, v%d, vcc", t1, t1)
    a("v_and_b32 v%d, 1, v%d", t2, t0)
    a("v_lshlrev_b32 v%d, 2, v%d", t2, t2)
    a("v_bfe_u32 v%d, v%d, 1, 1", t2 + 1, t0)
    a("v_lshl_add_u32 v%d, v%d, 4, v%d", t2, t2 + 1, t2)
    a("v_add_u32 v%d, 11, v%d", t2, t2)
    a("s_mov_b32 s%d, 0xf0000000", s_ex)
    a("s_mov_b32 s%d, 0xf0000000", s_ex + 1)
    a("v_cndmask_b32 v%d, v%d, v%d, s[%d:%d]", t1, t1, t2, s_ex, s_ex + 1)
    a("s_bitcmp1_b32 s%d, 0", s_c)
    a("s_cselect_b32 s%d, -1, 0", s_bad)
    a("s_mov_b32 s%d, s%d", s_bad + 1, s_bad)
    a("v_cndmask_b32 v%d, v%d, v%d, s[%d:%d]", t1, t0, t1, s_bad, s_bad + 1)
    a("v_lshl_add_u32 v%d, v%d, 5, v%d", t1, v_g, t1)
    a("s_lshl_b32 s%d, s%d, 12", s_t0, s_w)
    a("v_lshl_add_u32 v%d, v%d, 4, s%d", v_ko, t1, s_t0)
    v_q4 = 255
    a("v_lshlrev_b32 v%d, 2, v%d", v_q4, v_c)
    a("v_add_u32 v%d, %d, v%d", v_q4, CNT, v_q4)
    a("s_lshl_b32 s%d, s%d, 11", s_t0, s_w)
    a("v_add_u32 v%d, s%d, v%d", v_gw, s_t0, v_gb)
    a("s_lshl_b32 s%d, s%d, 2", s_t0, s_w)
    a("s_add_u32 s%d, s%d, %d", s_t0, s_t0, QX)
    a("v_add_u32 v%d, s%d, v%d", v_csw, s_t0, v_l16)
    a("s_waitcnt lgkmcnt(0)")
    stamp(a, 1, "p0")
    srd(a, sWS, 46, WS_END)
    def acc(t): return vr(ACC + 16 * t, 16)
    spins = []
    def peek(off): a("ds_read_b32 v%d, v%d offset:%d", v_tg, v_q4, off)
    def need(off, thr):
        n = len(spins); spins.append((off, thr))
        a("v_cmp_gt_u32 vcc, %d, v%d", thr, v_tg)
        a("s_cbranch_vccnz L_SP%d" % n)
        a.label("L_SPB%d" % n)
    def post(off, val, tmp):
        a("v_mov_b32 v%d, %d", tmp, val)
        a("ds_write_b32 v%d, v%d offset:%d", v_tag, tmp, off - 16)
    def wset(p): return (ACC + 32) if p % 2 == 0 else RING
    win = {"x": 0, "h": 0, "c": 0}
    def setwin(kind, n):
        wdw = (slot_of(n) // (2 * SL)) * 2 * SL
        d = wdw - win[kind]
        if d:
            for r_ in {"x": [v_xa + q for q in range(4)] + [v_gb, v_gw], "h": [v_hb, v_qb], "c": [v_hw, v_qw]}[kind]:
                if d > 0: a("v_add_u32 v%d, %d, v%d", r_, d, r_)
                else: a("v_subrev_u32 v%d, %d, v%d", r_, -d, r_)
            win[kind] = wdw
        return slot_of(n) - wdw
    def rd1(p, q, off):
        a("ds_read_b128 %s, v%d offset:%d", vr(X0 + 16 * p + 4 * q, 4), v_xa + q, off)
        for t in range(2):
            for h in range(2):
                a("ds_read_b64_tr_b16 %s, v%d offset:%d", vr(wset(p) + 8 * q + 4 * t + 2 * h, 2), v_gb, off + 16384 + q * 2048 + h * 512 + t * 256)
    def rdc(off):
        for t in range(2):
            for h in range(2):
                a("ds_read_b64_tr_b16 %s, v%d offset:%d", vr(WE + 4 * t + 2 * h, 2), v_gw, off + 16384 + h * 512 + t * 256)
    def cs_pack(src, off, ta, tb):
        return ["v_and_b32 v%d, s%d, v%d" % (ta, s_mask, src), "v_sub_f32 v%d, v%d, v%d" % (tb, src, ta),
                "v_lshrrev_b32 v%d, 16, v%d" % (ta, ta), "v_and_or_b32 v%d, v%d, s%d, v%d" % (src, tb, s_mask, ta),
                "ds_write_b32 v%d, v%d offset:%d" % (v_csw, src, off)]
    def split3(m, h0, h1, h2, neg):
        o = []
        if neg: o.append("v_sub_f32 v%d, 0, v%d" % (m, m))
        o += ["v_and_b32 v%d, s%d, v%d" % (h0, s_mask, m), "v_sub_f32 v%d, v%d, v%d" % (m, m, h0),
              "v_and_b32 v%d, s%d, v%d" % (h1, s_mask, m), "v_sub_f32 v%d, v%d, v%d" % (m, m, h1),
              "v_lshrrev_b32 v%d, 16, v%d" % (h0, h0), "v_or_b32 v%d, v%d, v%d" % (h0, h0, h1), "v_lshrrev_b32 v%d, 16, v%d" % (h2, m)]
        return o
    def finalize_ops(swap):
        st = ["v_mov_b32 v%d, v%d" % (v_sum + 1, v_sum), "v_mov_b32 v%d, v%d" % (v_sq + 1, v_sq), None, None,
              "v_permlane32_swap_b32 v%d, v%d" % (v_sum, v_sum + 1), "v_permlane32_swap_b32 v%d, v%d" % (v_sq, v_sq + 1),
              "v_add_f32 v%d, v%d, v%d" % (v_sum, v_sum, v_sum + 1), "v_add_f32 v%d, v%d, v%d" % (v_sq, v_sq, v_sq + 1),
              "v_mul_f32 v%d, %s, v%d" % (v_sum, f32(1.0 / 448), v_sum), "v_mul_f32 v%d, %s, v%d" % (v_sq, f32(1.0 / 448), v_sq),
              "v_fma_f32 v%d, -v%d, v%d, v%d" % (v_sq, v_sum, v_sum, v_sq), "v_max_f32 v%d, 0, v%d" % (v_sq, v_sq),
              "v_cvt_pk_bf16_f32 v%d, v%d, v%d" % (t0, v_sq, v_sq), "v_and_b32 v%d, s%d, v%d" % (t0, s_mask, t0),
              "v_add_f32 v%d, %s, v%d" % (t0, f32(1e-5), t0), "v_cvt_pk_bf16_f32 v%d, v%d, v%d" % (t0, t0, t0),
              "v_and_b32 v%d, s%d, v%d" % (t0, s_mask, t0), "v_sqrt_f32 v%d, v%d" % (t0, t0), None,
              "v_cvt_pk_bf16_f32 v%d, v%d, v%d" % (t0, t0, t0), "v_and_b32 v%d, s%d, v%d" % (t0, s_mask, t0),
              "v_rcp_f32 v%d, v%d" % (v_r, t0), None]
        if swap:
            st += ["ds_write_b32 v%d, v%d" % (t2, v_r)] + ["ds_read_b128 %s, v%d offset:%d" % (vr(RING + 4 * k, 4), t2 + 1, 32 * k) for k in range(4)]
        st += ["v_cvt_pk_bf16_f32 v%d, -v%d, -v%d" % (XE + k, v_sum, v_sum) for k in range(4)]
        st += ["v_mov_b32 v%d, v%d" % (v_r + 1, v_r), "v_add_u32 v%d, %d, v%d" % (t1, QX, v_l16)]
        return [o for o in st if o]
    def pass1(swap):
        win["x"] = 0
        a("s_barrier")
        stamp(a, 3); stamp(a, 1, "p1")
        rdc(0)
        for q in range(4): rd1(0, q, 0)
        if swap:
            a("s_lshl_b32 s%d, s%d, 7", s_t0, s_w)
            a("s_add_u32 s%d, s%d, %d", s_t0, s_t0, RB)
            a("v_and_b32 v%d, 31, v%d", t2, v_lane)
            a("v_lshl_add_u32 v%d, v%d, 2, s%d", t2, t2, s_t0)
            a("v_lshl_add_u32 v%d, v%d, 4, s%d", t2 + 1, v_g, s_t0)
        for p in range(7):
            for q in range(4):
                a("s_waitcnt lgkmcnt(%d)", 5 * (3 - q))
                if q == 0:
                    for j in range(4):
                        for t in range(2):
                            a("v_dot2c_f32_bf16 v%d, s%d, v%d", v_cs + t, s_ones, WE + 4 * t + j)
                for j in range(4):
                    x = X0 + 16 * p + 4 * q + j
                    a("v_dot2c_f32_bf16 v%d, s%d, v%d", v_sum, s_ones, x)
                    a("v_dot2c_f32_bf16 v%d, v%d, v%d", v_sq, x, x)
                if q == 0 and p == 6:
                    for t in range(2):
                        for o_ in cs_pack(v_cs + t, 5120 + 1024 * t, t0, t1): a(o_)
                    post(48, 1, t0)
            fin = finalize_ops(swap) if p == 6 else []
            off = setwin("x", p + 1) if p < 6 else None
            for m in range(8):
                q, t = m >> 1, m & 1
                wf = vr(wset(p) + 8 * q + 4 * t, 4); xf = vr(X0 + 16 * p + 4 * q, 4)
                A, B = (xf, wf) if swap else (wf, xf)
                first = (p == 0 and q == 0)
                a("%s %s, %s, %s, %s", MF, acc(t), A, B, "0" if first else acc(t))
                if p < 6:
                    if m == 3:
                        a("s_barrier")
                        rdc(off)
                        stamp(a, 2 + p, "p1")
                    if m >= 4: rd1(p + 1, m - 4, off)
                else:
                    if m == 0: peek(48)
                    k = 6 if m < 5 else len(fin)
                    for o in fin[:k]: a(o)
                    fin = fin[k:]
                    if m == 6:
                        a("s_waitcnt lgkmcnt(0)")
                        need(48, 1)
                        for t_ in range(2): a("ds_read_b128 %s, v%d offset:%d", vr(WE + 4 * t_, 4), t1, 5120 + 1024 * t_)
        a("s_waitcnt lgkmcnt(0)")
        for t in range(2):
            wf = vr(WE + 4 * t, 4); xf = vr(XE, 4)
            A, B = (xf, wf) if swap else (wf, xf)
            a("%s %s, %s, %s, %s", MF, acc(t), A, B, acc(t))
        stamp(a, 8, "p1")
    def pack(t, kind, rreg=None):
        b = ACC + 16 * t
        for jj in range(8):
            a("v_pk_mul_f32 %s, %s, %s", vr(b + 2 * jj, 2), vr(b + 2 * jj, 2), vr((RING + 2 * jj) if kind == "v" else v_r, 2))
            a("v_cvt_pk_bf16_f32 v%d, v%d, v%d", b + jj, b + 2 * jj, b + 2 * jj + 1)
            if kind == "h": a("v_pk_max_i16 v%d, v%d, 0", b + jj, b + jj)
        if kind == "q":
            a("v_cndmask_b32 v%d, v%d, 0, s[%d:%d]", b + 6, b + 6, s_hi, s_hi + 1)
            a("v_cndmask_b32 v%d, v%d, 0, s[%d:%d]", b + 7, b + 7, s_hi, s_hi + 1)
        elif kind == "k":
            a("v_cndmask_b32 v%d, v%d, v%d, s[%d:%d]", b + 6, b + 6, v_t, s_hi, s_hi + 1)
            a("v_cndmask_b32 v%d, v%d, v%d, s[%d:%d]", b + 7, b + 7, v_t + 1, s_hi, s_hi + 1)
        elif kind == "v":
            for jj in range(8):
                a("v_cndmask_b32 v%d, v%d, v%d, s[%d:%d]", b + jj, b + jj, v_t, s_ex, s_ex + 1)
    def kv_epilogue(kind):
        for t in range(2):
            pack(t, kind, "v%d" % v_r)
            for f in range(2):
                a("ds_write_b128 v%d, %s offset:%d", v_ko, vr(ACC + 16 * t + 4 * f, 4), 2048 * t + 1024 * f)
    a("s_bitcmp1_b32 s%d, 0", s_c)
    a("s_cbranch_scc1 L_P1V")
    pass1(False)
    stamp(a, 4); stamp(a, 1, "p2")
    a("v_mov_b32 v%d, 0x3f803f80", v_t)
    a("v_mov_b32 v%d, 0x00003f80", v_t + 1)
    kv_epilogue("k")
    a("s_branch L_EQ")
    a.label("L_P1V")
    pass1(True)
    stamp(a, 4); stamp(a, 1, "p2")
    a("v_mov_b32 v%d, 0x3f803f80", v_t)
    kv_epilogue("v")
    a.label("L_EQ")
    stamp(a, 2, "p2"); stamp(a, 9, "p1")
    NPB = 0
    a("s_waitcnt vmcnt(0) lgkmcnt(0)")
    a("s_barrier")
    stamp(a, 3, "p2")
    class LG:
        def __init__(s_): s_.ops = []; s_.done = 0
        def issue(s_, tag): s_.ops.append(tag)
        def wait(s_, tag):
            idx = max(i for i, t_ in enumerate(s_.ops) if t_ == tag)
            if idx < s_.done: return
            n_ = min(15, len(s_.ops) - 1 - idx)
            a("s_waitcnt lgkmcnt(%d)", n_); s_.done = len(s_.ops) - n_
    lg = LG()
    def rdw(dst, kind, p, qoff, t, tag):
        off = setwin(kind, 7 + p)
        hb, qb = (v_hb, v_qb) if kind == "h" else (v_hw, v_qw)
        for h in range(2):
            if t < 4: a("ds_read_b64_tr_b16 %s, v%d offset:%d", vr(dst + 2 * h, 2), hb, off + qoff + h * 1024 + t * 256)
            else: a("ds_read_b64_tr_b16 %s, v%d offset:%d", vr(dst + 2 * h, 2), qb, off + qoff + 4096 + h * 256)
            lg.issue(tag)
    def rd2(n):
        s, t = divmod(n, 5); p, q = divmod(s, 4)
        rdw(RING + 4 * (n % 8), "h", p, q * 5120, t, n)
    for n in range(7): rd2(n)
    a("s_mul_i32 s%d, s%d, 5120", s_t0, s_w)
    a("v_add_u32 v%d, s%d, v%d", v_hw, s_t0, v_hb)
    a("v_add_u32 v%d, s%d, v%d", v_qw, s_t0, v_qb)
    for t in range(5): a("v_mov_b32 v%d, 0", C2 + t)
    stamp(a, 5); stamp(a, 4, "p2")
    KV0, Q0, P0, O0, S0, QP, MX = 24, 88, 120, 136, 216, 200, 208
    CSF = 72
    def q(u, f): return vr(QP + 4 * f, 4) if u == 3 else vr(Q0 + 8 * u + 4 * f, 4)
    def qreg(u, r): return (QP if u == 3 else Q0 + 8 * u) + r
    def qtile(dst, u):
        a("s_add_u32 s%d, s%d, %d", dst, s_w, u + 1)
        a("s_and_b32 s%d, s%d, 3", dst, dst)
    def o(u): return vr(O0 + 16 * u, 16)
    def kv(st, f): return vr(KV0 + 16 * st + 4 * f, 4)
    def kvload(st, fr=(0, 1, 2, 3)):
        a("s_add_u32 s%d, s%d, s%d", s_off, s_i, s_rb)
        a("s_and_b32 s%d, s%d, 15", s_off, s_off)
        a("s_lshl_b32 s%d, s%d, 12", s_off, s_off)
        a("s_add_u32 s%d, s%d, s%d", s_off, s_off, s_kvb)
        for f in fr:
            a("buffer_load_dwordx4 %s, v%d, s[%d:%d], s%d offen offset:%d sc1", kv(st, f), v_l16, sWS, sWS + 3, s_off, 1024 * f)
        a("s_add_u32 s%d, s%d, 1", s_i, s_i)
    NJ = 140
    barjobs = {20 * p - 7: p + 1 for p in (3, 5)}
    cs_step = {4: 0, 6: 1, 8: 2, 12: 3, 16: 4, 20: 5, 22: 6}
    CF = [X0, X0 + 4, X0 + 8, X0 + 12, v_t]
    pend = []
    for s in range(28):
        if s % 4 == 0: stamp(a, 1 + s // 4, "p5")
        for t in range(5):
            n = 5 * s + t
            if t == 2 and (s - 1) in cs_step:
                lg.wait(("c", s - 1, 4))
                for j in range(4):
                    for t_ in range(5):
                        a("v_dot2c_f32_bf16 v%d, s%d, v%d", C2 + t_, s_ones, CF[t_] + j)
                if cs_step[s - 1] == 6:
                    for t_ in range(5): pend += cs_pack(C2 + t_, 1024 * t_, v_t, v_t + 1)
            if t in (0, 3): lg.wait(n + (2 if t == 0 else 1))
            a("%s %s, %s, %s, %s", MF, acc(t), vr(RING + 4 * (n % 8), 4), vr(X0 + 4 * s, 4), acc(t) if s else "0")
            if n in barjobs:
                lg.wait(("pk", n)); need(64, 8 + barjobs[n])
            if n + 7 < NJ: rd2(n + 7)
            if s in cs_step: rdw(CF[t], "c", cs_step[s], 0, t, ("c", s, t))
            if n + 6 in barjobs: peek(64); lg.issue(("pk", n + 6))
            if n in (28, 81): post(80, 8 if n == 28 else 11, 254); lg.issue("post")
            if pend:
                for o_ in pend[:5]:
                    a(o_)
                lg.issue("csw"); pend = pend[5:]
                if not pend:
                    post(48, 2, 254); lg.issue("post")
                    a("v_add_u32 v%d, %d, v%d", v_t + 2, QX, v_l16)
            if s == 24 and t == 3: peek(80); lg.issue("pk80")
            if s == 25 and t == 3: lg.wait("pk80"); need(80, 11); peek(48); lg.issue("pk48")
            if s == 26 and t == 3: lg.wait("pk48"); need(48, 2)
            if n >= 134 and n < 139:
                a("ds_read_b128 %s, v%d offset:%d", vr(CSF + 4 * (n - 134), 4), v_t + 2, 1024 * (n - 134)); lg.issue("csf")
            if n == 134: a("ds_read_b32 v%d, v%d", v_tg, v_tag); lg.issue("tg")
    a("s_waitcnt lgkmcnt(0)")
    for t in range(5):
        a("%s %s, %s, %s, %s", MF, acc(t), vr(CSF + 4 * t, 4), vr(XE, 4), acc(t))
    stamp(a, 7, "p2"); stamp(a, 1, "p3"); stamp(a, 8, "p5")
    a("s_setprio %d", OPT["prioA"])
    def kvreads():
        for st in range(3):
            for f in range(4):
                if st < 2: a("ds_read_b128 %s, v%d offset:%d", kv(st, f), v_ks, 4096 * st + 1024 * f)
                else: a("ds_read_b128 %s, v%d offset:%d", kv(st, f), v_ks2, 1024 * f)
    a("v_readfirstlane_b32 s%d, v%d", s_state, v_tg)
    a("s_mov_b32 s%d, 3", s_i)
    a("s_cmp_eq_u32 s%d, 0", s_state)
    a("s_cbranch_scc1 L_NK")
    kvreads()
    a.label("L_NK")
    for t in range(4):
        pack(t, "h")
        for f in range(2):
            a("ds_write_b128 v%d, %s offset:%d", v_ho, vr(ACC + 16 * t + 4 * f, 4), 2048 * t + 1024 * f)
    a("v_mov_b32 v%d, 1", t0)
    a("ds_write_b32 v%d, v%d offset:16", v_tag, t0)
    stamp(a, 6); stamp(a, 8, "p2"); stamp(a, 2, "p3"); stamp(a, 9, "p5")
    a("v_mul_f32 v%d, %s, v%d", v_r, f32(28 ** -0.5 * math.log2(math.e)), v_r)
    a("v_mov_b32 v%d, v%d", v_r + 1, v_r)
    pack(4, "q")
    a("s_cmp_lg_u32 s%d, 0", s_state)
    a("s_cbranch_scc1 L_LOADED")
    a("s_mov_b32 s%d, %d", s_spin, SPIN_MAX * 8)
    a.label("L_AP")
    a("ds_read_b32 v%d, v%d", v_tg, v_tag)
    a("s_sub_u32 s%d, s%d, 1", s_spin, s_spin)
    a("s_cbranch_scc1 L_APX")
    a("s_waitcnt lgkmcnt(0)")
    a("v_readfirstlane_b32 s%d, v%d", s_state, v_tg)
    a("s_cmp_eq_u32 s%d, 0", s_state)
    a("s_cbranch_scc1 L_AP")
    a.label("L_APX")
    kvreads()
    a.label("L_LOADED")
    a("s_waitcnt lgkmcnt(0)")
    stamp(a, 7); stamp(a, 9, "p2"); stamp(a, 3, "p3")
    nsync = [0]
    def async_():
        n = nsync[0]; nsync[0] += 1
        a("v_mov_b32 v12, %d", CNT)
        a("v_mov_b32 v13, 1")
        a("s_add_u32 s%d, s%d, 4", s_tgt, s_tgt)
        a("s_mov_b64 exec, 1")
        a("ds_add_u32 v12, v13")
        a("s_mov_b64 exec, -1")
        a("s_mov_b32 s%d, %d", s_spin, SPIN_MAX)
        a.label("L_AS%d" % n)
        a("ds_read_b32 v13, v12")
        a("s_sub_u32 s%d, s%d, 1", s_spin, s_spin)
        a("s_cbranch_scc1 L_ASX%d" % n)
        a("s_waitcnt lgkmcnt(0)")
        a("v_readfirstlane_b32 s%d, v13", s_t0)
        a("s_cmp_lt_u32 s%d, s%d", s_t0, s_tgt)
        a("s_cbranch_scc1 L_AS%d" % n)
        a.label("L_ASX%d" % n)
    def split_m(m, h0, h1, h2):
        for o_ in split3(m, h0, h1, h2, True): a(o_)
    def patch(u, h0, h2):
        a("v_cndmask_b32 v%d, v%d, %s, s[%d:%d]", qreg(u, 6), qreg(u, 6), h0, s_hi, s_hi + 1)
        a("v_cndmask_b32 v%d, v%d, %s, s[%d:%d]", qreg(u, 7), qreg(u, 7), h2, s_hi, s_hi + 1)
    a("%s %s, %s, %s, 0", MF, vr(S0, 16), kv(0, 0), q(3, 0))
    a("%s %s, %s, %s, %s", MF, vr(S0, 16), kv(0, 1), q(3, 1), vr(S0, 16))
    for u in range(4):
        qtile(s_t1, u)
        a("s_lshl_b32 s%d, s%d, 13", s_t1, s_t1)
        a("s_add_u32 s%d, s%d, %d", s_t1, s_t1, KVS)
        a("v_add_u32 v%d, s%d, v%d", v_t + u, s_t1, v_l16)
    a("ds_write_b128 v%d, %s", v_t + 3, q(3, 0))
    a("v_max3_f32 v%d, v%d, v%d, v%d", MX, S0, S0 + 1, S0 + 2)
    a("v_max3_f32 v%d, v%d, v%d, v%d", MX + 1, S0 + 3, S0 + 4, S0 + 5)
    for j in range(6, 14, 4):
        a("v_max3_f32 v%d, v%d, v%d, v%d", MX, S0 + j, S0 + j + 1, MX)
        a("v_max3_f32 v%d, v%d, v%d, v%d", MX + 1, S0 + j + 2, S0 + j + 3, MX + 1)
    a("v_max3_f32 v%d, v%d, v%d, v%d", MX, S0 + 14, S0 + 15, MX)
    a("v_max_f32 v%d, v%d, v%d", MX, MX, MX + 1)
    a("v_mov_b32 v%d, v%d", MX + 1, MX)
    a("v_permlane32_swap_b32 v%d, v%d", MX, MX + 1)
    a("v_max_f32 v%d, v%d, v%d", MX, MX, MX + 1)
    a("v_add_f32 v%d, %s, v%d", MX, f32(OPT["bias"]), MX)
    split_m(MX, MX + 2, MX + 1, MX + 3)
    patch(3, "v%d" % (MX + 2), "v%d" % (MX + 3))
    a("ds_write_b128 v%d, %s offset:1024", v_t + 3, q(3, 1))
    stamp(a, 4, "p3")
    async_()
    stamp(a, 5, "p3")
    for u in range(3):
        for f in range(2):
            a("ds_read_b128 %s, v%d offset:%d", q(u, f), v_t + u, 1024 * f)
    a("s_branch L_GO")
    a.label("L_RESTART")
    a("s_mov_b32 s%d, 0", s_i)
    kvload(0); kvload(1); kvload(2)
    for u in range(4):
        a("v_mov_b32 v%d, 0xff800000", MX + u)
        patch(u, "0", "0")
    a("s_mov_b32 s%d, 0", s_i)
    a.label("L_MAXLOOP")
    kvload(3, (0, 1))
    a("s_waitcnt vmcnt(0)")
    for u in range(4):
        a("%s %s, %s, %s, 0", MF, o(u), kv(3, 0), q(u, 0))
        a("%s %s, %s, %s, %s", MF, o(u), kv(3, 1), q(u, 1), o(u))
    for u in range(4):
        for j in range(8):
            a("v_max3_f32 v%d, v%d, v%d, v%d", MX + u, O0 + 16 * u + 2 * j, O0 + 16 * u + 2 * j + 1, MX + u)
    a("s_cmp_lt_u32 s%d, 16", s_i)
    a("s_cbranch_scc1 L_MAXLOOP")
    a("s_mov_b32 s%d, 3", s_i)
    for u in range(4): a("v_mov_b32 v%d, v%d", v_t + u, MX + u)
    for u in range(4): a("v_permlane32_swap_b32 v%d, v%d", MX + u, v_t + u)
    for u in range(4): a("v_max_f32 v%d, v%d, v%d", MX + u, MX + u, v_t + u)
    a("v_lshlrev_b32 v%d, 2, v%d", v_t + 4, v_lane)
    for u in range(4):
        qtile(s_t1, u)
        a("s_lshl_b32 s%d, s%d, 10", s_t1, s_t1)
        a("s_add_u32 s%d, s%d, %d", s_t1, s_t1, QX)
        a("v_add_u32 v%d, s%d, v%d", v_t + u, s_t1, v_t + 4)
    a("s_lshl_b32 s%d, s%d, 8", s_t0, s_w)
    for u in range(4):
        a("v_add_u32 v%d, s%d, v%d", v_t + 5, s_t0, v_t + u)
        a("ds_write_b32 v%d, v%d", v_t + 5, MX + u)
    async_()
    for u in range(4):
        a("ds_read2_b32 %s, v%d offset0:0 offset1:64", vr(S0 + 4 * u, 2), v_t + u)
        a("ds_read2_b32 %s, v%d offset0:128 offset1:192", vr(S0 + 4 * u + 2, 2), v_t + u)
    a("s_waitcnt lgkmcnt(0)")
    for u in range(4):
        a("v_max3_f32 v%d, v%d, v%d, v%d", MX + u, S0 + 4 * u, S0 + 4 * u + 1, S0 + 4 * u + 2)
        a("v_max_f32 v%d, v%d, v%d", MX + u, MX + u, S0 + 4 * u + 3)
    for u in range(4):
        split_m(MX + u, v_t, v_t + 1, v_t + 2)
        patch(u, "v%d" % v_t, "v%d" % (v_t + 2))
    a.label("L_GO")
    def S(n): return S0 + 16 * (n & 1)
    def P(n): return P0 + 8 * (n & 1)
    cur = {"g0": False}
    def uo(n):
        return ((n + 3) & 3) if (cur["g0"] and 0 <= n < 4) else (n & 3)
    def qk(n, f):
        i, u = n >> 2, uo(n)
        d = vr(S(n), 16)
        return "%s %s, %s, %s, %s" % (MF, d, kv(i & 3, f), q(u, f), d if f else "0")
    def pv(n, f, init=False):
        i, u = n >> 2, uo(n)
        return "%s %s, %s, %s, %s" % (MF, o(u), kv(i & 3, 2 + f), vr(P(n) + 4 * f, 4), "0" if (init and f == 0) else o(u))
    def cwrite(u, qd): return "ds_write_b128 v%d, %s offset:%d" % (v_t + u, vr(O0 + 16 * u + 4 * qd, 4), CA + u * 4096 + qd * 1024)
    PAT = OPT.get("pat", ((4, 0), (4, 2), (4, 2), (4, 4)))
    def slot(n, g0, last, loads):
        i, u = n >> 2, n & 3
        m = [None, None] if last else [qk(n + 1, 0), qk(n + 1, 1)]
        m += [None, None] if (g0 and n == 0) else [pv(n - 1, 0, g0 and n <= 4), pv(n - 1, 1)]
        free = [[], [], [], []]
        if u == 2 and loads["wait"] is not None: free[3].append("s_waitcnt vmcnt(%d)" % loads["wait"])
        if loads["issue"]:
            st = (i + 3) & 3
            if u == 0:
                free[0].append("s_add_u32 s%d, s%d, s%d" % (s_off, s_i, s_rb))
                free[1].append("s_and_b32 s%d, s%d, 15" % (s_off, s_off))
                free[2].append("s_lshl_b32 s%d, s%d, 12" % (s_off, s_off))
                free[3].append("s_add_u32 s%d, s%d, s%d" % (s_off, s_off, s_kvb))
            if u == 1:
                free[0] += ["buffer_load_dwordx4 %s, v%d, s[%d:%d], s%d offen offset:%d sc1" % (kv(st, f), v_l16, sWS, sWS + 3, s_off, 1024 * f) for f in range(4)]
                free[1].append("s_add_u32 s%d, s%d, 1" % (s_i, s_i))
        if loads["lastg"] and n >= 14:
            for k in range(4): free[k].append(cwrite(n - 14, k))
        ne = nc = 0
        for k in range(4):
            if m[k]: a(m[k])
            for x in free[k]: a(x)
            for j in range(PAT[k][0]):
                a("v_exp_f32 v%d, v%d", S(n) + ne, S(n) + ne); ne += 1
            for j in range(PAT[k][1]):
                assert 2 * nc + 1 < ne
                a("v_cvt_pk_bf16_f32 v%d, v%d, v%d", P(n) + nc, S(n) + 2 * nc, S(n) + 2 * nc + 1); nc += 1
        assert ne == 16 and nc == 8
    stamp(a, 8); stamp(a, 6, "p3")
    cur["g0"] = True
    a(qk(0, 0)); a(qk(0, 1))
    a("s_waitcnt lgkmcnt(0)")
    for u in range(4):
        qtile(s_t1, u)
        a("s_mul_i32 s%d, s%d, 12288", s_t1, s_t1)
        a("v_add_u32 v%d, s%d, v%d", v_t + u, s_t1, v_l16)
    def group(g, last_group):
        cur["g0"] = (g == 0)
        for n in range(16):
            i = n >> 2
            issue = (not last_group) or i == 0
            wait = {0: 8, 1: 4, 2: 0, 3: None}[i] if last_group else (None if (g == 0 and i < 2) else 8)
            slot(n, g == 0, last_group and n == 15, dict(issue=issue, wait=wait, lastg=last_group))
    group(0, False)
    stamp(a, 7, "p3")
    a("s_mov_b32 s%d, 2", s_cnt)
    a.label("L_LOOP")
    group(1, False)
    a("s_sub_u32 s%d, s%d, 1", s_cnt, s_cnt)
    a("s_cmp_lg_u32 s%d, 0", s_cnt)
    a("s_cbranch_scc1 L_LOOP")
    stamp(a, 8, "p3")
    group(3, True)
    a(pv(15, 0)); a(cwrite(2, 0)); a(cwrite(2, 1)); a(pv(15, 1)); a(cwrite(2, 2)); a(cwrite(2, 3))
    stamp(a, 9); stamp(a, 9, "p3"); stamp(a, 1, "p4")
    stamp(a, 2, "p4")
    async_()
    stamp(a, 3, "p4")
    for u in range(3):
        for qd in range(4):
            a("ds_read_b128 %s, v%d offset:%d", vr(O0 + 16 * u + 4 * qd, 4), v_t + 3, CA + u * 4096 + qd * 1024)
    a("s_lshr_b32 s%d, s%d, 1", s_t1, s_rt)
    a("s_mul_i32 s%d, s%d, 72", s_t1, s_t1)
    a("s_add_u32 s%d, s%d, s%d", s_t1, s_t1, s_c)
    a("s_add_u32 s%d, s%d, 56", s_t1, s_t1)
    a("s_lshl_b32 s%d, s%d, 2", s_t1, s_t1)
    a("s_and_b32 s%d, s%d, 1", s_t0, s_rt)
    a("s_add_u32 s%d, s%d, s%d", s_t1, s_t1, s_t0)
    a("s_lshl_b32 s%d, s%d, 10", s_t1, s_t1)
    a("s_add_u32 s%d, s%d, 0x%x", s_t1, s_t1, AF)
    a("s_waitcnt lgkmcnt(8)")
    for j in range(16): a("v_add_f32 v%d, v%d, v%d", O0 + j, O0 + j, O0 + 48 + j)
    a("s_waitcnt lgkmcnt(0)")
    for j in range(16): a("v_add_f32 v%d, v%d, v%d", O0 + 16 + j, O0 + 16 + j, O0 + 32 + j)
    for j in (7,) + tuple(x for x in range(16) if x != 7):
        a("v_add_f32 v%d, v%d, v%d", O0 + j, O0 + j, O0 + 16 + j)
        if j == 0: a("v_rcp_f32 v%d, v%d", v_t + 2, O0 + 7)
    a("v_maximum3_f32 v%d, abs(v%d), abs(v%d), abs(v%d)", v_t + 3, O0, O0 + 1, O0 + 2)
    for j in range(3, 15, 2):
        a("v_maximum3_f32 v%d, abs(v%d), abs(v%d), v%d", v_t + 3, O0 + j, O0 + j + 1, v_t + 3)
    a("v_maximum3_f32 v%d, abs(v%d), abs(v%d), v%d", v_t + 3, O0 + 15, O0 + 15, v_t + 3)
    a("v_mov_b32 v%d, 0x7e800000", v_t + 4)
    a("v_cmp_nlt_f32 s[%d:%d], v%d, v%d", s_bad, s_bad + 1, v_t + 3, v_t + 4)
    for j in range(16):
        a("v_mul_f32 v%d, v%d, v%d", O0 + j, O0 + j, v_t + 2)
    for jj in range(8):
        a("v_cvt_pk_bf16_f32 v%d, v%d, v%d", P0 + jj, O0 + 2 * jj, O0 + 2 * jj + 1)
    stamp(a, 4, "p4")
    a("s_or_b32 s%d, s%d, s%d", s_bad, s_bad, s_bad + 1)
    a("s_cmp_lg_u32 s%d, 0", s_mode)
    a("s_cselect_b32 s%d, 0, s%d", s_bad, s_bad)
    a("s_cmp_lg_u32 s%d, 0", s_bad)
    a("s_cbranch_scc1 L_NOPUB")
    a("s_cmp_eq_u32 s%d, 2", s_mode)
    a("s_cbranch_scc1 L_NOPUB")
    for f in range(2):
        a("buffer_store_dwordx4 %s, v%d, s[%d:%d], s%d offen offset:%d sc1", vr(P0 + 4 * f, 4), v_l16, sWS, sWS + 3, s_t1, 2048 * f)
    stamp(a, 5, "p4")
    a.label("L_NOPUB")
    a("s_cmp_lg_u32 s%d, 0", s_mode)
    a("s_cbranch_scc1 L_AEND")
    a("v_mov_b32 v%d, %d", v_t, CNT + 4)
    a("v_mov_b32 v%d, s%d", v_t + 1, s_bad)
    a("ds_or_b32 v%d, v%d", v_t, v_t + 1)
    async_()
    a("ds_read_b32 v%d, v%d", v_t + 1, v_t)
    a("s_waitcnt lgkmcnt(0)")
    a("v_readfirstlane_b32 s%d, v%d", s_t0, v_t + 1)
    a("s_cmp_eq_u32 s%d, 0", s_t0)
    a("s_cbranch_scc1 L_AEND")
    a("s_cmp_lg_u32 s%d, 0", s_bad)
    a("s_cselect_b32 s%d, 1, 2", s_mode)
    a("s_branch L_RESTART")
    a.label("L_AEND")
    stamp_flush(a)
    a("s_endpgm")
    for n, (off, thr) in enumerate(spins):
        a.label("L_SP%d" % n)
        a("s_mov_b32 s%d, %d", s_spin, SPIN_MAX * 8)
        a.label("L_SPL%d" % n)
        peek(off)
        a("s_sub_u32 s%d, s%d, 1", s_spin, s_spin)
        a("s_cbranch_scc1 L_SPB%d" % n)
        a("s_waitcnt lgkmcnt(0)")
        a("v_cmp_gt_u32 vcc, %d, v%d", thr, v_tg)
        a("s_cbranch_vccnz L_SPL%d" % n)
        a("s_branch L_SPB%d" % n)

    mark_b = len(a.l)
    a("s_setprio %d", OPT.get("prioB1", 1))
    sW2 = 12
    NE = OPT.get("ne", 18)
    BACC, E0 = 16, 80
    HR = E0 + 8 * NE
    def wslot(i): return E0 + 8 * (i % NE)
    NH = (256 - HR) // 8
    v_xoff, v_gd, v_hd, v_qd, v_ch_, v_cq = 24, 28, 30, 34, 35, 36
    CF, CT, CA5 = 40, 60, 64
    v_rw, v_sw, v_sr, v_a0, v_a1, v_xo, v_oo = 11, 12, 13, 14, 15, 3, 0
    v_cr, v_rw2 = 10, 8
    NON, ZR, TB = 36, 40, 44
    s_xo, s_gb, s_hb, s_ab, s_rb64, s_cb, s_k, s_kr = 60, 61, 62, 63, 4, 5, 6, 7
    s_cph, s_stg, s_w2b, s_xrow, s_qb_ = 57, 70, 71, 68, 69
    sXX = 72
    a("s_and_b32 s%d, s%d, 3", s_w, s_w)
    a("s_lshl_b32 s%d, s%d, 2", s_xrow, s_rb)
    a("s_add_u32 s%d, s%d, s%d", s_xrow, s_xrow, s_w)
    a("s_mul_i32 s%d, s%d, %d", s_xrow, s_xrow, 32 * 896)
    a("v_lshrrev_b32 v17, 3, v%d", v_lane)
    a("v_mul_u32_u24 v17, 896, v17")
    a("v_lshrrev_b32 v16, 4, v%d", v_lane)
    a("v_and_b32 v19, 7, v%d", v_lane)
    a("v_xor_b32 v18, v16, v19")
    a("v_lshl_add_u32 v%d, v18, 4, v17", v_xoff)
    a("v_xor_b32 v%d, 64, v%d", v_xoff + 1, v_xoff)
    a("v_add_u32 v%d, %d, v%d", v_xoff + 2, 2 * (7168 - 1024), v_xoff)
    a("v_add_u32 v%d, %d, v%d", v_xoff + 3, 3 * (7168 - 1024), v_xoff + 1)
    a("v_add_u32 v%d, %d, v%d", v_xoff + 1, 1 * (7168 - 1024), v_xoff + 1)
    a("v_lshl_add_u32 v17, v%d, 2, v%d", v_g, v_rr)
    a("v_mul_u32_u24 v17, 2688, v17")
    a("v_mul_u32_u24 v18, 56, v%d", v_ch)
    a("v_lshl_add_u32 v18, v%d, 4, v18", v_c)
    a("v_add_u32 v%d, v17, v18", v_gd)
    a("v_add_u32 v%d, %d, v%d", v_gd + 1, 8 * 2688 - 1024, v_gd)
    a("s_and_b32 s%d, s%d, 14", s_t0, s_c)
    a("s_mul_i32 s%d, s%d, 56", s_t0, s_t0)
    a("s_and_b32 s%d, s%d, 1", s_t1, s_c)
    a("s_add_u32 s%d, s%d, 1", s_t1, s_t1)
    a("s_mul_i32 s%d, s%d, 896", s_t1, s_t1)
    a("s_add_u32 s%d, s%d, s%d", s_t0, s_t0, s_t1)
    a("s_mul_i32 s%d, s%d, %d", s_qb_, s_w, 16 * 2688)
    a("s_add_u32 s%d, s%d, s%d", s_gb, s_qb_, s_t0)
    stamp(a, 1, "b0")
    a("s_waitcnt lgkmcnt(0)")
    stamp(a, 2, "b0")
    srd(a, sXX, 40, XBYTES)
    srd(a, sW, 42, 448 * 1344 * 2)
    vm = VM(a)
    def I(n):
        if n < 7:
            nxt7(s_cp, n == 0)
            a("s_lshl_b32 s%d, s%d, 7", s_t0, s_cp)
            a("s_add_u32 s%d, s%d, s%d", s_t0, s_t0, s_xrow)
            a("s_lshl_b32 s%d, s%d, 12", s_t1, s_w)
            a("s_add_u32 m0, s%d, %d", s_t1, slot_of(n))
            for i in range(4):
                a("buffer_load_dwordx4 v%d, s[%d:%d], s%d offen offset:%d lds", v_xoff + i, sXX, sXX + 3, s_t0, 1024 * i); vm.issue(n)
            a("s_mul_i32 s%d, s%d, %d", s_t0, s_cp, 64 * 2688)
            a("s_add_u32 s%d, s%d, s%d", s_t0, s_t0, s_gb)
            a("s_lshl_b32 s%d, s%d, 11", s_t1, s_w)
            a("s_add_u32 m0, s%d, %d", s_t1, slot_of(n) + 16384)
            for i in range(2):
                a("buffer_load_dwordx4 v%d, s[%d:%d], s%d offen offset:%d lds", v_gd + i, sW, sW + 3, s_t0, 1024 * i); vm.issue(n)
        else:
            nxt7(s_cp, n == 7)
            a("s_mul_i32 s%d, s%d, %d", s_t0, s_cp, 64 * 3584)
            a("s_add_u32 s%d, s%d, s%d", s_t0, s_t0, s_hb)
            a("s_mul_i32 s%d, s%d, 5120", s_t1, s_w)
            a("s_add_u32 m0, s%d, %d", s_t1, slot_of(n))
            for i in range(4):
                a("buffer_load_dwordx4 v%d, s[%d:%d], s%d offen offset:%d lds", v_hd + i, sW1, sW1 + 3, s_t0, 1024 * i); vm.issue(n)
            a("s_mul_i32 s%d, s%d, %d", s_t0, s_cp, 64 * 2688)
            a("s_add_u32 s%d, s%d, s%d", s_t0, s_t0, s_qb_)
            a("s_add_u32 m0, s%d, %d", s_t1, slot_of(n) + 4096)
            a("buffer_load_dwordx4 v%d, s[%d:%d], s%d offen lds", v_qd, sW, sW + 3, s_t0); vm.issue(n)
    LEAD = OPT.get("lead", 3)
    for n in range(2):
        I(n); stamp(a, 3 + n, "b0")
    a("s_and_b32 s%d, s2, 3", s_rb64)
    a("s_lshl_b32 s%d, s%d, 3", s_rb64, s_rb64)
    a("s_bfe_u32 s%d, s2, 0x30003", s_t0)
    a("s_add_u32 s%d, s%d, s%d", s_rb64, s_rb64, s_t0)
    a("s_and_b32 s%d, s2, 4", s_cb)
    a("s_lshr_b32 s%d, s2, 6", s_t0)
    a("s_add_u32 s%d, s%d, s%d", s_cb, s_cb, s_t0)
    a("v_mul_u32_u24 v17, 3584, v%d", v_rr)
    a("v_lshl_add_u32 v17, v16, 6, v17")
    a("v_lshl_add_u32 v%d, v%d, 4, v17", v_hd, v_c)
    for i in range(1, 4): a("v_add_u32 v%d, %d, v%d", v_hd + i, i * (4 * 3584 - 1024), v_hd)
    a("s_mul_i32 s%d, s%d, %d", s_hb, s_w, 16 * 3584)
    a("s_lshl_b32 s%d, s%d, 8", s_t0, s_c)
    a("s_add_u32 s%d, s%d, s%d", s_hb, s_hb, s_t0)
    a("s_cmp_ge_u32 s%d, 14", s_c)
    a("s_cselect_b32 s%d, 0x4000000, s%d", s_hb, s_hb)
    a("v_lshrrev_b32 v17, 2, v%d", v_lane)
    a("v_mul_u32_u24 v17, 2688, v17")
    a("v_lshl_add_u32 v%d, v%d, 4, v17", v_qd, v_c)
    a("s_mul_i32 s%d, s%d, 56", s_t0, s_c)
    a("s_add_u32 s%d, s%d, s%d", s_qb_, s_qb_, s_t0)
    a("v_lshl_add_u32 v16, v%d, 2, v%d", v_g, v_rr)
    a("v_mul_u32_u24 v17, 896, v16")
    a("v_lshlrev_b32 v18, 4, v%d", v_c)
    a("v_lshl_add_u32 v19, v%d, 6, v18", v_ch)
    a("s_lshr_b32 s%d, s%d, 1", s_t0, s_w)
    a("s_lshl_b32 s%d, s%d, 6", s_t0, s_t0)
    a("v_xor_b32 v19, s%d, v19", s_t0)
    a("v_add_u32 v%d, v17, v19", v_rw)
    a("s_lshl_b32 s%d, s%d, 13", s_stg, s_w)
    a("s_add_u32 s%d, s%d, %d", s_stg, s_stg, HO)
    a("s_mov_b32 s%d, s%d", s_t0, s_stg)
    a("v_add_u32 v%d, s%d, v%d", v_sw, s_t0, v_l16)
    a("v_lshl_add_u32 v%d, v%d, 9, v%d", v_sr, v_g, v_trp)
    a("v_add_u32 v%d, s%d, v%d", v_cr, s_t0, v_sr)
    a("v_add_u32 v%d, s%d, v%d", v_sr, s_stg, v_sr)
    a("v_mul_u32_u24 v17, 896, v%d", v_g)
    a("v_sub_u32 v%d, v%d, v17", v_rw2, v_rw)
    a("s_and_b32 s%d, s%d, 3", s_k, s_cb)
    a("s_mul_i32 s%d, s%d, 7", s_k, s_k)
    a("s_and_b32 s%d, s%d, 7", s_t0, s_rb64)
    a("s_mul_i32 s%d, s%d, 7", s_t0, s_t0)
    a("s_lshr_b32 s%d, s%d, 1", s_t0, s_t0)
    a("s_add_u32 s%d, s%d, s%d", s_k, s_k, s_t0)
    a("s_sub_u32 s%d, s%d, 28", s_t0, s_k)
    a("s_cmp_ge_u32 s%d, 28", s_k)
    a("s_cselect_b32 s%d, s%d, s%d", s_k, s_t0, s_k)
    a("s_mov_b32 s%d, s%d", s_kr, s_k)
    a("s_mul_i32 s%d, s%d, %d", s_w2b, s_w, 28 * 16 * 896)
    a("s_lshl_b32 s%d, s%d, 7", s_t0, s_cb)
    a("s_add_u32 s%d, s%d, s%d", s_w2b, s_w2b, s_t0)
    a("s_cmp_ge_u32 s%d, 7", s_cb)
    a("s_cselect_b32 s%d, 0x4000000, s%d", s_w2b, s_w2b)
    srd(a, sW1, 48, 448 * 1792 * 2)
    srd(a, sW2, 50, 1792 * 448 * 2)
    srd(a, sWS, 46, WS_END)
    srd(a, sDBG, 54, 256)
    a("s_or_b32 s%d, s2, s%d", s_t0, s_w)
    a("s_cmp_lg_u32 s%d, 0", s_t0)
    a("s_cbranch_scc1 L_BNW")
    a("s_memrealtime s[%d:%d]", s_non, s_non + 1)
    a("v_mov_b32 v18, 0")
    a("s_waitcnt lgkmcnt(0)")
    a("s_or_b32 s%d, s%d, 1", s_non, s_non)
    a("v_mov_b32 v16, s%d", s_non)
    a("v_mov_b32 v17, s%d", s_non + 1)
    a("s_mov_b64 exec, 1")
    a("buffer_store_dwordx2 v[16:17], v18, s[%d:%d], 0 offen sc1", sDBG, sDBG + 3)
    a("s_mov_b64 exec, -1")
    a.label("L_BNW")
    def prefetch():
        if OPT.get("wpf", True):
            a("s_lshl_b32 s%d, s2, 2", s_t0)
            a("s_add_u32 s%d, s%d, s%d", s_t0, s_t0, s_w)
            a("s_lshl_b32 s%d, s%d, 10", s_t0, s_t0)
            a("s_sub_u32 s%d, 0x%x, s%d", s_t1, 2047 * 1024, s_t0)
            a("buffer_load_dwordx4 v[232:235], v%d, s[%d:%d], s%d offen", v_l16, sW1, sW1 + 3, s_t0); vm.issue("pf")
            a("buffer_load_dwordx4 v[236:239], v%d, s[%d:%d], s%d offen", v_l16, sW1, sW1 + 3, s_t1); vm.issue("pf")
    def prefetch2():
        if OPT.get("wpf", True):
            a("s_lshl_b32 s%d, s2, 2", s_t0)
            a("s_add_u32 s%d, s%d, s%d", s_t0, s_t0, s_w)
            a("s_lshl_b32 s%d, s%d, 10", s_t0, s_t0)
            a("s_add_u32 s%d, s%d, 0x100000", s_t1, s_t0)
            a("buffer_load_dwordx4 v[224:227], v%d, s[%d:%d], s%d offen", v_l16, sW2, sW2 + 3, s_t0); vm.issue("pf")
            a("buffer_load_dwordx4 v[228:231], v%d, s[%d:%d], s%d offen", v_l16, sW2, sW2 + 3, s_t1); vm.issue("pf")
            srd(a, 72, 44, 448 * 448 * 2)
            a("s_sub_u32 s%d, 0x%x, s%d", s_t1, 1023 * 1024, s_t0)
            a("buffer_load_dwordx4 v[240:243], v%d, s[72:75], s%d offen", v_l16, s_t1); vm.issue("pf")
    nraw = [0]
    def waddr():
        a("s_mul_i32 s%d, s%d, %d", s_t0, s_kr, 16 * 896)
        a("s_add_u32 s%d, s%d, s%d", s_t0, s_t0, s_w2b)
        a("s_add_u32 s%d, s%d, %d", s_t1, s_t0, 8 * 896)
        a("s_add_u32 s%d, s%d, 1", s_kr, s_kr)
        a("s_cmp_eq_u32 s%d, 28", s_kr)
        a("s_cselect_b32 s%d, 0, s%d", s_kr, s_kr)
    def R(cnt):
        for _ in range(cnt):
            e = nraw[0]
            if e >= NE: return
            nraw[0] += 1
            waddr()
            a("buffer_load_dwordx4 %s, v%d, s[%d:%d], s%d offen", vr(E0 + 8 * e, 4), v_rw, sW2, sW2 + 3, s_t0); vm.issue(("R", e))
            a("buffer_load_dwordx4 %s, v%d, s[%d:%d], s%d offen", vr(E0 + 8 * e + 4, 4), v_rw, sW2, sW2 + 3, s_t1); vm.issue(("R", e))
    bar = lambda: a("s_barrier")
    rp = OPT.get("rplan", (0, 6))
    bprio = [OPT.get("prioB1", 1)]
    def hi():
        if OPT.get("synchi", 1): a("s_setprio 3")
    def lo():
        if OPT.get("synchi", 1): a("s_setprio %d", bprio[0])
    npoll = [0]
    def poll(v_addr, s_base, slp, dst):
        n = npoll[0]; npoll[0] += 1
        hi()
        a("s_mov_b32 s%d, %d", s_spin, SPIN_MAX)
        a.label("L_BP%d" % n)
        a("buffer_load_dwordx2 %s, v%d, s[%d:%d], s%d offen sc1", vr(dst, 2), v_addr, sWS, sWS + 3, s_base)
        a("s_sub_u32 s%d, s%d, 1", s_spin, s_spin)
        a("s_cbranch_scc1 L_BPX%d" % n)
        a("s_waitcnt vmcnt(0)")
        a("v_cmp_ne_u64 vcc, s[%d:%d], %s", s_non, s_non + 1, vr(dst, 2))
        a("s_cbranch_vccz L_BPX%d" % n)
        if slp: a("s_sleep %d", slp)
        a("s_branch L_BP%d" % n)
        a.label("L_BPX%d" % n)
        lo()
        vm.done = len(vm.ops)
    nls = [0]
    def ldswait(addr_off, thr, slp=0):
        n = nls[0]; nls[0] += 1
        hi()
        a("s_mov_b32 s%d, %d", s_spin, SPIN_MAX * 8)
        a.label("L_BL%d" % n)
        a("ds_read_b32 v%d, v%d offset:%d", addr_off[2], addr_off[0], addr_off[1])
        a("s_sub_u32 s%d, s%d, 1", s_spin, s_spin)
        a("s_cbranch_scc1 L_BLX%d" % n)
        a("s_waitcnt lgkmcnt(0)")
        a("v_readfirstlane_b32 s%d, v%d", s_t0, addr_off[2])
        a("s_cmp_ge_u32 s%d, %d", s_t0, thr)
        a("s_cbranch_scc1 L_BLX%d" % n)
        if slp: a("s_sleep %d", slp)
        a("s_branch L_BL%d" % n)
        a.label("L_BLX%d" % n)
        lo()
    nfs = [0]
    def flagst(s_addr):
        n = nfs[0]; nfs[0] += 1
        hi()
        a("v_mov_b32 v22, %d", CNT + 96 + 4 * n)
        a("v_mov_b32 v23, 1")
        a("s_mov_b64 exec, 1")
        a("ds_add_rtn_u32 v23, v22, v23")
        a("s_mov_b64 exec, -1")
        a("s_waitcnt lgkmcnt(0)")
        a("v_readfirstlane_b32 s%d, v23", s_t0)
        a("s_cmp_lg_u32 s%d, 3", s_t0)
        a("s_cbranch_scc1 L_FS%d" % n)
        a("s_mov_b64 exec, 0xff")
        a("buffer_store_dwordx4 %s, v%d, s[%d:%d], s%d offen sc1", vr(NON, 4), v_l16, sWS, sWS + 3, s_addr)
        a("s_mov_b64 exec, -1")
        a.label("L_FS%d" % n)
        lo()
    for i in range(4): a("v_mov_b32 v%d, 0", ZR + i)
    s_rt, s_p, s_q, s_r = 64, 65, 66, 67
    a("s_lshl_b32 s%d, s%d, 2", s_t0, s_w)
    a("s_add_u32 s%d, s%d, %d", s_t0, s_t0, CNT + 16)
    a("v_mov_b32 v19, s%d", s_t0)
    a("v_lshlrev_b32 v35, 2, v%d", v_c)
    a("v_add_u32 v35, %d, v35", CNT)
    def landed(n):
        vm.wait(n)
        hi()
        a("v_mov_b32 v21, %d", n + 1)
        a("ds_write_b32 v19, v21 offset:48")
        lo()
    npg = [0]
    def prg(thr, off=80):
        n = npg[0]; npg[0] += 1
        hi()
        a("s_mov_b32 s%d, %d", s_spin, SPIN_MAX * 8)
        a.label("L_PG%d" % n)
        a("ds_read_b32 v21, v35 offset:%d", off)
        a("s_sub_u32 s%d, s%d, 1", s_spin, s_spin)
        a("s_cbranch_scc1 L_PGX%d" % n)
        a("s_waitcnt lgkmcnt(0)")
        a("v_cmp_gt_u32 vcc, %d, v21", thr)
        a("s_cbranch_vccz L_PGX%d" % n)
        a("s_sleep 2")
        a("s_branch L_PG%d" % n)
        a.label("L_PGX%d" % n)
        lo()
    nxt = 2
    plan = OPT["iplan"]
    for n in range(7):
        if n == 0: stamp(a, 5, "b0")
        vm.wait(n)
        if n < 2: stamp(a, 6 + 2 * n, "b0")
        bar()
        if n < 2: stamp(a, 7 + 2 * n, "b0")
        for _ in range(plan[n]):
            assert nxt - 5 <= n
            I(nxt); nxt += 1
        if n == OPT["pfb"]: prefetch2()
        if n == 3:
            a("buffer_load_dwordx2 %s, v%d, s[%d:%d], 0 offen sc1", vr(NON, 2), ZR, sDBG, sDBG + 3); vm.issue("non")
    assert nxt >= 10
    def trread(dst, base, off):
        for ct in range(2):
            for h in range(2):
                a("ds_read_b64_tr_b16 %s, v%d offset:%d", vr(dst + 4 * ct + 2 * h, 2), base, off + h * 1024 + ct * 256)
    ncv = [0]
    def convert(cnt):
        for _ in range(cnt):
            e = ncv[0]
            if e >= nraw[0]: return
            ncv[0] += 1
            vm.wait(("R", e))
            for h in range(2):
                a("ds_write_b128 v%d, %s offset:%d", v_sw, vr(E0 + 8 * e + 4 * h, 4), h * 1024)
            trread(E0 + 8 * e, v_cr, 0)
            a("s_waitcnt lgkmcnt(6)")
    a("s_lshl_b32 s%d, s%d, 2", s_rt, s_rb)
    a("s_add_u32 s%d, s%d, s%d", s_rt, s_rt, s_w)
    a("s_and_b32 s%d, s%d, 14", s_p, s_c)
    a("s_lshl_b32 s%d, s%d, 6", s_p, s_p)
    a("s_add_u32 s%d, s%d, s%d", s_p, s_p, s_rt)
    a("s_lshl_b32 s%d, s%d, 1", s_p, s_p)
    a("s_and_b32 s%d, s%d, 1", s_t0, s_c)
    a("s_add_u32 s%d, s%d, s%d", s_p, s_p, s_t0)
    a("s_lshl_b32 s%d, s%d, 11", s_p, s_p)
    a("s_add_u32 s%d, s%d, 0x%x", s_p, s_p, KV)
    a("s_add_u32 s%d, s%d, 262144", s_q, s_p)
    a("s_lshr_b32 s%d, s%d, 1", s_r, s_rt)
    a("s_mul_i32 s%d, s%d, 72", s_r, s_r)
    a("s_add_u32 s%d, s%d, s%d", s_r, s_r, s_c)
    a("s_add_u32 s%d, s%d, 56", s_r, s_r)
    a("s_lshl_b32 s%d, s%d, 2", s_r, s_r)
    a("s_and_b32 s%d, s%d, 1", s_t0, s_rt)
    a("s_add_u32 s%d, s%d, s%d", s_r, s_r, s_t0)
    a("s_lshl_b32 s%d, s%d, 10", s_r, s_r)
    a("s_add_u32 s%d, s%d, 0x%x", s_r, s_r, AF)
    a("s_lshl_b32 s%d, s%d, 12", s_t0, s_w)
    a("v_add_u32 v16, s%d, v%d", s_t0, v_l16)
    vm.wait(9)
    a("s_mov_b32 s%d, %d", s_spin, SPIN_MAX)
    a.label("L_BN")
    a("v_readfirstlane_b32 s%d, v%d", s_non, NON)
    a("v_readfirstlane_b32 s%d, v%d", s_non + 1, NON + 1)
    a("s_cmp_lg_u32 s%d, 0", s_non)
    a("s_cbranch_scc1 L_BNX")
    a("buffer_load_dwordx2 %s, v%d, s[%d:%d], 0 offen sc1", vr(NON, 2), ZR, sDBG, sDBG + 3)
    a("s_sub_u32 s%d, s%d, 1", s_spin, s_spin)
    a("s_cbranch_scc1 L_BNX")
    a("s_waitcnt vmcnt(0)")
    a("s_branch L_BN")
    a.label("L_BNX")
    a("v_mov_b32 v%d, v%d", NON + 2, NON)
    a("v_mov_b32 v%d, v%d", NON + 3, NON + 1)
    bar()
    stamp(a, 2, "b1"); stamp(a, 1, "b2")
    for i in range(4): a("ds_read_b128 %s, v16 offset:%d", vr(TB + 4 * i, 4), 1024 * i)
    for i in range(4):
        a("s_waitcnt lgkmcnt(%d)", 3 - i)
        a("buffer_store_dwordx4 %s, v%d, s[%d:%d], s%d offen offset:%d sc1", vr(TB + 4 * i, 4), v_l16, sWS, sWS + 3, s_q if i >> 1 else s_p, 1024 * (i & 1)); vm.issue("kv")
    rp = OPT.get("rplan", (0, 2, 2, 2))
    while nxt < 12: I(nxt); nxt += 1
    landed(11)
    a("s_lshl_b32 s%d, s%d, 4", s_p, s_c)
    a("s_add_u32 s%d, s%d, s%d", s_p, s_p, s_rb)
    a("s_lshl_b32 s%d, s%d, 7", s_p, s_p)
    a("s_lshl_b32 s%d, s%d, 4", s_q, s_rb)
    a("s_add_u32 s%d, s%d, s%d", s_q, s_q, s_c)
    a("s_lshl_b32 s%d, s%d, 7", s_q, s_q)
    a("s_add_u32 s%d, s%d, 0x%x", s_xo, s_q, FO)
    a("s_add_u32 s%d, s%d, 0x%x", s_q, s_q, FH)
    stamp(a, 2, "b2")
    vm.wait("kv")
    stamp(a, 3, "b2")
    flagst(s_p)
    stamp(a, 5, "b1"); stamp(a, 4, "b2")
    prg(12, 64)
    I(12)
    prg(8); I(13)
    stamp(a, 5, "b2")
    for f in range(2):
        a("buffer_store_dwordx4 %s, v%d, s[%d:%d], s%d offen offset:%d sc1", vr(ZR, 4), v_l16, sWS, sWS + 3, s_r, 2048 * f); vm.issue("oz")
    a("v_lshlrev_b32 v16, 7, v%d", v_c)
    a("v_bfe_u32 v17, v%d, 2, 1", v_lane)
    a("v_lshl_add_u32 v16, v17, 11, v16")
    a("s_and_b32 s%d, s%d, 14", s_p, s_c)
    a("s_lshl_b32 s%d, s%d, 2", s_p, s_p)
    a("s_add_u32 s%d, s%d, s%d", s_p, s_p, s_w)
    a("s_lshl_b32 s%d, s%d, 9", s_p, s_p)
    a("s_lshl_b32 s%d, s%d, 2", s_r, s_c)
    a("s_add_u32 s%d, s%d, s%d", s_r, s_r, s_w)
    a("s_lshl_b32 s%d, s%d, 16", s_r, s_r)
    a("s_add_u32 s%d, s%d, 0x%x", s_r, s_r, KV)
    a("s_lshl_b32 s%d, s%d, 13", s_t0, s_w)
    a("v_add_u32 v17, s%d, v%d", s_t0, v_l16)
    kvs2_base(s_t0)
    a("v_add_u32 v18, s%d, v%d", s_t0, v_l16)
    a("v_add_u32 v20, %d, v17", HO)
    stamp(a, 6, "b2")
    landed(13)
    stamp(a, 7, "b2")
    KB = [TB + 4 * i for i in range(9)] + [24, 28, ZR]
    def kbloads(count):
        for st in range(3):
            a("s_add_u32 s%d, s%d, %d", s_t0, s_rb, st)
            a("s_and_b32 s%d, s%d, 15", s_t0, s_t0)
            a("s_lshl_b32 s%d, s%d, 12", s_t0, s_t0)
            a("s_add_u32 s%d, s%d, s%d", s_t0, s_t0, s_r)
            for f in range(4):
                a("buffer_load_dwordx4 %s, v%d, s[%d:%d], s%d offen offset:%d sc1", vr(KB[4 * st + f], 4), v_l16, sWS, sWS + 3, s_t0, 1024 * f)
                if count: vm.issue(("kb", 4 * st + f))
    poll(16, s_p, OPT.get("sleepk", 2), 22)
    stamp(a, 8, "b2")
    kbloads(True)
    stamp(a, 9, "b2")
    stamp(a, 1); stamp(a, 1, "b1")
    if OPT["pfb"] == 99: prefetch2()
    R(rp[3])
    flagst(s_xo)
    prg(11)
    for i in range(12):
        vm.wait(("kb", i))
        if i < 8: a("ds_write_b128 v17, %s offset:%d", vr(KB[i], 4), KVS + 1024 * i)
        else: a("ds_write_b128 v18, %s offset:%d", vr(KB[i], 4), 1024 * (i - 8))
        if OPT.get("rmix", 0) and i % 2 == 1: R(1)
    a("v_mov_b32 v21, 1")
    a("ds_write_b32 v19, v21")
    stamp(a, 3, "b1")
    R(NE)
    a("s_lshr_b32 s%d, s%d, 1", s_t0, s_rt)
    a("s_mul_i32 s%d, s%d, 18", s_p, s_t0)
    a("s_add_u32 s%d, s%d, s%d", s_p, s_p, s_c)
    a("s_lshl_b32 s%d, s%d, 4", s_p, s_p)
    a("s_and_b32 s%d, s%d, 1", s_t1, s_rt)
    a("s_add_u32 s%d, s%d, s%d", s_p, s_p, s_t1)
    a("s_lshl_b32 s%d, s%d, 10", s_p, s_p)
    a("s_add_u32 s%d, s%d, 0x%x", s_p, s_p, AF)
    a("s_cmp_ge_u32 s%d, 14", s_c)
    a("s_cselect_b32 s%d, 0x4000000, s%d", s_p, s_p)
    ldswait((19, 16, 21), 1, 1)
    if OPT.get("prioBh") is not None: a("s_setprio %d", OPT["prioBh"]); bprio[0] = OPT["prioBh"]
    stamp(a, 4, "b1")
    for i in range(8): a("ds_read_b128 %s, v20 offset:%d", vr(TB + 4 * i, 4), 1024 * i)
    for i in range(8):
        a("s_waitcnt lgkmcnt(%d)", 7 - i)
        a("buffer_store_dwordx4 %s, v%d, s[%d:%d], s%d offen offset:%d sc1", vr(TB + 4 * i, 4), v_l16, sWS, sWS + 3, s_p, 2048 * (i & 1)); vm.issue("hs")
        if i & 1 and i < 7: a("s_add_u32 s%d, s%d, 4096", s_p, s_p)
    convert(OPT.get("cvh", 5))
    vm.wait("hs"); flagst(s_q)
    stamp(a, 6, "b1")
    a("s_setprio %d", OPT.get("prioB2", 0)); bprio[0] = OPT.get("prioB2", 0)
    a("s_cmp_ge_u32 s%d, 7", s_cb)
    a("s_cbranch_scc1 L_END")
    a("s_and_b32 s%d, s%d, 1", s_t0, s_w)
    a("s_lshl_b32 s%d, s%d, 10", s_t0, s_t0)
    a("v_add_u32 v%d, s%d, v%d", v_a0, s_t0, v_l16)
    a("v_xor_b32 v%d, 1024, v%d", v_a1, v_a0)
    a("v_and_b32 v%d, 31, v%d", v_xo, v_lane)
    a("v_mul_u32_u24 v%d, 896, v%d", v_xo, v_xo)
    a("v_lshl_add_u32 v%d, v%d, 4, v%d", v_oo, v_g, v_xo)
    a("v_lshl_add_u32 v%d, v%d, 3, v%d", v_xo, v_g, v_xo)
    a("s_lshl_b32 s%d, s%d, 1", s_xo, s_rb64)
    a("s_and_b32 s%d, s%d, 1", s_t0, s_w)
    a("s_add_u32 s%d, s%d, s%d", s_xo, s_xo, s_t0)
    a("s_mul_i32 s%d, s%d, %d", s_xo, s_xo, 32 * 896)
    a("s_lshl_b32 s%d, s%d, 1", s_t0, s_cb)
    a("s_lshr_b32 s%d, s%d, 1", s_t1, s_w)
    a("s_add_u32 s%d, s%d, s%d", s_t0, s_t0, s_t1)
    a("s_lshl_b32 s%d, s%d, 6", s_t0, s_t0)
    a("s_add_u32 s%d, s%d, s%d", s_xo, s_xo, s_t0)
    srd(a, sW, 40, XBYTES)
    a("s_mul_i32 s%d, s%d, 28", s_t0, s_w)
    a("s_mul_i32 s%d, s%d, 144", s_ab, s_rb64)
    a("s_add_u32 s%d, s%d, s%d", s_ab, s_ab, s_t0)
    a("s_lshl_b32 s%d, s%d, 11", s_ab, s_ab)
    a("s_add_u32 s%d, s%d, 0x%x", s_ab, s_ab, AF)
    a("s_lshl_b32 s%d, s%d, 11", s_k, s_k)
    for q4 in range(4):
        a("buffer_load_dwordx2 %s, v%d, s[%d:%d], s%d offen offset:%d", vr(HR + 2 * q4, 2), v_xo, sW, sW + 3, s_xo, 16 * q4); vm.issue("x")
    convert(NE)
    stamp(a, 2)
    vm.wait("x")
    for jj in range(8):
        a("v_lshlrev_b32 v%d, 16, v%d", BACC + 2 * jj, HR + jj)
        a("v_and_b32 v%d, s%d, v%d", BACC + 2 * jj + 1, s_mask, HR + jj)
    a("s_waitcnt lgkmcnt(0)")
    NL = 28 - NE
    def L(i):
        if OPT.get("noBload"): vm.issue(("L", i)); vm.done = len(vm.ops); return
        if i < NL:
            waddr(); sr_ = sW2
        else:
            k_ = i - NL; sr_ = sW1
            a("s_mul_i32 s%d, s%d, %d", s_t0, s_w, 112 * 896)
            a("s_lshl_b32 s%d, s%d, 7", s_t1, s_cb)
            a("s_add_u32 s%d, s%d, s%d", s_t0, s_t0, s_t1)
            a("s_add_u32 s%d, s%d, %d", s_t0, s_t0, (28 * (k_ >> 1) + 14 * (k_ & 1)) * 896)
            a("s_add_u32 s%d, s%d, %d", s_t1, s_t0, 8 * 896)
        for h in range(2):
            a("s_add_u32 m0, s%d, %d", s_stg, sloff(i) + h * 1024)
            a("buffer_load_dwordx4 v%d, s[%d:%d], s%d offen lds", v_rw2 if (h and i >= NL) else v_rw, sr_, sr_ + 3, s_t1 if h else s_t0); vm.issue(("L", i))
    a("v_lshlrev_b32 v9, 7, v%d", v_c)
    a("s_lshr_b32 s%d, s%d, 1", s_gb, s_rb64)
    a("s_lshl_b32 s%d, s%d, 11", s_gb, s_gb)
    a("s_mul_i32 s%d, s%d, 7", s_t0, s_w)
    a("s_lshr_b32 s%d, s%d, 1", s_t0, s_t0)
    a("s_lshl_b32 s%d, s%d, 7", s_t0, s_t0)
    a("s_add_u32 s%d, s%d, s%d", s_cph, s_gb, s_t0)
    a("s_add_u32 s%d, s%d, 0x%x", s_cph, s_cph, FH)
    a("s_lshl_b32 s%d, s%d, 9", s_t1, s_w)
    a("s_sub_u32 s%d, s%d, s%d", s_t1, s_t1, s_t0)
    a("s_add_u32 s%d, s%d, 0x%x", s_t1, s_t1, FO - FH)
    a("v_bfe_u32 v%d, v%d, 2, 1", HR + 10, v_lane)
    a("v_mul_lo_u32 v%d, v%d, s%d", HR + 10, HR + 10, s_t1)
    a("v_add_u32 v9, v9, v%d", HR + 10)
    srd(a, sW1, 44, 448 * 448 * 2)
    PL = OPT.get("prel", 8)
    a("v_mov_b32 v12, %d", CNT)
    ldswait((12, 0, 10), 4, 1)
    for i in range(PL): L(i)
    poll(9, s_cph, OPT["sleep"], HR + 8)
    stamp(a, 3)
    a("s_setprio %d", OPT.get("prioB3", 0)); bprio[0] = OPT.get("prioB3", 0)
    def hload(k):
        if OPT.get("noBload"): vm.issue(("h", k)); vm.done = len(vm.ops); return
        a("s_add_u32 s%d, s%d, s%d", s_hb, s_ab, s_k)
        for f, v in ((0, v_a0), (1, v_a1)):
            a("buffer_load_dwordx4 %s, v%d, s[%d:%d], s%d offen sc1", vr(HR + 8 * (k % NH) + 4 * f, 4), v, sWS, sWS + 3, s_hb); vm.issue(("h", k))
        a("s_add_u32 s%d, s%d, 2048", s_k, s_k)
        a("s_cmp_eq_u32 s%d, %d", s_k, 28 * 2048)
        a("s_cselect_b32 s%d, 0, s%d", s_k, s_k)
    def mf(Areg, Breg, first):
        for ct in range(2):
            for rt in range(2):
                l = 2 * ct + rt
                d = vr(BACC + 16 * l, 16)
                a("%s %s, %s, %s, %s", MF, d, vr(Breg + 4 * ct, 4), vr(Areg + 4 * rt, 4), "0" if (first and l) else d)
    for k in range(NH - 1): hload(k)
    nl = PL
    def mf1(Areg, Breg, first, l):
        if OPT.get("noBmfma"): return
        ct, rt = l >> 1, l & 1
        d = vr(BACC + 16 * l, 16)
        tog = OPT.get("tog", 0)
        if tog and l != 3: a("s_setprio 0")
        a("%s %s, %s, %s, %s", MF, d, vr(Breg + 4 * ct, 4), vr(Areg + 4 * rt, 4), "0" if (first and l) else d)
        if tog and l != 2: a("s_setprio 3")
    for k in range(28):
        vm.wait(("h", k))
        wreg = wslot(k)
        hreg = HR + 8 * (k % NH)
        j = k - (NSL - PL) if PL < NSL else k - 1
        mf1(hreg, wreg, k == 0, 0)
        if k + NH - 1 < 28: hload(k + NH - 1)
        mf1(hreg, wreg, k == 0, 1)
        if 0 <= j < NL + 8:
            vm.wait(("L", j))
            trread(wslot(NE + j), v_sr, sloff(j))
        mf1(hreg, wreg, k == 0, 2)
        mf1(hreg, wreg, k == 0, 3)
        if 0 <= j < NL + 8: a("s_waitcnt lgkmcnt(0)")
        if nl < NL + 8 and nl - NSL <= j:
            L(nl); nl += 1
        if k == 14: stamp(a, 4)
    stamp(a, 5)
    a("v_mov_b32 v13, 1")
    a("s_mov_b64 exec, 1")
    a("ds_add_u32 v12, v13 offset:8")
    a("s_mov_b64 exec, -1")
    assert nl == NL + 8
    used = {wslot(28 + i) for i in range(8)}
    OFB = [r_ for r_ in range(E0, 256, 8) if r_ not in used and r_ != HR + 8][:8]
    for i in range(8):
        for ct in range(2):
            rg = wslot(28 + i) + 4 * ct + 3
            a("v_and_b32 v%d, 0xffff, v%d", rg, rg)
    a("s_lshl_b32 s%d, s%d, 10", s_t0, s_w)
    a("s_add_u32 s%d, s%d, s%d", s_gb, s_gb, s_t0)
    a("s_add_u32 s%d, s%d, 0x%x", s_gb, s_gb, FO)
    a("s_mul_i32 s%d, s%d, 20", s_t0, s_w)
    a("s_sub_u32 s%d, 112, s%d", s_t0, s_t0)
    a("s_lshl_b32 s%d, s%d, 11", s_t0, s_t0)
    a("s_add_u32 s%d, s%d, s%d", s_hb, s_ab, s_t0)
    srd(a, sW, 52, XBYTES)
    RA = 4
    for l in range(4):
        a("s_xor_b32 s%d, s%d, %d", s_t0, s_w, l)
        a("s_cmp_ge_u32 s%d, 2", s_t0)
        a("s_cselect_b32 s%d, %d, %d", s_t1, 96 * K, 48 * K) if False else None
        a("s_mul_i32 s%d, s%d, 12288", s_t0, s_t0)
        a("s_cselect_b32 s%d, %d, 0", s_t1, 48 * K)
        a("s_add_u32 s%d, s%d, s%d", s_t0, s_t0, s_t1)
        a("s_add_u32 s%d, s%d, %d", s_t0, s_t0, 48 * K)
        a("v_add_u32 v%d, s%d, v%d", RA + l, s_t0, v_l16)
    ldswait((12, 0, 13), OPT.get("ogate", 8), 2)
    a("v_and_b32 v9, 7, v%d", v_lane)
    a("v_lshrrev_b32 v10, 1, v9")
    a("v_and_b32 v9, 1, v9")
    a("v_lshlrev_b32 v9, 10, v9")
    a("v_lshl_add_u32 v9, v10, 12, v9")
    a("s_mov_b32 s%d, 0x10000", s_t1)
    a("s_mov_b32 s%d, %d", s_spin, SPIN_MAX)
    def sentinel(tag):
        a.label("L_SN" + tag)
        a("buffer_load_dword v10, v9, s[%d:%d], s%d offen offset:%d sc1", sWS, sWS + 3, s_hb, 2048 + 1020)
        a("s_sub_u32 s%d, s%d, 1", s_spin, s_spin)
        a("s_cbranch_scc1 L_SNT" + tag)
        a("s_waitcnt vmcnt(0)")
        a("v_cmp_gt_u32 vcc, s%d, v10", s_t1)
        a("s_cbranch_vccz L_SNX" + tag)
        if OPT.get("sleeps", 1): a("s_sleep %d", OPT.get("sleeps", 1))
        a("s_branch L_SN" + tag)
        a.label("L_SNT" + tag)
        a("s_mov_b32 s%d, 0", s_spin)
        a.label("L_SNX" + tag)
    if not OPT.get("spec", 0): sentinel("a")
    stamp(a, 6)
    def oloads(h0):
        for hd in range(h0, 4):
            for f2 in range(2):
                a("s_add_u32 s%d, s%d, %d", s_t0, s_hb, (2 * hd + f2) * 2048)
                for f, v in ((0, v_a0), (1, v_a1)):
                    a("buffer_load_dwordx4 %s, v%d, s[%d:%d], s%d offen sc1", vr(OFB[2 * hd + f2] + 4 * f, 4), v, sWS, sWS + 3, s_t0)
    a("s_mov_b32 s%d, %d", s_spin, SPIN_MAX)
    a("s_mov_b32 s%d, 0x10000", s_t1)
    oloads(0)
    for hd in range(4):
        a.label("L_OW%d" % hd)
        a("s_waitcnt vmcnt(%d)", 4 * (3 - hd))
        a("v_min3_u32 v10, v%d, v%d, v%d", OFB[2 * hd] + 3, OFB[2 * hd] + 7, OFB[2 * hd + 1] + 3)
        a("v_min_u32 v10, v10, v%d", OFB[2 * hd + 1] + 7)
        a("v_cmp_gt_u32 vcc, s%d, v10", s_t1)
        a("s_cbranch_vccnz L_OR%d" % hd)
        a.label("L_OK%d" % hd)
        for f2 in range(2): mf(OFB[2 * hd + f2], wslot(28 + 2 * hd + f2), False)
    stamp(a, 7)
    ldswait((12, 8, 13), 4)
    for l in range(1, 4):
        for qd in range(4):
            a("ds_write_b128 v%d, %s offset:%d", RA + l, vr(BACC + 16 * l + 4 * qd, 4), (l - 1) * 4096 + qd * 1024)
    a("s_waitcnt lgkmcnt(0)")
    a("s_barrier")
    for l in range(1, 4):
        for qd in range(4):
            a("ds_read_b128 %s, v%d offset:%d", vr(BACC + 16 * l + 4 * qd, 4), RA, (l - 1) * 4096 + qd * 1024)
    a("s_waitcnt lgkmcnt(8)")
    for j in range(16): a("v_add_f32 v%d, v%d, v%d", BACC + j, BACC + j, BACC + 16 + j)
    a("s_waitcnt lgkmcnt(0)")
    for j in range(16): a("v_add_f32 v%d, v%d, v%d", BACC + 32 + j, BACC + 32 + j, BACC + 48 + j)
    for j in range(16): a("v_add_f32 v%d, v%d, v%d", BACC + j, BACC + j, BACC + 32 + j)
    for jj in range(8):
        a("v_cvt_pk_bf16_f32 v%d, v%d, v%d", E0 + jj, BACC + 2 * jj, BACC + 2 * jj + 1)
    for p in range(2):
        a("v_permlane32_swap_b32 v%d, v%d", E0 + 4 * p, E0 + 4 * p + 2)
        a("v_permlane32_swap_b32 v%d, v%d", E0 + 4 * p + 1, E0 + 4 * p + 3)
    for p in range(2):
        a("buffer_store_dwordx4 %s, v%d, s[%d:%d], s%d offen offset:%d", vr(E0 + 4 * p, 4), v_oo, sW, sW + 3, s_xo, 32 * p)
    stamp(a, 8); stamp(a, 9)
    stamp_flush(a)
    a("s_endpgm")
    for hd in range(4):
        a.label("L_OR%d" % hd)
        a("s_sub_u32 s%d, s%d, 1", s_spin, s_spin)
        a("s_cselect_b32 s%d, 0, s%d", s_spin, s_spin)
        a("s_cbranch_scc1 L_OK%d" % hd)
        a("s_waitcnt vmcnt(0)")
        if OPT.get("spec", 0): sentinel("r%d" % hd)
        oloads(hd)
        a("s_branch L_OW%d" % hd)
    l = a.l
    return l[:mark_a] + l[mark_b:] + l[mark_a:mark_b] + ["L_END:", "    s_endpgm"]

def build(path):
    hdr = open("cdna_kernels/%s.s.ref" % NAME).read().split("\n")
    top = [l for l in hdr if l.startswith(";") and "@launch" not in l]
    lines, added = fix(kernel())
    print("instrs", len(lines), "nop states added", added)
    out = top + ["; @launch grid=(256,1,1) block=(512,1,1) lds=%d" % LDS]
    out += ['.amdgcn_target "amdgcn-amd-amdhsa--gfx950"', ".text", ".globl " + KN, ".p2align 8", ".type %s,@function" % KN] + lines
    out += ['.section .rodata,"a"', ".p2align 6", """.amdhsa_kernel %s
  .amdhsa_next_free_vgpr 256
  .amdhsa_next_free_sgpr 102
  .amdhsa_accum_offset 256
  .amdhsa_group_segment_fixed_size 0
  .amdhsa_kernarg_size 72
  .amdhsa_user_sgpr_count 2
  .amdhsa_user_sgpr_kernarg_segment_ptr 1
  .amdhsa_system_sgpr_workgroup_id_x 1
.end_amdhsa_kernel""" % KN]
    open(path, "w").write("\n".join(out) + "\n")

if __name__ == "__main__":
    for kv_ in sys.argv[2:]:
        k, v = kv_.split("=", 1); OPT[k] = eval(v)
    build(sys.argv[1])
```

```python
import sys, math, struct
from asmlib import *

NAME = "parallel_sum__softmax_full_mha__dense_activation_relu__prompt"
KN = NAME + "_kernel"
KV, AF = 0x200000, 0x600000
FKV = 0x000000
FH = 0x8000
FO = 0x10000
WS_END = 0xF00000
XBYTES = 2048 * 448 * 2
OPT = dict(bias=64.0, stamps=False, sleep=2, prioA=2, rd=3, ne=16, pfa=99, pfb=99, iplan=(1,1,1,2,1,1,3), prioB1=0, prioA1=2, pat=((3,0),(3,0),(2,2),(8,6)))
STAMP = 0x2000000
SPIN_MAX = 1 << 17
K = 1024
NST = 12
def f32(x): return "0x%08x" % struct.unpack("<I", struct.pack("<f", x))[0]

def stamp(a, i, grp="main"):
    if i not in (0, NST - 2, NST - 1) and grp != OPT.get("sgrp", "main"): return
    if OPT["stamps"]: a("%s s[%d:%d]", "s_memtime" if OPT.get("cyc") else "s_memrealtime", 76 + 2 * i, 77 + 2 * i)
def hold_mark(a, k):
    if OPT.get("hold") == k: a("s_memrealtime s[98:99]")
def hold_end(a):
    if OPT.get("hold") is None: return
    a("s_waitcnt vmcnt(0) lgkmcnt(0)")
    if OPT["hold"] == 9: a("s_mov_b32 s98, s58")
    if OPT.get("holdx") is not None:
        a("s_and_b32 s95, s2, 7")
        a("s_cmp_lg_u32 s95, %d", OPT["holdx"])
        a("s_cbranch_scc1 L_HOLDX")
    a("s_add_u32 s98, s98, 6000")
    a.label("L_HOLD")
    a("s_memrealtime s[96:97]")
    a("s_waitcnt lgkmcnt(0)")
    a("s_sub_u32 s95, s96, s98")
    a("s_cmp_lt_i32 s95, 0")
    a("s_cbranch_scc1 L_HOLD")
    a.label("L_HOLDX")
def stamp_flush(a):
    if not OPT["stamps"]: return
    stamp(a, NST - 2)
    a("s_mov_b32 s64, s46\ns_mov_b32 s65, s47\ns_mov_b32 s66, 0x10000000\ns_mov_b32 s67, 0x00020000")
    a("s_lshl_b32 s68, s2, 3\ns_add_u32 s68, s68, s3\ns_lshl_b32 s68, s68, 6")
    a("s_add_u32 s68, s68, 0x%x", STAMP)
    a("v_mov_b32 v0, 0")
    a("s_waitcnt vmcnt(0) lgkmcnt(0)")
    stamp(a, NST - 1)
    a("s_waitcnt lgkmcnt(0)")
    for i in range(NST):
        a("v_mov_b32 v1, s%d", 76 + 2 * i)
        a("buffer_store_dword v1, v0, s[64:67], s68 offen offset:%d", 4 * i)

def srd(a, d, base, nbytes):
    a("s_mov_b32 s%d, s%d", d, base)
    a("s_mov_b32 s%d, s%d", d + 1, base + 1)
    a("s_mov_b32 s%d, 0x%x", d + 2, nbytes)
    a("s_mov_b32 s%d, 0x00020000", d + 3)

class VM:
    def __init__(self, a): self.a = a; self.ops = []; self.done = 0
    def issue(self, tag): self.ops.append(tag)
    def wait(self, tag):
        idx = max(i for i, t in enumerate(self.ops) if t == tag)
        if idx < self.done: return
        n = len(self.ops) - 1 - idx
        assert n <= 63, n
        self.a("s_waitcnt vmcnt(%d)", n); self.done = idx + 1

SL = 24 * K
def slot_of(n): return (n % 6) * SL
RB = 149 * K
CNT = 150 * K
QX = 152 * K
KVS = 48 * K
KVS2 = (20 * K, 44 * K, 140 * K, 144 * K)
HO = 80 * K
CV = 112 * K
NSL = 8
def sloff(j): return (j & 3) * 2048 + ((j >> 2) & 1) * 32768
CA = 0
LDS = 160 * K
MF = "v_mfma_f32_32x32x16_bf16"

def kernel():
    a = Asm()
    sWS, sX, sW, sW1, sDBG = 8, 12, 16, 20, 24
    s_w, s_rb, s_c, s_rot, s_t0, s_t1, s_cp, s_mask = 28, 29, 30, 31, 32, 33, 34, 35
    s_hi, s_ex, s_spin, s_non = 36, 38, 56, 58
    v_lane, v_l16 = 1, 2
    a.label(KN)
    a("s_cmp_ge_u32 s2, 256")
    a("s_cbranch_scc1 L_END")
    stamp(a, 0); hold_mark(a, 0)
    a("s_load_dwordx4 s[40:43], s[0:1], 0")
    a("s_load_dwordx2 s[44:45], s[0:1], 16")
    a("s_load_dwordx4 s[48:51], s[0:1], 32")
    a("s_load_dwordx4 s[52:55], s[0:1], 48")
    a("s_load_dwordx2 s[46:47], s[0:1], 64")
    a("v_lshrrev_b32 v3, 6, v0")
    a("v_and_b32 v%d, 63, v0", v_lane)
    a("v_readfirstlane_b32 s%d, v3", s_w)
    a("v_lshlrev_b32 v%d, 4, v%d", v_l16, v_lane)
    a("s_mov_b32 s%d, 0", s_hi)
    a("s_mov_b32 s%d, -1", s_hi + 1)
    a("s_mov_b32 s%d, 0xffff0000", s_mask)
    cb_ = OPT.get("cbits", 2)
    a("s_and_b32 s%d, s2, %d", s_c, (1 << (4 - cb_)) - 1)
    a("s_lshl_b32 s%d, s%d, %d", s_c, s_c, cb_)
    a("s_bfe_u32 s%d, s2, 0x%x", s_t0, (cb_ << 16) | 3)
    a("s_or_b32 s%d, s%d, s%d", s_c, s_c, s_t0)
    a("s_lshr_b32 s%d, s2, %d", s_rb, 3 + cb_)
    if cb_ > 1:
        a("s_bfe_u32 s%d, s2, 0x%x", s_t1, ((cb_ - 1) << 16) | (4 - cb_))
        a("s_lshl_b32 s%d, s%d, %d", s_t1, s_t1, 5 - cb_)
        a("s_or_b32 s%d, s%d, s%d", s_rb, s_rb, s_t1)
    a("s_mul_i32 s%d, s%d, %d", s_rot, s_t0, {1: 3, 2: 2, 3: 1}[cb_])
    a("s_add_u32 s%d, s%d, s%d", s_rot, s_rot, s_rb)
    a("s_mul_i32 s%d, s%d, 37", s_t0, s_rot)
    a("s_lshr_b32 s%d, s%d, 8", s_t0, s_t0)
    a("s_mul_i32 s%d, s%d, 7", s_t0, s_t0)
    a("s_sub_u32 s%d, s%d, s%d", s_rot, s_rot, s_t0)
    a("s_mov_b32 s3, s%d", s_w)
    v_g, v_ch, v_rr, v_c = 4, 5, 6, 7
    a("v_lshrrev_b32 v%d, 5, v%d", v_g, v_lane)
    a("v_bfe_u32 v%d, v%d, 4, 1", v_ch, v_lane)
    a("v_bfe_u32 v%d, v%d, 2, 2", v_rr, v_lane)
    a("v_and_b32 v%d, 3, v%d", v_c, v_lane)
    v_trp = 8
    a("v_lshlrev_b32 v%d, 6, v%d", v_trp, v_rr)
    a("v_lshl_add_u32 v%d, v%d, 5, v%d", v_trp, v_ch, v_trp)
    a("v_lshl_add_u32 v%d, v%d, 3, v%d", v_trp, v_c, v_trp)
    def nxt7(reg, first):
        if first: a("s_mov_b32 s%d, s%d", reg, s_rot)
        else:
            a("s_add_u32 s%d, s%d, 1", reg, reg)
            a("s_cmp_eq_u32 s%d, 7", reg)
            a("s_cselect_b32 s%d, 0, s%d", reg, reg)
    def kvs2_base(dst):
        a("s_mul_i32 s%d, s%d, %d", dst, s_w, 24 * K)
        a("s_add_u32 s%d, s%d, %d", dst, dst, 20 * K)
        a("s_lshl_b32 s%d, s%d, 12", s_t1, s_w)
        a("s_add_u32 s%d, s%d, %d", s_t1, s_t1, 132 * K)
        a("s_cmp_ge_u32 s%d, 2", s_w)
        a("s_cselect_b32 s%d, s%d, s%d", dst, s_t1, dst)
    a("s_cmp_ge_u32 s%d, 4", s_w)
    a("s_cbranch_scc0 L_A")
    mark_a = len(a.l)
    a.label("L_A")

    a("s_setprio %d", OPT.get("prioA1", 0))
    a("v_lshlrev_b32 v16, 2, v%d", v_lane)
    a("v_add_u32 v16, %d, v16", CNT)
    a("v_mov_b32 v17, 0")
    a("ds_write_b32 v16, v17")
    if OPT.get("codepf", True):
        a("s_getpc_b64 s[%d:%d]", s_ex, s_ex + 1)
        a.label("L_PC")
        a("s_lshr_b32 s%d, s2, 3", s_t0)
        a("s_lshl_b32 s%d, s%d, 5", s_t1, s_w)
        a("s_add_u32 s%d, s%d, s%d", s_t0, s_t0, s_t1)
        a("s_cmp_ge_u32 s%d, (L_END-%s)/1024", s_t0, KN)
        a("s_cbranch_scc1 L_NOCPF")
        a("s_lshl_b32 s%d, s%d, 10", s_t0, s_t0)
        a("s_sub_u32 s%d, s%d, L_PC-%s", s_ex, s_ex, KN)
        a("s_subb_u32 s%d, s%d, 0", s_ex + 1, s_ex + 1)
        a("s_add_u32 s%d, s%d, s%d", s_ex, s_ex, s_t0)
        a("s_addc_u32 s%d, s%d, 0", s_ex + 1, s_ex + 1)
        a("v_mov_b32 v17, s%d", s_ex + 1)
        a("v_add_co_u32 v16, vcc, s%d, v%d", s_ex, v_l16)
        a("v_addc_co_u32 v17, vcc, 0, v17, vcc")
        a("global_load_dword v254, v[16:17], off")
        a.label("L_NOCPF")
    v_xa, v_gb, v_hb, v_qb, v_r = 9, 13, 14, 15, 6
    v_gw, v_hw, v_qw, C2, v_csw = 5, 13, 3, 8, 0
    v_t = 16
    XE = 20
    X0, ACC, RING = 24, 136, 216
    v_non, v_z, v_pa, v_pd = 248, 254, 255, 252
    T4 = ACC + 64
    v_sum, v_sq, v_cs = T4, T4 + 2, T4 + 4
    WE = T4 + 8
    s_ones, s_st = 62, 63
    s_fl, s_rt, s_state = 4, 5, 6
    s_kvb, s_i, s_off, s_mode, s_cnt, s_tgt, s_pb, s_hdone = 16, 17, 18, 19, 20, 21, 22, 23
    s_bad, s_skip, s_hfl = 64, 70, 71
    t0, t1, t2 = v_t, v_t + 1, v_t + 2
    a("s_lshl_b32 s%d, s%d, 2", s_rt, s_rb)
    a("s_add_u32 s%d, s%d, s%d", s_rt, s_rt, s_w)
    a("s_mov_b32 s%d, 0x3f803f80", s_ones)
    a("v_and_b32 v%d, 31, v%d", t0, v_lane)
    a("v_bfe_u32 v%d, v%d, 1, 3", t1, v_lane)
    a("v_xor_b32 v%d, v%d, v%d", t1, t1, v_g)
    a("v_lshlrev_b32 v%d, 7, v%d", t0, t0)
    a("v_lshl_add_u32 v%d, v%d, 4, v%d", t0, t1, t0)
    a("s_lshl_b32 s%d, s%d, 12", s_t0, s_w)
    for q in range(4):
        a("v_xor_b32 v%d, %d, v%d", t1, 32 * q, t0)
        a("v_add_u32 v%d, s%d, v%d", v_xa + q, s_t0, t1)
    a("v_lshl_add_u32 v%d, v%d, 10, v%d", v_gb, v_g, v_trp)
    a("v_lshl_add_u32 v%d, v%d, 11, v%d", v_hb, v_g, v_trp)
    a("v_lshl_add_u32 v%d, v%d, 9, v%d", v_qb, v_g, v_trp)
    for r_ in (v_sum, v_sq, v_cs, v_cs + 1): a("v_mov_b32 v%d, 0", r_)
    a("s_mov_b32 s%d, 0", s_mode)
    a("s_mov_b32 s%d, 0", s_tgt)
    a("s_lshl_b32 s%d, s%d, 2", s_kvb, s_c)
    a("s_add_u32 s%d, s%d, s%d", s_kvb, s_kvb, s_w)
    a("s_lshl_b32 s%d, s%d, 16", s_kvb, s_kvb)
    a("s_add_u32 s%d, s%d, 0x%x", s_kvb, s_kvb, KV)
    v_ko, v_ks, v_ks2, v_ho, v_tag, v_tg = 248, 249, 250, 251, 252, 253
    a("s_lshl_b32 s%d, s%d, 13", s_t0, s_w)
    a("v_add_u32 v%d, s%d, v%d", v_ks, s_t0, v_l16)
    a("v_add_u32 v%d, %d, v%d", v_ho, HO, v_ks)
    a("v_add_u32 v%d, %d, v%d", v_ks, KVS, v_ks)
    kvs2_base(s_t0)
    a("v_add_u32 v%d, s%d, v%d", v_ks2, s_t0, v_l16)
    a("s_lshl_b32 s%d, s%d, 2", s_t0, s_w)
    a("s_add_u32 s%d, s%d, %d", s_t0, s_t0, CNT + 16)
    a("v_mov_b32 v%d, s%d", v_tag, s_t0)
    a("v_and_b32 v%d, 31, v%d", t0, v_lane)
    a("v_mov_b32 v%d, v%d", t1, t0)
    for th in (11, 14, 25):
        a("v_cmp_le_u32 vcc, %d, v%d", th, t0)
        a("v_addc_co_u32 v%d, vcc, 0, v%d, vcc", t1, t1)
    a("v_and_b32 v%d, 1, v%d", t2, t0)
    a("v_lshlrev_b32 v%d, 2, v%d", t2, t2)
    a("v_bfe_u32 v%d, v%d, 1, 1", t2 + 1, t0)
    a("v_lshl_add_u32 v%d, v%d, 4, v%d", t2, t2 + 1, t2)
    a("v_add_u32 v%d, 11, v%d", t2, t2)
    a("s_mov_b32 s%d, 0xf0000000", s_ex)
    a("s_mov_b32 s%d, 0xf0000000", s_ex + 1)
    a("v_cndmask_b32 v%d, v%d, v%d, s[%d:%d]", t1, t1, t2, s_ex, s_ex + 1)
    a("s_bitcmp1_b32 s%d, 0", s_c)
    a("s_cselect_b32 s%d, -1, 0", s_bad)
    a("s_mov_b32 s%d, s%d", s_bad + 1, s_bad)
    a("v_cndmask_b32 v%d, v%d, v%d, s[%d:%d]", t1, t0, t1, s_bad, s_bad + 1)
    a("v_lshl_add_u32 v%d, v%d, 5, v%d", t1, v_g, t1)
    a("s_lshl_b32 s%d, s%d, 12", s_t0, s_w)
    a("v_lshl_add_u32 v%d, v%d, 4, s%d", v_ko, t1, s_t0)
    v_q4 = 255
    a("v_lshlrev_b32 v%d, 2, v%d", v_q4, v_c)
    a("v_add_u32 v%d, %d, v%d", v_q4, CNT, v_q4)
    a("s_lshl_b32 s%d, s%d, 11", s_t0, s_w)
    a("v_add_u32 v%d, s%d, v%d", v_gw, s_t0, v_gb)
    a("s_lshl_b32 s%d, s%d, 2", s_t0, s_w)
    a("s_add_u32 s%d, s%d, %d", s_t0, s_t0, QX)
    a("v_add_u32 v%d, s%d, v%d", v_csw, s_t0, v_l16)
    a("s_waitcnt lgkmcnt(0)")
    stamp(a, 1, "p0")
    srd(a, sWS, 46, WS_END)
    def acc(t): return vr(ACC + 16 * t, 16)
    spins = []
    def peek(off): a("ds_read_b32 v%d, v%d offset:%d", v_tg, v_q4, off)
    def need(off, thr):
        n = len(spins); spins.append((off, thr))
        a("v_cmp_gt_u32 vcc, %d, v%d", thr, v_tg)
        a("s_cbranch_vccnz L_SP%d" % n)
        a.label("L_SPB%d" % n)
    def post(off, val, tmp):
        a("v_mov_b32 v%d, %d", tmp, val)
        a("ds_write_b32 v%d, v%d offset:%d", v_tag, tmp, off - 16)
    def wset(p): return (ACC + 32) if p % 2 == 0 else RING
    win = {"x": 0, "h": 0, "c": 0}
    def setwin(kind, n):
        wdw = (slot_of(n) // (2 * SL)) * 2 * SL
        d = wdw - win[kind]
        if d:
            for r_ in {"x": [v_xa + q for q in range(4)] + [v_gb, v_gw], "h": [v_hb, v_qb], "c": [v_hw, v_qw]}[kind]:
                if d > 0: a("v_add_u32 v%d, %d, v%d", r_, d, r_)
                else: a("v_subrev_u32 v%d, %d, v%d", r_, -d, r_)
            win[kind] = wdw
        return slot_of(n) - wdw
    def rd1(p, q, off):
        a("ds_read_b128 %s, v%d offset:%d", vr(X0 + 16 * p + 4 * q, 4), v_xa + q, off)
        for t in range(2):
            for h in range(2):
                a("ds_read_b64_tr_b16 %s, v%d offset:%d", vr(wset(p) + 8 * q + 4 * t + 2 * h, 2), v_gb, off + 16384 + q * 2048 + h * 512 + t * 256)
    def rdc(off):
        for t in range(2):
            for h in range(2):
                a("ds_read_b64_tr_b16 %s, v%d offset:%d", vr(WE + 4 * t + 2 * h, 2), v_gw, off + 16384 + h * 512 + t * 256)
    def cs_pack(src, off, ta, tb):
        return ["v_and_b32 v%d, s%d, v%d" % (ta, s_mask, src), "v_sub_f32 v%d, v%d, v%d" % (tb, src, ta),
                "v_lshrrev_b32 v%d, 16, v%d" % (ta, ta), "v_and_or_b32 v%d, v%d, s%d, v%d" % (src, tb, s_mask, ta),
                "ds_write_b32 v%d, v%d offset:%d" % (v_csw, src, off)]
    def split3(m, h0, h1, h2, neg):
        o = []
        if neg: o.append("v_sub_f32 v%d, 0, v%d" % (m, m))
        o += ["v_and_b32 v%d, s%d, v%d" % (h0, s_mask, m), "v_sub_f32 v%d, v%d, v%d" % (m, m, h0),
              "v_and_b32 v%d, s%d, v%d" % (h1, s_mask, m), "v_sub_f32 v%d, v%d, v%d" % (m, m, h1),
              "v_lshrrev_b32 v%d, 16, v%d" % (h0, h0), "v_or_b32 v%d, v%d, v%d" % (h0, h0, h1), "v_lshrrev_b32 v%d, 16, v%d" % (h2, m)]
        return o
    def finalize_ops(swap):
        st = ["v_mov_b32 v%d, v%d" % (v_sum + 1, v_sum), "v_mov_b32 v%d, v%d" % (v_sq + 1, v_sq), None, None,
              "v_permlane32_swap_b32 v%d, v%d" % (v_sum, v_sum + 1), "v_permlane32_swap_b32 v%d, v%d" % (v_sq, v_sq + 1),
              "v_add_f32 v%d, v%d, v%d" % (v_sum, v_sum, v_sum + 1), "v_add_f32 v%d, v%d, v%d" % (v_sq, v_sq, v_sq + 1),
              "v_mul_f32 v%d, %s, v%d" % (v_sum, f32(1.0 / 448), v_sum), "v_mul_f32 v%d, %s, v%d" % (v_sq, f32(1.0 / 448), v_sq),
              "v_fma_f32 v%d, -v%d, v%d, v%d" % (v_sq, v_sum, v_sum, v_sq), "v_max_f32 v%d, 0, v%d" % (v_sq, v_sq),
              "v_cvt_pk_bf16_f32 v%d, v%d, v%d" % (t0, v_sq, v_sq), "v_and_b32 v%d, s%d, v%d" % (t0, s_mask, t0),
              "v_add_f32 v%d, %s, v%d" % (t0, f32(1e-5), t0), "v_cvt_pk_bf16_f32 v%d, v%d, v%d" % (t0, t0, t0),
              "v_and_b32 v%d, s%d, v%d" % (t0, s_mask, t0), "v_sqrt_f32 v%d, v%d" % (t0, t0), None,
              "v_cvt_pk_bf16_f32 v%d, v%d, v%d" % (t0, t0, t0), "v_and_b32 v%d, s%d, v%d" % (t0, s_mask, t0),
              "v_rcp_f32 v%d, v%d" % (v_r, t0), None]
        if swap:
            st += ["ds_write_b32 v%d, v%d" % (t2, v_r)] + ["ds_read_b128 %s, v%d offset:%d" % (vr(RING + 4 * k, 4), t2 + 1, 32 * k) for k in range(4)]
        st += ["v_cvt_pk_bf16_f32 v%d, -v%d, -v%d" % (XE + k, v_sum, v_sum) for k in range(4)]
        st += ["v_mov_b32 v%d, v%d" % (v_r + 1, v_r), "v_add_u32 v%d, %d, v%d" % (t1, QX, v_l16)]
        return [o for o in st if o]
    def pass1(swap):
        win["x"] = 0
        a("s_barrier")
        stamp(a, 3); stamp(a, 1, "p1")
        rdc(0)
        for q in range(4): rd1(0, q, 0)
        if swap:
            a("s_lshl_b32 s%d, s%d, 7", s_t0, s_w)
            a("s_add_u32 s%d, s%d, %d", s_t0, s_t0, RB)
            a("v_and_b32 v%d, 31, v%d", t2, v_lane)
            a("v_lshl_add_u32 v%d, v%d, 2, s%d", t2, t2, s_t0)
            a("v_lshl_add_u32 v%d, v%d, 4, s%d", t2 + 1, v_g, s_t0)
        for p in range(7):
            for q in range(4):
                a("s_waitcnt lgkmcnt(%d)", 5 * (3 - q))
                if q == 0:
                    for j in range(4):
                        for t in range(2):
                            a("v_dot2c_f32_bf16 v%d, s%d, v%d", v_cs + t, s_ones, WE + 4 * t + j)
                for j in range(4):
                    x = X0 + 16 * p + 4 * q + j
                    a("v_dot2c_f32_bf16 v%d, s%d, v%d", v_sum, s_ones, x)
                    a("v_dot2c_f32_bf16 v%d, v%d, v%d", v_sq, x, x)
                if q == 0 and p == 6:
                    for t in range(2):
                        for o_ in cs_pack(v_cs + t, 5120 + 1024 * t, t0, t1): a(o_)
                    post(48, 1, t0)
            fin = finalize_ops(swap) if p == 6 else []
            off = setwin("x", p + 1) if p < 6 else None
            for m in range(8):
                q, t = m >> 1, m & 1
                wf = vr(wset(p) + 8 * q + 4 * t, 4); xf = vr(X0 + 16 * p + 4 * q, 4)
                A, B = (xf, wf) if swap else (wf, xf)
                first = (p == 0 and q == 0)
                a("%s %s, %s, %s, %s", MF, acc(t), A, B, "0" if first else acc(t))
                if p < 6:
                    if m == 3:
                        a("s_barrier")
                        rdc(off)
                        stamp(a, 2 + p, "p1")
                    if m >= 4: rd1(p + 1, m - 4, off)
                else:
                    if m == 0: peek(48)
                    k = 6 if m < 5 else len(fin)
                    for o in fin[:k]: a(o)
                    fin = fin[k:]
                    if m == 6:
                        a("s_waitcnt lgkmcnt(0)")
                        need(48, 1)
                        for t_ in range(2): a("ds_read_b128 %s, v%d offset:%d", vr(WE + 4 * t_, 4), t1, 5120 + 1024 * t_)
        a("s_waitcnt lgkmcnt(0)")
        for t in range(2):
            wf = vr(WE + 4 * t, 4); xf = vr(XE, 4)
            A, B = (xf, wf) if swap else (wf, xf)
            a("%s %s, %s, %s, %s", MF, acc(t), A, B, acc(t))
        stamp(a, 8, "p1")
    def pack(t, kind, rreg=None):
        b = ACC + 16 * t
        for jj in range(8):
            a("v_pk_mul_f32 %s, %s, %s", vr(b + 2 * jj, 2), vr(b + 2 * jj, 2), vr((RING + 2 * jj) if kind == "v" else v_r, 2))
            a("v_cvt_pk_bf16_f32 v%d, v%d, v%d", b + jj, b + 2 * jj, b + 2 * jj + 1)
            if kind == "h": a("v_pk_max_i16 v%d, v%d, 0", b + jj, b + jj)
        if kind == "q":
            a("v_cndmask_b32 v%d, v%d, 0, s[%d:%d]", b + 6, b + 6, s_hi, s_hi + 1)
            a("v_cndmask_b32 v%d, v%d, 0, s[%d:%d]", b + 7, b + 7, s_hi, s_hi + 1)
        elif kind == "k":
            a("v_cndmask_b32 v%d, v%d, v%d, s[%d:%d]", b + 6, b + 6, v_t, s_hi, s_hi + 1)
            a("v_cndmask_b32 v%d, v%d, v%d, s[%d:%d]", b + 7, b + 7, v_t + 1, s_hi, s_hi + 1)
        elif kind == "v":
            for jj in range(8):
                a("v_cndmask_b32 v%d, v%d, v%d, s[%d:%d]", b + jj, b + jj, v_t, s_ex, s_ex + 1)
    def kv_epilogue(kind):
        for t in range(2):
            pack(t, kind, "v%d" % v_r)
            for f in range(2):
                a("ds_write_b128 v%d, %s offset:%d", v_ko, vr(ACC + 16 * t + 4 * f, 4), 2048 * t + 1024 * f)
    a("s_bitcmp1_b32 s%d, 0", s_c)
    a("s_cbranch_scc1 L_P1V")
    pass1(False)
    stamp(a, 4); stamp(a, 1, "p2")
    a("v_mov_b32 v%d, 0x3f803f80", v_t)
    a("v_mov_b32 v%d, 0x00003f80", v_t + 1)
    kv_epilogue("k")
    a("s_branch L_EQ")
    a.label("L_P1V")
    pass1(True)
    stamp(a, 4); stamp(a, 1, "p2")
    a("v_mov_b32 v%d, 0x3f803f80", v_t)
    kv_epilogue("v")
    a.label("L_EQ")
    stamp(a, 2, "p2"); stamp(a, 9, "p1")
    NPB = 0
    a("s_waitcnt vmcnt(0) lgkmcnt(0)")
    a("s_barrier")
    stamp(a, 3, "p2")
    class LG:
        def __init__(s_): s_.ops = []; s_.done = 0
        def issue(s_, tag): s_.ops.append(tag)
        def wait(s_, tag):
            idx = max(i for i, t_ in enumerate(s_.ops) if t_ == tag)
            if idx < s_.done: return
            n_ = min(15, len(s_.ops) - 1 - idx)
            a("s_waitcnt lgkmcnt(%d)", n_); s_.done = len(s_.ops) - n_
    lg = LG()
    def rdw(dst, kind, p, qoff, t, tag):
        off = setwin(kind, 7 + p)
        hb, qb = (v_hb, v_qb) if kind == "h" else (v_hw, v_qw)
        for h in range(2):
            if t < 4: a("ds_read_b64_tr_b16 %s, v%d offset:%d", vr(dst + 2 * h, 2), hb, off + qoff + h * 1024 + t * 256)
            else: a("ds_read_b64_tr_b16 %s, v%d offset:%d", vr(dst + 2 * h, 2), qb, off + qoff + 4096 + h * 256)
            lg.issue(tag)
    def rd2(n):
        s, t = divmod(n, 5); p, q = divmod(s, 4)
        rdw(RING + 4 * (n % 8), "h", p, q * 5120, t, n)
    for n in range(7): rd2(n)
    a("s_mul_i32 s%d, s%d, 5120", s_t0, s_w)
    a("v_add_u32 v%d, s%d, v%d", v_hw, s_t0, v_hb)
    a("v_add_u32 v%d, s%d, v%d", v_qw, s_t0, v_qb)
    for t in range(5): a("v_mov_b32 v%d, 0", C2 + t)
    stamp(a, 5); stamp(a, 4, "p2")
    KV0, Q0, P0, O0, S0, QP, MX = 24, 88, 120, 136, 216, 200, 208
    CSF = 72
    def q(u, f): return vr(QP + 4 * f, 4) if u == 3 else vr(Q0 + 8 * u + 4 * f, 4)
    def qreg(u, r): return (QP if u == 3 else Q0 + 8 * u) + r
    def qtile(dst, u):
        a("s_add_u32 s%d, s%d, %d", dst, s_w, u + 1)
        a("s_and_b32 s%d, s%d, 3", dst, dst)
    def o(u): return vr(O0 + 16 * u, 16)
    def kv(st, f): return vr(KV0 + 16 * st + 4 * f, 4)
    def kvload(st, fr=(0, 1, 2, 3)):
        a("s_add_u32 s%d, s%d, s%d", s_off, s_i, s_rb)
        a("s_and_b32 s%d, s%d, 15", s_off, s_off)
        a("s_lshl_b32 s%d, s%d, 12", s_off, s_off)
        a("s_add_u32 s%d, s%d, s%d", s_off, s_off, s_kvb)
        for f in fr:
            a("buffer_load_dwordx4 %s, v%d, s[%d:%d], s%d offen offset:%d sc1", kv(st, f), v_l16, sWS, sWS + 3, s_off, 1024 * f)
        a("s_add_u32 s%d, s%d, 1", s_i, s_i)
    NJ = 140
    barjobs = {20 * p - 7: p + 1 for p in (3, 5)}
    cs_step = {4: 0, 6: 1, 8: 2, 12: 3, 16: 4, 20: 5, 22: 6}
    CF = [X0, X0 + 4, X0 + 8, X0 + 12, v_t]
    pend = []
    for s in range(28):
        if s % 4 == 0: stamp(a, 1 + s // 4, "p5")
        for t in range(5):
            n = 5 * s + t
            if t == 2 and (s - 1) in cs_step:
                lg.wait(("c", s - 1, 4))
                for j in range(4):
                    for t_ in range(5):
                        a("v_dot2c_f32_bf16 v%d, s%d, v%d", C2 + t_, s_ones, CF[t_] + j)
                if cs_step[s - 1] == 6:
                    for t_ in range(5): pend += cs_pack(C2 + t_, 1024 * t_, v_t, v_t + 1)
            if t in (0, 3): lg.wait(n + (2 if t == 0 else 1))
            a("%s %s, %s, %s, %s", MF, acc(t), vr(RING + 4 * (n % 8), 4), vr(X0 + 4 * s, 4), acc(t) if s else "0")
            if n in barjobs:
                lg.wait(("pk", n)); need(64, 8 + barjobs[n])
            if n + 7 < NJ: rd2(n + 7)
            if s in cs_step: rdw(CF[t], "c", cs_step[s], 0, t, ("c", s, t))
            if n + 6 in barjobs: peek(64); lg.issue(("pk", n + 6))
            if n in (28, 81): post(80, 8 if n == 28 else 11, 254); lg.issue("post")
            if pend:
                for o_ in pend[:5]:
                    a(o_)
                lg.issue("csw"); pend = pend[5:]
                if not pend:
                    post(48, 2, 254); lg.issue("post")
                    a("v_add_u32 v%d, %d, v%d", v_t + 2, QX, v_l16)
            if s == 24 and t == 3: peek(80); lg.issue("pk80")
            if s == 25 and t == 3: lg.wait("pk80"); need(80, 11); peek(48); lg.issue("pk48")
            if s == 26 and t == 3: lg.wait("pk48"); need(48, 2)
            if n >= 134 and n < 139:
                a("ds_read_b128 %s, v%d offset:%d", vr(CSF + 4 * (n - 134), 4), v_t + 2, 1024 * (n - 134)); lg.issue("csf")
            if n == 134: a("ds_read_b32 v%d, v%d", v_tg, v_tag); lg.issue("tg")
    a("s_waitcnt lgkmcnt(0)")
    for t in range(5):
        a("%s %s, %s, %s, %s", MF, acc(t), vr(CSF + 4 * t, 4), vr(XE, 4), acc(t))
    stamp(a, 7, "p2"); stamp(a, 1, "p3"); stamp(a, 8, "p5")
    a("s_setprio %d", OPT["prioA"])
    def kvreads():
        for st in range(3):
            for f in range(4):
                if st < 2: a("ds_read_b128 %s, v%d offset:%d", kv(st, f), v_ks, 4096 * st + 1024 * f)
                else: a("ds_read_b128 %s, v%d offset:%d", kv(st, f), v_ks2, 1024 * f)
    a("v_readfirstlane_b32 s%d, v%d", s_state, v_tg)
    a("s_mov_b32 s%d, 3", s_i)
    a("s_cmp_eq_u32 s%d, 0", s_state)
    a("s_cbranch_scc1 L_NK")
    kvreads()
    a.label("L_NK")
    for t in range(4):
        pack(t, "h")
        for f in range(2):
            a("ds_write_b128 v%d, %s offset:%d", v_ho, vr(ACC + 16 * t + 4 * f, 4), 2048 * t + 1024 * f)
    a("v_mov_b32 v%d, 1", t0)
    a("ds_write_b32 v%d, v%d offset:16", v_tag, t0)
    stamp(a, 6); stamp(a, 8, "p2"); stamp(a, 2, "p3"); stamp(a, 9, "p5")
    a("v_mul_f32 v%d, %s, v%d", v_r, f32(28 ** -0.5 * math.log2(math.e)), v_r)
    a("v_mov_b32 v%d, v%d", v_r + 1, v_r)
    pack(4, "q")
    a("s_cmp_lg_u32 s%d, 0", s_state)
    a("s_cbranch_scc1 L_LOADED")
    a("s_mov_b32 s%d, %d", s_spin, SPIN_MAX * 8)
    a.label("L_AP")
    a("ds_read_b32 v%d, v%d", v_tg, v_tag)
    a("s_sub_u32 s%d, s%d, 1", s_spin, s_spin)
    a("s_cbranch_scc1 L_APX")
    a("s_waitcnt lgkmcnt(0)")
    a("v_readfirstlane_b32 s%d, v%d", s_state, v_tg)
    a("s_cmp_eq_u32 s%d, 0", s_state)
    a("s_cbranch_scc1 L_AP")
    a.label("L_APX")
    kvreads()
    a.label("L_LOADED")
    a("s_waitcnt lgkmcnt(0)")
    stamp(a, 7); stamp(a, 9, "p2"); stamp(a, 3, "p3")
    nsync = [0]
    def async_():
        n = nsync[0]; nsync[0] += 1
        a("v_mov_b32 v12, %d", CNT)
        a("v_mov_b32 v13, 1")
        a("s_add_u32 s%d, s%d, 4", s_tgt, s_tgt)
        a("s_mov_b64 exec, 1")
        a("ds_add_u32 v12, v13")
        a("s_mov_b64 exec, -1")
        a("s_mov_b32 s%d, %d", s_spin, SPIN_MAX)
        a.label("L_AS%d" % n)
        a("ds_read_b32 v13, v12")
        a("s_sub_u32 s%d, s%d, 1", s_spin, s_spin)
        a("s_cbranch_scc1 L_ASX%d" % n)
        a("s_waitcnt lgkmcnt(0)")
        a("v_readfirstlane_b32 s%d, v13", s_t0)
        a("s_cmp_lt_u32 s%d, s%d", s_t0, s_tgt)
        a("s_cbranch_scc1 L_AS%d" % n)
        a.label("L_ASX%d" % n)
    def split_m(m, h0, h1, h2):
        for o_ in split3(m, h0, h1, h2, True): a(o_)
    def patch(u, h0, h2):
        a("v_cndmask_b32 v%d, v%d, %s, s[%d:%d]", qreg(u, 6), qreg(u, 6), h0, s_hi, s_hi + 1)
        a("v_cndmask_b32 v%d, v%d, %s, s[%d:%d]", qreg(u, 7), qreg(u, 7), h2, s_hi, s_hi + 1)
    a("%s %s, %s, %s, 0", MF, vr(S0, 16), kv(0, 0), q(3, 0))
    a("%s %s, %s, %s, %s", MF, vr(S0, 16), kv(0, 1), q(3, 1), vr(S0, 16))
    for u in range(4):
        qtile(s_t1, u)
        a("s_lshl_b32 s%d, s%d, 13", s_t1, s_t1)
        a("s_add_u32 s%d, s%d, %d", s_t1, s_t1, KVS)
        a("v_add_u32 v%d, s%d, v%d", v_t + u, s_t1, v_l16)
    a("ds_write_b128 v%d, %s", v_t + 3, q(3, 0))
    a("v_max3_f32 v%d, v%d, v%d, v%d", MX, S0, S0 + 1, S0 + 2)
    a("v_max3_f32 v%d, v%d, v%d, v%d", MX + 1, S0 + 3, S0 + 4, S0 + 5)
    for j in range(6, 14, 4):
        a("v_max3_f32 v%d, v%d, v%d, v%d", MX, S0 + j, S0 + j + 1, MX)
        a("v_max3_f32 v%d, v%d, v%d, v%d", MX + 1, S0 + j + 2, S0 + j + 3, MX + 1)
    a("v_max3_f32 v%d, v%d, v%d, v%d", MX, S0 + 14, S0 + 15, MX)
    a("v_max_f32 v%d, v%d, v%d", MX, MX, MX + 1)
    a("v_mov_b32 v%d, v%d", MX + 1, MX)
    a("v_permlane32_swap_b32 v%d, v%d", MX, MX + 1)
    a("v_max_f32 v%d, v%d, v%d", MX, MX, MX + 1)
    a("v_add_f32 v%d, %s, v%d", MX, f32(OPT["bias"]), MX)
    split_m(MX, MX + 2, MX + 1, MX + 3)
    patch(3, "v%d" % (MX + 2), "v%d" % (MX + 3))
    a("ds_write_b128 v%d, %s offset:1024", v_t + 3, q(3, 1))
    stamp(a, 4, "p3")
    async_()
    stamp(a, 5, "p3")
    for u in range(3):
        for f in range(2):
            a("ds_read_b128 %s, v%d offset:%d", q(u, f), v_t + u, 1024 * f)
    a("s_branch L_GO")
    a.label("L_RESTART")
    a("s_mov_b32 s%d, 0", s_i)
    kvload(0); kvload(1); kvload(2)
    for u in range(4):
        a("v_mov_b32 v%d, 0xff800000", MX + u)
        patch(u, "0", "0")
    a("s_mov_b32 s%d, 0", s_i)
    a.label("L_MAXLOOP")
    kvload(3, (0, 1))
    a("s_waitcnt vmcnt(0)")
    for u in range(4):
        a("%s %s, %s, %s, 0", MF, o(u), kv(3, 0), q(u, 0))
        a("%s %s, %s, %s, %s", MF, o(u), kv(3, 1), q(u, 1), o(u))
    for u in range(4):
        for j in range(8):
            a("v_max3_f32 v%d, v%d, v%d, v%d", MX + u, O0 + 16 * u + 2 * j, O0 + 16 * u + 2 * j + 1, MX + u)
    a("s_cmp_lt_u32 s%d, 16", s_i)
    a("s_cbranch_scc1 L_MAXLOOP")
    a("s_mov_b32 s%d, 3", s_i)
    for u in range(4): a("v_mov_b32 v%d, v%d", v_t + u, MX + u)
    for u in range(4): a("v_permlane32_swap_b32 v%d, v%d", MX + u, v_t + u)
    for u in range(4): a("v_max_f32 v%d, v%d, v%d", MX + u, MX + u, v_t + u)
    a("v_lshlrev_b32 v%d, 2, v%d", v_t + 4, v_lane)
    for u in range(4):
        qtile(s_t1, u)
        a("s_lshl_b32 s%d, s%d, 10", s_t1, s_t1)
        a("s_add_u32 s%d, s%d, %d", s_t1, s_t1, QX)
        a("v_add_u32 v%d, s%d, v%d", v_t + u, s_t1, v_t + 4)
    a("s_lshl_b32 s%d, s%d, 8", s_t0, s_w)
    for u in range(4):
        a("v_add_u32 v%d, s%d, v%d", v_t + 5, s_t0, v_t + u)
        a("ds_write_b32 v%d, v%d", v_t + 5, MX + u)
    async_()
    for u in range(4):
        a("ds_read2_b32 %s, v%d offset0:0 offset1:64", vr(S0 + 4 * u, 2), v_t + u)
        a("ds_read2_b32 %s, v%d offset0:128 offset1:192", vr(S0 + 4 * u + 2, 2), v_t + u)
    a("s_waitcnt lgkmcnt(0)")
    for u in range(4):
        a("v_max3_f32 v%d, v%d, v%d, v%d", MX + u, S0 + 4 * u, S0 + 4 * u + 1, S0 + 4 * u + 2)
        a("v_max_f32 v%d, v%d, v%d", MX + u, MX + u, S0 + 4 * u + 3)
    for u in range(4):
        split_m(MX + u, v_t, v_t + 1, v_t + 2)
        patch(u, "v%d" % v_t, "v%d" % (v_t + 2))
    a.label("L_GO")
    def S(n): return S0 + 16 * (n & 1)
    def P(n): return P0 + 8 * (n & 1)
    cur = {"g0": False}
    def uo(n):
        return ((n + 3) & 3) if (cur["g0"] and 0 <= n < 4) else (n & 3)
    def qk(n, f):
        i, u = n >> 2, uo(n)
        d = vr(S(n), 16)
        return "%s %s, %s, %s, %s" % (MF, d, kv(i & 3, f), q(u, f), d if f else "0")
    def pv(n, f, init=False):
        i, u = n >> 2, uo(n)
        return "%s %s, %s, %s, %s" % (MF, o(u), kv(i & 3, 2 + f), vr(P(n) + 4 * f, 4), "0" if (init and f == 0) else o(u))
    def cwrite(u, qd): return "ds_write_b128 v%d, %s offset:%d" % (v_t + u, vr(O0 + 16 * u + 4 * qd, 4), CA + u * 4096 + qd * 1024)
    PAT = OPT.get("pat", ((4, 0), (4, 2), (4, 2), (4, 4)))
    def slot(n, g0, last, loads):
        i, u = n >> 2, n & 3
        m = [None, None] if last else [qk(n + 1, 0), qk(n + 1, 1)]
        m += [None, None] if (g0 and n == 0) else [pv(n - 1, 0, g0 and n <= 4), pv(n - 1, 1)]
        free = [[], [], [], []]
        if u == 2 and loads["wait"] is not None: free[3].append("s_waitcnt vmcnt(%d)" % loads["wait"])
        if loads["issue"]:
            st = (i + 3) & 3
            if u == 0:
                free[0].append("s_add_u32 s%d, s%d, s%d" % (s_off, s_i, s_rb))
                free[1].append("s_and_b32 s%d, s%d, 15" % (s_off, s_off))
                free[2].append("s_lshl_b32 s%d, s%d, 12" % (s_off, s_off))
                free[3].append("s_add_u32 s%d, s%d, s%d" % (s_off, s_off, s_kvb))
            if u == 1:
                free[0] += ["buffer_load_dwordx4 %s, v%d, s[%d:%d], s%d offen offset:%d sc1" % (kv(st, f), v_l16, sWS, sWS + 3, s_off, 1024 * f) for f in range(4)]
                free[1].append("s_add_u32 s%d, s%d, 1" % (s_i, s_i))
        if loads["lastg"] and n >= 14:
            for k in range(4): free[k].append(cwrite(n - 14, k))
        ne = nc = 0
        for k in range(4):
            if m[k]: a(m[k])
            for x in free[k]: a(x)
            for j in range(PAT[k][0]):
                a("v_exp_f32 v%d, v%d", S(n) + ne, S(n) + ne); ne += 1
            for j in range(PAT[k][1]):
                assert 2 * nc + 1 < ne
                a("v_cvt_pk_bf16_f32 v%d, v%d, v%d", P(n) + nc, S(n) + 2 * nc, S(n) + 2 * nc + 1); nc += 1
        assert ne == 16 and nc == 8
    stamp(a, 8); stamp(a, 6, "p3")
    cur["g0"] = True
    a(qk(0, 0)); a(qk(0, 1))
    a("s_waitcnt lgkmcnt(0)")
    for u in range(4):
        qtile(s_t1, u)
        a("s_mul_i32 s%d, s%d, 12288", s_t1, s_t1)
        a("v_add_u32 v%d, s%d, v%d", v_t + u, s_t1, v_l16)
    def group(g, last_group):
        cur["g0"] = (g == 0)
        for n in range(16):
            i = n >> 2
            issue = (not last_group) or i == 0
            wait = {0: 8, 1: 4, 2: 0, 3: None}[i] if last_group else (None if (g == 0 and i < 2) else 8)
            slot(n, g == 0, last_group and n == 15, dict(issue=issue, wait=wait, lastg=last_group))
    group(0, False)
    stamp(a, 7, "p3")
    a("s_mov_b32 s%d, 2", s_cnt)
    a.label("L_LOOP")
    group(1, False)
    a("s_sub_u32 s%d, s%d, 1", s_cnt, s_cnt)
    a("s_cmp_lg_u32 s%d, 0", s_cnt)
    a("s_cbranch_scc1 L_LOOP")
    stamp(a, 8, "p3")
    group(3, True)
    a(pv(15, 0)); a(cwrite(2, 0)); a(cwrite(2, 1)); a(pv(15, 1)); a(cwrite(2, 2)); a(cwrite(2, 3))
    stamp(a, 9); stamp(a, 9, "p3"); stamp(a, 1, "p4")
    stamp(a, 2, "p4")
    async_()
    stamp(a, 3, "p4")
    for u in range(3):
        for qd in range(4):
            a("ds_read_b128 %s, v%d offset:%d", vr(O0 + 16 * u + 4 * qd, 4), v_t + 3, CA + u * 4096 + qd * 1024)
    a("s_lshr_b32 s%d, s%d, 1", s_t1, s_rt)
    a("s_mul_i32 s%d, s%d, 72", s_t1, s_t1)
    a("s_add_u32 s%d, s%d, s%d", s_t1, s_t1, s_c)
    a("s_add_u32 s%d, s%d, 56", s_t1, s_t1)
    a("s_lshl_b32 s%d, s%d, 2", s_t1, s_t1)
    a("s_and_b32 s%d, s%d, 1", s_t0, s_rt)
    a("s_add_u32 s%d, s%d, s%d", s_t1, s_t1, s_t0)
    a("s_lshl_b32 s%d, s%d, 10", s_t1, s_t1)
    a("s_add_u32 s%d, s%d, 0x%x", s_t1, s_t1, AF)
    a("s_waitcnt lgkmcnt(8)")
    for j in range(16): a("v_add_f32 v%d, v%d, v%d", O0 + j, O0 + j, O0 + 48 + j)
    a("s_waitcnt lgkmcnt(0)")
    for j in range(16): a("v_add_f32 v%d, v%d, v%d", O0 + 16 + j, O0 + 16 + j, O0 + 32 + j)
    for j in (7,) + tuple(x for x in range(16) if x != 7):
        a("v_add_f32 v%d, v%d, v%d", O0 + j, O0 + j, O0 + 16 + j)
        if j == 0: a("v_rcp_f32 v%d, v%d", v_t + 2, O0 + 7)
    a("v_maximum3_f32 v%d, abs(v%d), abs(v%d), abs(v%d)", v_t + 3, O0, O0 + 1, O0 + 2)
    for j in range(3, 15, 2):
        a("v_maximum3_f32 v%d, abs(v%d), abs(v%d), v%d", v_t + 3, O0 + j, O0 + j + 1, v_t + 3)
    a("v_maximum3_f32 v%d, abs(v%d), abs(v%d), v%d", v_t + 3, O0 + 15, O0 + 15, v_t + 3)
    a("v_mov_b32 v%d, 0x7e800000", v_t + 4)
    a("v_cmp_nlt_f32 s[%d:%d], v%d, v%d", s_bad, s_bad + 1, v_t + 3, v_t + 4)
    for j in range(16):
        a("v_mul_f32 v%d, v%d, v%d", O0 + j, O0 + j, v_t + 2)
    for jj in range(8):
        a("v_cvt_pk_bf16_f32 v%d, v%d, v%d", P0 + jj, O0 + 2 * jj, O0 + 2 * jj + 1)
    stamp(a, 4, "p4")
    a("s_or_b32 s%d, s%d, s%d", s_bad, s_bad, s_bad + 1)
    a("s_cmp_lg_u32 s%d, 0", s_mode)
    a("s_cselect_b32 s%d, 0, s%d", s_bad, s_bad)
    a("s_cmp_lg_u32 s%d, 0", s_bad)
    a("s_cbranch_scc1 L_NOPUB")
    a("s_cmp_eq_u32 s%d, 2", s_mode)
    a("s_cbranch_scc1 L_NOPUB")
    for f in range(2):
        a("buffer_store_dwordx4 %s, v%d, s[%d:%d], s%d offen offset:%d sc1", vr(P0 + 4 * f, 4), v_l16, sWS, sWS + 3, s_t1, 2048 * f)
    stamp(a, 5, "p4")
    a.label("L_NOPUB")
    a("s_cmp_lg_u32 s%d, 0", s_mode)
    a("s_cbranch_scc1 L_AEND")
    a("v_mov_b32 v%d, %d", v_t, CNT + 4)
    a("v_mov_b32 v%d, s%d", v_t + 1, s_bad)
    a("ds_or_b32 v%d, v%d", v_t, v_t + 1)
    async_()
    a("ds_read_b32 v%d, v%d", v_t + 1, v_t)
    a("s_waitcnt lgkmcnt(0)")
    a("v_readfirstlane_b32 s%d, v%d", s_t0, v_t + 1)
    a("s_cmp_eq_u32 s%d, 0", s_t0)
    a("s_cbranch_scc1 L_AEND")
    a("s_cmp_lg_u32 s%d, 0", s_bad)
    a("s_cselect_b32 s%d, 1, 2", s_mode)
    a("s_branch L_RESTART")
    a.label("L_AEND")
    stamp_flush(a)
    a("s_endpgm")
    for n, (off, thr) in enumerate(spins):
        a.label("L_SP%d" % n)
        a("s_mov_b32 s%d, %d", s_spin, SPIN_MAX * 8)
        a.label("L_SPL%d" % n)
        peek(off)
        a("s_sub_u32 s%d, s%d, 1", s_spin, s_spin)
        a("s_cbranch_scc1 L_SPB%d" % n)
        a("s_waitcnt lgkmcnt(0)")
        a("v_cmp_gt_u32 vcc, %d, v%d", thr, v_tg)
        a("s_cbranch_vccnz L_SPL%d" % n)
        a("s_branch L_SPB%d" % n)

    mark_b = len(a.l)
    a("s_setprio %d", OPT.get("prioB1", 1))
    sW2 = 12
    NE = OPT.get("ne", 18)
    BACC, E0 = 16, 80
    HR = E0 + 8 * NE
    def wslot(i): return E0 + 8 * (i % NE)
    NH = (256 - HR) // 8
    v_xoff, v_gd, v_hd, v_qd, v_ch_, v_cq = 24, 28, 30, 34, 35, 36
    CF, CT, CA5 = 40, 60, 64
    v_rw, v_sw, v_sr, v_a0, v_a1, v_xo, v_oo = 11, 12, 13, 14, 15, 3, 0
    v_cr, v_rw2 = 10, 8
    NON, ZR, TB = 36, 40, 44
    s_xo, s_gb, s_hb, s_ab, s_rb64, s_cb, s_k, s_kr = 60, 61, 62, 63, 4, 5, 6, 7
    s_cph, s_stg, s_w2b, s_xrow, s_qb_ = 57, 70, 71, 68, 69
    sXX = 72
    a("s_and_b32 s%d, s%d, 3", s_w, s_w)
    a("s_lshl_b32 s%d, s%d, 2", s_xrow, s_rb)
    a("s_add_u32 s%d, s%d, s%d", s_xrow, s_xrow, s_w)
    a("s_mul_i32 s%d, s%d, %d", s_xrow, s_xrow, 32 * 896)
    a("v_lshrrev_b32 v17, 3, v%d", v_lane)
    a("v_mul_u32_u24 v17, 896, v17")
    a("v_lshrrev_b32 v16, 4, v%d", v_lane)
    a("v_and_b32 v19, 7, v%d", v_lane)
    a("v_xor_b32 v18, v16, v19")
    a("v_lshl_add_u32 v%d, v18, 4, v17", v_xoff)
    a("v_xor_b32 v%d, 64, v%d", v_xoff + 1, v_xoff)
    a("v_add_u32 v%d, %d, v%d", v_xoff + 2, 2 * (7168 - 1024), v_xoff)
    a("v_add_u32 v%d, %d, v%d", v_xoff + 3, 3 * (7168 - 1024), v_xoff + 1)
    a("v_add_u32 v%d, %d, v%d", v_xoff + 1, 1 * (7168 - 1024), v_xoff + 1)
    a("v_lshl_add_u32 v17, v%d, 2, v%d", v_g, v_rr)
    a("v_mul_u32_u24 v17, 2688, v17")
    a("v_mul_u32_u24 v18, 56, v%d", v_ch)
    a("v_lshl_add_u32 v18, v%d, 4, v18", v_c)
    a("v_add_u32 v%d, v17, v18", v_gd)
    a("v_add_u32 v%d, %d, v%d", v_gd + 1, 8 * 2688 - 1024, v_gd)
    a("s_and_b32 s%d, s%d, 14", s_t0, s_c)
    a("s_mul_i32 s%d, s%d, 56", s_t0, s_t0)
    a("s_and_b32 s%d, s%d, 1", s_t1, s_c)
    a("s_add_u32 s%d, s%d, 1", s_t1, s_t1)
    a("s_mul_i32 s%d, s%d, 896", s_t1, s_t1)
    a("s_add_u32 s%d, s%d, s%d", s_t0, s_t0, s_t1)
    a("s_mul_i32 s%d, s%d, %d", s_qb_, s_w, 16 * 2688)
    a("s_add_u32 s%d, s%d, s%d", s_gb, s_qb_, s_t0)
    stamp(a, 1, "b0")
    a("s_waitcnt lgkmcnt(0)")
    stamp(a, 2, "b0")
    srd(a, sXX, 40, XBYTES)
    srd(a, sW, 42, 448 * 1344 * 2)
    vm = VM(a)
    def I(n):
        if n < 7:
            nxt7(s_cp, n == 0)
            a("s_lshl_b32 s%d, s%d, 7", s_t0, s_cp)
            a("s_add_u32 s%d, s%d, s%d", s_t0, s_t0, s_xrow)
            a("s_lshl_b32 s%d, s%d, 12", s_t1, s_w)
            a("s_add_u32 m0, s%d, %d", s_t1, slot_of(n))
            for i in range(4):
                a("buffer_load_dwordx4 v%d, s[%d:%d], s%d offen offset:%d lds", v_xoff + i, sXX, sXX + 3, s_t0, 1024 * i); vm.issue(n)
            a("s_mul_i32 s%d, s%d, %d", s_t0, s_cp, 64 * 2688)
            a("s_add_u32 s%d, s%d, s%d", s_t0, s_t0, s_gb)
            a("s_lshl_b32 s%d, s%d, 11", s_t1, s_w)
            a("s_add_u32 m0, s%d, %d", s_t1, slot_of(n) + 16384)
            for i in range(2):
                a("buffer_load_dwordx4 v%d, s[%d:%d], s%d offen offset:%d lds", v_gd + i, sW, sW + 3, s_t0, 1024 * i); vm.issue(n)
        else:
            nxt7(s_cp, n == 7)
            a("s_mul_i32 s%d, s%d, %d", s_t0, s_cp, 64 * 3584)
            a("s_add_u32 s%d, s%d, s%d", s_t0, s_t0, s_hb)
            a("s_mul_i32 s%d, s%d, 5120", s_t1, s_w)
            a("s_add_u32 m0, s%d, %d", s_t1, slot_of(n))
            for i in range(4):
                a("buffer_load_dwordx4 v%d, s[%d:%d], s%d offen offset:%d lds", v_hd + i, sW1, sW1 + 3, s_t0, 1024 * i); vm.issue(n)
            a("s_mul_i32 s%d, s%d, %d", s_t0, s_cp, 64 * 2688)
            a("s_add_u32 s%d, s%d, s%d", s_t0, s_t0, s_qb_)
            a("s_add_u32 m0, s%d, %d", s_t1, slot_of(n) + 4096)
            a("buffer_load_dwordx4 v%d, s[%d:%d], s%d offen lds", v_qd, sW, sW + 3, s_t0); vm.issue(n)
    LEAD = OPT.get("lead", 3)
    for n in range(2):
        I(n); stamp(a, 3 + n, "b0")
    a("s_and_b32 s%d, s2, 3", s_rb64)
    a("s_lshl_b32 s%d, s%d, 3", s_rb64, s_rb64)
    a("s_bfe_u32 s%d, s2, 0x30003", s_t0)
    a("s_add_u32 s%d, s%d, s%d", s_rb64, s_rb64, s_t0)
    a("s_and_b32 s%d, s2, 4", s_cb)
    a("s_lshr_b32 s%d, s2, 6", s_t0)
    a("s_add_u32 s%d, s%d, s%d", s_cb, s_cb, s_t0)
    a("v_mul_u32_u24 v17, 3584, v%d", v_rr)
    a("v_lshl_add_u32 v17, v16, 6, v17")
    a("v_lshl_add_u32 v%d, v%d, 4, v17", v_hd, v_c)
    for i in range(1, 4): a("v_add_u32 v%d, %d, v%d", v_hd + i, i * (4 * 3584 - 1024), v_hd)
    a("s_mul_i32 s%d, s%d, %d", s_hb, s_w, 16 * 3584)
    a("s_lshl_b32 s%d, s%d, 8", s_t0, s_c)
    a("s_add_u32 s%d, s%d, s%d", s_hb, s_hb, s_t0)
    a("s_cmp_ge_u32 s%d, 14", s_c)
    a("s_cselect_b32 s%d, 0x4000000, s%d", s_hb, s_hb)
    a("v_lshrrev_b32 v17, 2, v%d", v_lane)
    a("v_mul_u32_u24 v17, 2688, v17")
    a("v_lshl_add_u32 v%d, v%d, 4, v17", v_qd, v_c)
    a("s_mul_i32 s%d, s%d, 56", s_t0, s_c)
    a("s_add_u32 s%d, s%d, s%d", s_qb_, s_qb_, s_t0)
    a("v_lshl_add_u32 v16, v%d, 2, v%d", v_g, v_rr)
    a("v_mul_u32_u24 v17, 896, v16")
    a("v_lshlrev_b32 v18, 4, v%d", v_c)
    a("v_lshl_add_u32 v19, v%d, 6, v18", v_ch)
    a("s_lshr_b32 s%d, s%d, 1", s_t0, s_w)
    a("s_lshl_b32 s%d, s%d, 6", s_t0, s_t0)
    a("v_xor_b32 v19, s%d, v19", s_t0)
    a("v_add_u32 v%d, v17, v19", v_rw)
    a("s_lshl_b32 s%d, s%d, 13", s_stg, s_w)
    a("s_add_u32 s%d, s%d, %d", s_stg, s_stg, HO)
    a("s_mov_b32 s%d, s%d", s_t0, s_stg)
    a("v_add_u32 v%d, s%d, v%d", v_sw, s_t0, v_l16)
    a("v_lshl_add_u32 v%d, v%d, 9, v%d", v_sr, v_g, v_trp)
    a("v_add_u32 v%d, s%d, v%d", v_cr, s_t0, v_sr)
    a("v_add_u32 v%d, s%d, v%d", v_sr, s_stg, v_sr)
    a("v_mul_u32_u24 v17, 896, v%d", v_g)
    a("v_sub_u32 v%d, v%d, v17", v_rw2, v_rw)
    a("s_and_b32 s%d, s%d, 3", s_k, s_cb)
    a("s_mul_i32 s%d, s%d, 7", s_k, s_k)
    a("s_and_b32 s%d, s%d, 7", s_t0, s_rb64)
    a("s_mul_i32 s%d, s%d, 7", s_t0, s_t0)
    a("s_lshr_b32 s%d, s%d, 1", s_t0, s_t0)
    a("s_add_u32 s%d, s%d, s%d", s_k, s_k, s_t0)
    a("s_sub_u32 s%d, s%d, 28", s_t0, s_k)
    a("s_cmp_ge_u32 s%d, 28", s_k)
    a("s_cselect_b32 s%d, s%d, s%d", s_k, s_t0, s_k)
    a("s_mov_b32 s%d, s%d", s_kr, s_k)
    a("s_mul_i32 s%d, s%d, %d", s_w2b, s_w, 28 * 16 * 896)
    a("s_lshl_b32 s%d, s%d, 7", s_t0, s_cb)
    a("s_add_u32 s%d, s%d, s%d", s_w2b, s_w2b, s_t0)
    a("s_cmp_ge_u32 s%d, 7", s_cb)
    a("s_cselect_b32 s%d, 0x4000000, s%d", s_w2b, s_w2b)
    srd(a, sW1, 48, 448 * 1792 * 2)
    srd(a, sW2, 50, 1792 * 448 * 2)
    srd(a, sWS, 46, WS_END)
    srd(a, sDBG, 54, 256)
    a("s_or_b32 s%d, s2, s%d", s_t0, s_w)
    a("s_cmp_lg_u32 s%d, 0", s_t0)
    a("s_cbranch_scc1 L_BNW")
    a("s_memrealtime s[%d:%d]", s_non, s_non + 1)
    a("v_mov_b32 v18, 0")
    a("s_waitcnt lgkmcnt(0)")
    a("s_or_b32 s%d, s%d, 1", s_non, s_non)
    a("v_mov_b32 v16, s%d", s_non)
    a("v_mov_b32 v17, s%d", s_non + 1)
    a("s_mov_b64 exec, 1")
    a("buffer_store_dwordx2 v[16:17], v18, s[%d:%d], 0 offen sc1", sDBG, sDBG + 3)
    a("s_mov_b64 exec, -1")
    a.label("L_BNW")
    def prefetch():
        if OPT.get("wpf", True):
            a("s_lshl_b32 s%d, s2, 2", s_t0)
            a("s_add_u32 s%d, s%d, s%d", s_t0, s_t0, s_w)
            a("s_lshl_b32 s%d, s%d, 10", s_t0, s_t0)
            a("s_sub_u32 s%d, 0x%x, s%d", s_t1, 2047 * 1024, s_t0)
            a("buffer_load_dwordx4 v[232:235], v%d, s[%d:%d], s%d offen", v_l16, sW1, sW1 + 3, s_t0); vm.issue("pf")
            a("buffer_load_dwordx4 v[236:239], v%d, s[%d:%d], s%d offen", v_l16, sW1, sW1 + 3, s_t1); vm.issue("pf")
    def prefetch2():
        if OPT.get("wpf", True):
            a("s_lshl_b32 s%d, s2, 2", s_t0)
            a("s_add_u32 s%d, s%d, s%d", s_t0, s_t0, s_w)
            a("s_lshl_b32 s%d, s%d, 10", s_t0, s_t0)
            a("s_add_u32 s%d, s%d, 0x100000", s_t1, s_t0)
            a("buffer_load_dwordx4 v[224:227], v%d, s[%d:%d], s%d offen", v_l16, sW2, sW2 + 3, s_t0); vm.issue("pf")
            a("buffer_load_dwordx4 v[228:231], v%d, s[%d:%d], s%d offen", v_l16, sW2, sW2 + 3, s_t1); vm.issue("pf")
            srd(a, 72, 44, 448 * 448 * 2)
            a("s_sub_u32 s%d, 0x%x, s%d", s_t1, 1023 * 1024, s_t0)
            a("buffer_load_dwordx4 v[240:243], v%d, s[72:75], s%d offen", v_l16, s_t1); vm.issue("pf")
    nraw = [0]
    def waddr():
        a("s_mul_i32 s%d, s%d, %d", s_t0, s_kr, 16 * 896)
        a("s_add_u32 s%d, s%d, s%d", s_t0, s_t0, s_w2b)
        a("s_add_u32 s%d, s%d, %d", s_t1, s_t0, 8 * 896)
        a("s_add_u32 s%d, s%d, 1", s_kr, s_kr)
        a("s_cmp_eq_u32 s%d, 28", s_kr)
        a("s_cselect_b32 s%d, 0, s%d", s_kr, s_kr)
    def R(cnt):
        for _ in range(cnt):
            e = nraw[0]
            if e >= NE: return
            nraw[0] += 1
            waddr()
            a("buffer_load_dwordx4 %s, v%d, s[%d:%d], s%d offen", vr(E0 + 8 * e, 4), v_rw, sW2, sW2 + 3, s_t0); vm.issue(("R", e))
            a("buffer_load_dwordx4 %s, v%d, s[%d:%d], s%d offen", vr(E0 + 8 * e + 4, 4), v_rw, sW2, sW2 + 3, s_t1); vm.issue(("R", e))
    bar = lambda: a("s_barrier")
    rp = OPT.get("rplan", (0, 6))
    bprio = [OPT.get("prioB1", 1)]
    def hi():
        if OPT.get("synchi", 1): a("s_setprio 3")
    def lo():
        if OPT.get("synchi", 1): a("s_setprio %d", bprio[0])
    npoll = [0]
    def poll(v_addr, s_base, slp, dst):
        n = npoll[0]; npoll[0] += 1
        hi()
        a("s_mov_b32 s%d, %d", s_spin, SPIN_MAX)
        a.label("L_BP%d" % n)
        a("buffer_load_dwordx2 %s, v%d, s[%d:%d], s%d offen sc1", vr(dst, 2), v_addr, sWS, sWS + 3, s_base)
        a("s_sub_u32 s%d, s%d, 1", s_spin, s_spin)
        a("s_cbranch_scc1 L_BPX%d" % n)
        a("s_waitcnt vmcnt(0)")
        a("v_cmp_ne_u64 vcc, s[%d:%d], %s", s_non, s_non + 1, vr(dst, 2))
        a("s_cbranch_vccz L_BPX%d" % n)
        if slp: a("s_sleep %d", slp)
        a("s_branch L_BP%d" % n)
        a.label("L_BPX%d" % n)
        lo()
        vm.done = len(vm.ops)
    nls = [0]
    def ldswait(addr_off, thr, slp=0):
        n = nls[0]; nls[0] += 1
        hi()
        a("s_mov_b32 s%d, %d", s_spin, SPIN_MAX * 8)
        a.label("L_BL%d" % n)
        a("ds_read_b32 v%d, v%d offset:%d", addr_off[2], addr_off[0], addr_off[1])
        a("s_sub_u32 s%d, s%d, 1", s_spin, s_spin)
        a("s_cbranch_scc1 L_BLX%d" % n)
        a("s_waitcnt lgkmcnt(0)")
        a("v_readfirstlane_b32 s%d, v%d", s_t0, addr_off[2])
        a("s_cmp_ge_u32 s%d, %d", s_t0, thr)
        a("s_cbranch_scc1 L_BLX%d" % n)
        if slp: a("s_sleep %d", slp)
        a("s_branch L_BL%d" % n)
        a.label("L_BLX%d" % n)
        lo()
    nfs = [0]
    def flagst(s_addr):
        n = nfs[0]; nfs[0] += 1
        hi()
        a("v_mov_b32 v22, %d", CNT + 96 + 4 * n)
        a("v_mov_b32 v23, 1")
        a("s_mov_b64 exec, 1")
        a("ds_add_rtn_u32 v23, v22, v23")
        a("s_mov_b64 exec, -1")
        a("s_waitcnt lgkmcnt(0)")
        a("v_readfirstlane_b32 s%d, v23", s_t0)
        a("s_cmp_lg_u32 s%d, 3", s_t0)
        a("s_cbranch_scc1 L_FS%d" % n)
        a("s_mov_b64 exec, 0xff")
        a("buffer_store_dwordx4 %s, v%d, s[%d:%d], s%d offen sc1", vr(NON, 4), v_l16, sWS, sWS + 3, s_addr)
        a("s_mov_b64 exec, -1")
        a.label("L_FS%d" % n)
        lo()
    for i in range(4): a("v_mov_b32 v%d, 0", ZR + i)
    s_rt, s_p, s_q, s_r = 64, 65, 66, 67
    a("s_lshl_b32 s%d, s%d, 2", s_t0, s_w)
    a("s_add_u32 s%d, s%d, %d", s_t0, s_t0, CNT + 16)
    a("v_mov_b32 v19, s%d", s_t0)
    a("v_lshlrev_b32 v35, 2, v%d", v_c)
    a("v_add_u32 v35, %d, v35", CNT)
    def landed(n):
        vm.wait(n)
        hi()
        a("v_mov_b32 v21, %d", n + 1)
        a("ds_write_b32 v19, v21 offset:48")
        lo()
    npg = [0]
    def prg(thr, off=80):
        n = npg[0]; npg[0] += 1
        hi()
        a("s_mov_b32 s%d, %d", s_spin, SPIN_MAX * 8)
        a.label("L_PG%d" % n)
        a("ds_read_b32 v21, v35 offset:%d", off)
        a("s_sub_u32 s%d, s%d, 1", s_spin, s_spin)
        a("s_cbranch_scc1 L_PGX%d" % n)
        a("s_waitcnt lgkmcnt(0)")
        a("v_cmp_gt_u32 vcc, %d, v21", thr)
        a("s_cbranch_vccz L_PGX%d" % n)
        a("s_sleep 2")
        a("s_branch L_PG%d" % n)
        a.label("L_PGX%d" % n)
        lo()
    nxt = 2
    plan = OPT["iplan"]
    for n in range(7):
        if n == 0: stamp(a, 5, "b0")
        vm.wait(n)
        if n < 2: stamp(a, 6 + 2 * n, "b0")
        bar()
        if n < 2: stamp(a, 7 + 2 * n, "b0")
        if n == 0: hold_mark(a, 1)
        for _ in range(plan[n]):
            assert nxt - 5 <= n
            I(nxt); nxt += 1
        if n == OPT["pfb"]: prefetch2()
        if n == 3:
            a("buffer_load_dwordx2 %s, v%d, s[%d:%d], 0 offen sc1", vr(NON, 2), ZR, sDBG, sDBG + 3); vm.issue("non")
    assert nxt >= 10
    def trread(dst, base, off):
        for ct in range(2):
            for h in range(2):
                a("ds_read_b64_tr_b16 %s, v%d offset:%d", vr(dst + 4 * ct + 2 * h, 2), base, off + h * 1024 + ct * 256)
    ncv = [0]
    def convert(cnt):
        for _ in range(cnt):
            e = ncv[0]
            if e >= nraw[0]: return
            ncv[0] += 1
            vm.wait(("R", e))
            for h in range(2):
                a("ds_write_b128 v%d, %s offset:%d", v_sw, vr(E0 + 8 * e + 4 * h, 4), h * 1024)
            trread(E0 + 8 * e, v_cr, 0)
            a("s_waitcnt lgkmcnt(6)")
    a("s_lshl_b32 s%d, s%d, 2", s_rt, s_rb)
    a("s_add_u32 s%d, s%d, s%d", s_rt, s_rt, s_w)
    a("s_and_b32 s%d, s%d, 14", s_p, s_c)
    a("s_lshl_b32 s%d, s%d, 6", s_p, s_p)
    a("s_add_u32 s%d, s%d, s%d", s_p, s_p, s_rt)
    a("s_lshl_b32 s%d, s%d, 1", s_p, s_p)
    a("s_and_b32 s%d, s%d, 1", s_t0, s_c)
    a("s_add_u32 s%d, s%d, s%d", s_p, s_p, s_t0)
    a("s_lshl_b32 s%d, s%d, 11", s_p, s_p)
    a("s_add_u32 s%d, s%d, 0x%x", s_p, s_p, KV)
    a("s_add_u32 s%d, s%d, 262144", s_q, s_p)
    a("s_lshr_b32 s%d, s%d, 1", s_r, s_rt)
    a("s_mul_i32 s%d, s%d, 72", s_r, s_r)
    a("s_add_u32 s%d, s%d, s%d", s_r, s_r, s_c)
    a("s_add_u32 s%d, s%d, 56", s_r, s_r)
    a("s_lshl_b32 s%d, s%d, 2", s_r, s_r)
    a("s_and_b32 s%d, s%d, 1", s_t0, s_rt)
    a("s_add_u32 s%d, s%d, s%d", s_r, s_r, s_t0)
    a("s_lshl_b32 s%d, s%d, 10", s_r, s_r)
    a("s_add_u32 s%d, s%d, 0x%x", s_r, s_r, AF)
    a("s_lshl_b32 s%d, s%d, 12", s_t0, s_w)
    a("v_add_u32 v16, s%d, v%d", s_t0, v_l16)
    vm.wait(9)
    a("s_mov_b32 s%d, %d", s_spin, SPIN_MAX)
    a.label("L_BN")
    a("v_readfirstlane_b32 s%d, v%d", s_non, NON)
    a("v_readfirstlane_b32 s%d, v%d", s_non + 1, NON + 1)
    a("s_cmp_lg_u32 s%d, 0", s_non)
    a("s_cbranch_scc1 L_BNX")
    a("buffer_load_dwordx2 %s, v%d, s[%d:%d], 0 offen sc1", vr(NON, 2), ZR, sDBG, sDBG + 3)
    a("s_sub_u32 s%d, s%d, 1", s_spin, s_spin)
    a("s_cbranch_scc1 L_BNX")
    a("s_waitcnt vmcnt(0)")
    a("s_branch L_BN")
    a.label("L_BNX")
    a("v_mov_b32 v%d, v%d", NON + 2, NON)
    a("v_mov_b32 v%d, v%d", NON + 3, NON + 1)
    bar()
    stamp(a, 2, "b1"); stamp(a, 1, "b2"); hold_mark(a, 2)
    for i in range(4): a("ds_read_b128 %s, v16 offset:%d", vr(TB + 4 * i, 4), 1024 * i)
    for i in range(4):
        a("s_waitcnt lgkmcnt(%d)", 3 - i)
        a("buffer_store_dwordx4 %s, v%d, s[%d:%d], s%d offen offset:%d sc1", vr(TB + 4 * i, 4), v_l16, sWS, sWS + 3, s_q if i >> 1 else s_p, 1024 * (i & 1)); vm.issue("kv")
    rp = OPT.get("rplan", (0, 2, 2, 2))
    while nxt < 12: I(nxt); nxt += 1
    landed(11)
    a("s_lshl_b32 s%d, s%d, 4", s_p, s_c)
    a("s_add_u32 s%d, s%d, s%d", s_p, s_p, s_rb)
    a("s_lshl_b32 s%d, s%d, 7", s_p, s_p)
    a("s_lshl_b32 s%d, s%d, 4", s_q, s_rb)
    a("s_add_u32 s%d, s%d, s%d", s_q, s_q, s_c)
    a("s_lshl_b32 s%d, s%d, 7", s_q, s_q)
    a("s_add_u32 s%d, s%d, 0x%x", s_xo, s_q, FO)
    a("s_add_u32 s%d, s%d, 0x%x", s_q, s_q, FH)
    stamp(a, 2, "b2")
    vm.wait("kv")
    stamp(a, 3, "b2")
    flagst(s_p)
    stamp(a, 5, "b1"); stamp(a, 4, "b2")
    prg(12, 64)
    I(12)
    prg(8); I(13)
    stamp(a, 5, "b2")
    for f in range(2):
        a("buffer_store_dwordx4 %s, v%d, s[%d:%d], s%d offen offset:%d sc1", vr(ZR, 4), v_l16, sWS, sWS + 3, s_r, 2048 * f); vm.issue("oz")
    a("v_lshlrev_b32 v16, 7, v%d", v_c)
    a("v_bfe_u32 v17, v%d, 2, 1", v_lane)
    a("v_lshl_add_u32 v16, v17, 11, v16")
    a("s_and_b32 s%d, s%d, 14", s_p, s_c)
    a("s_lshl_b32 s%d, s%d, 2", s_p, s_p)
    a("s_add_u32 s%d, s%d, s%d", s_p, s_p, s_w)
    a("s_lshl_b32 s%d, s%d, 9", s_p, s_p)
    a("s_lshl_b32 s%d, s%d, 2", s_r, s_c)
    a("s_add_u32 s%d, s%d, s%d", s_r, s_r, s_w)
    a("s_lshl_b32 s%d, s%d, 16", s_r, s_r)
    a("s_add_u32 s%d, s%d, 0x%x", s_r, s_r, KV)
    a("s_lshl_b32 s%d, s%d, 13", s_t0, s_w)
    a("v_add_u32 v17, s%d, v%d", s_t0, v_l16)
    kvs2_base(s_t0)
    a("v_add_u32 v18, s%d, v%d", s_t0, v_l16)
    a("v_add_u32 v20, %d, v17", HO)
    stamp(a, 6, "b2")
    landed(13)
    stamp(a, 7, "b2")
    KB = [TB + 4 * i for i in range(9)] + [24, 28, ZR]
    def kbloads(count):
        for st in range(3):
            a("s_add_u32 s%d, s%d, %d", s_t0, s_rb, st)
            a("s_and_b32 s%d, s%d, 15", s_t0, s_t0)
            a("s_lshl_b32 s%d, s%d, 12", s_t0, s_t0)
            a("s_add_u32 s%d, s%d, s%d", s_t0, s_t0, s_r)
            for f in range(4):
                a("buffer_load_dwordx4 %s, v%d, s[%d:%d], s%d offen offset:%d sc1", vr(KB[4 * st + f], 4), v_l16, sWS, sWS + 3, s_t0, 1024 * f)
                if count: vm.issue(("kb", 4 * st + f))
    poll(16, s_p, OPT.get("sleepk", 2), 22)
    stamp(a, 8, "b2")
    kbloads(True)
    stamp(a, 9, "b2")
    stamp(a, 1); stamp(a, 1, "b1")
    if OPT["pfb"] == 99: prefetch2()
    R(rp[3])
    flagst(s_xo)
    prg(11)
    for i in range(12):
        vm.wait(("kb", i))
        if i < 8: a("ds_write_b128 v17, %s offset:%d", vr(KB[i], 4), KVS + 1024 * i)
        else: a("ds_write_b128 v18, %s offset:%d", vr(KB[i], 4), 1024 * (i - 8))
        if OPT.get("rmix", 0) and i % 2 == 1: R(1)
    a("v_mov_b32 v21, 1")
    a("ds_write_b32 v19, v21")
    stamp(a, 3, "b1")
    R(NE)
    a("s_lshr_b32 s%d, s%d, 1", s_t0, s_rt)
    a("s_mul_i32 s%d, s%d, 18", s_p, s_t0)
    a("s_add_u32 s%d, s%d, s%d", s_p, s_p, s_c)
    a("s_lshl_b32 s%d, s%d, 4", s_p, s_p)
    a("s_and_b32 s%d, s%d, 1", s_t1, s_rt)
    a("s_add_u32 s%d, s%d, s%d", s_p, s_p, s_t1)
    a("s_lshl_b32 s%d, s%d, 10", s_p, s_p)
    a("s_add_u32 s%d, s%d, 0x%x", s_p, s_p, AF)
    a("s_cmp_ge_u32 s%d, 14", s_c)
    a("s_cselect_b32 s%d, 0x4000000, s%d", s_p, s_p)
    ldswait((19, 16, 21), 1, 1)
    if OPT.get("prioBh") is not None: a("s_setprio %d", OPT["prioBh"]); bprio[0] = OPT["prioBh"]
    stamp(a, 4, "b1"); hold_mark(a, 3)
    for i in range(8): a("ds_read_b128 %s, v20 offset:%d", vr(TB + 4 * i, 4), 1024 * i)
    for i in range(8):
        a("s_waitcnt lgkmcnt(%d)", 7 - i)
        a("buffer_store_dwordx4 %s, v%d, s[%d:%d], s%d offen offset:%d sc1", vr(TB + 4 * i, 4), v_l16, sWS, sWS + 3, s_p, 2048 * (i & 1)); vm.issue("hs")
        if i & 1 and i < 7: a("s_add_u32 s%d, s%d, 4096", s_p, s_p)
    convert(OPT.get("cvh", 5))
    vm.wait("hs"); flagst(s_q)
    stamp(a, 6, "b1")
    a("s_setprio %d", OPT.get("prioB2", 0)); bprio[0] = OPT.get("prioB2", 0)
    a("s_cmp_ge_u32 s%d, 7", s_cb)
    a("s_cbranch_scc1 L_END")
    a("s_and_b32 s%d, s%d, 1", s_t0, s_w)
    a("s_lshl_b32 s%d, s%d, 10", s_t0, s_t0)
    a("v_add_u32 v%d, s%d, v%d", v_a0, s_t0, v_l16)
    a("v_xor_b32 v%d, 1024, v%d", v_a1, v_a0)
    a("v_and_b32 v%d, 31, v%d", v_xo, v_lane)
    a("v_mul_u32_u24 v%d, 896, v%d", v_xo, v_xo)
    a("v_lshl_add_u32 v%d, v%d, 4, v%d", v_oo, v_g, v_xo)
    a("v_lshl_add_u32 v%d, v%d, 3, v%d", v_xo, v_g, v_xo)
    a("s_lshl_b32 s%d, s%d, 1", s_xo, s_rb64)
    a("s_and_b32 s%d, s%d, 1", s_t0, s_w)
    a("s_add_u32 s%d, s%d, s%d", s_xo, s_xo, s_t0)
    a("s_mul_i32 s%d, s%d, %d", s_xo, s_xo, 32 * 896)
    a("s_lshl_b32 s%d, s%d, 1", s_t0, s_cb)
    a("s_lshr_b32 s%d, s%d, 1", s_t1, s_w)
    a("s_add_u32 s%d, s%d, s%d", s_t0, s_t0, s_t1)
    a("s_lshl_b32 s%d, s%d, 6", s_t0, s_t0)
    a("s_add_u32 s%d, s%d, s%d", s_xo, s_xo, s_t0)
    srd(a, sW, 40, XBYTES)
    a("s_mul_i32 s%d, s%d, 28", s_t0, s_w)
    a("s_mul_i32 s%d, s%d, 144", s_ab, s_rb64)
    a("s_add_u32 s%d, s%d, s%d", s_ab, s_ab, s_t0)
    a("s_lshl_b32 s%d, s%d, 11", s_ab, s_ab)
    a("s_add_u32 s%d, s%d, 0x%x", s_ab, s_ab, AF)
    a("s_lshl_b32 s%d, s%d, 11", s_k, s_k)
    for q4 in range(4):
        a("buffer_load_dwordx2 %s, v%d, s[%d:%d], s%d offen offset:%d", vr(HR + 2 * q4, 2), v_xo, sW, sW + 3, s_xo, 16 * q4); vm.issue("x")
    convert(NE)
    stamp(a, 2)
    vm.wait("x")
    for jj in range(8):
        a("v_lshlrev_b32 v%d, 16, v%d", BACC + 2 * jj, HR + jj)
        a("v_and_b32 v%d, s%d, v%d", BACC + 2 * jj + 1, s_mask, HR + jj)
    a("s_waitcnt lgkmcnt(0)")
    NL = 28 - NE
    def L(i):
        if OPT.get("noBload"): vm.issue(("L", i)); vm.done = len(vm.ops); return
        if i < NL:
            waddr(); sr_ = sW2
        else:
            k_ = i - NL; sr_ = sW1
            a("s_mul_i32 s%d, s%d, %d", s_t0, s_w, 112 * 896)
            a("s_lshl_b32 s%d, s%d, 7", s_t1, s_cb)
            a("s_add_u32 s%d, s%d, s%d", s_t0, s_t0, s_t1)
            a("s_add_u32 s%d, s%d, %d", s_t0, s_t0, (28 * (k_ >> 1) + 14 * (k_ & 1)) * 896)
            a("s_add_u32 s%d, s%d, %d", s_t1, s_t0, 8 * 896)
        for h in range(2):
            a("s_add_u32 m0, s%d, %d", s_stg, sloff(i) + h * 1024)
            a("buffer_load_dwordx4 v%d, s[%d:%d], s%d offen lds", v_rw2 if (h and i >= NL) else v_rw, sr_, sr_ + 3, s_t1 if h else s_t0); vm.issue(("L", i))
    a("v_lshlrev_b32 v9, 7, v%d", v_c)
    a("s_lshr_b32 s%d, s%d, 1", s_gb, s_rb64)
    a("s_lshl_b32 s%d, s%d, 11", s_gb, s_gb)
    a("s_mul_i32 s%d, s%d, 7", s_t0, s_w)
    a("s_lshr_b32 s%d, s%d, 1", s_t0, s_t0)
    a("s_lshl_b32 s%d, s%d, 7", s_t0, s_t0)
    a("s_add_u32 s%d, s%d, s%d", s_cph, s_gb, s_t0)
    a("s_add_u32 s%d, s%d, 0x%x", s_cph, s_cph, FH)
    a("s_lshl_b32 s%d, s%d, 9", s_t1, s_w)
    a("s_sub_u32 s%d, s%d, s%d", s_t1, s_t1, s_t0)
    a("s_add_u32 s%d, s%d, 0x%x", s_t1, s_t1, FO - FH)
    a("v_bfe_u32 v%d, v%d, 2, 1", HR + 10, v_lane)
    a("v_mul_lo_u32 v%d, v%d, s%d", HR + 10, HR + 10, s_t1)
    a("v_add_u32 v9, v9, v%d", HR + 10)
    srd(a, sW1, 44, 448 * 448 * 2)
    PL = OPT.get("prel", 8)
    a("v_mov_b32 v12, %d", CNT)
    ldswait((12, 0, 10), 4, 1)
    for i in range(PL): L(i)
    poll(9, s_cph, OPT["sleep"], HR + 8)
    stamp(a, 3)
    a("s_setprio %d", OPT.get("prioB3", 0)); bprio[0] = OPT.get("prioB3", 0)
    def hload(k):
        if OPT.get("noBload"): vm.issue(("h", k)); vm.done = len(vm.ops); return
        a("s_add_u32 s%d, s%d, s%d", s_hb, s_ab, s_k)
        for f, v in ((0, v_a0), (1, v_a1)):
            a("buffer_load_dwordx4 %s, v%d, s[%d:%d], s%d offen sc1", vr(HR + 8 * (k % NH) + 4 * f, 4), v, sWS, sWS + 3, s_hb); vm.issue(("h", k))
        a("s_add_u32 s%d, s%d, 2048", s_k, s_k)
        a("s_cmp_eq_u32 s%d, %d", s_k, 28 * 2048)
        a("s_cselect_b32 s%d, 0, s%d", s_k, s_k)
    def mf(Areg, Breg, first):
        for ct in range(2):
            for rt in range(2):
                l = 2 * ct + rt
                d = vr(BACC + 16 * l, 16)
                a("%s %s, %s, %s, %s", MF, d, vr(Breg + 4 * ct, 4), vr(Areg + 4 * rt, 4), "0" if (first and l) else d)
    for k in range(NH - 1): hload(k)
    nl = PL
    def mf1(Areg, Breg, first, l):
        if OPT.get("noBmfma"): return
        ct, rt = l >> 1, l & 1
        d = vr(BACC + 16 * l, 16)
        tog = OPT.get("tog", 0)
        if tog and l != 3: a("s_setprio 0")
        a("%s %s, %s, %s, %s", MF, d, vr(Breg + 4 * ct, 4), vr(Areg + 4 * rt, 4), "0" if (first and l) else d)
        if tog and l != 2: a("s_setprio 3")
    for k in range(28):
        vm.wait(("h", k))
        wreg = wslot(k)
        hreg = HR + 8 * (k % NH)
        j = k - (NSL - PL) if PL < NSL else k - 1
        mf1(hreg, wreg, k == 0, 0)
        if k + NH - 1 < 28: hload(k + NH - 1)
        mf1(hreg, wreg, k == 0, 1)
        if 0 <= j < NL + 8:
            vm.wait(("L", j))
            trread(wslot(NE + j), v_sr, sloff(j))
        mf1(hreg, wreg, k == 0, 2)
        mf1(hreg, wreg, k == 0, 3)
        if 0 <= j < NL + 8: a("s_waitcnt lgkmcnt(0)")
        if nl < NL + 8 and nl - NSL <= j:
            L(nl); nl += 1
        if k == 14: stamp(a, 4)
    stamp(a, 5)
    a("v_mov_b32 v13, 1")
    a("s_mov_b64 exec, 1")
    a("ds_add_u32 v12, v13 offset:8")
    a("s_mov_b64 exec, -1")
    assert nl == NL + 8
    used = {wslot(28 + i) for i in range(8)}
    OFB = [r_ for r_ in range(E0, 256, 8) if r_ not in used and r_ != HR + 8][:8]
    for i in range(8):
        for ct in range(2):
            rg = wslot(28 + i) + 4 * ct + 3
            a("v_and_b32 v%d, 0xffff, v%d", rg, rg)
    a("s_lshl_b32 s%d, s%d, 10", s_t0, s_w)
    a("s_add_u32 s%d, s%d, s%d", s_gb, s_gb, s_t0)
    a("s_add_u32 s%d, s%d, 0x%x", s_gb, s_gb, FO)
    a("s_mul_i32 s%d, s%d, 20", s_t0, s_w)
    a("s_sub_u32 s%d, 112, s%d", s_t0, s_t0)
    a("s_lshl_b32 s%d, s%d, 11", s_t0, s_t0)
    a("s_add_u32 s%d, s%d, s%d", s_hb, s_ab, s_t0)
    srd(a, sW, 52, XBYTES)
    RA = 4
    for l in range(4):
        a("s_xor_b32 s%d, s%d, %d", s_t0, s_w, l)
        a("s_cmp_ge_u32 s%d, 2", s_t0)
        a("s_cselect_b32 s%d, %d, %d", s_t1, 96 * K, 48 * K) if False else None
        a("s_mul_i32 s%d, s%d, 12288", s_t0, s_t0)
        a("s_cselect_b32 s%d, %d, 0", s_t1, 48 * K)
        a("s_add_u32 s%d, s%d, s%d", s_t0, s_t0, s_t1)
        a("s_add_u32 s%d, s%d, %d", s_t0, s_t0, 48 * K)
        a("v_add_u32 v%d, s%d, v%d", RA + l, s_t0, v_l16)
    ldswait((12, 0, 13), OPT.get("ogate", 8), 2)
    hold_mark(a, 4)
    a("v_and_b32 v9, 7, v%d", v_lane)
    a("v_lshrrev_b32 v10, 1, v9")
    a("v_and_b32 v9, 1, v9")
    a("v_lshlrev_b32 v9, 10, v9")
    a("v_lshl_add_u32 v9, v10, 12, v9")
    a("s_mov_b32 s%d, 0x10000", s_t1)
    a("s_mov_b32 s%d, %d", s_spin, SPIN_MAX)
    def sentinel(tag):
        a.label("L_SN" + tag)
        a("buffer_load_dword v10, v9, s[%d:%d], s%d offen offset:%d sc1", sWS, sWS + 3, s_hb, 2048 + 1020)
        a("s_sub_u32 s%d, s%d, 1", s_spin, s_spin)
        a("s_cbranch_scc1 L_SNT" + tag)
        a("s_waitcnt vmcnt(0)")
        a("v_cmp_gt_u32 vcc, s%d, v10", s_t1)
        a("s_cbranch_vccz L_SNX" + tag)
        if OPT.get("sleeps", 1): a("s_sleep %d", OPT.get("sleeps", 1))
        a("s_branch L_SN" + tag)
        a.label("L_SNT" + tag)
        a("s_mov_b32 s%d, 0", s_spin)
        a.label("L_SNX" + tag)
    if not OPT.get("spec", 0): sentinel("a")
    stamp(a, 6)
    def oloads(h0):
        for hd in range(h0, 4):
            for f2 in range(2):
                a("s_add_u32 s%d, s%d, %d", s_t0, s_hb, (2 * hd + f2) * 2048)
                for f, v in ((0, v_a0), (1, v_a1)):
                    a("buffer_load_dwordx4 %s, v%d, s[%d:%d], s%d offen sc1", vr(OFB[2 * hd + f2] + 4 * f, 4), v, sWS, sWS + 3, s_t0)
    a("s_mov_b32 s%d, %d", s_spin, SPIN_MAX)
    a("s_mov_b32 s%d, 0x10000", s_t1)
    oloads(0)
    for hd in range(4):
        a.label("L_OW%d" % hd)
        a("s_waitcnt vmcnt(%d)", 4 * (3 - hd))
        a("v_min3_u32 v10, v%d, v%d, v%d", OFB[2 * hd] + 3, OFB[2 * hd] + 7, OFB[2 * hd + 1] + 3)
        a("v_min_u32 v10, v10, v%d", OFB[2 * hd + 1] + 7)
        a("v_cmp_gt_u32 vcc, s%d, v10", s_t1)
        a("s_cbranch_vccnz L_OR%d" % hd)
        a.label("L_OK%d" % hd)
        for f2 in range(2): mf(OFB[2 * hd + f2], wslot(28 + 2 * hd + f2), False)
    stamp(a, 7)
    ldswait((12, 8, 13), 4)
    for l in range(1, 4):
        for qd in range(4):
            a("ds_write_b128 v%d, %s offset:%d", RA + l, vr(BACC + 16 * l + 4 * qd, 4), (l - 1) * 4096 + qd * 1024)
    a("s_waitcnt lgkmcnt(0)")
    a("s_barrier")
    for l in range(1, 4):
        for qd in range(4):
            a("ds_read_b128 %s, v%d offset:%d", vr(BACC + 16 * l + 4 * qd, 4), RA, (l - 1) * 4096 + qd * 1024)
    a("s_waitcnt lgkmcnt(8)")
    for j in range(16): a("v_add_f32 v%d, v%d, v%d", BACC + j, BACC + j, BACC + 16 + j)
    a("s_waitcnt lgkmcnt(0)")
    for j in range(16): a("v_add_f32 v%d, v%d, v%d", BACC + 32 + j, BACC + 32 + j, BACC + 48 + j)
    for j in range(16): a("v_add_f32 v%d, v%d, v%d", BACC + j, BACC + j, BACC + 32 + j)
    for jj in range(8):
        a("v_cvt_pk_bf16_f32 v%d, v%d, v%d", E0 + jj, BACC + 2 * jj, BACC + 2 * jj + 1)
    for p in range(2):
        a("v_permlane32_swap_b32 v%d, v%d", E0 + 4 * p, E0 + 4 * p + 2)
        a("v_permlane32_swap_b32 v%d, v%d", E0 + 4 * p + 1, E0 + 4 * p + 3)
    for p in range(2):
        a("buffer_store_dwordx4 %s, v%d, s[%d:%d], s%d offen offset:%d", vr(E0 + 4 * p, 4), v_oo, sW, sW + 3, s_xo, 32 * p)
    stamp(a, 8); stamp(a, 9)
    hold_end(a)
    stamp_flush(a)
    a("s_endpgm")
    for hd in range(4):
        a.label("L_OR%d" % hd)
        a("s_sub_u32 s%d, s%d, 1", s_spin, s_spin)
        a("s_cselect_b32 s%d, 0, s%d", s_spin, s_spin)
        a("s_cbranch_scc1 L_OK%d" % hd)
        a("s_waitcnt vmcnt(0)")
        if OPT.get("spec", 0): sentinel("r%d" % hd)
        oloads(hd)
        a("s_branch L_OW%d" % hd)
    l = a.l
    return l[:mark_a] + l[mark_b:] + l[mark_a:mark_b] + ["L_END:", "    s_endpgm"]

def build(path):
    hdr = open("cdna_kernels/%s.s.ref" % NAME).read().split("\n")
    top = [l for l in hdr if l.startswith(";") and "@launch" not in l]
    lines, added = fix(kernel())
    print("instrs", len(lines), "nop states added", added)
    out = top + ["; @launch grid=(256,1,1) block=(512,1,1) lds=%d" % LDS]
    out += ['.amdgcn_target "amdgcn-amd-amdhsa--gfx950"', ".text", ".globl " + KN, ".p2align 8", ".type %s,@function" % KN] + lines
    out += ['.section .rodata,"a"', ".p2align 6", """.amdhsa_kernel %s
  .amdhsa_next_free_vgpr 256
  .amdhsa_next_free_sgpr 102
  .amdhsa_accum_offset 256
  .amdhsa_group_segment_fixed_size 0
  .amdhsa_kernarg_size 72
  .amdhsa_user_sgpr_count 2
  .amdhsa_user_sgpr_kernarg_segment_ptr 1
  .amdhsa_system_sgpr_workgroup_id_x 1
.end_amdhsa_kernel""" % KN]
    open(path, "w").write("\n".join(out) + "\n")

if __name__ == "__main__":
    for kv_ in sys.argv[2:]:
        k, v = kv_.split("=", 1); OPT[k] = eval(v)
    build(sys.argv[1])
```

```python
import sys, math, struct
from asmlib import *

NAME = "parallel_sum__softmax_full_mha__dense_activation_relu__prompt"
KN = NAME + "_kernel"
KV, AF = 0x200000, 0x600000
FKV = 0x000000
FH = 0x8000
FO = 0x10000
WS_END = 0xF00000
XBYTES = 2048 * 448 * 2
OPT = dict(bias=80.0, prel=4, stamps=False, sleep=2, prioA=2, rd=3, ne=16, pfa=99, pfb=99, iplan=(1,1,1,2,1,1,3), prioB1=0, prioA1=2, pat=((3,0),(3,0),(2,2),(8,6)))
STAMP = 0x2000000
SPIN_MAX = 1 << 17
K = 1024
NST = 12
def f32(x): return "0x%08x" % struct.unpack("<I", struct.pack("<f", x))[0]

def stamp(a, i, grp="main"):
    if i not in (0, NST - 2, NST - 1) and grp != OPT.get("sgrp", "main"): return
    if OPT["stamps"]: a("%s s[%d:%d]", "s_memtime" if OPT.get("cyc") else "s_memrealtime", 76 + 2 * i, 77 + 2 * i)
def hold_mark(a, k):
    if OPT.get("hold") == k: a("s_memrealtime s[98:99]")
def hold_end(a):
    if OPT.get("hold") is None: return
    a("s_waitcnt vmcnt(0) lgkmcnt(0)")
    if OPT["hold"] == 9: a("s_mov_b32 s98, s58")
    if OPT.get("holdx") is not None:
        a("s_and_b32 s95, s2, 7")
        a("s_cmp_lg_u32 s95, %d", OPT["holdx"])
        a("s_cbranch_scc1 L_HOLDX")
    a("s_add_u32 s98, s98, 6000")
    a.label("L_HOLD")
    a("s_memrealtime s[96:97]")
    a("s_waitcnt lgkmcnt(0)")
    a("s_sub_u32 s95, s96, s98")
    a("s_cmp_lt_i32 s95, 0")
    a("s_cbranch_scc1 L_HOLD")
    a.label("L_HOLDX")
def stamp_flush(a):
    if not OPT["stamps"]: return
    stamp(a, NST - 2)
    a("s_mov_b32 s64, s46\ns_mov_b32 s65, s47\ns_mov_b32 s66, 0x10000000\ns_mov_b32 s67, 0x00020000")
    a("s_lshl_b32 s68, s2, 3\ns_add_u32 s68, s68, s3\ns_lshl_b32 s68, s68, 6")
    a("s_add_u32 s68, s68, 0x%x", STAMP)
    a("v_mov_b32 v0, 0")
    a("s_waitcnt vmcnt(0) lgkmcnt(0)")
    stamp(a, NST - 1)
    a("s_waitcnt lgkmcnt(0)")
    for i in range(NST):
        a("v_mov_b32 v1, s%d", 76 + 2 * i)
        a("buffer_store_dword v1, v0, s[64:67], s68 offen offset:%d", 4 * i)

def srd(a, d, base, nbytes):
    a("s_mov_b32 s%d, s%d", d, base)
    a("s_mov_b32 s%d, s%d", d + 1, base + 1)
    a("s_mov_b32 s%d, 0x%x", d + 2, nbytes)
    a("s_mov_b32 s%d, 0x00020000", d + 3)

class VM:
    def __init__(self, a): self.a = a; self.ops = []; self.done = 0
    def issue(self, tag): self.ops.append(tag)
    def wait(self, tag):
        idx = max(i for i, t in enumerate(self.ops) if t == tag)
        if idx < self.done: return
        n = len(self.ops) - 1 - idx
        assert n <= 63, n
        self.a("s_waitcnt vmcnt(%d)", n); self.done = idx + 1

SL = 24 * K
def slot_of(n): return (n % 6) * SL
RB = 149 * K
CNT = 150 * K
QX = 152 * K
KVS = 48 * K
KVS2 = (20 * K, 44 * K, 140 * K, 144 * K)
HO = 80 * K
CV = 112 * K
NSL = 8
def sloff(j): return (j & 3) * 2048 + ((j >> 2) & 1) * 32768
CA = 0
LDS = 160 * K
MF = "v_mfma_f32_32x32x16_bf16"

def kernel():
    a = Asm()
    sWS, sX, sW, sW1, sDBG = 8, 12, 16, 20, 24
    s_w, s_rb, s_c, s_rot, s_t0, s_t1, s_cp, s_mask = 28, 29, 30, 31, 32, 33, 34, 35
    s_hi, s_ex, s_spin, s_non = 36, 38, 56, 58
    v_lane, v_l16 = 1, 2
    a.label(KN)
    a("s_cmp_ge_u32 s2, 256")
    a("s_cbranch_scc1 L_END")
    stamp(a, 0); hold_mark(a, 0)
    a("s_load_dwordx4 s[40:43], s[0:1], 0")
    a("s_load_dwordx2 s[44:45], s[0:1], 16")
    a("s_load_dwordx4 s[48:51], s[0:1], 32")
    a("s_load_dwordx4 s[52:55], s[0:1], 48")
    a("s_load_dwordx2 s[46:47], s[0:1], 64")
    if OPT.get("codepf", 1) == 1:
        a("s_getpc_b64 s[%d:%d]", s_ex, s_ex + 1)
        a.label("L_PC")
        a("s_lshr_b32 s%d, s2, 3", s_t0)
        a("v_lshlrev_b32 v16, 5, v0")
        a("v_add_u32 v16, s%d, v16", s_t0)
        a("v_cmp_gt_u32 vcc, (L_END-L_PC)/128, v16")
        a("v_lshlrev_b32 v16, 7, v16")
        a("s_and_saveexec_b64 s[%d:%d], vcc", s_hi, s_hi + 1)
        a("s_cbranch_execz L_NOCPF")
        a("global_load_dword v254, v16, s[%d:%d]", s_ex, s_ex + 1) if False else None
        a("v_mov_b32 v17, s%d", s_ex + 1)
        a("v_add_co_u32 v16, vcc, s%d, v16", s_ex)
        a("v_addc_co_u32 v17, vcc, 0, v17, vcc")
        a("global_load_dword v254, v[16:17], off")
        a.label("L_NOCPF")
        a("s_mov_b64 exec, -1")
    a("v_lshrrev_b32 v3, 6, v0")
    a("v_and_b32 v%d, 63, v0", v_lane)
    a("v_readfirstlane_b32 s%d, v3", s_w)
    a("v_lshlrev_b32 v%d, 4, v%d", v_l16, v_lane)
    a("s_mov_b32 s%d, 0", s_hi)
    a("s_mov_b32 s%d, -1", s_hi + 1)
    a("s_mov_b32 s%d, 0xffff0000", s_mask)
    cb_ = OPT.get("cbits", 2)
    a("s_and_b32 s%d, s2, %d", s_c, (1 << (4 - cb_)) - 1)
    a("s_lshl_b32 s%d, s%d, %d", s_c, s_c, cb_)
    a("s_bfe_u32 s%d, s2, 0x%x", s_t0, (cb_ << 16) | 3)
    a("s_or_b32 s%d, s%d, s%d", s_c, s_c, s_t0)
    a("s_lshr_b32 s%d, s2, %d", s_rb, 3 + cb_)
    if cb_ > 1:
        a("s_bfe_u32 s%d, s2, 0x%x", s_t1, ((cb_ - 1) << 16) | (4 - cb_))
        a("s_lshl_b32 s%d, s%d, %d", s_t1, s_t1, 5 - cb_)
        a("s_or_b32 s%d, s%d, s%d", s_rb, s_rb, s_t1)
    a("s_mul_i32 s%d, s%d, %d", s_rot, s_t0, {1: 3, 2: 2, 3: 1}[cb_])
    a("s_add_u32 s%d, s%d, s%d", s_rot, s_rot, s_rb)
    a("s_mul_i32 s%d, s%d, 37", s_t0, s_rot)
    a("s_lshr_b32 s%d, s%d, 8", s_t0, s_t0)
    a("s_mul_i32 s%d, s%d, 7", s_t0, s_t0)
    a("s_sub_u32 s%d, s%d, s%d", s_rot, s_rot, s_t0)
    a("s_mov_b32 s3, s%d", s_w)
    v_g, v_ch, v_rr, v_c = 4, 5, 6, 7
    a("v_lshrrev_b32 v%d, 5, v%d", v_g, v_lane)
    a("v_bfe_u32 v%d, v%d, 4, 1", v_ch, v_lane)
    a("v_bfe_u32 v%d, v%d, 2, 2", v_rr, v_lane)
    a("v_and_b32 v%d, 3, v%d", v_c, v_lane)
    v_trp = 8
    a("v_lshlrev_b32 v%d, 6, v%d", v_trp, v_rr)
    a("v_lshl_add_u32 v%d, v%d, 5, v%d", v_trp, v_ch, v_trp)
    a("v_lshl_add_u32 v%d, v%d, 3, v%d", v_trp, v_c, v_trp)
    def nxt7(reg, first):
        if first: a("s_mov_b32 s%d, s%d", reg, s_rot)
        else:
            a("s_add_u32 s%d, s%d, 1", reg, reg)
            a("s_cmp_eq_u32 s%d, 7", reg)
            a("s_cselect_b32 s%d, 0, s%d", reg, reg)
    def kvs2_base(dst):
        a("s_mul_i32 s%d, s%d, %d", dst, s_w, 24 * K)
        a("s_add_u32 s%d, s%d, %d", dst, dst, 20 * K)
        a("s_lshl_b32 s%d, s%d, 12", s_t1, s_w)
        a("s_add_u32 s%d, s%d, %d", s_t1, s_t1, 132 * K)
        a("s_cmp_ge_u32 s%d, 2", s_w)
        a("s_cselect_b32 s%d, s%d, s%d", dst, s_t1, dst)
    a("s_cmp_ge_u32 s%d, 4", s_w)
    a("s_cbranch_scc0 L_A")
    mark_a = len(a.l)
    a.label("L_A")

    a("s_setprio %d", OPT.get("prioA1", 0))
    a("v_lshlrev_b32 v16, 2, v%d", v_lane)
    a("v_add_u32 v16, %d, v16", CNT)
    a("v_mov_b32 v17, 0")
    a("ds_write_b32 v16, v17")
    v_xa, v_gb, v_hb, v_qb, v_r = 9, 13, 14, 15, 6
    v_gw, v_hw, v_qw, C2, v_csw = 5, 13, 3, 8, 0
    v_t = 16
    XE = 20
    X0, ACC, RING = 24, 136, 216
    v_non, v_z, v_pa, v_pd = 248, 254, 255, 252
    T4 = ACC + 64
    v_sum, v_sq, v_cs = T4, T4 + 2, T4 + 4
    WE = T4 + 8
    s_ones, s_st = 62, 63
    s_fl, s_rt, s_state = 4, 5, 6
    s_kvb, s_i, s_off, s_mode, s_cnt, s_tgt, s_pb, s_hdone = 16, 17, 18, 19, 20, 21, 22, 23
    s_bad, s_skip, s_hfl = 64, 70, 71
    t0, t1, t2 = v_t, v_t + 1, v_t + 2
    a("s_lshl_b32 s%d, s%d, 2", s_rt, s_rb)
    a("s_add_u32 s%d, s%d, s%d", s_rt, s_rt, s_w)
    a("s_mov_b32 s%d, 0x3f803f80", s_ones)
    a("v_and_b32 v%d, 31, v%d", t0, v_lane)
    a("v_bfe_u32 v%d, v%d, 1, 3", t1, v_lane)
    a("v_xor_b32 v%d, v%d, v%d", t1, t1, v_g)
    a("v_lshlrev_b32 v%d, 7, v%d", t0, t0)
    a("v_lshl_add_u32 v%d, v%d, 4, v%d", t0, t1, t0)
    a("s_lshl_b32 s%d, s%d, 12", s_t0, s_w)
    for q in range(4):
        a("v_xor_b32 v%d, %d, v%d", t1, 32 * q, t0)
        a("v_add_u32 v%d, s%d, v%d", v_xa + q, s_t0, t1)
    a("v_lshl_add_u32 v%d, v%d, 10, v%d", v_gb, v_g, v_trp)
    a("v_lshl_add_u32 v%d, v%d, 11, v%d", v_hb, v_g, v_trp)
    a("v_lshl_add_u32 v%d, v%d, 9, v%d", v_qb, v_g, v_trp)
    for r_ in (v_sum, v_sq, v_cs, v_cs + 1): a("v_mov_b32 v%d, 0", r_)
    a("s_mov_b32 s%d, 0", s_mode)
    a("s_mov_b32 s%d, 0", s_tgt)
    a("s_lshl_b32 s%d, s%d, 2", s_kvb, s_c)
    a("s_add_u32 s%d, s%d, s%d", s_kvb, s_kvb, s_w)
    a("s_lshl_b32 s%d, s%d, 16", s_kvb, s_kvb)
    a("s_add_u32 s%d, s%d, 0x%x", s_kvb, s_kvb, KV)
    v_ko, v_ks, v_ks2, v_ho, v_tag, v_tg = 248, 249, 250, 251, 252, 253
    a("s_lshl_b32 s%d, s%d, 13", s_t0, s_w)
    a("v_add_u32 v%d, s%d, v%d", v_ks, s_t0, v_l16)
    a("v_add_u32 v%d, %d, v%d", v_ho, HO, v_ks)
    a("v_add_u32 v%d, %d, v%d", v_ks, KVS, v_ks)
    kvs2_base(s_t0)
    a("v_add_u32 v%d, s%d, v%d", v_ks2, s_t0, v_l16)
    a("s_lshl_b32 s%d, s%d, 2", s_t0, s_w)
    a("s_add_u32 s%d, s%d, %d", s_t0, s_t0, CNT + 16)
    a("v_mov_b32 v%d, s%d", v_tag, s_t0)
    a("s_lshl_b32 s%d, s%d, 12", s_t0, s_w)
    a("v_add_u32 v%d, s%d, v%d", v_ko, s_t0, v_l16)
    a("s_bitcmp1_b32 s%d, 0", s_c)
    a("s_cselect_b32 s%d, s%d, 0x3f80", s_st, s_ones)
    v_q4 = 255
    a("v_lshlrev_b32 v%d, 2, v%d", v_q4, v_c)
    a("v_add_u32 v%d, %d, v%d", v_q4, CNT, v_q4)
    a("s_lshl_b32 s%d, s%d, 11", s_t0, s_w)
    a("v_add_u32 v%d, s%d, v%d", v_gw, s_t0, v_gb)
    a("s_lshl_b32 s%d, s%d, 2", s_t0, s_w)
    a("s_add_u32 s%d, s%d, %d", s_t0, s_t0, QX)
    a("v_add_u32 v%d, s%d, v%d", v_csw, s_t0, v_l16)
    a("s_waitcnt lgkmcnt(0)")
    stamp(a, 1, "p0")
    srd(a, sWS, 46, WS_END)
    AE = 0
    def acc(t): return vr(ACC + 16 * t, 16)
    spins = []
    def peek(off): a("ds_read_b32 v%d, v%d offset:%d", v_tg, v_q4, off)
    def need(off, thr):
        n = len(spins); spins.append((off, thr))
        a("v_cmp_gt_u32 vcc, %d, v%d", thr, v_tg)
        a("s_cbranch_vccnz L_SP%d" % n)
        a.label("L_SPB%d" % n)
    def post(off, val, tmp):
        a("v_mov_b32 v%d, %d", tmp, val)
        a("ds_write_b32 v%d, v%d offset:%d", v_tag, tmp, off - 16)
    def wset(p): return (ACC + 32) if p % 2 == 0 else RING
    win = {"x": 0, "h": 0, "c": 0}
    def setwin(kind, n):
        wdw = (slot_of(n) // (2 * SL)) * 2 * SL
        d = wdw - win[kind]
        if d:
            for r_ in {"x": [v_xa + q for q in range(4)] + [v_gb, v_gw], "h": [v_hb, v_qb], "c": [v_hw, v_qw]}[kind]:
                if d > 0: a("v_add_u32 v%d, %d, v%d", r_, d, r_)
                else: a("v_subrev_u32 v%d, %d, v%d", r_, -d, r_)
            win[kind] = wdw
        return slot_of(n) - wdw
    def rd1(p, q, off):
        a("ds_read_b128 %s, v%d offset:%d", vr(X0 + 16 * p + 4 * q, 4), v_xa + q, off)
        for t in range(2):
            for h in range(2):
                a("ds_read_b64_tr_b16 %s, v%d offset:%d", vr(wset(p) + 8 * q + 4 * t + 2 * h, 2), v_gb, off + 16384 + q * 2048 + h * 512 + t * 256)
    def rdc(off):
        for t in range(2):
            for h in range(2):
                a("ds_read_b64_tr_b16 %s, v%d offset:%d", vr(WE + 4 * t + 2 * h, 2), v_gw, off + 16384 + h * 512 + t * 256)
    def cs_pack(src, off, ta, tb):
        return ["v_and_b32 v%d, s%d, v%d" % (ta, s_mask, src), "v_sub_f32 v%d, v%d, v%d" % (tb, src, ta),
                "v_lshrrev_b32 v%d, 16, v%d" % (ta, ta), "v_and_or_b32 v%d, v%d, s%d, v%d" % (src, tb, s_mask, ta),
                "ds_write_b32 v%d, v%d offset:%d" % (v_csw, src, off)]
    def split3(m, h0, h1, h2, neg):
        o = []
        if neg: o.append("v_sub_f32 v%d, 0, v%d" % (m, m))
        o += ["v_and_b32 v%d, s%d, v%d" % (h0, s_mask, m), "v_sub_f32 v%d, v%d, v%d" % (m, m, h0),
              "v_and_b32 v%d, s%d, v%d" % (h1, s_mask, m), "v_sub_f32 v%d, v%d, v%d" % (m, m, h1),
              "v_lshrrev_b32 v%d, 16, v%d" % (h0, h0), "v_or_b32 v%d, v%d, v%d" % (h0, h0, h1), "v_lshrrev_b32 v%d, 16, v%d" % (h2, m)]
        return o
    def finalize_ops(swap):
        st = ["v_mov_b32 v%d, v%d" % (v_sum + 1, v_sum), "v_mov_b32 v%d, v%d" % (v_sq + 1, v_sq), None, None,
              "v_permlane32_swap_b32 v%d, v%d" % (v_sum, v_sum + 1), "v_permlane32_swap_b32 v%d, v%d" % (v_sq, v_sq + 1),
              "v_add_f32 v%d, v%d, v%d" % (v_sum, v_sum, v_sum + 1), "v_add_f32 v%d, v%d, v%d" % (v_sq, v_sq, v_sq + 1),
              "v_mul_f32 v%d, %s, v%d" % (v_sum, f32(1.0 / 448), v_sum), "v_mul_f32 v%d, %s, v%d" % (v_sq, f32(1.0 / 448), v_sq),
              "v_fma_f32 v%d, -v%d, v%d, v%d" % (v_sq, v_sum, v_sum, v_sq), "v_max_f32 v%d, 0, v%d" % (v_sq, v_sq),
              "v_cvt_pk_bf16_f32 v%d, v%d, v%d" % (t0, v_sq, v_sq), "v_and_b32 v%d, s%d, v%d" % (t0, s_mask, t0),
              "v_add_f32 v%d, %s, v%d" % (t0, f32(1e-5), t0), "v_cvt_pk_bf16_f32 v%d, v%d, v%d" % (t0, t0, t0),
              "v_and_b32 v%d, s%d, v%d" % (t0, s_mask, t0), "v_sqrt_f32 v%d, v%d" % (t0, t0), None,
              "v_cvt_pk_bf16_f32 v%d, v%d, v%d" % (t0, t0, t0), "v_and_b32 v%d, s%d, v%d" % (t0, s_mask, t0),
              "v_rcp_f32 v%d, v%d" % (v_r, t0), None]
        if swap:
            st += ["ds_write_b32 v%d, v%d" % (t2, v_r)] + ["ds_read_b128 %s, v%d offset:%d" % (vr(RING + 4 * k, 4), t2 + 1, 32 * k) for k in range(4)]
        st += ["v_cvt_pk_bf16_f32 v%d, -v%d, -v%d" % (XE + k, v_sum, v_sum) for k in range(4)]
        st += ["v_mov_b32 v%d, v%d" % (v_r + 1, v_r), "v_add_u32 v%d, %d, v%d" % (t1, QX, v_l16)]
        return [o for o in st if o]
    def pass1(swap):
        win["x"] = 0
        a("s_barrier")
        stamp(a, 3); stamp(a, 1, "p1")
        rdc(0)
        for q in range(4): rd1(0, q, 0)
        if swap:
            a("s_lshl_b32 s%d, s%d, 7", s_t0, s_w)
            a("s_add_u32 s%d, s%d, %d", s_t0, s_t0, RB)
            a("v_and_b32 v%d, 31, v%d", t2, v_lane)
            a("v_lshl_add_u32 v%d, v%d, 2, s%d", t2, t2, s_t0)
            a("v_lshl_add_u32 v%d, v%d, 4, s%d", t2 + 1, v_g, s_t0)
        for p in range(7):
            for q in range(4):
                a("s_waitcnt lgkmcnt(%d)", 5 * (3 - q))
                if q == 0:
                    for j in range(4):
                        for t in range(2):
                            a("v_dot2c_f32_bf16 v%d, s%d, v%d", v_cs + t, s_ones, WE + 4 * t + j)
                for j in range(4):
                    x = X0 + 16 * p + 4 * q + j
                    a("v_dot2c_f32_bf16 v%d, s%d, v%d", v_sum, s_ones, x)
                    a("v_dot2c_f32_bf16 v%d, v%d, v%d", v_sq, x, x)
                if q == 0 and p == 6:
                    for t in range(2):
                        for o_ in cs_pack(v_cs + t, 5120 + 1024 * t, t0, t1): a(o_)
                    post(48, 1, t0)
            fin = finalize_ops(swap) if p == 6 else []
            off = setwin("x", p + 1) if p < 6 else None
            for m in range(8):
                q, t = m >> 1, m & 1
                wf = vr(wset(p) + 8 * q + 4 * t, 4); xf = vr(X0 + 16 * p + 4 * q, 4)
                A, B = (xf, wf) if swap else (wf, xf)
                first = (p == 0 and q == 0)
                a("%s %s, %s, %s, %s", MF, acc(t), A, B, "0" if first else acc(t))
                if p < 6:
                    if m == 3:
                        if 2 <= p + 1 < 2 + AE: a("s_waitcnt vmcnt(%d)", 6 * (1 + AE - (p + 1)))
                        a("s_barrier")
                        rdc(off)
                        stamp(a, 2 + p, "p1")
                    if m >= 4: rd1(p + 1, m - 4, off)
                else:
                    if m == 0: peek(48)
                    k = 6 if m < 5 else len(fin)
                    for o in fin[:k]: a(o)
                    fin = fin[k:]
                    if m == 6:
                        a("s_waitcnt lgkmcnt(0)")
                        need(48, 1)
                        for t_ in range(2): a("ds_read_b128 %s, v%d offset:%d", vr(WE + 4 * t_, 4), t1, 5120 + 1024 * t_)
        a("s_waitcnt lgkmcnt(0)")
        for t in range(2):
            wf = vr(WE + 4 * t, 4); xf = vr(XE, 4)
            A, B = (xf, wf) if swap else (wf, xf)
            a("%s %s, %s, %s, %s", MF, acc(t), A, B, acc(t))
        stamp(a, 8, "p1")
    def pack(t, kind, rreg=None):
        b = ACC + 16 * t
        for jj in range(8):
            a("v_pk_mul_f32 %s, %s, %s", vr(b + 2 * jj, 2), vr(b + 2 * jj, 2), vr((RING + 2 * jj) if kind == "v" else v_r, 2))
            a("v_cvt_pk_bf16_f32 v%d, v%d, v%d", b + jj, b + 2 * jj, b + 2 * jj + 1)
            if kind == "h": a("v_pk_max_i16 v%d, v%d, 0", b + jj, b + jj)
        if kind == "q":
            a("v_cndmask_b32 v%d, v%d, 0, s[%d:%d]", b + 6, b + 6, s_hi, s_hi + 1)
            a("v_cndmask_b32 v%d, v%d, 0, s[%d:%d]", b + 7, b + 7, s_hi, s_hi + 1)
        elif kind == "k":
            a("v_cndmask_b32 v%d, v%d, v%d, s[%d:%d]", b + 6, b + 6, v_t, s_hi, s_hi + 1)
            a("v_cndmask_b32 v%d, v%d, v%d, s[%d:%d]", b + 7, b + 7, v_t + 1, s_hi, s_hi + 1)
        elif kind == "v":
            for jj in range(8):
                a("v_cndmask_b32 v%d, v%d, v%d, s[%d:%d]", b + jj, b + jj, v_t, s_ex, s_ex + 1)
    def kv_epilogue(kind):
        for t in range(2):
            pack(t, kind, "v%d" % v_r)
            for f in range(2):
                a("ds_write_b128 v%d, %s offset:%d", v_ko, vr(ACC + 16 * t + 4 * f, 4), 2048 * t + 1024 * f)
    pass1(False)
    stamp(a, 4); stamp(a, 1, "p2")
    a("v_mov_b32 v%d, s%d", v_t, s_ones)
    a("v_mov_b32 v%d, s%d", v_t + 1, s_st)
    kv_epilogue("k")
    stamp(a, 2, "p2"); stamp(a, 9, "p1")
    NPB = 0
    a("s_waitcnt vmcnt(0) lgkmcnt(0)")
    a("s_barrier")
    stamp(a, 3, "p2")
    class LG:
        def __init__(s_): s_.ops = []; s_.done = 0
        def issue(s_, tag): s_.ops.append(tag)
        def wait(s_, tag):
            idx = max(i for i, t_ in enumerate(s_.ops) if t_ == tag)
            if idx < s_.done: return
            n_ = min(15, len(s_.ops) - 1 - idx)
            a("s_waitcnt lgkmcnt(%d)", n_); s_.done = len(s_.ops) - n_
    lg = LG()
    def rdw(dst, kind, p, qoff, t, tag):
        off = setwin(kind, 7 + p)
        hb, qb = (v_hb, v_qb) if kind == "h" else (v_hw, v_qw)
        for h in range(2):
            if t < 4: a("ds_read_b64_tr_b16 %s, v%d offset:%d", vr(dst + 2 * h, 2), hb, off + qoff + h * 1024 + t * 256)
            else: a("ds_read_b64_tr_b16 %s, v%d offset:%d", vr(dst + 2 * h, 2), qb, off + qoff + 4096 + h * 256)
            lg.issue(tag)
    def rd2(n):
        s, t = divmod(n, 5); p, q = divmod(s, 4)
        rdw(RING + 4 * (n % 8), "h", p, q * 5120, t, n)
    for n in range(7): rd2(n)
    a("s_mul_i32 s%d, s%d, 5120", s_t0, s_w)
    a("v_add_u32 v%d, s%d, v%d", v_hw, s_t0, v_hb)
    a("v_add_u32 v%d, s%d, v%d", v_qw, s_t0, v_qb)
    for t in range(5): a("v_mov_b32 v%d, 0", C2 + t)
    stamp(a, 5); stamp(a, 4, "p2")
    KV0, Q0, P0, O0, S0, QP, MX = 24, 88, 120, 136, 216, 200, 208
    CSF = 72
    def q(u, f): return vr(QP + 4 * f, 4) if u == 3 else vr(Q0 + 8 * u + 4 * f, 4)
    def qreg(u, r): return (QP if u == 3 else Q0 + 8 * u) + r
    def qtile(dst, u):
        a("s_add_u32 s%d, s%d, %d", dst, s_w, u + 1)
        a("s_and_b32 s%d, s%d, 3", dst, dst)
    def o(u): return vr(O0 + 16 * u, 16)
    def kv(st, f): return vr(KV0 + 16 * st + 4 * f, 4)
    def kvload(st, fr=(0, 1, 2, 3)):
        a("s_add_u32 s%d, s%d, s%d", s_off, s_i, s_rb)
        a("s_and_b32 s%d, s%d, 15", s_off, s_off)
        a("s_lshl_b32 s%d, s%d, 12", s_off, s_off)
        a("s_add_u32 s%d, s%d, s%d", s_off, s_off, s_kvb)
        for f in fr:
            a("buffer_load_dwordx4 %s, v%d, s[%d:%d], s%d offen offset:%d sc1", kv(st, f), v_l16, sWS, sWS + 3, s_off, 1024 * f)
        a("s_add_u32 s%d, s%d, 1", s_i, s_i)
    NJ = 140
    barjobs = {20 * p - 7: p + 1 for p in (3, 5)}
    cs_step = {4: 0, 6: 1, 8: 2, 12: 3, 16: 4, 20: 5, 22: 6}
    CF = [X0, X0 + 4, X0 + 8, X0 + 12, v_t]
    pend = []
    for s in range(28):
        if s % 4 == 0: stamp(a, 1 + s // 4, "p5")
        for t in range(5):
            n = 5 * s + t
            if t == 2 and (s - 1) in cs_step:
                lg.wait(("c", s - 1, 4))
                for j in range(4):
                    for t_ in range(5):
                        a("v_dot2c_f32_bf16 v%d, s%d, v%d", C2 + t_, s_ones, CF[t_] + j)
                if cs_step[s - 1] == 6:
                    for t_ in range(5): pend += cs_pack(C2 + t_, 1024 * t_, v_t, v_t + 1)
            if t in (0, 3): lg.wait(n + (2 if t == 0 else 1))
            a("%s %s, %s, %s, %s", MF, acc(t), vr(RING + 4 * (n % 8), 4), vr(X0 + 4 * s, 4), acc(t) if s else "0")
            if n in barjobs:
                lg.wait(("pk", n)); need(64, 8 + barjobs[n])
            if n + 7 < NJ: rd2(n + 7)
            if s in cs_step: rdw(CF[t], "c", cs_step[s], 0, t, ("c", s, t))
            if n + 6 in barjobs: peek(64); lg.issue(("pk", n + 6))
            if n in (28, 81): post(80, 8 if n == 28 else 11, 254); lg.issue("post")
            if pend:
                for o_ in pend[:5]:
                    a(o_)
                lg.issue("csw"); pend = pend[5:]
                if not pend:
                    post(48, 2, 254); lg.issue("post")
                    a("v_add_u32 v%d, %d, v%d", v_t + 2, QX, v_l16)
            if s == 24 and t == 3: peek(80); lg.issue("pk80")
            if s == 25 and t == 3: lg.wait("pk80"); need(80, 11); peek(48); lg.issue("pk48")
            if s == 26 and t == 3: lg.wait("pk48"); need(48, 2)
            if n >= 134 and n < 139:
                a("ds_read_b128 %s, v%d offset:%d", vr(CSF + 4 * (n - 134), 4), v_t + 2, 1024 * (n - 134)); lg.issue("csf")
            if n == 134: a("ds_read_b32 v%d, v%d", v_tg, v_tag); lg.issue("tg")
    a("s_waitcnt lgkmcnt(0)")
    for t in range(5):
        a("%s %s, %s, %s, %s", MF, acc(t), vr(CSF + 4 * t, 4), vr(XE, 4), acc(t))
    stamp(a, 7, "p2"); stamp(a, 1, "p3"); stamp(a, 8, "p5")
    a("s_setprio %d", OPT["prioA"])
    def kvreads():
        for st in range(3):
            for f in range(4):
                if st < 2: a("ds_read_b128 %s, v%d offset:%d", kv(st, f), v_ks, 4096 * st + 1024 * f)
                else: a("ds_read_b128 %s, v%d offset:%d", kv(st, f), v_ks2, 1024 * f)
    a("v_readfirstlane_b32 s%d, v%d", s_state, v_tg)
    a("s_mov_b32 s%d, 3", s_i)
    a("s_cmp_eq_u32 s%d, 0", s_state)
    a("s_cbranch_scc1 L_NK")
    kvreads()
    a.label("L_NK")
    for t in range(4):
        pack(t, "h")
        for f in range(2):
            a("ds_write_b128 v%d, %s offset:%d", v_ho, vr(ACC + 16 * t + 4 * f, 4), 2048 * t + 1024 * f)
    a("v_mov_b32 v%d, 1", t0)
    a("ds_write_b32 v%d, v%d offset:16", v_tag, t0)
    stamp(a, 6); stamp(a, 8, "p2"); stamp(a, 2, "p3"); stamp(a, 9, "p5")
    a("v_mul_f32 v%d, %s, v%d", v_r, f32(28 ** -0.5 * math.log2(math.e)), v_r)
    a("v_mov_b32 v%d, v%d", v_r + 1, v_r)
    pack(4, "q")
    a("s_cmp_lg_u32 s%d, 0", s_state)
    a("s_cbranch_scc1 L_LOADED")
    a("s_mov_b32 s%d, %d", s_spin, SPIN_MAX * 8)
    a.label("L_AP")
    a("ds_read_b32 v%d, v%d", v_tg, v_tag)
    a("s_sub_u32 s%d, s%d, 1", s_spin, s_spin)
    a("s_cbranch_scc1 L_APX")
    a("s_waitcnt lgkmcnt(0)")
    a("v_readfirstlane_b32 s%d, v%d", s_state, v_tg)
    a("s_cmp_eq_u32 s%d, 0", s_state)
    a("s_cbranch_scc1 L_AP")
    a.label("L_APX")
    kvreads()
    a.label("L_LOADED")
    a("s_waitcnt lgkmcnt(0)")
    stamp(a, 7); stamp(a, 9, "p2"); stamp(a, 3, "p3")
    nsync = [0]
    def async_():
        n = nsync[0]; nsync[0] += 1
        a("v_mov_b32 v12, %d", CNT)
        a("v_mov_b32 v13, 1")
        a("s_add_u32 s%d, s%d, 4", s_tgt, s_tgt)
        a("s_mov_b64 exec, 1")
        a("ds_add_u32 v12, v13")
        a("s_mov_b64 exec, -1")
        a("s_mov_b32 s%d, %d", s_spin, SPIN_MAX)
        a.label("L_AS%d" % n)
        a("ds_read_b32 v13, v12")
        a("s_sub_u32 s%d, s%d, 1", s_spin, s_spin)
        a("s_cbranch_scc1 L_ASX%d" % n)
        a("s_waitcnt lgkmcnt(0)")
        a("v_readfirstlane_b32 s%d, v13", s_t0)
        a("s_cmp_lt_u32 s%d, s%d", s_t0, s_tgt)
        a("s_cbranch_scc1 L_AS%d" % n)
        a.label("L_ASX%d" % n)
    def split_m(m, h0, h1, h2):
        for o_ in split3(m, h0, h1, h2, True): a(o_)
    def patch(u, h0, h2):
        a("v_cndmask_b32 v%d, v%d, %s, s[%d:%d]", qreg(u, 6), qreg(u, 6), h0, s_hi, s_hi + 1)
        a("v_cndmask_b32 v%d, v%d, %s, s[%d:%d]", qreg(u, 7), qreg(u, 7), h2, s_hi, s_hi + 1)
    a("%s %s, %s, %s, 0", MF, vr(S0, 16), kv(0, 0), q(3, 0))
    a("%s %s, %s, %s, %s", MF, vr(S0, 16), kv(0, 1), q(3, 1), vr(S0, 16))
    for u in range(4):
        qtile(s_t1, u)
        a("s_lshl_b32 s%d, s%d, 13", s_t1, s_t1)
        a("s_add_u32 s%d, s%d, %d", s_t1, s_t1, KVS)
        a("v_add_u32 v%d, s%d, v%d", v_t + u, s_t1, v_l16)
    a("ds_write_b128 v%d, %s", v_t + 3, q(3, 0))
    a("v_max3_f32 v%d, v%d, v%d, v%d", MX, S0, S0 + 1, S0 + 2)
    a("v_max3_f32 v%d, v%d, v%d, v%d", MX + 1, S0 + 3, S0 + 4, S0 + 5)
    for j in range(6, 14, 4):
        a("v_max3_f32 v%d, v%d, v%d, v%d", MX, S0 + j, S0 + j + 1, MX)
        a("v_max3_f32 v%d, v%d, v%d, v%d", MX + 1, S0 + j + 2, S0 + j + 3, MX + 1)
    a("v_max3_f32 v%d, v%d, v%d, v%d", MX, S0 + 14, S0 + 15, MX)
    a("v_max_f32 v%d, v%d, v%d", MX, MX, MX + 1)
    a("v_mov_b32 v%d, v%d", MX + 1, MX)
    a("v_permlane32_swap_b32 v%d, v%d", MX, MX + 1)
    a("v_max_f32 v%d, v%d, v%d", MX, MX, MX + 1)
    a("v_add_f32 v%d, %s, v%d", MX, f32(OPT["bias"]), MX)
    split_m(MX, MX + 2, MX + 1, MX + 3)
    patch(3, "v%d" % (MX + 2), "v%d" % (MX + 3))
    a("ds_write_b128 v%d, %s offset:1024", v_t + 3, q(3, 1))
    stamp(a, 4, "p3")
    async_()
    stamp(a, 5, "p3")
    for u in range(3):
        for f in range(2):
            a("ds_read_b128 %s, v%d offset:%d", q(u, f), v_t + u, 1024 * f)
    mark_s0 = len(a.l)
    a.label("L_RESTART")
    a("s_mov_b32 s%d, 0", s_i)
    kvload(0); kvload(1); kvload(2)
    for u in range(4):
        a("v_mov_b32 v%d, 0xff800000", MX + u)
        patch(u, "0", "0")
    a("s_mov_b32 s%d, 0", s_i)
    a.label("L_MAXLOOP")
    kvload(3, (0, 1))
    a("s_waitcnt vmcnt(0)")
    for u in range(4):
        a("%s %s, %s, %s, 0", MF, o(u), kv(3, 0), q(u, 0))
        a("%s %s, %s, %s, %s", MF, o(u), kv(3, 1), q(u, 1), o(u))
    for u in range(4):
        for j in range(8):
            a("v_max3_f32 v%d, v%d, v%d, v%d", MX + u, O0 + 16 * u + 2 * j, O0 + 16 * u + 2 * j + 1, MX + u)
    a("s_cmp_lt_u32 s%d, 16", s_i)
    a("s_cbranch_scc1 L_MAXLOOP")
    a("s_mov_b32 s%d, 3", s_i)
    for u in range(4): a("v_mov_b32 v%d, v%d", v_t + u, MX + u)
    for u in range(4): a("v_permlane32_swap_b32 v%d, v%d", MX + u, v_t + u)
    for u in range(4): a("v_max_f32 v%d, v%d, v%d", MX + u, MX + u, v_t + u)
    a("v_lshlrev_b32 v%d, 2, v%d", v_t + 4, v_lane)
    for u in range(4):
        qtile(s_t1, u)
        a("s_lshl_b32 s%d, s%d, 10", s_t1, s_t1)
        a("s_add_u32 s%d, s%d, %d", s_t1, s_t1, QX)
        a("v_add_u32 v%d, s%d, v%d", v_t + u, s_t1, v_t + 4)
    a("s_lshl_b32 s%d, s%d, 8", s_t0, s_w)
    for u in range(4):
        a("v_add_u32 v%d, s%d, v%d", v_t + 5, s_t0, v_t + u)
        a("ds_write_b32 v%d, v%d", v_t + 5, MX + u)
    async_()
    for u in range(4):
        a("ds_read2_b32 %s, v%d offset0:0 offset1:64", vr(S0 + 4 * u, 2), v_t + u)
        a("ds_read2_b32 %s, v%d offset0:128 offset1:192", vr(S0 + 4 * u + 2, 2), v_t + u)
    a("s_waitcnt lgkmcnt(0)")
    for u in range(4):
        a("v_max3_f32 v%d, v%d, v%d, v%d", MX + u, S0 + 4 * u, S0 + 4 * u + 1, S0 + 4 * u + 2)
        a("v_max_f32 v%d, v%d, v%d", MX + u, MX + u, S0 + 4 * u + 3)
    for u in range(4):
        split_m(MX + u, v_t, v_t + 1, v_t + 2)
        patch(u, "v%d" % v_t, "v%d" % (v_t + 2))
    a("s_branch L_GO")
    mark_s1 = len(a.l)
    a.label("L_GO")
    def S(n): return S0 + 16 * (n & 1)
    def P(n): return P0 + 8 * (n & 1)
    cur = {"g0": False}
    def uo(n):
        return ((n + 3) & 3) if (cur["g0"] and 0 <= n < 4) else (n & 3)
    def qk(n, f):
        i, u = n >> 2, uo(n)
        d = vr(S(n), 16)
        return "%s %s, %s, %s, %s" % (MF, d, kv(i & 3, f), q(u, f), d if f else "0")
    def pv(n, f, init=False):
        i, u = n >> 2, uo(n)
        return "%s %s, %s, %s, %s" % (MF, o(u), kv(i & 3, 2 + f), vr(P(n) + 4 * f, 4), "0" if (init and f == 0) else o(u))
    def cwrite(u, qd): return "ds_write_b128 v%d, %s offset:%d" % (v_t + u, vr(O0 + 16 * u + 4 * qd, 4), CA + u * 4096 + qd * 1024)
    PAT = OPT.get("pat", ((4, 0), (4, 2), (4, 2), (4, 4)))
    def slot(n, g0, last, loads):
        i, u = n >> 2, n & 3
        m = [None, None] if last else [qk(n + 1, 0), qk(n + 1, 1)]
        m += [None, None] if (g0 and n == 0) else [pv(n - 1, 0, g0 and n <= 4), pv(n - 1, 1)]
        free = [[], [], [], []]
        if u == 2 and loads["wait"] is not None: free[3].append("s_waitcnt vmcnt(%d)" % loads["wait"])
        if loads["issue"]:
            st = (i + 3) & 3
            if u == 0:
                free[0].append("s_add_u32 s%d, s%d, s%d" % (s_off, s_i, s_rb))
                free[1].append("s_and_b32 s%d, s%d, 15" % (s_off, s_off))
                free[2].append("s_lshl_b32 s%d, s%d, 12" % (s_off, s_off))
                free[3].append("s_add_u32 s%d, s%d, s%d" % (s_off, s_off, s_kvb))
            if u == 1:
                free[0] += ["buffer_load_dwordx4 %s, v%d, s[%d:%d], s%d offen offset:%d sc1" % (kv(st, f), v_l16, sWS, sWS + 3, s_off, 1024 * f) for f in range(4)]
                free[1].append("s_add_u32 s%d, s%d, 1" % (s_i, s_i))
        if loads["lastg"] and n >= 14:
            for k in range(4): free[k].append(cwrite(n - 14, k))
        ne = nc = 0
        for k in range(4):
            if m[k]: a(m[k])
            for x in free[k]: a(x)
            for j in range(PAT[k][0]):
                a("v_exp_f32 v%d, v%d", S(n) + ne, S(n) + ne); ne += 1
            for j in range(PAT[k][1]):
                assert 2 * nc + 1 < ne
                a("v_cvt_pk_bf16_f32 v%d, v%d, v%d", P(n) + nc, S(n) + 2 * nc, S(n) + 2 * nc + 1); nc += 1
        assert ne == 16 and nc == 8
    stamp(a, 8); stamp(a, 6, "p3")
    cur["g0"] = True
    a(qk(0, 0)); a(qk(0, 1))
    a("s_waitcnt lgkmcnt(0)")
    for u in range(4):
        qtile(s_t1, u)
        a("s_mul_i32 s%d, s%d, 12288", s_t1, s_t1)
        a("v_add_u32 v%d, s%d, v%d", v_t + u, s_t1, v_l16)
    def group(g, last_group):
        cur["g0"] = (g == 0)
        for n in range(16):
            i = n >> 2
            issue = (not last_group) or i == 0
            wait = {0: 8, 1: 4, 2: 0, 3: None}[i] if last_group else (None if (g == 0 and i < 2) else 8)
            slot(n, g == 0, last_group and n == 15, dict(issue=issue, wait=wait, lastg=last_group))
    group(0, False)
    stamp(a, 7, "p3")
    a("s_mov_b32 s%d, 2", s_cnt)
    a.label("L_LOOP")
    group(1, False)
    a("s_sub_u32 s%d, s%d, 1", s_cnt, s_cnt)
    a("s_cmp_lg_u32 s%d, 0", s_cnt)
    a("s_cbranch_scc1 L_LOOP")
    stamp(a, 8, "p3")
    group(3, True)
    a(pv(15, 0)); a(cwrite(2, 0)); a(cwrite(2, 1)); a(pv(15, 1)); a(cwrite(2, 2)); a(cwrite(2, 3))
    stamp(a, 9); stamp(a, 9, "p3"); stamp(a, 1, "p4")
    stamp(a, 2, "p4")
    async_()
    stamp(a, 3, "p4")
    for u in range(3):
        for qd in range(4):
            a("ds_read_b128 %s, v%d offset:%d", vr(O0 + 16 * u + 4 * qd, 4), v_t + 3, CA + u * 4096 + qd * 1024)
    a("s_lshr_b32 s%d, s%d, 1", s_t1, s_rt)
    a("s_mul_i32 s%d, s%d, 72", s_t1, s_t1)
    a("s_add_u32 s%d, s%d, s%d", s_t1, s_t1, s_c)
    a("s_add_u32 s%d, s%d, 56", s_t1, s_t1)
    a("s_lshl_b32 s%d, s%d, 2", s_t1, s_t1)
    a("s_and_b32 s%d, s%d, 1", s_t0, s_rt)
    a("s_add_u32 s%d, s%d, s%d", s_t1, s_t1, s_t0)
    a("s_lshl_b32 s%d, s%d, 10", s_t1, s_t1)
    a("s_add_u32 s%d, s%d, 0x%x", s_t1, s_t1, AF)
    a("s_waitcnt lgkmcnt(8)")
    for j in range(16): a("v_add_f32 v%d, v%d, v%d", O0 + j, O0 + j, O0 + 48 + j)
    a("s_waitcnt lgkmcnt(0)")
    for j in range(16): a("v_add_f32 v%d, v%d, v%d", O0 + 16 + j, O0 + 16 + j, O0 + 32 + j)
    for j in (7,) + tuple(x for x in range(16) if x != 7):
        a("v_add_f32 v%d, v%d, v%d", O0 + j, O0 + j, O0 + 16 + j)
        if j == 0: a("v_rcp_f32 v%d, v%d", v_t + 2, O0 + 7)
    a("v_maximum3_f32 v%d, abs(v%d), abs(v%d), abs(v%d)", v_t + 3, O0, O0 + 1, O0 + 2)
    for j in range(3, 15, 2):
        a("v_maximum3_f32 v%d, abs(v%d), abs(v%d), v%d", v_t + 3, O0 + j, O0 + j + 1, v_t + 3)
    a("v_maximum3_f32 v%d, abs(v%d), abs(v%d), v%d", v_t + 3, O0 + 15, O0 + 15, v_t + 3)
    a("v_mov_b32 v%d, 0x7e800000", v_t + 4)
    a("v_cmp_nlt_f32 s[%d:%d], v%d, v%d", s_bad, s_bad + 1, v_t + 3, v_t + 4)
    for j in range(16):
        a("v_mul_f32 v%d, v%d, v%d", O0 + j, O0 + j, v_t + 2)
    for jj in range(8):
        a("v_cvt_pk_bf16_f32 v%d, v%d, v%d", P0 + jj, O0 + 2 * jj, O0 + 2 * jj + 1)
    stamp(a, 4, "p4")
    a("s_or_b32 s%d, s%d, s%d", s_bad, s_bad, s_bad + 1)
    a("s_cmp_lg_u32 s%d, 0", s_mode)
    a("s_cselect_b32 s%d, 0, s%d", s_bad, s_bad)
    a("s_cmp_lg_u32 s%d, 0", s_bad)
    a("s_cbranch_scc1 L_NOPUB")
    a("s_cmp_eq_u32 s%d, 2", s_mode)
    a("s_cbranch_scc1 L_NOPUB")
    for f in range(2):
        a("buffer_store_dwordx4 %s, v%d, s[%d:%d], s%d offen offset:%d sc1", vr(P0 + 4 * f, 4), v_l16, sWS, sWS + 3, s_t1, 2048 * f)
    stamp(a, 5, "p4")
    a.label("L_NOPUB")
    a("s_cmp_lg_u32 s%d, 0", s_mode)
    a("s_cbranch_scc1 L_AEND")
    a("v_mov_b32 v%d, %d", v_t, CNT + 4)
    a("v_mov_b32 v%d, s%d", v_t + 1, s_bad)
    a("ds_or_b32 v%d, v%d", v_t, v_t + 1)
    async_()
    a("ds_read_b32 v%d, v%d", v_t + 1, v_t)
    a("s_waitcnt lgkmcnt(0)")
    a("v_readfirstlane_b32 s%d, v%d", s_t0, v_t + 1)
    a("s_cmp_eq_u32 s%d, 0", s_t0)
    a("s_cbranch_scc1 L_AEND")
    a("s_cmp_lg_u32 s%d, 0", s_bad)
    a("s_cselect_b32 s%d, 1, 2", s_mode)
    a("s_branch L_RESTART")
    a.label("L_AEND")
    stamp_flush(a)
    a("s_endpgm")
    for n, (off, thr) in enumerate(spins):
        a.label("L_SP%d" % n)
        a("s_mov_b32 s%d, %d", s_spin, SPIN_MAX * 8)
        a.label("L_SPL%d" % n)
        peek(off)
        a("s_sub_u32 s%d, s%d, 1", s_spin, s_spin)
        a("s_cbranch_scc1 L_SPB%d" % n)
        a("s_waitcnt lgkmcnt(0)")
        a("v_cmp_gt_u32 vcc, %d, v%d", thr, v_tg)
        a("s_cbranch_vccnz L_SPL%d" % n)
        a("s_branch L_SPB%d" % n)

    mark_b = len(a.l)
    a("s_setprio %d", OPT.get("prioB1", 1))
    sW2 = 12
    NE = OPT.get("ne", 18)
    BACC, E0 = 16, 80
    HR = E0 + 8 * NE
    def wslot(i): return E0 + 8 * (i % NE)
    NH = (256 - HR) // 8
    v_xoff, v_gd, v_hd, v_qd, v_ch_, v_cq = 24, 28, 30, 34, 35, 36
    CF, CT, CA5 = 40, 60, 64
    v_rw, v_sw, v_sr, v_a0, v_a1, v_xo, v_oo = 11, 12, 13, 14, 15, 3, 0
    v_cr, v_rw2 = 10, 8
    NON, ZR, TB = 36, 40, 44
    s_xo, s_gb, s_hb, s_ab, s_rb64, s_cb, s_k, s_kr = 60, 61, 62, 63, 4, 5, 6, 7
    s_cph, s_stg, s_w2b, s_xrow, s_qb_ = 57, 70, 71, 68, 69
    sXX = 72
    a("s_and_b32 s%d, s%d, 3", s_w, s_w)
    a("s_lshl_b32 s%d, s%d, 2", s_xrow, s_rb)
    a("s_add_u32 s%d, s%d, s%d", s_xrow, s_xrow, s_w)
    a("s_mul_i32 s%d, s%d, %d", s_xrow, s_xrow, 32 * 896)
    a("v_lshrrev_b32 v17, 3, v%d", v_lane)
    a("v_mul_u32_u24 v17, 896, v17")
    a("v_lshrrev_b32 v16, 4, v%d", v_lane)
    a("v_and_b32 v19, 7, v%d", v_lane)
    a("v_xor_b32 v18, v16, v19")
    a("v_lshl_add_u32 v%d, v18, 4, v17", v_xoff)
    a("v_xor_b32 v%d, 64, v%d", v_xoff + 1, v_xoff)
    a("v_add_u32 v%d, %d, v%d", v_xoff + 2, 2 * (7168 - 1024), v_xoff)
    a("v_add_u32 v%d, %d, v%d", v_xoff + 3, 3 * (7168 - 1024), v_xoff + 1)
    a("v_add_u32 v%d, %d, v%d", v_xoff + 1, 1 * (7168 - 1024), v_xoff + 1)
    a("v_lshl_add_u32 v17, v%d, 2, v%d", v_g, v_rr)
    a("v_mul_u32_u24 v17, 2688, v17")
    a("v_mul_u32_u24 v18, 56, v%d", v_ch)
    a("v_lshl_add_u32 v18, v%d, 4, v18", v_c)
    a("v_add_u32 v%d, v17, v18", v_gd)
    a("v_add_u32 v%d, %d, v%d", v_gd + 1, 8 * 2688 - 1024, v_gd)
    a("s_and_b32 s%d, s%d, 14", s_t0, s_c)
    a("s_mul_i32 s%d, s%d, 56", s_t0, s_t0)
    a("s_and_b32 s%d, s%d, 1", s_t1, s_c)
    a("s_add_u32 s%d, s%d, 1", s_t1, s_t1)
    a("s_mul_i32 s%d, s%d, 896", s_t1, s_t1)
    a("s_add_u32 s%d, s%d, s%d", s_t0, s_t0, s_t1)
    a("s_mul_i32 s%d, s%d, %d", s_qb_, s_w, 16 * 2688)
    a("s_add_u32 s%d, s%d, s%d", s_gb, s_qb_, s_t0)
    stamp(a, 1, "b0")
    a("s_waitcnt lgkmcnt(0)")
    stamp(a, 2, "b0")
    srd(a, sXX, 40, XBYTES)
    srd(a, sW, 42, 448 * 1344 * 2)
    vm = VM(a)
    def I(n):
        if n < 7:
            nxt7(s_cp, n == 0)
            a("s_lshl_b32 s%d, s%d, 7", s_t0, s_cp)
            a("s_add_u32 s%d, s%d, s%d", s_t0, s_t0, s_xrow)
            a("s_lshl_b32 s%d, s%d, 12", s_t1, s_w)
            a("s_add_u32 m0, s%d, %d", s_t1, slot_of(n))
            for i in range(4):
                a("buffer_load_dwordx4 v%d, s[%d:%d], s%d offen offset:%d lds", v_xoff + i, sXX, sXX + 3, s_t0, 1024 * i); vm.issue(n)
            a("s_mul_i32 s%d, s%d, %d", s_t0, s_cp, 64 * 2688)
            a("s_add_u32 s%d, s%d, s%d", s_t0, s_t0, s_gb)
            a("s_lshl_b32 s%d, s%d, 11", s_t1, s_w)
            a("s_add_u32 m0, s%d, %d", s_t1, slot_of(n) + 16384)
            for i in range(2):
                a("buffer_load_dwordx4 v%d, s[%d:%d], s%d offen offset:%d lds", v_gd + i, sW, sW + 3, s_t0, 1024 * i); vm.issue(n)
        else:
            nxt7(s_cp, n == 7)
            a("s_mul_i32 s%d, s%d, %d", s_t0, s_cp, 64 * 3584)
            a("s_add_u32 s%d, s%d, s%d", s_t0, s_t0, s_hb)
            a("s_mul_i32 s%d, s%d, 5120", s_t1, s_w)
            a("s_add_u32 m0, s%d, %d", s_t1, slot_of(n))
            for i in range(4):
                a("buffer_load_dwordx4 v%d, s[%d:%d], s%d offen offset:%d lds", v_hd + i, sW1, sW1 + 3, s_t0, 1024 * i); vm.issue(n)
            a("s_mul_i32 s%d, s%d, %d", s_t0, s_cp, 64 * 2688)
            a("s_add_u32 s%d, s%d, s%d", s_t0, s_t0, s_qb_)
            a("s_add_u32 m0, s%d, %d", s_t1, slot_of(n) + 4096)
            a("buffer_load_dwordx4 v%d, s[%d:%d], s%d offen lds", v_qd, sW, sW + 3, s_t0); vm.issue(n)
    LEAD = OPT.get("lead", 3)
    for n in range(2):
        I(n); stamp(a, 3 + n, "b0")
    a("s_branch L_B2")
    mark_b2 = len(a.l)
    a.label("L_B2")
    a("s_and_b32 s%d, s2, 3", s_rb64)
    a("s_lshl_b32 s%d, s%d, 3", s_rb64, s_rb64)
    a("s_bfe_u32 s%d, s2, 0x30003", s_t0)
    a("s_add_u32 s%d, s%d, s%d", s_rb64, s_rb64, s_t0)
    a("s_and_b32 s%d, s2, 4", s_cb)
    a("s_lshr_b32 s%d, s2, 6", s_t0)
    a("s_add_u32 s%d, s%d, s%d", s_cb, s_cb, s_t0)
    a("v_mul_u32_u24 v17, 3584, v%d", v_rr)
    a("v_lshl_add_u32 v17, v16, 6, v17")
    a("v_lshl_add_u32 v%d, v%d, 4, v17", v_hd, v_c)
    for i in range(1, 4): a("v_add_u32 v%d, %d, v%d", v_hd + i, i * (4 * 3584 - 1024), v_hd)
    a("s_mul_i32 s%d, s%d, %d", s_hb, s_w, 16 * 3584)
    a("s_lshl_b32 s%d, s%d, 8", s_t0, s_c)
    a("s_add_u32 s%d, s%d, s%d", s_hb, s_hb, s_t0)
    a("s_cmp_ge_u32 s%d, 14", s_c)
    a("s_cselect_b32 s%d, 0x4000000, s%d", s_hb, s_hb)
    a("v_lshrrev_b32 v17, 2, v%d", v_lane)
    a("v_mul_u32_u24 v17, 2688, v17")
    a("v_lshl_add_u32 v%d, v%d, 4, v17", v_qd, v_c)
    a("s_mul_i32 s%d, s%d, 56", s_t0, s_c)
    a("s_add_u32 s%d, s%d, s%d", s_qb_, s_qb_, s_t0)
    a("v_lshl_add_u32 v16, v%d, 2, v%d", v_g, v_rr)
    a("v_mul_u32_u24 v17, 896, v16")
    a("v_lshlrev_b32 v18, 4, v%d", v_c)
    a("v_lshl_add_u32 v19, v%d, 6, v18", v_ch)
    a("s_lshr_b32 s%d, s%d, 1", s_t0, s_w)
    a("s_lshl_b32 s%d, s%d, 6", s_t0, s_t0)
    a("v_xor_b32 v19, s%d, v19", s_t0)
    a("v_add_u32 v%d, v17, v19", v_rw)
    a("s_lshl_b32 s%d, s%d, 13", s_stg, s_w)
    a("s_add_u32 s%d, s%d, %d", s_stg, s_stg, HO)
    a("s_mov_b32 s%d, s%d", s_t0, s_stg)
    a("v_add_u32 v%d, s%d, v%d", v_sw, s_t0, v_l16)
    a("v_lshl_add_u32 v%d, v%d, 9, v%d", v_sr, v_g, v_trp)
    a("v_add_u32 v%d, s%d, v%d", v_cr, s_t0, v_sr)
    a("v_add_u32 v%d, s%d, v%d", v_sr, s_stg, v_sr)
    a("v_mul_u32_u24 v17, 896, v%d", v_g)
    a("v_sub_u32 v%d, v%d, v17", v_rw2, v_rw)
    a("s_and_b32 s%d, s%d, 3", s_k, s_cb)
    a("s_mul_i32 s%d, s%d, 7", s_k, s_k)
    a("s_and_b32 s%d, s%d, 7", s_t0, s_rb64)
    a("s_mul_i32 s%d, s%d, 7", s_t0, s_t0)
    a("s_lshr_b32 s%d, s%d, 1", s_t0, s_t0)
    a("s_add_u32 s%d, s%d, s%d", s_k, s_k, s_t0)
    a("s_sub_u32 s%d, s%d, 28", s_t0, s_k)
    a("s_cmp_ge_u32 s%d, 28", s_k)
    a("s_cselect_b32 s%d, s%d, s%d", s_k, s_t0, s_k)
    a("s_mov_b32 s%d, s%d", s_kr, s_k)
    a("s_mul_i32 s%d, s%d, %d", s_w2b, s_w, 28 * 16 * 896)
    a("s_lshl_b32 s%d, s%d, 7", s_t0, s_cb)
    a("s_add_u32 s%d, s%d, s%d", s_w2b, s_w2b, s_t0)
    a("s_cmp_ge_u32 s%d, 7", s_cb)
    a("s_cselect_b32 s%d, 0x4000000, s%d", s_w2b, s_w2b)
    srd(a, sW1, 48, 448 * 1792 * 2)
    srd(a, sW2, 50, 1792 * 448 * 2)
    srd(a, sWS, 46, WS_END)
    srd(a, sDBG, 54, 256)
    a("s_or_b32 s%d, s2, s%d", s_t0, s_w)
    a("s_cmp_lg_u32 s%d, 0", s_t0)
    a("s_cbranch_scc1 L_BNW")
    a("s_memrealtime s[%d:%d]", s_non, s_non + 1)
    a("v_mov_b32 v18, 0")
    a("s_waitcnt lgkmcnt(0)")
    a("s_or_b32 s%d, s%d, 1", s_non, s_non)
    a("v_mov_b32 v16, s%d", s_non)
    a("v_mov_b32 v17, s%d", s_non + 1)
    a("s_mov_b64 exec, 1")
    a("buffer_store_dwordx2 v[16:17], v18, s[%d:%d], 0 offen sc1", sDBG, sDBG + 3)
    a("s_mov_b64 exec, -1")
    a.label("L_BNW")
    def prefetch():
        if OPT.get("wpf", True):
            a("s_lshl_b32 s%d, s2, 2", s_t0)
            a("s_add_u32 s%d, s%d, s%d", s_t0, s_t0, s_w)
            a("s_lshl_b32 s%d, s%d, 10", s_t0, s_t0)
            a("s_sub_u32 s%d, 0x%x, s%d", s_t1, 2047 * 1024, s_t0)
            a("buffer_load_dwordx4 v[232:235], v%d, s[%d:%d], s%d offen", v_l16, sW1, sW1 + 3, s_t0); vm.issue("pf")
            a("buffer_load_dwordx4 v[236:239], v%d, s[%d:%d], s%d offen", v_l16, sW1, sW1 + 3, s_t1); vm.issue("pf")
    def prefetch2():
        if OPT.get("wpf", True):
            a("s_lshl_b32 s%d, s2, 2", s_t0)
            a("s_add_u32 s%d, s%d, s%d", s_t0, s_t0, s_w)
            a("s_lshl_b32 s%d, s%d, 10", s_t0, s_t0)
            a("s_add_u32 s%d, s%d, 0x100000", s_t1, s_t0)
            a("buffer_load_dwordx4 v[224:227], v%d, s[%d:%d], s%d offen", v_l16, sW2, sW2 + 3, s_t0); vm.issue("pf")
            a("buffer_load_dwordx4 v[228:231], v%d, s[%d:%d], s%d offen", v_l16, sW2, sW2 + 3, s_t1); vm.issue("pf")
            srd(a, 72, 44, 448 * 448 * 2)
            a("s_sub_u32 s%d, 0x%x, s%d", s_t1, 1023 * 1024, s_t0)
            a("buffer_load_dwordx4 v[240:243], v%d, s[72:75], s%d offen", v_l16, s_t1); vm.issue("pf")
    nraw = [0]
    def waddr():
        a("s_mul_i32 s%d, s%d, %d", s_t0, s_kr, 16 * 896)
        a("s_add_u32 s%d, s%d, s%d", s_t0, s_t0, s_w2b)
        a("s_add_u32 s%d, s%d, %d", s_t1, s_t0, 8 * 896)
        a("s_add_u32 s%d, s%d, 1", s_kr, s_kr)
        a("s_cmp_eq_u32 s%d, 28", s_kr)
        a("s_cselect_b32 s%d, 0, s%d", s_kr, s_kr)
    def R(cnt):
        for _ in range(cnt):
            e = nraw[0]
            if e >= NE: return
            nraw[0] += 1
            waddr()
            a("buffer_load_dwordx4 %s, v%d, s[%d:%d], s%d offen", vr(E0 + 8 * e, 4), v_rw, sW2, sW2 + 3, s_t0); vm.issue(("R", e))
            a("buffer_load_dwordx4 %s, v%d, s[%d:%d], s%d offen", vr(E0 + 8 * e + 4, 4), v_rw, sW2, sW2 + 3, s_t1); vm.issue(("R", e))
    bar = lambda: a("s_barrier")
    rp = OPT.get("rplan", (0, 6))
    bprio = [OPT.get("prioB1", 1)]
    def hi():
        if OPT.get("synchi", 1): a("s_setprio 3")
    def lo():
        if OPT.get("synchi", 1): a("s_setprio %d", bprio[0])
    npoll = [0]
    def poll(v_addr, s_base, slp, dst):
        n = npoll[0]; npoll[0] += 1
        hi()
        a("s_mov_b32 s%d, %d", s_spin, SPIN_MAX)
        a.label("L_BP%d" % n)
        a("buffer_load_dwordx2 %s, v%d, s[%d:%d], s%d offen sc1", vr(dst, 2), v_addr, sWS, sWS + 3, s_base)
        a("s_sub_u32 s%d, s%d, 1", s_spin, s_spin)
        a("s_cbranch_scc1 L_BPX%d" % n)
        a("s_waitcnt vmcnt(0)")
        a("v_cmp_ne_u64 vcc, s[%d:%d], %s", s_non, s_non + 1, vr(dst, 2))
        a("s_cbranch_vccz L_BPX%d" % n)
        if slp: a("s_sleep %d", slp)
        a("s_branch L_BP%d" % n)
        a.label("L_BPX%d" % n)
        lo()
        vm.done = len(vm.ops)
    nls = [0]
    def ldswait(addr_off, thr, slp=0):
        n = nls[0]; nls[0] += 1
        hi()
        a("s_mov_b32 s%d, %d", s_spin, SPIN_MAX * 8)
        a.label("L_BL%d" % n)
        a("ds_read_b32 v%d, v%d offset:%d", addr_off[2], addr_off[0], addr_off[1])
        a("s_sub_u32 s%d, s%d, 1", s_spin, s_spin)
        a("s_cbranch_scc1 L_BLX%d" % n)
        a("s_waitcnt lgkmcnt(0)")
        a("v_readfirstlane_b32 s%d, v%d", s_t0, addr_off[2])
        a("s_cmp_ge_u32 s%d, %d", s_t0, thr)
        a("s_cbranch_scc1 L_BLX%d" % n)
        if slp: a("s_sleep %d", slp)
        a("s_branch L_BL%d" % n)
        a.label("L_BLX%d" % n)
        lo()
    nfs = [0]
    def flagst(s_addr):
        n = nfs[0]; nfs[0] += 1
        hi()
        a("v_mov_b32 v22, %d", CNT + 96 + 4 * n)
        a("v_mov_b32 v23, 1")
        a("s_mov_b64 exec, 1")
        a("ds_add_rtn_u32 v23, v22, v23")
        a("s_mov_b64 exec, -1")
        a("s_waitcnt lgkmcnt(0)")
        a("v_readfirstlane_b32 s%d, v23", s_t0)
        a("s_cmp_lg_u32 s%d, 3", s_t0)
        a("s_cbranch_scc1 L_FS%d" % n)
        a("s_mov_b64 exec, 0xff")
        a("buffer_store_dwordx4 %s, v%d, s[%d:%d], s%d offen sc1", vr(NON, 4), v_l16, sWS, sWS + 3, s_addr)
        a("s_mov_b64 exec, -1")
        a.label("L_FS%d" % n)
        lo()
    for i in range(4): a("v_mov_b32 v%d, 0", ZR + i)
    s_rt, s_p, s_q, s_r = 64, 65, 66, 67
    a("s_lshl_b32 s%d, s%d, 2", s_t0, s_w)
    a("s_add_u32 s%d, s%d, %d", s_t0, s_t0, CNT + 16)
    a("v_mov_b32 v19, s%d", s_t0)
    a("v_lshlrev_b32 v35, 2, v%d", v_c)
    a("v_add_u32 v35, %d, v35", CNT)
    def landed(n):
        vm.wait(n)
        hi()
        a("v_mov_b32 v21, %d", n + 1)
        a("ds_write_b32 v19, v21 offset:48")
        lo()
    npg = [0]
    def prg(thr, off=80):
        n = npg[0]; npg[0] += 1
        hi()
        a("s_mov_b32 s%d, %d", s_spin, SPIN_MAX * 8)
        a.label("L_PG%d" % n)
        a("ds_read_b32 v21, v35 offset:%d", off)
        a("s_sub_u32 s%d, s%d, 1", s_spin, s_spin)
        a("s_cbranch_scc1 L_PGX%d" % n)
        a("s_waitcnt lgkmcnt(0)")
        a("v_cmp_gt_u32 vcc, %d, v21", thr)
        a("s_cbranch_vccz L_PGX%d" % n)
        a("s_sleep 2")
        a("s_branch L_PG%d" % n)
        a.label("L_PGX%d" % n)
        lo()
    nxt = 2 + AE
    for _ in range(AE): nxt7(s_cp, False)
    plan = OPT["iplan"]
    for n in range(7):
        if n == 0: stamp(a, 5, "b0")
        if not (2 <= n < 2 + AE): vm.wait(n)
        if n < 2: stamp(a, 6 + 2 * n, "b0")
        bar()
        if n < 2: stamp(a, 7 + 2 * n, "b0")
        if n == 0: hold_mark(a, 1)
        for _ in range(plan[n]):
            assert nxt - 5 <= n
            I(nxt); nxt += 1
        if n == OPT["pfb"]: prefetch2()
        if n == 3:
            a("buffer_load_dwordx2 %s, v%d, s[%d:%d], 0 offen sc1", vr(NON, 2), ZR, sDBG, sDBG + 3); vm.issue("non")
    assert nxt >= 10
    def trread(dst, base, off):
        for ct in range(2):
            for h in range(2):
                a("ds_read_b64_tr_b16 %s, v%d offset:%d", vr(dst + 4 * ct + 2 * h, 2), base, off + h * 1024 + ct * 256)
    ncv = [0]
    def convert(cnt):
        for _ in range(cnt):
            e = ncv[0]
            if e >= nraw[0]: return
            ncv[0] += 1
            vm.wait(("R", e))
            for h in range(2):
                a("ds_write_b128 v%d, %s offset:%d", v_sw, vr(E0 + 8 * e + 4 * h, 4), h * 1024)
            trread(E0 + 8 * e, v_cr, 0)
            a("s_waitcnt lgkmcnt(6)")
    a("s_lshl_b32 s%d, s%d, 2", s_rt, s_rb)
    a("s_add_u32 s%d, s%d, s%d", s_rt, s_rt, s_w)
    a("s_and_b32 s%d, s%d, 14", s_p, s_c)
    a("s_lshl_b32 s%d, s%d, 6", s_p, s_p)
    a("s_add_u32 s%d, s%d, s%d", s_p, s_p, s_rt)
    a("s_lshl_b32 s%d, s%d, 1", s_p, s_p)
    a("s_and_b32 s%d, s%d, 1", s_t0, s_c)
    a("s_add_u32 s%d, s%d, s%d", s_p, s_p, s_t0)
    a("s_lshl_b32 s%d, s%d, 11", s_p, s_p)
    a("s_add_u32 s%d, s%d, 0x%x", s_p, s_p, KV)
    a("s_add_u32 s%d, s%d, 262144", s_q, s_p)
    a("s_lshr_b32 s%d, s%d, 1", s_r, s_rt)
    a("s_mul_i32 s%d, s%d, 72", s_r, s_r)
    a("s_add_u32 s%d, s%d, s%d", s_r, s_r, s_c)
    a("s_add_u32 s%d, s%d, 56", s_r, s_r)
    a("s_lshl_b32 s%d, s%d, 2", s_r, s_r)
    a("s_and_b32 s%d, s%d, 1", s_t0, s_rt)
    a("s_add_u32 s%d, s%d, s%d", s_r, s_r, s_t0)
    a("s_lshl_b32 s%d, s%d, 10", s_r, s_r)
    a("s_add_u32 s%d, s%d, 0x%x", s_r, s_r, AF)
    a("s_lshl_b32 s%d, s%d, 12", s_t0, s_w)
    a("v_add_u32 v16, s%d, v%d", s_t0, v_l16)
    a("v_and_b32 v17, 1, v%d", v_c)
    a("v_lshl_add_u32 v18, v%d, 2, v%d", v_g, v_rr)
    a("v_lshl_add_u32 v17, v17, 5, v18")
    a("v_lshlrev_b32 v17, 4, v17")
    a("v_lshl_add_u32 v17, v%d, 10, v17", v_ch)
    a("v_lshrrev_b32 v18, 1, v%d", v_c)
    a("v_lshl_add_u32 v17, v18, 3, v17")
    a("v_add_u32 v17, s%d, v17", s_t0)
    a("v_and_b32 v20, 31, v%d", v_lane)
    a("v_mov_b32 v18, v20")
    for th in (11, 14, 25):
        a("v_cmp_le_u32 vcc, %d, v20", th)
        a("v_addc_co_u32 v18, vcc, 0, v18, vcc")
    a("v_and_b32 v22, 1, v20")
    a("v_lshlrev_b32 v22, 2, v22")
    a("v_bfe_u32 v23, v20, 1, 1")
    a("v_lshl_add_u32 v22, v23, 4, v22")
    a("v_add_u32 v22, 11, v22")
    a("s_mov_b32 s%d, 0xf0000000", s_ex)
    a("s_mov_b32 s%d, 0xf0000000", s_ex + 1)
    a("v_cndmask_b32 v18, v18, v22, s[%d:%d]", s_ex, s_ex + 1)
    a("s_bitcmp1_b32 s%d, 0", s_c)
    a("s_cselect_b32 s%d, -1, 0", s_ex)
    a("s_mov_b32 s%d, s%d", s_ex + 1, s_ex)
    a("v_cndmask_b32 v18, v20, v18, s[%d:%d]", s_ex, s_ex + 1)
    a("v_lshl_add_u32 v18, v%d, 5, v18", v_g)
    a("v_lshlrev_b32 v18, 4, v18")
    vm.wait(9)
    a("s_mov_b32 s%d, %d", s_spin, SPIN_MAX)
    a.label("L_BN")
    a("v_readfirstlane_b32 s%d, v%d", s_non, NON)
    a("v_readfirstlane_b32 s%d, v%d", s_non + 1, NON + 1)
    a("s_cmp_lg_u32 s%d, 0", s_non)
    a("s_cbranch_scc1 L_BNX")
    a("buffer_load_dwordx2 %s, v%d, s[%d:%d], 0 offen sc1", vr(NON, 2), ZR, sDBG, sDBG + 3)
    a("s_sub_u32 s%d, s%d, 1", s_spin, s_spin)
    a("s_cbranch_scc1 L_BNX")
    a("s_waitcnt vmcnt(0)")
    a("s_branch L_BN")
    a.label("L_BNX")
    a("v_mov_b32 v%d, v%d", NON + 2, NON)
    a("v_mov_b32 v%d, v%d", NON + 3, NON + 1)
    bar()
    stamp(a, 2, "b1"); stamp(a, 1, "b2"); hold_mark(a, 2)
    a("s_bitcmp1_b32 s%d, 0", s_c)
    a("s_cbranch_scc1 L_VT")
    for i in range(4): a("ds_read_b128 %s, v16 offset:%d", vr(TB + 4 * i, 4), 1024 * i)
    a("s_branch L_VJ")
    a.label("L_VT")
    for i in range(4):
        for h in range(2):
            a("ds_read_b64_tr_b16 %s, v17 offset:%d", vr(TB + 4 * i + 2 * h, 2), 2048 * (i >> 1) + (16 * (i & 1) + 8 * h) * 16)
    a.label("L_VJ")
    for i in range(4):
        a("s_waitcnt lgkmcnt(%d)", 3 - i)
        a("buffer_store_dwordx4 %s, v18, s[%d:%d], s%d offen offset:%d sc1", vr(TB + 4 * i, 4), sWS, sWS + 3, s_q if i >> 1 else s_p, 1024 * (i & 1)); vm.issue("kv")
    rp = OPT.get("rplan", (0, 2, 2, 2))
    while nxt < 12: I(nxt); nxt += 1
    landed(11)
    a("s_lshl_b32 s%d, s%d, 4", s_p, s_c)
    a("s_add_u32 s%d, s%d, s%d", s_p, s_p, s_rb)
    a("s_lshl_b32 s%d, s%d, 7", s_p, s_p)
    a("s_lshl_b32 s%d, s%d, 4", s_q, s_rb)
    a("s_add_u32 s%d, s%d, s%d", s_q, s_q, s_c)
    a("s_lshl_b32 s%d, s%d, 7", s_q, s_q)
    a("s_add_u32 s%d, s%d, 0x%x", s_xo, s_q, FO)
    a("s_add_u32 s%d, s%d, 0x%x", s_q, s_q, FH)
    stamp(a, 2, "b2")
    vm.wait("kv")
    stamp(a, 3, "b2")
    flagst(s_p)
    stamp(a, 5, "b1"); stamp(a, 4, "b2")
    prg(12, 64)
    I(12)
    prg(8); I(13)
    stamp(a, 5, "b2")
    for f in range(2):
        a("buffer_store_dwordx4 %s, v%d, s[%d:%d], s%d offen offset:%d sc1", vr(ZR, 4), v_l16, sWS, sWS + 3, s_r, 2048 * f); vm.issue("oz")
    a("v_lshlrev_b32 v16, 7, v%d", v_c)
    a("v_bfe_u32 v17, v%d, 2, 1", v_lane)
    a("v_lshl_add_u32 v16, v17, 11, v16")
    a("s_and_b32 s%d, s%d, 14", s_p, s_c)
    a("s_lshl_b32 s%d, s%d, 2", s_p, s_p)
    a("s_add_u32 s%d, s%d, s%d", s_p, s_p, s_w)
    a("s_lshl_b32 s%d, s%d, 9", s_p, s_p)
    a("s_lshl_b32 s%d, s%d, 2", s_r, s_c)
    a("s_add_u32 s%d, s%d, s%d", s_r, s_r, s_w)
    a("s_lshl_b32 s%d, s%d, 16", s_r, s_r)
    a("s_add_u32 s%d, s%d, 0x%x", s_r, s_r, KV)
    a("s_lshl_b32 s%d, s%d, 13", s_t0, s_w)
    a("v_add_u32 v17, s%d, v%d", s_t0, v_l16)
    kvs2_base(s_t0)
    a("v_add_u32 v18, s%d, v%d", s_t0, v_l16)
    a("v_add_u32 v20, %d, v17", HO)
    stamp(a, 6, "b2")
    landed(13)
    stamp(a, 7, "b2")
    KB = [TB + 4 * i for i in range(9)] + [24, 28, ZR]
    def kbloads(count):
        for st in range(3):
            a("s_add_u32 s%d, s%d, %d", s_t0, s_rb, st)
            a("s_and_b32 s%d, s%d, 15", s_t0, s_t0)
            a("s_lshl_b32 s%d, s%d, 12", s_t0, s_t0)
            a("s_add_u32 s%d, s%d, s%d", s_t0, s_t0, s_r)
            for f in range(4):
                a("buffer_load_dwordx4 %s, v%d, s[%d:%d], s%d offen offset:%d sc1", vr(KB[4 * st + f], 4), v_l16, sWS, sWS + 3, s_t0, 1024 * f)
                if count: vm.issue(("kb", 4 * st + f))
    poll(16, s_p, OPT.get("sleepk", 2), 22)
    stamp(a, 8, "b2")
    kbloads(True)
    stamp(a, 9, "b2")
    stamp(a, 1); stamp(a, 1, "b1")
    if OPT["pfb"] == 99: prefetch2()
    R(rp[3])
    flagst(s_xo)
    prg(11)
    for i in range(12):
        vm.wait(("kb", i))
        if i < 8: a("ds_write_b128 v17, %s offset:%d", vr(KB[i], 4), KVS + 1024 * i)
        else: a("ds_write_b128 v18, %s offset:%d", vr(KB[i], 4), 1024 * (i - 8))
        if OPT.get("rmix", 0) and i % 2 == 1: R(1)
    a("v_mov_b32 v21, 1")
    a("ds_write_b32 v19, v21")
    stamp(a, 3, "b1")
    R(OPT.get("rpre", NE))
    a("s_lshr_b32 s%d, s%d, 1", s_t0, s_rt)
    a("s_mul_i32 s%d, s%d, 18", s_p, s_t0)
    a("s_add_u32 s%d, s%d, s%d", s_p, s_p, s_c)
    a("s_lshl_b32 s%d, s%d, 4", s_p, s_p)
    a("s_and_b32 s%d, s%d, 1", s_t1, s_rt)
    a("s_add_u32 s%d, s%d, s%d", s_p, s_p, s_t1)
    a("s_lshl_b32 s%d, s%d, 10", s_p, s_p)
    a("s_add_u32 s%d, s%d, 0x%x", s_p, s_p, AF)
    a("s_cmp_ge_u32 s%d, 14", s_c)
    a("s_cselect_b32 s%d, 0x4000000, s%d", s_p, s_p)
    ldswait((19, 16, 21), 1, 1)
    if OPT.get("prioBh") is not None: a("s_setprio %d", OPT["prioBh"]); bprio[0] = OPT["prioBh"]
    stamp(a, 4, "b1"); hold_mark(a, 3)
    for i in range(8): a("ds_read_b128 %s, v20 offset:%d", vr(TB + 4 * i, 4), 1024 * i)
    for i in range(8):
        a("s_waitcnt lgkmcnt(%d)", 7 - i)
        a("buffer_store_dwordx4 %s, v%d, s[%d:%d], s%d offen offset:%d sc1", vr(TB + 4 * i, 4), v_l16, sWS, sWS + 3, s_p, 2048 * (i & 1)); vm.issue("hs")
        if i & 1 and i < 7: a("s_add_u32 s%d, s%d, 4096", s_p, s_p)
    R(OPT.get("rmid", 0))
    convert(min(OPT.get("cvh", 5), nraw[0] - OPT.get("rmid", 0)))
    vm.wait("hs"); flagst(s_q)
    R(NE)
    stamp(a, 6, "b1")
    a("s_setprio %d", OPT.get("prioB2", 0)); bprio[0] = OPT.get("prioB2", 0)
    a("s_cmp_ge_u32 s%d, 7", s_cb)
    a("s_cbranch_scc1 L_END")
    a("s_and_b32 s%d, s%d, 1", s_t0, s_w)
    a("s_lshl_b32 s%d, s%d, 10", s_t0, s_t0)
    a("v_add_u32 v%d, s%d, v%d", v_a0, s_t0, v_l16)
    a("v_xor_b32 v%d, 1024, v%d", v_a1, v_a0)
    a("v_and_b32 v%d, 31, v%d", v_xo, v_lane)
    a("v_mul_u32_u24 v%d, 896, v%d", v_xo, v_xo)
    a("v_lshl_add_u32 v%d, v%d, 4, v%d", v_oo, v_g, v_xo)
    a("v_lshl_add_u32 v%d, v%d, 3, v%d", v_xo, v_g, v_xo)
    a("s_lshl_b32 s%d, s%d, 1", s_xo, s_rb64)
    a("s_and_b32 s%d, s%d, 1", s_t0, s_w)
    a("s_add_u32 s%d, s%d, s%d", s_xo, s_xo, s_t0)
    a("s_mul_i32 s%d, s%d, %d", s_xo, s_xo, 32 * 896)
    a("s_lshl_b32 s%d, s%d, 1", s_t0, s_cb)
    a("s_lshr_b32 s%d, s%d, 1", s_t1, s_w)
    a("s_add_u32 s%d, s%d, s%d", s_t0, s_t0, s_t1)
    a("s_lshl_b32 s%d, s%d, 6", s_t0, s_t0)
    a("s_add_u32 s%d, s%d, s%d", s_xo, s_xo, s_t0)
    srd(a, sW, 40, XBYTES)
    a("s_mul_i32 s%d, s%d, 28", s_t0, s_w)
    a("s_mul_i32 s%d, s%d, 144", s_ab, s_rb64)
    a("s_add_u32 s%d, s%d, s%d", s_ab, s_ab, s_t0)
    a("s_lshl_b32 s%d, s%d, 11", s_ab, s_ab)
    a("s_add_u32 s%d, s%d, 0x%x", s_ab, s_ab, AF)
    a("s_lshl_b32 s%d, s%d, 11", s_k, s_k)
    for q4 in range(4):
        a("buffer_load_dwordx2 %s, v%d, s[%d:%d], s%d offen offset:%d", vr(HR + 2 * q4, 2), v_xo, sW, sW + 3, s_xo, 16 * q4); vm.issue("x")
    convert(NE)
    stamp(a, 2)
    vm.wait("x")
    for jj in range(8):
        a("v_lshlrev_b32 v%d, 16, v%d", BACC + 2 * jj, HR + jj)
        a("v_and_b32 v%d, s%d, v%d", BACC + 2 * jj + 1, s_mask, HR + jj)
    a("s_waitcnt lgkmcnt(0)")
    NL = 28 - NE
    def L(i):
        if OPT.get("noBload"): vm.issue(("L", i)); vm.done = len(vm.ops); return
        if i < NL:
            waddr(); sr_ = sW2
        else:
            k_ = i - NL; sr_ = sW1
            a("s_mul_i32 s%d, s%d, %d", s_t0, s_w, 112 * 896)
            a("s_lshl_b32 s%d, s%d, 7", s_t1, s_cb)
            a("s_add_u32 s%d, s%d, s%d", s_t0, s_t0, s_t1)
            a("s_add_u32 s%d, s%d, %d", s_t0, s_t0, (28 * (k_ >> 1) + 14 * (k_ & 1)) * 896)
            a("s_add_u32 s%d, s%d, %d", s_t1, s_t0, 8 * 896)
        for h in range(2):
            a("s_add_u32 m0, s%d, %d", s_stg, sloff(i) + h * 1024)
            a("buffer_load_dwordx4 v%d, s[%d:%d], s%d offen lds", v_rw2 if (h and i >= NL) else v_rw, sr_, sr_ + 3, s_t1 if h else s_t0); vm.issue(("L", i))
    a("v_lshlrev_b32 v9, 7, v%d", v_c)
    a("s_lshr_b32 s%d, s%d, 1", s_gb, s_rb64)
    a("s_lshl_b32 s%d, s%d, 11", s_gb, s_gb)
    a("s_mul_i32 s%d, s%d, 7", s_t0, s_w)
    a("s_lshr_b32 s%d, s%d, 1", s_t0, s_t0)
    a("s_lshl_b32 s%d, s%d, 7", s_t0, s_t0)
    a("s_add_u32 s%d, s%d, s%d", s_cph, s_gb, s_t0)
    a("s_add_u32 s%d, s%d, 0x%x", s_cph, s_cph, FH)
    a("s_lshl_b32 s%d, s%d, 9", s_t1, s_w)
    a("s_sub_u32 s%d, s%d, s%d", s_t1, s_t1, s_t0)
    a("s_add_u32 s%d, s%d, 0x%x", s_t1, s_t1, FO - FH)
    a("v_bfe_u32 v%d, v%d, 2, 1", HR + 10, v_lane)
    a("v_mul_lo_u32 v%d, v%d, s%d", HR + 10, HR + 10, s_t1)
    a("v_add_u32 v9, v9, v%d", HR + 10)
    srd(a, sW1, 44, 448 * 448 * 2)
    PL = OPT.get("prel", 8)
    a("v_mov_b32 v12, %d", CNT)
    ldswait((12, 0, 10), 4, 1)
    for i in range(PL): L(i)
    poll(9, s_cph, OPT["sleep"], HR + 8)
    stamp(a, 3)
    a("s_setprio %d", OPT.get("prioB3", 0)); bprio[0] = OPT.get("prioB3", 0)
    def hload(k):
        if OPT.get("noBload"): vm.issue(("h", k)); vm.done = len(vm.ops); return
        a("s_add_u32 s%d, s%d, s%d", s_hb, s_ab, s_k)
        for f, v in ((0, v_a0), (1, v_a1)):
            a("buffer_load_dwordx4 %s, v%d, s[%d:%d], s%d offen sc1", vr(HR + 8 * (k % NH) + 4 * f, 4), v, sWS, sWS + 3, s_hb); vm.issue(("h", k))
        a("s_add_u32 s%d, s%d, 2048", s_k, s_k)
        a("s_cmp_eq_u32 s%d, %d", s_k, 28 * 2048)
        a("s_cselect_b32 s%d, 0, s%d", s_k, s_k)
    def mf(Areg, Breg, first):
        for ct in range(2):
            for rt in range(2):
                l = 2 * ct + rt
                d = vr(BACC + 16 * l, 16)
                a("%s %s, %s, %s, %s", MF, d, vr(Breg + 4 * ct, 4), vr(Areg + 4 * rt, 4), "0" if (first and l) else d)
    for k in range(NH - 1): hload(k)
    nl = PL
    def mf1(Areg, Breg, first, l):
        if OPT.get("noBmfma"): return
        ct, rt = l >> 1, l & 1
        d = vr(BACC + 16 * l, 16)
        tog = OPT.get("tog", 0)
        if tog and l != 3: a("s_setprio 0")
        a("%s %s, %s, %s, %s", MF, d, vr(Breg + 4 * ct, 4), vr(Areg + 4 * rt, 4), "0" if (first and l) else d)
        if tog and l != 2: a("s_setprio 3")
    for k in range(28):
        if k == OPT.get("pause"): ldswait((12, 0, 10), OPT.get("pgate", 5), 4)
        vm.wait(("h", k))
        wreg = wslot(k)
        hreg = HR + 8 * (k % NH)
        j = k - (NSL - PL) if PL < NSL else k - 1
        mf1(hreg, wreg, k == 0, 0)
        if k + NH - 1 < 28: hload(k + NH - 1)
        mf1(hreg, wreg, k == 0, 1)
        if 0 <= j < NL + 8:
            vm.wait(("L", j))
            trread(wslot(NE + j), v_sr, sloff(j))
        mf1(hreg, wreg, k == 0, 2)
        mf1(hreg, wreg, k == 0, 3)
        if 0 <= j < NL + 8: a("s_waitcnt lgkmcnt(0)")
        if nl < NL + 8 and nl - NSL <= j:
            L(nl); nl += 1
        if k == 14: stamp(a, 4)
    stamp(a, 5)
    a("v_mov_b32 v13, 1")
    a("s_mov_b64 exec, 1")
    a("ds_add_u32 v12, v13 offset:8")
    a("s_mov_b64 exec, -1")
    assert nl == NL + 8
    used = {wslot(28 + i) for i in range(8)}
    OFB = [r_ for r_ in range(E0, 256, 8) if r_ not in used and r_ != HR + 8][:8]
    for i in range(8):
        for ct in range(2):
            rg = wslot(28 + i) + 4 * ct + 3
            a("v_and_b32 v%d, 0xffff, v%d", rg, rg)
    a("s_lshl_b32 s%d, s%d, 10", s_t0, s_w)
    a("s_add_u32 s%d, s%d, s%d", s_gb, s_gb, s_t0)
    a("s_add_u32 s%d, s%d, 0x%x", s_gb, s_gb, FO)
    a("s_mul_i32 s%d, s%d, 20", s_t0, s_w)
    a("s_sub_u32 s%d, 112, s%d", s_t0, s_t0)
    a("s_lshl_b32 s%d, s%d, 11", s_t0, s_t0)
    a("s_add_u32 s%d, s%d, s%d", s_hb, s_ab, s_t0)
    srd(a, sW, 52, XBYTES)
    RA = 4
    for l in range(4):
        a("s_xor_b32 s%d, s%d, %d", s_t0, s_w, l)
        a("s_cmp_ge_u32 s%d, 2", s_t0)
        a("s_cselect_b32 s%d, %d, %d", s_t1, 96 * K, 48 * K) if False else None
        a("s_mul_i32 s%d, s%d, 12288", s_t0, s_t0)
        a("s_cselect_b32 s%d, %d, 0", s_t1, 48 * K)
        a("s_add_u32 s%d, s%d, s%d", s_t0, s_t0, s_t1)
        a("s_add_u32 s%d, s%d, %d", s_t0, s_t0, 48 * K)
        a("v_add_u32 v%d, s%d, v%d", RA + l, s_t0, v_l16)
    ldswait((12, 0, 13), OPT.get("ogate", 8), 2)
    hold_mark(a, 4)
    a("v_and_b32 v9, 7, v%d", v_lane)
    a("v_lshrrev_b32 v10, 1, v9")
    a("v_and_b32 v9, 1, v9")
    a("v_lshlrev_b32 v9, 10, v9")
    a("v_lshl_add_u32 v9, v10, 12, v9")
    a("s_mov_b32 s%d, 0x10000", s_t1)
    a("s_mov_b32 s%d, %d", s_spin, SPIN_MAX)
    def sentinel(tag):
        a.label("L_SN" + tag)
        a("buffer_load_dword v10, v9, s[%d:%d], s%d offen offset:%d sc1", sWS, sWS + 3, s_hb, 2048 + 1020)
        a("s_sub_u32 s%d, s%d, 1", s_spin, s_spin)
        a("s_cbranch_scc1 L_SNT" + tag)
        a("s_waitcnt vmcnt(0)")
        a("v_cmp_gt_u32 vcc, s%d, v10", s_t1)
        a("s_cbranch_vccz L_SNX" + tag)
        if OPT.get("sleeps", 1): a("s_sleep %d", OPT.get("sleeps", 1))
        a("s_branch L_SN" + tag)
        a.label("L_SNT" + tag)
        a("s_mov_b32 s%d, 0", s_spin)
        a.label("L_SNX" + tag)
    if not OPT.get("spec", 0): sentinel("a")
    stamp(a, 6)
    def oloads(h0):
        for hd in range(h0, 4):
            for f2 in range(2):
                a("s_add_u32 s%d, s%d, %d", s_t0, s_hb, (2 * hd + f2) * 2048)
                for f, v in ((0, v_a0), (1, v_a1)):
                    a("buffer_load_dwordx4 %s, v%d, s[%d:%d], s%d offen sc1", vr(OFB[2 * hd + f2] + 4 * f, 4), v, sWS, sWS + 3, s_t0)
    a("s_mov_b32 s%d, %d", s_spin, SPIN_MAX)
    a("s_mov_b32 s%d, 0x10000", s_t1)
    oloads(0)
    for hd in range(4):
        a.label("L_OW%d" % hd)
        a("s_waitcnt vmcnt(%d)", 4 * (3 - hd))
        a("v_min3_u32 v10, v%d, v%d, v%d", OFB[2 * hd] + 3, OFB[2 * hd] + 7, OFB[2 * hd + 1] + 3)
        a("v_min_u32 v10, v10, v%d", OFB[2 * hd + 1] + 7)
        a("v_cmp_gt_u32 vcc, s%d, v10", s_t1)
        a("s_cbranch_vccnz L_OR%d" % hd)
        a.label("L_OK%d" % hd)
        for f2 in range(2): mf(OFB[2 * hd + f2], wslot(28 + 2 * hd + f2), False)
    stamp(a, 7)
    ldswait((12, 8, 13), 4)
    for l in range(1, 4):
        for qd in range(4):
            a("ds_write_b128 v%d, %s offset:%d", RA + l, vr(BACC + 16 * l + 4 * qd, 4), (l - 1) * 4096 + qd * 1024)
    a("s_waitcnt lgkmcnt(0)")
    a("s_barrier")
    for l in range(1, 4):
        for qd in range(4):
            a("ds_read_b128 %s, v%d offset:%d", vr(BACC + 16 * l + 4 * qd, 4), RA, (l - 1) * 4096 + qd * 1024)
    a("s_waitcnt lgkmcnt(8)")
    for j in range(16): a("v_add_f32 v%d, v%d, v%d", BACC + j, BACC + j, BACC + 16 + j)
    a("s_waitcnt lgkmcnt(0)")
    for j in range(16): a("v_add_f32 v%d, v%d, v%d", BACC + 32 + j, BACC + 32 + j, BACC + 48 + j)
    for j in range(16): a("v_add_f32 v%d, v%d, v%d", BACC + j, BACC + j, BACC + 32 + j)
    for jj in range(8):
        a("v_cvt_pk_bf16_f32 v%d, v%d, v%d", E0 + jj, BACC + 2 * jj, BACC + 2 * jj + 1)
    for p in range(2):
        a("v_permlane32_swap_b32 v%d, v%d", E0 + 4 * p, E0 + 4 * p + 2)
        a("v_permlane32_swap_b32 v%d, v%d", E0 + 4 * p + 1, E0 + 4 * p + 3)
    for p in range(2):
        a("buffer_store_dwordx4 %s, v%d, s[%d:%d], s%d offen offset:%d", vr(E0 + 4 * p, 4), v_oo, sW, sW + 3, s_xo, 32 * p)
    stamp(a, 8); stamp(a, 9)
    hold_end(a)
    stamp_flush(a)
    a("s_endpgm")
    for hd in range(4):
        a.label("L_OR%d" % hd)
        a("s_sub_u32 s%d, s%d, 1", s_spin, s_spin)
        a("s_cselect_b32 s%d, 0, s%d", s_spin, s_spin)
        a("s_cbranch_scc1 L_OK%d" % hd)
        a("s_waitcnt vmcnt(0)")
        if OPT.get("spec", 0): sentinel("r%d" % hd)
        oloads(hd)
        a("s_branch L_OW%d" % hd)
    l = a.l
    if OPT.get("lay", 0) == 1:
        return l[:mark_a] + l[mark_b:mark_b2] + l[mark_a:mark_s0] + l[mark_s1:mark_b] + l[mark_b2:] + l[mark_s0:mark_s1] + ["L_END:", "    s_endpgm"]
    return l[:mark_a] + l[mark_b:mark_b2 - 1] + l[mark_b2:] + l[mark_a:mark_s0] + l[mark_s1:mark_b] + l[mark_s0:mark_s1] + ["L_END:", "    s_endpgm"]

def build(path):
    hdr = open("cdna_kernels/%s.s.ref" % NAME).read().split("\n")
    top = [l for l in hdr if l.startswith(";") and "@launch" not in l]
    lines, added = fix(kernel())
    print("instrs", len(lines), "nop states added", added)
    out = top + ["; @launch grid=(256,1,1) block=(512,1,1) lds=%d" % LDS]
    out += ['.amdgcn_target "amdgcn-amd-amdhsa--gfx950"', ".text", ".globl " + KN, ".p2align 8", ".type %s,@function" % KN] + lines
    out += ['.section .rodata,"a"', ".p2align 6", """.amdhsa_kernel %s
  .amdhsa_next_free_vgpr 256
  .amdhsa_next_free_sgpr 102
  .amdhsa_accum_offset 256
  .amdhsa_group_segment_fixed_size 0
  .amdhsa_kernarg_size 72
  .amdhsa_user_sgpr_count 2
  .amdhsa_user_sgpr_kernarg_segment_ptr 1
  .amdhsa_system_sgpr_workgroup_id_x 1
.end_amdhsa_kernel""" % KN]
    open(path, "w").write("\n".join(out) + "\n")

if __name__ == "__main__":
    for kv_ in sys.argv[2:]:
        k, v = kv_.split("=", 1); OPT[k] = eval(v)
    build(sys.argv[1])
```

```python
import sys, math, struct
from asmlib import *

NAME = "parallel_sum__softmax_full_mha__dense_activation_relu__prompt"
KN = NAME + "_kernel"
KV, AF = 0x200000, 0x600000
FKV = 0x000000
FH = 0x8000
FO = 0x10000
WS_END = 0xF00000
XBYTES = 2048 * 448 * 2
OPT = dict(kvat=2, bias=96.0, prel=2, prioB2=0, wpf=False, stamps=False, sleep=2, prioA=2, rd=3, ne=16, pfa=99, pfb=99, iplan=(1,1,1,2,1,1,3), prioB1=0, prioA1=2, pat=((3,0),(3,0),(2,2),(8,6)))
STAMP = 0x2000000
SPIN_MAX = 1 << 17
K = 1024
NST = 12
def f32(x): return "0x%08x" % struct.unpack("<I", struct.pack("<f", x))[0]

def stamp(a, i, grp="main"):
    if i not in (0, NST - 2, NST - 1) and grp != OPT.get("sgrp", "main"): return
    if OPT["stamps"]: a("%s s[%d:%d]", "s_memtime" if OPT.get("cyc") else "s_memrealtime", 76 + 2 * i, 77 + 2 * i)
def hold_mark(a, k):
    if OPT.get("hold") == k: a("s_memrealtime s[98:99]")
def hold_end(a):
    if OPT.get("hold") is None: return
    a("s_waitcnt vmcnt(0) lgkmcnt(0)")
    if OPT["hold"] == 9: a("s_mov_b32 s98, s58")
    if OPT.get("holdx") is not None:
        a("s_and_b32 s95, s2, 7")
        a("s_cmp_lg_u32 s95, %d", OPT["holdx"])
        a("s_cbranch_scc1 L_HOLDX")
    a("s_add_u32 s98, s98, 6000")
    a.label("L_HOLD")
    a("s_memrealtime s[96:97]")
    a("s_waitcnt lgkmcnt(0)")
    a("s_sub_u32 s95, s96, s98")
    a("s_cmp_lt_i32 s95, 0")
    a("s_cbranch_scc1 L_HOLD")
    a.label("L_HOLDX")
def stamp_flush(a):
    if not OPT["stamps"]: return
    stamp(a, NST - 2)
    a("s_mov_b32 s64, s46\ns_mov_b32 s65, s47\ns_mov_b32 s66, 0x10000000\ns_mov_b32 s67, 0x00020000")
    a("s_lshl_b32 s68, s2, 3\ns_add_u32 s68, s68, s3\ns_lshl_b32 s68, s68, 6")
    a("s_add_u32 s68, s68, 0x%x", STAMP)
    a("v_mov_b32 v0, 0")
    a("s_waitcnt vmcnt(0) lgkmcnt(0)")
    stamp(a, NST - 1)
    a("s_waitcnt lgkmcnt(0)")
    for i in range(NST):
        a("v_mov_b32 v1, s%d", 76 + 2 * i)
        a("buffer_store_dword v1, v0, s[64:67], s68 offen offset:%d", 4 * i)

def srd(a, d, base, nbytes):
    a("s_mov_b32 s%d, s%d", d, base)
    a("s_mov_b32 s%d, s%d", d + 1, base + 1)
    a("s_mov_b32 s%d, 0x%x", d + 2, nbytes)
    a("s_mov_b32 s%d, 0x00020000", d + 3)

class VM:
    def __init__(self, a): self.a = a; self.ops = []; self.done = 0
    def issue(self, tag): self.ops.append(tag)
    def wait(self, tag):
        idx = max(i for i, t in enumerate(self.ops) if t == tag)
        if idx < self.done: return
        n = len(self.ops) - 1 - idx
        assert n <= 63, n
        self.a("s_waitcnt vmcnt(%d)", n); self.done = idx + 1

SL = 24 * K
def slot_of(n): return (n % 6) * SL
RB = 149 * K
CNT = 150 * K
QX = 152 * K
KVS = 48 * K
KVS2 = (20 * K, 44 * K, 140 * K, 144 * K)
HO = 80 * K
CV = 112 * K
NSL = 8
def sloff(j): return (j & 3) * 2048 + ((j >> 2) & 1) * 32768
CA = 0
LDS = 160 * K
MF = "v_mfma_f32_32x32x16_bf16"

def kernel():
    a = Asm()
    sWS, sX, sW, sW1, sDBG = 8, 12, 16, 20, 24
    s_w, s_rb, s_c, s_rot, s_t0, s_t1, s_cp, s_mask = 28, 29, 30, 31, 32, 33, 34, 35
    s_hi, s_ex, s_spin, s_non = 36, 38, 56, 58
    v_lane, v_l16 = 1, 2
    a.label(KN)
    a("s_cmp_ge_u32 s2, 256")
    a("s_cbranch_scc1 L_END")
    stamp(a, 0); hold_mark(a, 0)
    a("s_load_dwordx4 s[40:43], s[0:1], 0")
    a("s_load_dwordx2 s[44:45], s[0:1], 16")
    a("s_load_dwordx4 s[48:51], s[0:1], 32")
    a("s_load_dwordx4 s[52:55], s[0:1], 48")
    a("s_load_dwordx2 s[46:47], s[0:1], 64")
    if OPT.get("codepf", 1) == 1:
        a("s_getpc_b64 s[%d:%d]", s_ex, s_ex + 1)
        a.label("L_PC")
        a("s_lshr_b32 s%d, s2, 3", s_t0)
        a("v_lshlrev_b32 v16, 5, v0")
        a("v_add_u32 v16, s%d, v16", s_t0)
        a("v_cmp_gt_u32 vcc, (L_END-L_PC)/128, v16")
        a("v_lshlrev_b32 v16, 7, v16")
        a("s_and_saveexec_b64 s[%d:%d], vcc", s_hi, s_hi + 1)
        a("s_cbranch_execz L_NOCPF")
        a("global_load_dword v254, v16, s[%d:%d]", s_ex, s_ex + 1) if False else None
        a("v_mov_b32 v17, s%d", s_ex + 1)
        a("v_add_co_u32 v16, vcc, s%d, v16", s_ex)
        a("v_addc_co_u32 v17, vcc, 0, v17, vcc")
        a("global_load_dword v254, v[16:17], off")
        a.label("L_NOCPF")
        a("s_mov_b64 exec, -1")
    a("v_lshrrev_b32 v3, 6, v0")
    a("v_and_b32 v%d, 63, v0", v_lane)
    a("v_readfirstlane_b32 s%d, v3", s_w)
    a("v_lshlrev_b32 v%d, 4, v%d", v_l16, v_lane)
    a("s_mov_b32 s%d, 0", s_hi)
    a("s_mov_b32 s%d, -1", s_hi + 1)
    a("s_mov_b32 s%d, 0xffff0000", s_mask)
    cb_ = OPT.get("cbits", 2)
    a("s_and_b32 s%d, s2, %d", s_c, (1 << (4 - cb_)) - 1)
    a("s_lshl_b32 s%d, s%d, %d", s_c, s_c, cb_)
    a("s_bfe_u32 s%d, s2, 0x%x", s_t0, (cb_ << 16) | 3)
    a("s_or_b32 s%d, s%d, s%d", s_c, s_c, s_t0)
    a("s_lshr_b32 s%d, s2, %d", s_rb, 3 + cb_)
    if cb_ > 1:
        a("s_bfe_u32 s%d, s2, 0x%x", s_t1, ((cb_ - 1) << 16) | (4 - cb_))
        a("s_lshl_b32 s%d, s%d, %d", s_t1, s_t1, 5 - cb_)
        a("s_or_b32 s%d, s%d, s%d", s_rb, s_rb, s_t1)
    a("s_mul_i32 s%d, s%d, %d", s_rot, s_t0, {1: 3, 2: 2, 3: 1}[cb_])
    a("s_add_u32 s%d, s%d, s%d", s_rot, s_rot, s_rb)
    a("s_mul_i32 s%d, s%d, 37", s_t0, s_rot)
    a("s_lshr_b32 s%d, s%d, 8", s_t0, s_t0)
    a("s_mul_i32 s%d, s%d, 7", s_t0, s_t0)
    a("s_sub_u32 s%d, s%d, s%d", s_rot, s_rot, s_t0)
    a("s_mov_b32 s3, s%d", s_w)
    s_pc, s_fc = 100, 101
    pc = list(range(16)); fc = list(range(16))
    if OPT.get("perm", 1):
        for x, y in ((2, 0), (4, 1), (6, 14), (9, 15)): pc[x], pc[y] = pc[y], pc[x]
        for x, y in ((11, 14), (13, 15)): fc[x], fc[y] = fc[y], fc[x]
    a("s_lshl_b32 s%d, s%d, 2", s_t0, s_c)
    for dst, tab in ((s_pc, pc), (s_fc, fc)):
        v_ = sum(t_ << (4 * i_) for i_, t_ in enumerate(tab))
        a("s_mov_b32 s%d, 0x%x", s_ex, v_ & 0xffffffff)
        a("s_mov_b32 s%d, 0x%x", s_ex + 1, v_ >> 32)
        a("s_lshr_b64 s[%d:%d], s[%d:%d], s%d", s_ex, s_ex + 1, s_ex, s_ex + 1, s_t0)
        a("s_and_b32 s%d, s%d, 15", dst, s_ex)
    v_g, v_ch, v_rr, v_c = 4, 5, 6, 7
    a("v_lshrrev_b32 v%d, 5, v%d", v_g, v_lane)
    a("v_bfe_u32 v%d, v%d, 4, 1", v_ch, v_lane)
    a("v_bfe_u32 v%d, v%d, 2, 2", v_rr, v_lane)
    a("v_and_b32 v%d, 3, v%d", v_c, v_lane)
    v_trp = 8
    a("v_lshlrev_b32 v%d, 6, v%d", v_trp, v_rr)
    a("v_lshl_add_u32 v%d, v%d, 5, v%d", v_trp, v_ch, v_trp)
    a("v_lshl_add_u32 v%d, v%d, 3, v%d", v_trp, v_c, v_trp)
    def nxt7(reg, first):
        if first: a("s_mov_b32 s%d, s%d", reg, s_rot)
        else:
            a("s_add_u32 s%d, s%d, 1", reg, reg)
            a("s_cmp_eq_u32 s%d, 7", reg)
            a("s_cselect_b32 s%d, 0, s%d", reg, reg)
    def kvs2_base(dst):
        a("s_mul_i32 s%d, s%d, %d", dst, s_w, 24 * K)
        a("s_add_u32 s%d, s%d, %d", dst, dst, 20 * K)
        a("s_lshl_b32 s%d, s%d, 12", s_t1, s_w)
        a("s_add_u32 s%d, s%d, %d", s_t1, s_t1, 132 * K)
        a("s_cmp_ge_u32 s%d, 2", s_w)
        a("s_cselect_b32 s%d, s%d, s%d", dst, s_t1, dst)
    a("s_cmp_ge_u32 s%d, 4", s_w)
    a("s_cbranch_scc0 L_A")
    mark_a = len(a.l)
    a.label("L_A")

    a("s_setprio %d", OPT.get("prioA1", 0))
    a("v_lshlrev_b32 v16, 2, v%d", v_lane)
    a("v_add_u32 v16, %d, v16", CNT)
    a("v_mov_b32 v17, 0")
    a("ds_write_b32 v16, v17")
    v_xa, v_gb, v_hb, v_qb, v_r = 9, 13, 14, 15, 6
    v_gw, v_hw, v_qw, C2, v_csw = 5, 13, 3, 8, 0
    v_t = 16
    XE = 20
    X0, ACC, RING = 24, 136, 216
    v_non, v_z, v_pa, v_pd = 248, 254, 255, 252
    T4 = ACC + 64
    v_sum, v_sq, v_cs = T4, T4 + 2, T4 + 4
    WE = T4 + 8
    s_ones, s_st = 62, 63
    s_fl, s_rt, s_state = 4, 5, 6
    s_kvb, s_i, s_off, s_mode, s_cnt, s_tgt, s_pb, s_hdone = 16, 17, 18, 19, 20, 21, 22, 23
    s_bad, s_skip, s_hfl = 64, 70, 71
    t0, t1, t2 = v_t, v_t + 1, v_t + 2
    a("s_lshl_b32 s%d, s%d, 2", s_rt, s_rb)
    a("s_add_u32 s%d, s%d, s%d", s_rt, s_rt, s_w)
    a("s_mov_b32 s%d, 0x3f803f80", s_ones)
    a("v_and_b32 v%d, 31, v%d", t0, v_lane)
    a("v_bfe_u32 v%d, v%d, 1, 3", t1, v_lane)
    a("v_xor_b32 v%d, v%d, v%d", t1, t1, v_g)
    a("v_lshlrev_b32 v%d, 7, v%d", t0, t0)
    a("v_lshl_add_u32 v%d, v%d, 4, v%d", t0, t1, t0)
    a("s_lshl_b32 s%d, s%d, 12", s_t0, s_w)
    for q in range(4):
        a("v_xor_b32 v%d, %d, v%d", t1, 32 * q, t0)
        a("v_add_u32 v%d, s%d, v%d", v_xa + q, s_t0, t1)
    a("v_lshl_add_u32 v%d, v%d, 11, v%d", v_hb, v_g, v_trp)
    a("v_and_b32 v%d, 48, v%d", t1, v_trp)
    a("v_cmp_eq_u32 s[%d:%d], 48, v%d", s_ex, s_ex + 1, t1)
    a("v_or_b32 v%d, 8, v%d", t1, v_trp)
    a("v_cndmask_b32 v%d, v%d, v%d, s[%d:%d]", t1, v_trp, t1, s_ex, s_ex + 1)
    a("v_lshl_add_u32 v%d, v%d, 10, v%d", v_gb, v_g, t1)
    a("v_lshl_add_u32 v%d, v%d, 9, v%d", v_qb, v_g, t1)
    for r_ in (v_sum, v_sq, v_cs, v_cs + 1): a("v_mov_b32 v%d, 0", r_)
    a("s_mov_b32 s%d, 0", s_mode)
    a("s_mov_b32 s%d, 0", s_tgt)
    a("s_lshl_b32 s%d, s%d, 2", s_kvb, s_c)
    a("s_add_u32 s%d, s%d, s%d", s_kvb, s_kvb, s_w)
    a("s_lshl_b32 s%d, s%d, 16", s_kvb, s_kvb)
    a("s_add_u32 s%d, s%d, 0x%x", s_kvb, s_kvb, KV)
    v_ko, v_ks, v_ks2, v_ho, v_tag, v_tg = 248, 249, 250, 251, 252, 253
    a("s_lshl_b32 s%d, s%d, 13", s_t0, s_w)
    a("v_add_u32 v%d, s%d, v%d", v_ks, s_t0, v_l16)
    a("v_add_u32 v%d, %d, v%d", v_ho, HO, v_ks)
    a("v_add_u32 v%d, %d, v%d", v_ks, KVS, v_ks)
    kvs2_base(s_t0)
    a("v_add_u32 v%d, s%d, v%d", v_ks2, s_t0, v_l16)
    a("s_lshl_b32 s%d, s%d, 2", s_t0, s_w)
    a("s_add_u32 s%d, s%d, %d", s_t0, s_t0, CNT + 16)
    a("v_mov_b32 v%d, s%d", v_tag, s_t0)
    a("s_lshl_b32 s%d, s%d, 12", s_t0, s_w)
    a("v_add_u32 v%d, s%d, v%d", v_ko, s_t0, v_l16)
    a("s_bitcmp1_b32 s%d, 0", s_pc)
    a("s_cselect_b32 s%d, s%d, 0x3f80", s_st, s_ones)
    v_q4 = 255
    a("v_lshlrev_b32 v%d, 2, v%d", v_q4, v_c)
    a("v_add_u32 v%d, %d, v%d", v_q4, CNT, v_q4)
    a("s_lshl_b32 s%d, s%d, 11", s_t0, s_w)
    a("v_add_u32 v%d, s%d, v%d", v_gw, s_t0, v_gb)
    a("s_lshl_b32 s%d, s%d, 2", s_t0, s_w)
    a("s_add_u32 s%d, s%d, %d", s_t0, s_t0, QX)
    a("v_add_u32 v%d, s%d, v%d", v_csw, s_t0, v_l16)
    a("s_waitcnt lgkmcnt(0)")
    stamp(a, 1, "p0")
    srd(a, sWS, 46, WS_END)
    AE = 0
    def acc(t): return vr(ACC + 16 * t, 16)
    spins = []
    def peek(off): a("ds_read_b32 v%d, v%d offset:%d", v_tg, v_q4, off)
    def need(off, thr):
        n = len(spins); spins.append((off, thr))
        a("v_cmp_gt_u32 vcc, %d, v%d", thr, v_tg)
        a("s_cbranch_vccnz L_SP%d" % n)
        a.label("L_SPB%d" % n)
    def post(off, val, tmp):
        a("v_mov_b32 v%d, %d", tmp, val)
        a("ds_write_b32 v%d, v%d offset:%d", v_tag, tmp, off - 16)
    def wset(p): return (ACC + 32) if p % 2 == 0 else RING
    win = {"x": 0, "h": 0, "c": 0}
    def setwin(kind, n):
        wdw = (slot_of(n) // (2 * SL)) * 2 * SL
        d = wdw - win[kind]
        if d:
            for r_ in {"x": [v_xa + q for q in range(4)] + [v_gb, v_gw], "h": [v_hb, v_qb], "c": [v_hw, v_qw]}[kind]:
                if d > 0: a("v_add_u32 v%d, %d, v%d", r_, d, r_)
                else: a("v_subrev_u32 v%d, %d, v%d", r_, -d, r_)
            win[kind] = wdw
        return slot_of(n) - wdw
    def rd1(p, q, off):
        a("ds_read_b128 %s, v%d offset:%d", vr(X0 + 16 * p + 4 * q, 4), v_xa + q, off)
        for t in range(2):
            for h in range(2):
                a("ds_read_b64_tr_b16 %s, v%d offset:%d", vr(wset(p) + 8 * q + 4 * t + 2 * h, 2), v_gb, off + 16384 + q * 2048 + h * 512 + t * 256)
    def rdc(off):
        for t in range(2):
            for h in range(2):
                a("ds_read_b64_tr_b16 %s, v%d offset:%d", vr(WE + 4 * t + 2 * h, 2), v_gw, off + 16384 + h * 512 + t * 256)
    def cs_pack(src, off, ta, tb):
        return ["v_and_b32 v%d, s%d, v%d" % (ta, s_mask, src), "v_sub_f32 v%d, v%d, v%d" % (tb, src, ta),
                "v_lshrrev_b32 v%d, 16, v%d" % (ta, ta), "v_and_or_b32 v%d, v%d, s%d, v%d" % (src, tb, s_mask, ta),
                "ds_write_b32 v%d, v%d offset:%d" % (v_csw, src, off)]
    def split3(m, h0, h1, h2, neg):
        o = []
        if neg: o.append("v_sub_f32 v%d, 0, v%d" % (m, m))
        o += ["v_and_b32 v%d, s%d, v%d" % (h0, s_mask, m), "v_sub_f32 v%d, v%d, v%d" % (m, m, h0),
              "v_and_b32 v%d, s%d, v%d" % (h1, s_mask, m), "v_sub_f32 v%d, v%d, v%d" % (m, m, h1),
              "v_lshrrev_b32 v%d, 16, v%d" % (h0, h0), "v_or_b32 v%d, v%d, v%d" % (h0, h0, h1), "v_lshrrev_b32 v%d, 16, v%d" % (h2, m)]
        return o
    def finalize_ops(swap):
        st = ["v_mov_b32 v%d, v%d" % (v_sum + 1, v_sum), "v_mov_b32 v%d, v%d" % (v_sq + 1, v_sq), None, None,
              "v_permlane32_swap_b32 v%d, v%d" % (v_sum, v_sum + 1), "v_permlane32_swap_b32 v%d, v%d" % (v_sq, v_sq + 1),
              "v_add_f32 v%d, v%d, v%d" % (v_sum, v_sum, v_sum + 1), "v_add_f32 v%d, v%d, v%d" % (v_sq, v_sq, v_sq + 1),
              "v_mul_f32 v%d, %s, v%d" % (v_sum, f32(1.0 / 448), v_sum), "v_mul_f32 v%d, %s, v%d" % (v_sq, f32(1.0 / 448), v_sq),
              "v_fma_f32 v%d, -v%d, v%d, v%d" % (v_sq, v_sum, v_sum, v_sq), "v_max_f32 v%d, 0, v%d" % (v_sq, v_sq),
              "v_cvt_pk_bf16_f32 v%d, v%d, v%d" % (t0, v_sq, v_sq), "v_and_b32 v%d, s%d, v%d" % (t0, s_mask, t0),
              "v_add_f32 v%d, %s, v%d" % (t0, f32(1e-5), t0), "v_cvt_pk_bf16_f32 v%d, v%d, v%d" % (t0, t0, t0),
              "v_and_b32 v%d, s%d, v%d" % (t0, s_mask, t0), "v_sqrt_f32 v%d, v%d" % (t0, t0), None,
              "v_cvt_pk_bf16_f32 v%d, v%d, v%d" % (t0, t0, t0), "v_and_b32 v%d, s%d, v%d" % (t0, s_mask, t0),
              "v_rcp_f32 v%d, v%d" % (v_r, t0), None]
        if swap:
            st += ["ds_write_b32 v%d, v%d" % (t2, v_r)] + ["ds_read_b128 %s, v%d offset:%d" % (vr(RING + 4 * k, 4), t2 + 1, 32 * k) for k in range(4)]
        st += ["v_cvt_pk_bf16_f32 v%d, -v%d, -v%d" % (XE + k, v_sum, v_sum) for k in range(4)]
        st += ["v_mov_b32 v%d, v%d" % (v_r + 1, v_r), "v_add_u32 v%d, %d, v%d" % (t1, QX, v_l16)]
        return [o for o in st if o]
    def pass1(swap):
        win["x"] = 0
        a("s_barrier")
        stamp(a, 3); stamp(a, 1, "p1")
        rdc(0)
        for q in range(4): rd1(0, q, 0)
        if swap:
            a("s_lshl_b32 s%d, s%d, 7", s_t0, s_w)
            a("s_add_u32 s%d, s%d, %d", s_t0, s_t0, RB)
            a("v_and_b32 v%d, 31, v%d", t2, v_lane)
            a("v_lshl_add_u32 v%d, v%d, 2, s%d", t2, t2, s_t0)
            a("v_lshl_add_u32 v%d, v%d, 4, s%d", t2 + 1, v_g, s_t0)
        for p in range(7):
            for q in range(4):
                a("s_waitcnt lgkmcnt(%d)", 5 * (3 - q))
                if q == 0:
                    for j in range(4):
                        for t in range(2):
                            a("v_dot2c_f32_bf16 v%d, s%d, v%d", v_cs + t, s_ones, WE + 4 * t + j)
                for j in range(4):
                    x = X0 + 16 * p + 4 * q + j
                    a("v_dot2c_f32_bf16 v%d, s%d, v%d", v_sum, s_ones, x)
                    a("v_dot2c_f32_bf16 v%d, v%d, v%d", v_sq, x, x)
                if q == 0 and p == 6:
                    for t in range(2):
                        for o_ in cs_pack(v_cs + t, 5120 + 1024 * t, t0, t1): a(o_)
                    post(48, 1, t0)
            fin = finalize_ops(swap) if p == 6 else []
            off = setwin("x", p + 1) if p < 6 else None
            for m in range(8):
                q, t = m >> 1, m & 1
                wf = vr(wset(p) + 8 * q + 4 * t, 4); xf = vr(X0 + 16 * p + 4 * q, 4)
                A, B = (xf, wf) if swap else (wf, xf)
                first = (p == 0 and q == 0)
                a("%s %s, %s, %s, %s", MF, acc(t), A, B, "0" if first else acc(t))
                if p < 6:
                    if m == 3:
                        if 2 <= p + 1 < 2 + AE: a("s_waitcnt vmcnt(%d)", 6 * (1 + AE - (p + 1)))
                        a("s_barrier")
                        rdc(off)
                        stamp(a, 2 + p, "p1")
                    if m >= 4: rd1(p + 1, m - 4, off)
                else:
                    if m == 0: peek(48)
                    k = 6 if m < 5 else len(fin)
                    for o in fin[:k]: a(o)
                    fin = fin[k:]
                    if m == 6:
                        a("s_waitcnt lgkmcnt(0)")
                        need(48, 1)
                        for t_ in range(2): a("ds_read_b128 %s, v%d offset:%d", vr(WE + 4 * t_, 4), t1, 5120 + 1024 * t_)
        a("s_waitcnt lgkmcnt(0)")
        for t in range(2):
            wf = vr(WE + 4 * t, 4); xf = vr(XE, 4)
            A, B = (xf, wf) if swap else (wf, xf)
            a("%s %s, %s, %s, %s", MF, acc(t), A, B, acc(t))
        stamp(a, 8, "p1")
    def pack(t, kind, rreg=None):
        b = ACC + 16 * t
        for jj in range(8):
            a("v_pk_mul_f32 %s, %s, %s", vr(b + 2 * jj, 2), vr(b + 2 * jj, 2), vr((RING + 2 * jj) if kind == "v" else v_r, 2))
            a("v_cvt_pk_bf16_f32 v%d, v%d, v%d", b + jj, b + 2 * jj, b + 2 * jj + 1)
            if kind == "h": a("v_pk_max_i16 v%d, v%d, 0", b + jj, b + jj)
        if kind == "q":
            a("v_cndmask_b32 v%d, v%d, 0, s[%d:%d]", b + 6, b + 6, s_hi, s_hi + 1)
            a("v_cndmask_b32 v%d, v%d, 0, s[%d:%d]", b + 7, b + 7, s_hi, s_hi + 1)
        elif kind == "k":
            a("v_cndmask_b32 v%d, v%d, v%d, s[%d:%d]", b + 6, b + 6, v_t, s_hi, s_hi + 1)
            a("v_cndmask_b32 v%d, v%d, v%d, s[%d:%d]", b + 7, b + 7, v_t + 1, s_hi, s_hi + 1)
        elif kind == "v":
            for jj in range(8):
                a("v_cndmask_b32 v%d, v%d, v%d, s[%d:%d]", b + jj, b + jj, v_t, s_ex, s_ex + 1)
    def kv_epilogue(kind):
        for t in range(2):
            pack(t, kind, "v%d" % v_r)
            for f in range(2):
                a("ds_write_b128 v%d, %s offset:%d", v_ko, vr(ACC + 16 * t + 4 * f, 4), 2048 * t + 1024 * f)
    pass1(False)
    stamp(a, 4); stamp(a, 1, "p2")
    a("v_mov_b32 v%d, s%d", v_t, s_ones)
    a("v_mov_b32 v%d, s%d", v_t + 1, s_st)
    kv_epilogue("k")
    stamp(a, 2, "p2"); stamp(a, 9, "p1")
    NPB = 0
    a("s_waitcnt vmcnt(0) lgkmcnt(0)")
    a("s_barrier")
    stamp(a, 3, "p2")
    class LG:
        def __init__(s_): s_.ops = []; s_.done = 0
        def issue(s_, tag): s_.ops.append(tag)
        def wait(s_, tag):
            idx = max(i for i, t_ in enumerate(s_.ops) if t_ == tag)
            if idx < s_.done: return
            n_ = min(15, len(s_.ops) - 1 - idx)
            a("s_waitcnt lgkmcnt(%d)", n_); s_.done = len(s_.ops) - n_
    lg = LG()
    def rdw(dst, kind, p, qoff, t, tag):
        off = setwin(kind, 7 + p)
        hb, qb = (v_hb, v_qb) if kind == "h" else (v_hw, v_qw)
        for h in range(2):
            if t < 4: a("ds_read_b64_tr_b16 %s, v%d offset:%d", vr(dst + 2 * h, 2), hb, off + qoff + h * 1024 + t * 256)
            else: a("ds_read_b64_tr_b16 %s, v%d offset:%d", vr(dst + 2 * h, 2), qb, off + qoff + 4096 + h * 256)
            lg.issue(tag)
    def rd2(n):
        s, t = divmod(n, 5); p, q = divmod(s, 4)
        rdw(RING + 4 * (n % 8), "h", p, q * 5120, t, n)
    for n in range(7): rd2(n)
    a("s_mul_i32 s%d, s%d, 5120", s_t0, s_w)
    a("v_add_u32 v%d, s%d, v%d", v_hw, s_t0, v_hb)
    a("v_add_u32 v%d, s%d, v%d", v_qw, s_t0, v_qb)
    for t in range(5): a("v_mov_b32 v%d, 0", C2 + t)
    stamp(a, 5); stamp(a, 4, "p2")
    KV0, Q0, P0, O0, S0, QP, MX = 24, 88, 120, 136, 216, 200, 208
    CSF = 72
    def q(u, f): return vr(QP + 4 * f, 4) if u == 3 else vr(Q0 + 8 * u + 4 * f, 4)
    def qreg(u, r): return (QP if u == 3 else Q0 + 8 * u) + r
    def qtile(dst, u):
        a("s_add_u32 s%d, s%d, %d", dst, s_w, u + 1)
        a("s_and_b32 s%d, s%d, 3", dst, dst)
    def o(u): return vr(O0 + 16 * u, 16)
    def kv(st, f): return vr(KV0 + 16 * st + 4 * f, 4)
    def kvload(st, fr=(0, 1, 2, 3)):
        a("s_add_u32 s%d, s%d, s%d", s_off, s_i, s_rb)
        a("s_and_b32 s%d, s%d, 15", s_off, s_off)
        a("s_lshl_b32 s%d, s%d, 12", s_off, s_off)
        a("s_add_u32 s%d, s%d, s%d", s_off, s_off, s_kvb)
        for f in fr:
            a("buffer_load_dwordx4 %s, v%d, s[%d:%d], s%d offen offset:%d sc1", kv(st, f), v_l16, sWS, sWS + 3, s_off, 1024 * f)
        a("s_add_u32 s%d, s%d, 1", s_i, s_i)
    NJ = 140
    barjobs = {20 * p - 7: p + 1 for p in (3, 5)}
    if OPT.get("split56"): barjobs[93] = 5; barjobs[108] = 6
    cs_step = {4: 0, 6: 1, 8: 2, 12: 3, 16: 4, 20: 5, 22: 6}
    CF = [X0, X0 + 4, X0 + 8, X0 + 12, v_t]
    pend = []
    for s in range(28):
        if s % 4 == 0: stamp(a, 1 + s // 4, "p5")
        for t in range(5):
            n = 5 * s + t
            if t == 2 and (s - 1) in cs_step:
                lg.wait(("c", s - 1, 4))
                for j in range(4):
                    for t_ in range(5):
                        a("v_dot2c_f32_bf16 v%d, s%d, v%d", C2 + t_, s_ones, CF[t_] + j)
                if cs_step[s - 1] == 6:
                    for t_ in range(5): pend += cs_pack(C2 + t_, 1024 * t_, v_t, v_t + 1)
            if t in (0, 3): lg.wait(n + (2 if t == 0 else 1))
            a("%s %s, %s, %s, %s", MF, acc(t), vr(RING + 4 * (n % 8), 4), vr(X0 + 4 * s, 4), acc(t) if s else "0")
            if n in barjobs:
                lg.wait(("pk", n)); need(64, 8 + barjobs[n])
            if n + 7 < NJ: rd2(n + 7)
            if s in cs_step: rdw(CF[t], "c", cs_step[s], 0, t, ("c", s, t))
            if n + 6 in barjobs: peek(64); lg.issue(("pk", n + 6))
            if n in (28, 81): post(80, 8 if n == 28 else 11, 254); lg.issue("post")
            if pend:
                for o_ in pend[:5]:
                    a(o_)
                lg.issue("csw"); pend = pend[5:]
                if not pend:
                    post(48, 2, 254); lg.issue("post")
                    a("v_add_u32 v%d, %d, v%d", v_t + 2, QX, v_l16)
            if s == 24 and t == 3: peek(80); lg.issue("pk80")
            if s == 25 and t == 3: lg.wait("pk80"); need(80, 11); peek(48); lg.issue("pk48")
            if s == 26 and t == 3: lg.wait("pk48"); need(48, 2)
            if n >= 134 and n < 139:
                a("ds_read_b128 %s, v%d offset:%d", vr(CSF + 4 * (n - 134), 4), v_t + 2, 1024 * (n - 134)); lg.issue("csf")
            if n == 134: a("ds_read_b32 v%d, v%d", v_tg, v_tag); lg.issue("tg")
    a("s_waitcnt lgkmcnt(0)")
    for t in range(5):
        a("%s %s, %s, %s, %s", MF, acc(t), vr(CSF + 4 * t, 4), vr(XE, 4), acc(t))
    stamp(a, 7, "p2"); stamp(a, 1, "p3"); stamp(a, 8, "p5")
    a("s_setprio %d", OPT["prioA"])
    def kvreads():
        for st in range(3):
            for f in range(4):
                if st < 2: a("ds_read_b128 %s, v%d offset:%d", kv(st, f), v_ks, 4096 * st + 1024 * f)
                else: a("ds_read_b128 %s, v%d offset:%d", kv(st, f), v_ks2, 1024 * f)
    a("v_readfirstlane_b32 s%d, v%d", s_state, v_tg)
    a("s_mov_b32 s%d, 3", s_i)
    a("s_cmp_eq_u32 s%d, 0", s_state)
    a("s_cbranch_scc1 L_NK")
    kvreads()
    a.label("L_NK")
    for t in range(4):
        pack(t, "h")
        for f in range(2):
            a("ds_write_b128 v%d, %s offset:%d", v_ho, vr(ACC + 16 * t + 4 * f, 4), 2048 * t + 1024 * f)
    a("v_mov_b32 v%d, 1", t0)
    a("ds_write_b32 v%d, v%d offset:16", v_tag, t0)
    stamp(a, 6); stamp(a, 8, "p2"); stamp(a, 2, "p3"); stamp(a, 9, "p5")
    a("v_mul_f32 v%d, %s, v%d", v_r, f32(28 ** -0.5 * math.log2(math.e)), v_r)
    a("v_mov_b32 v%d, v%d", v_r + 1, v_r)
    pack(4, "q")
    a("s_cmp_lg_u32 s%d, 0", s_state)
    a("s_cbranch_scc1 L_LOADED")
    a("s_mov_b32 s%d, %d", s_spin, SPIN_MAX * 8)
    a.label("L_AP")
    a("ds_read_b32 v%d, v%d", v_tg, v_tag)
    a("s_sub_u32 s%d, s%d, 1", s_spin, s_spin)
    a("s_cbranch_scc1 L_APX")
    a("s_waitcnt lgkmcnt(0)")
    a("v_readfirstlane_b32 s%d, v%d", s_state, v_tg)
    a("s_cmp_eq_u32 s%d, 0", s_state)
    a("s_cbranch_scc1 L_AP")
    a.label("L_APX")
    kvreads()
    a.label("L_LOADED")
    a("s_waitcnt lgkmcnt(0)")
    stamp(a, 7); stamp(a, 9, "p2"); stamp(a, 3, "p3")
    nsync = [0]
    def async_():
        n = nsync[0]; nsync[0] += 1
        a("v_mov_b32 v12, %d", CNT)
        a("v_mov_b32 v13, 1")
        a("s_add_u32 s%d, s%d, 4", s_tgt, s_tgt)
        a("s_mov_b64 exec, 1")
        a("ds_add_u32 v12, v13")
        a("s_mov_b64 exec, -1")
        a("s_mov_b32 s%d, %d", s_spin, SPIN_MAX)
        a.label("L_AS%d" % n)
        a("ds_read_b32 v13, v12")
        a("s_sub_u32 s%d, s%d, 1", s_spin, s_spin)
        a("s_cbranch_scc1 L_ASX%d" % n)
        a("s_waitcnt lgkmcnt(0)")
        a("v_readfirstlane_b32 s%d, v13", s_t0)
        a("s_cmp_lt_u32 s%d, s%d", s_t0, s_tgt)
        a("s_cbranch_scc1 L_AS%d" % n)
        a.label("L_ASX%d" % n)
    def split_m(m, h0, h1, h2):
        for o_ in split3(m, h0, h1, h2, True): a(o_)
    def patch(u, h0, h2):
        a("v_cndmask_b32 v%d, v%d, %s, s[%d:%d]", qreg(u, 6), qreg(u, 6), h0, s_hi, s_hi + 1)
        a("v_cndmask_b32 v%d, v%d, %s, s[%d:%d]", qreg(u, 7), qreg(u, 7), h2, s_hi, s_hi + 1)
    a("%s %s, %s, %s, 0", MF, vr(S0, 16), kv(0, 0), q(3, 0))
    a("%s %s, %s, %s, %s", MF, vr(S0, 16), kv(0, 1), q(3, 1), vr(S0, 16))
    for u in range(4):
        qtile(s_t1, u)
        a("s_lshl_b32 s%d, s%d, 13", s_t1, s_t1)
        a("s_add_u32 s%d, s%d, %d", s_t1, s_t1, KVS)
        a("v_add_u32 v%d, s%d, v%d", v_t + u, s_t1, v_l16)
    a("ds_write_b128 v%d, %s", v_t + 3, q(3, 0))
    a("v_max3_f32 v%d, v%d, v%d, v%d", MX, S0, S0 + 1, S0 + 2)
    a("v_max3_f32 v%d, v%d, v%d, v%d", MX + 1, S0 + 3, S0 + 4, S0 + 5)
    for j in range(6, 14, 4):
        a("v_max3_f32 v%d, v%d, v%d, v%d", MX, S0 + j, S0 + j + 1, MX)
        a("v_max3_f32 v%d, v%d, v%d, v%d", MX + 1, S0 + j + 2, S0 + j + 3, MX + 1)
    a("v_max3_f32 v%d, v%d, v%d, v%d", MX, S0 + 14, S0 + 15, MX)
    a("v_max_f32 v%d, v%d, v%d", MX, MX, MX + 1)
    a("v_mov_b32 v%d, v%d", MX + 1, MX)
    a("v_permlane32_swap_b32 v%d, v%d", MX, MX + 1)
    a("v_max_f32 v%d, v%d, v%d", MX, MX, MX + 1)
    a("v_add_f32 v%d, %s, v%d", MX, f32(OPT["bias"]), MX)
    split_m(MX, MX + 2, MX + 1, MX + 3)
    patch(3, "v%d" % (MX + 2), "v%d" % (MX + 3))
    a("ds_write_b128 v%d, %s offset:1024", v_t + 3, q(3, 1))
    stamp(a, 4, "p3")
    async_()
    stamp(a, 5, "p3")
    for u in range(3):
        for f in range(2):
            a("ds_read_b128 %s, v%d offset:%d", q(u, f), v_t + u, 1024 * f)
    mark_s0 = len(a.l)
    a.label("L_RESTART")
    a("s_mov_b32 s%d, 0", s_i)
    kvload(0); kvload(1); kvload(2)
    for u in range(4):
        a("v_mov_b32 v%d, 0xff800000", MX + u)
        patch(u, "0", "0")
    a("s_mov_b32 s%d, 0", s_i)
    a.label("L_MAXLOOP")
    kvload(3, (0, 1))
    a("s_waitcnt vmcnt(0)")
    for u in range(4):
        a("%s %s, %s, %s, 0", MF, o(u), kv(3, 0), q(u, 0))
        a("%s %s, %s, %s, %s", MF, o(u), kv(3, 1), q(u, 1), o(u))
    for u in range(4):
        for j in range(8):
            a("v_max3_f32 v%d, v%d, v%d, v%d", MX + u, O0 + 16 * u + 2 * j, O0 + 16 * u + 2 * j + 1, MX + u)
    a("s_cmp_lt_u32 s%d, 16", s_i)
    a("s_cbranch_scc1 L_MAXLOOP")
    a("s_mov_b32 s%d, 3", s_i)
    for u in range(4): a("v_mov_b32 v%d, v%d", v_t + u, MX + u)
    for u in range(4): a("v_permlane32_swap_b32 v%d, v%d", MX + u, v_t + u)
    for u in range(4): a("v_max_f32 v%d, v%d, v%d", MX + u, MX + u, v_t + u)
    a("v_lshlrev_b32 v%d, 2, v%d", v_t + 4, v_lane)
    for u in range(4):
        qtile(s_t1, u)
        a("s_lshl_b32 s%d, s%d, 10", s_t1, s_t1)
        a("s_add_u32 s%d, s%d, %d", s_t1, s_t1, QX)
        a("v_add_u32 v%d, s%d, v%d", v_t + u, s_t1, v_t + 4)
    a("s_lshl_b32 s%d, s%d, 8", s_t0, s_w)
    for u in range(4):
        a("v_add_u32 v%d, s%d, v%d", v_t + 5, s_t0, v_t + u)
        a("ds_write_b32 v%d, v%d", v_t + 5, MX + u)
    async_()
    for u in range(4):
        a("ds_read2_b32 %s, v%d offset0:0 offset1:64", vr(S0 + 4 * u, 2), v_t + u)
        a("ds_read2_b32 %s, v%d offset0:128 offset1:192", vr(S0 + 4 * u + 2, 2), v_t + u)
    a("s_waitcnt lgkmcnt(0)")
    for u in range(4):
        a("v_max3_f32 v%d, v%d, v%d, v%d", MX + u, S0 + 4 * u, S0 + 4 * u + 1, S0 + 4 * u + 2)
        a("v_max_f32 v%d, v%d, v%d", MX + u, MX + u, S0 + 4 * u + 3)
    for u in range(4):
        split_m(MX + u, v_t, v_t + 1, v_t + 2)
        patch(u, "v%d" % v_t, "v%d" % (v_t + 2))
    a("s_branch L_GO")
    mark_s1 = len(a.l)
    a.label("L_GO")
    def S(n): return S0 + 16 * (n & 1)
    def P(n): return P0 + 8 * (n & 1)
    cur = {"g0": False}
    def uo(n):
        return ((n + 3) & 3) if (cur["g0"] and 0 <= n < 4) else (n & 3)
    def qk(n, f):
        i, u = n >> 2, uo(n)
        d = vr(S(n), 16)
        return "%s %s, %s, %s, %s" % (MF, d, kv(i & 3, f), q(u, f), d if f else "0")
    def pv(n, f, init=False):
        i, u = n >> 2, uo(n)
        return "%s %s, %s, %s, %s" % (MF, o(u), kv(i & 3, 2 + f), vr(P(n) + 4 * f, 4), "0" if (init and f == 0) else o(u))
    def cwrite(u, qd): return "ds_write_b128 v%d, %s offset:%d" % (v_t + u, vr(O0 + 16 * u + 4 * qd, 4), CA + u * 4096 + qd * 1024)
    PAT = OPT.get("pat", ((4, 0), (4, 2), (4, 2), (4, 4)))
    def slot(n, g0, last, loads):
        i, u = n >> 2, n & 3
        m = [None, None] if last else [qk(n + 1, 0), qk(n + 1, 1)]
        m += [None, None] if (g0 and n == 0) else [pv(n - 1, 0, g0 and n <= 4), pv(n - 1, 1)]
        free = [[], [], [], []]
        if u == 2 and loads["wait"] is not None: free[3].append("s_waitcnt vmcnt(%d)" % loads["wait"])
        if loads["issue"]:
            st = (i + 3) & 3
            if u == 0:
                free[0].append("s_add_u32 s%d, s%d, s%d" % (s_off, s_i, s_rb))
                free[1].append("s_and_b32 s%d, s%d, 15" % (s_off, s_off))
                free[2].append("s_lshl_b32 s%d, s%d, 12" % (s_off, s_off))
                free[3].append("s_add_u32 s%d, s%d, s%d" % (s_off, s_off, s_kvb))
            if u == 1:
                if OPT.get("noKV") == 2:
                    for f in range(4): free[f].append("ds_read_b128 %s, v%d offset:%d" % (kv(st, f), v_ks, 1024 * f + 4096 * (st & 1)))
                elif OPT.get("spread"):
                    for f in range(4): free[f].append("buffer_load_dwordx4 %s, v%d, s[%d:%d], s%d offen offset:%d sc1" % (kv(st, f), v_l16, sWS, sWS + 3, s_off, 1024 * f))
                elif OPT.get("kvat") is not None:
                    free[OPT["kvat"]] += ["buffer_load_dwordx4 %s, v%d, s[%d:%d], s%d offen offset:%d sc1" % (kv(st, f), v_l16, sWS, sWS + 3, s_off, 1024 * f) for f in range(4)]
                elif not OPT.get("noKV") or g0 and i == 0:
                    free[0] += ["buffer_load_dwordx4 %s, v%d, s[%d:%d], s%d offen offset:%d sc1" % (kv(st, f), v_l16, sWS, sWS + 3, s_off, 1024 * f) for f in range(4)]
                free[1].append("s_add_u32 s%d, s%d, 1" % (s_i, s_i))
        if loads["lastg"] and n >= 14:
            for k in range(4): free[k].append(cwrite(n - 14, k))
        ne = nc = 0
        for k in range(4):
            if m[k]: a(m[k])
            for x in free[k]: a(x)
            for j in range(PAT[k][0]):
                a("v_exp_f32 v%d, v%d", S(n) + ne, S(n) + ne); ne += 1
            for j in range(PAT[k][1]):
                assert 2 * nc + 1 < ne
                a("v_cvt_pk_bf16_f32 v%d, v%d, v%d", P(n) + nc, S(n) + 2 * nc, S(n) + 2 * nc + 1); nc += 1
        assert ne == 16 and nc == 8
    stamp(a, 8); stamp(a, 6, "p3")
    cur["g0"] = True
    a(qk(0, 0)); a(qk(0, 1))
    a("s_waitcnt lgkmcnt(0)")
    for u in range(4):
        qtile(s_t1, u)
        a("s_mul_i32 s%d, s%d, 12288", s_t1, s_t1)
        a("v_add_u32 v%d, s%d, v%d", v_t + u, s_t1, v_l16)
    def group(g, last_group):
        cur["g0"] = (g == 0)
        for n in range(16):
            i = n >> 2
            issue = (not last_group) or i == 0
            wait = {0: 8, 1: 4, 2: 0, 3: None}[i] if last_group else (None if (g == 0 and i < 2) else 8)
            slot(n, g == 0, last_group and n == 15, dict(issue=issue, wait=wait, lastg=last_group))
    group(0, False)
    stamp(a, 7, "p3")
    a("s_mov_b32 s%d, 2", s_cnt)
    a.label("L_LOOP")
    group(1, False)
    a("s_sub_u32 s%d, s%d, 1", s_cnt, s_cnt)
    a("s_cmp_lg_u32 s%d, 0", s_cnt)
    a("s_cbranch_scc1 L_LOOP")
    stamp(a, 8, "p3")
    group(3, True)
    a(pv(15, 0)); a(cwrite(2, 0)); a(cwrite(2, 1)); a(pv(15, 1)); a(cwrite(2, 2)); a(cwrite(2, 3))
    stamp(a, 9); stamp(a, 9, "p3"); stamp(a, 1, "p4")
    stamp(a, 2, "p4")
    async_()
    stamp(a, 3, "p4")
    for u in range(3):
        for qd in range(4):
            a("ds_read_b128 %s, v%d offset:%d", vr(O0 + 16 * u + 4 * qd, 4), v_t + 3, CA + u * 4096 + qd * 1024)
    a("s_lshr_b32 s%d, s%d, 1", s_t1, s_rt)
    a("s_mul_i32 s%d, s%d, 72", s_t1, s_t1)
    a("s_add_u32 s%d, s%d, s%d", s_t1, s_t1, s_c)
    a("s_add_u32 s%d, s%d, 56", s_t1, s_t1)
    a("s_lshl_b32 s%d, s%d, 2", s_t1, s_t1)
    a("s_and_b32 s%d, s%d, 1", s_t0, s_rt)
    a("s_add_u32 s%d, s%d, s%d", s_t1, s_t1, s_t0)
    a("s_lshl_b32 s%d, s%d, 10", s_t1, s_t1)
    a("s_add_u32 s%d, s%d, 0x%x", s_t1, s_t1, AF)
    a("s_waitcnt lgkmcnt(8)")
    for j in range(16): a("v_add_f32 v%d, v%d, v%d", O0 + j, O0 + j, O0 + 48 + j)
    a("s_waitcnt lgkmcnt(0)")
    for j in range(16): a("v_add_f32 v%d, v%d, v%d", O0 + 16 + j, O0 + 16 + j, O0 + 32 + j)
    for j in (7,) + tuple(x for x in range(16) if x != 7):
        a("v_add_f32 v%d, v%d, v%d", O0 + j, O0 + j, O0 + 16 + j)
        if j == 0: a("v_rcp_f32 v%d, v%d", v_t + 2, O0 + 7)
    js = [j for j in range(16) if j not in (7, 15)]
    a("v_maximum3_f32 v%d, abs(v%d), abs(v%d), abs(v%d)", v_t + 3, O0 + js[0], O0 + js[1], O0 + js[2])
    for i_ in range(3, 13, 2):
        a("v_maximum3_f32 v%d, abs(v%d), abs(v%d), v%d", v_t + 3, O0 + js[i_], O0 + js[i_ + 1], v_t + 3)
    a("v_maximum3_f32 v%d, abs(v%d), abs(v%d), v%d", v_t + 3, O0 + js[13], O0 + js[13], v_t + 3)
    a("v_mov_b32 v%d, 0x7e800000", v_t + 4)
    a("v_cmp_gt_f32 vcc, 0x%x, v%d", (127 - 106) << 23, v_t + 3)
    a("v_maximum3_f32 v%d, v%d, v%d, v%d", v_t + 3, O0 + 7, O0 + 7, v_t + 3)
    a("v_cmp_nlt_f32 s[%d:%d], v%d, v%d", s_bad, s_bad + 1, v_t + 3, v_t + 4)
    a("s_or_b64 s[%d:%d], s[%d:%d], vcc", s_bad, s_bad + 1, s_bad, s_bad + 1)
    for j in range(16):
        a("v_mul_f32 v%d, v%d, v%d", O0 + j, O0 + j, v_t + 2)
    for jj in range(8):
        a("v_cvt_pk_bf16_f32 v%d, v%d, v%d", P0 + jj, O0 + 2 * jj, O0 + 2 * jj + 1)
    stamp(a, 4, "p4")
    a("s_or_b32 s%d, s%d, s%d", s_bad, s_bad, s_bad + 1)
    a("s_cmp_lg_u32 s%d, 0", s_mode)
    a("s_cselect_b32 s%d, 0, s%d", s_bad, s_bad)
    a("s_cmp_lg_u32 s%d, 0", s_bad)
    a("s_cbranch_scc1 L_NOPUB")
    a("s_cmp_eq_u32 s%d, 2", s_mode)
    a("s_cbranch_scc1 L_NOPUB")
    for f in range(2):
        a("buffer_store_dwordx4 %s, v%d, s[%d:%d], s%d offen offset:%d sc1", vr(P0 + 4 * f, 4), v_l16, sWS, sWS + 3, s_t1, 2048 * f)
    stamp(a, 5, "p4")
    a.label("L_NOPUB")
    a("s_cmp_lg_u32 s%d, 0", s_mode)
    a("s_cbranch_scc1 L_AEND")
    a("v_mov_b32 v%d, %d", v_t, CNT + 4)
    a("v_mov_b32 v%d, s%d", v_t + 1, s_bad)
    a("ds_or_b32 v%d, v%d", v_t, v_t + 1)
    async_()
    a("ds_read_b32 v%d, v%d", v_t + 1, v_t)
    a("s_waitcnt lgkmcnt(0)")
    a("v_readfirstlane_b32 s%d, v%d", s_t0, v_t + 1)
    a("s_cmp_eq_u32 s%d, 0", s_t0)
    a("s_cbranch_scc1 L_AEND")
    a("s_cmp_lg_u32 s%d, 0", s_bad)
    a("s_cselect_b32 s%d, 1, 2", s_mode)
    a("s_branch L_RESTART")
    a.label("L_AEND")
    stamp_flush(a)
    a("s_endpgm")
    for n, (off, thr) in enumerate(spins):
        a.label("L_SP%d" % n)
        a("s_mov_b32 s%d, %d", s_spin, SPIN_MAX * 8)
        a.label("L_SPL%d" % n)
        peek(off)
        a("s_sub_u32 s%d, s%d, 1", s_spin, s_spin)
        a("s_cbranch_scc1 L_SPB%d" % n)
        a("s_waitcnt lgkmcnt(0)")
        a("v_cmp_gt_u32 vcc, %d, v%d", thr, v_tg)
        a("s_cbranch_vccnz L_SPL%d" % n)
        a("s_branch L_SPB%d" % n)

    mark_b = len(a.l)
    a("s_setprio %d", OPT.get("prioB1", 1))
    sW2 = 12
    NE = OPT.get("ne", 18)
    BACC, E0 = 16, 80
    HR = E0 + 8 * NE
    def wslot(i): return E0 + 8 * (i % NE)
    NH = (256 - HR) // 8
    v_xoff, v_gd, v_hd, v_qd, v_ch_, v_cq = 24, 28, 30, 34, 35, 36
    CF, CT, CA5 = 40, 60, 64
    v_rw, v_sw, v_sr, v_a0, v_a1, v_xo, v_oo = 11, 12, 13, 14, 15, 3, 0
    v_cr, v_rw2 = 10, 8
    NON, ZR, TB = 36, 40, 44
    s_xo, s_gb, s_hb, s_ab, s_rb64, s_cb, s_k, s_kr = 60, 61, 62, 63, 4, 5, 6, 7
    s_cph, s_stg, s_w2b, s_xrow, s_qb_ = 57, 70, 71, 68, 69
    sXX = 72
    a("s_and_b32 s%d, s%d, 3", s_w, s_w)
    a("s_lshl_b32 s%d, s%d, 2", s_xrow, s_rb)
    a("s_add_u32 s%d, s%d, s%d", s_xrow, s_xrow, s_w)
    a("s_mul_i32 s%d, s%d, %d", s_xrow, s_xrow, 32 * 896)
    a("v_lshrrev_b32 v17, 3, v%d", v_lane)
    a("v_mul_u32_u24 v17, 896, v17")
    a("v_lshrrev_b32 v16, 4, v%d", v_lane)
    a("v_and_b32 v19, 7, v%d", v_lane)
    a("v_xor_b32 v18, v16, v19")
    a("v_lshl_add_u32 v%d, v18, 4, v17", v_xoff)
    a("v_xor_b32 v%d, 64, v%d", v_xoff + 1, v_xoff)
    a("v_add_u32 v%d, %d, v%d", v_xoff + 2, 2 * (7168 - 1024), v_xoff)
    a("v_add_u32 v%d, %d, v%d", v_xoff + 3, 3 * (7168 - 1024), v_xoff + 1)
    a("v_add_u32 v%d, %d, v%d", v_xoff + 1, 1 * (7168 - 1024), v_xoff + 1)
    a("v_lshl_add_u32 v17, v%d, 2, v%d", v_g, v_rr)
    a("v_mul_u32_u24 v17, 2688, v17")
    a("v_mul_u32_u24 v18, 56, v%d", v_ch)
    a("v_lshlrev_b32 v20, 4, v%d", v_c)
    a("v_min_u32 v20, 40, v20")
    a("v_add3_u32 v%d, v17, v18, v20", v_gd)
    a("v_add_u32 v%d, %d, v%d", v_gd + 1, 8 * 2688 - 1024, v_gd)
    a("s_and_b32 s%d, s%d, 14", s_t0, s_pc)
    a("s_mul_i32 s%d, s%d, 56", s_t0, s_t0)
    a("s_and_b32 s%d, s%d, 1", s_t1, s_pc)
    a("s_add_u32 s%d, s%d, 1", s_t1, s_t1)
    a("s_mul_i32 s%d, s%d, 896", s_t1, s_t1)
    a("s_add_u32 s%d, s%d, s%d", s_t0, s_t0, s_t1)
    a("s_mul_i32 s%d, s%d, %d", s_qb_, s_w, 16 * 2688)
    a("s_add_u32 s%d, s%d, s%d", s_gb, s_qb_, s_t0)
    stamp(a, 1, "b0")
    a("s_waitcnt lgkmcnt(0)")
    stamp(a, 2, "b0")
    srd(a, sXX, 40, XBYTES)
    srd(a, sW, 42, 448 * 1344 * 2)
    vm = VM(a)
    def I(n):
        if n < 7:
            nxt7(s_cp, n == 0)
            a("s_lshl_b32 s%d, s%d, 7", s_t0, s_cp)
            a("s_add_u32 s%d, s%d, s%d", s_t0, s_t0, s_xrow)
            a("s_lshl_b32 s%d, s%d, 12", s_t1, s_w)
            a("s_add_u32 m0, s%d, %d", s_t1, slot_of(n))
            for i in range(4):
                a("buffer_load_dwordx4 v%d, s[%d:%d], s%d offen offset:%d lds", v_xoff + i, sXX, sXX + 3, s_t0, 1024 * i); vm.issue(n)
            a("s_mul_i32 s%d, s%d, %d", s_t0, s_cp, 64 * 2688)
            a("s_add_u32 s%d, s%d, s%d", s_t0, s_t0, s_gb)
            a("s_lshl_b32 s%d, s%d, 11", s_t1, s_w)
            a("s_add_u32 m0, s%d, %d", s_t1, slot_of(n) + 16384)
            for i in range(2):
                a("buffer_load_dwordx4 v%d, s[%d:%d], s%d offen offset:%d lds", v_gd + i, sW, sW + 3, s_t0, 1024 * i); vm.issue(n)
        else:
            nxt7(s_cp, n == 7)
            a("s_mul_i32 s%d, s%d, %d", s_t0, s_cp, 64 * 3584)
            a("s_add_u32 s%d, s%d, s%d", s_t0, s_t0, s_hb)
            a("s_mul_i32 s%d, s%d, 5120", s_t1, s_w)
            a("s_add_u32 m0, s%d, %d", s_t1, slot_of(n))
            for i in range(4):
                a("buffer_load_dwordx4 v%d, s[%d:%d], s%d offen offset:%d lds", v_hd + i, sW1, sW1 + 3, s_t0, 1024 * i); vm.issue(n)
            a("s_mul_i32 s%d, s%d, %d", s_t0, s_cp, 64 * 2688)
            a("s_add_u32 s%d, s%d, s%d", s_t0, s_t0, s_qb_)
            a("s_add_u32 m0, s%d, %d", s_t1, slot_of(n) + 4096)
            a("buffer_load_dwordx4 v%d, s[%d:%d], s%d offen lds", v_qd, sW, sW + 3, s_t0); vm.issue(n)
    LEAD = OPT.get("lead", 3)
    for n in range(2):
        I(n); stamp(a, 3 + n, "b0")
    a("s_branch L_B2")
    mark_b2 = len(a.l)
    a.label("L_B2")
    a("s_and_b32 s%d, s2, 3", s_rb64)
    a("s_lshl_b32 s%d, s%d, 3", s_rb64, s_rb64)
    a("s_bfe_u32 s%d, s2, 0x30003", s_t0)
    a("s_add_u32 s%d, s%d, s%d", s_rb64, s_rb64, s_t0)
    a("s_and_b32 s%d, s2, 4", s_cb)
    a("s_lshr_b32 s%d, s2, 6", s_t0)
    a("s_add_u32 s%d, s%d, s%d", s_cb, s_cb, s_t0)
    if OPT.get("gbal", 1):
        a("s_bfe_u32 s%d, s2, 0x10005", s_t1)
        a("s_bfe_u32 s%d, s2, 0x10002", s_k)
        a("s_cmp_eq_u32 s%d, s%d", s_t1, s_k)
        a("s_cselect_b32 s%d, 3, 7", s_t1)
        a("s_cmp_eq_u32 s%d, 3", s_t0)
        a("s_cselect_b32 s%d, s%d, s%d", s_cb, s_t1, s_cb)
    a("v_mul_u32_u24 v17, 3584, v%d", v_rr)
    a("v_lshl_add_u32 v17, v16, 6, v17")
    a("v_lshl_add_u32 v%d, v%d, 4, v17", v_hd, v_c)
    for i in range(1, 4): a("v_add_u32 v%d, %d, v%d", v_hd + i, i * (4 * 3584 - 1024), v_hd)
    a("s_mul_i32 s%d, s%d, %d", s_hb, s_w, 16 * 3584)
    a("s_lshl_b32 s%d, s%d, 8", s_t0, s_fc)
    a("s_add_u32 s%d, s%d, s%d", s_hb, s_hb, s_t0)
    a("s_cmp_ge_u32 s%d, 14", s_fc)
    a("s_cselect_b32 s%d, 0x4000000, s%d", s_hb, s_hb)
    a("v_lshrrev_b32 v17, 2, v%d", v_lane)
    a("v_mul_u32_u24 v17, 2688, v17")
    a("v_add_u32 v%d, v20, v17", v_qd)
    a("s_mul_i32 s%d, s%d, 56", s_t0, s_c)
    a("s_add_u32 s%d, s%d, s%d", s_qb_, s_qb_, s_t0)
    a("v_lshl_add_u32 v16, v%d, 2, v%d", v_g, v_rr)
    a("v_mul_u32_u24 v17, 896, v16")
    a("v_lshlrev_b32 v18, 4, v%d", v_c)
    a("v_lshl_add_u32 v19, v%d, 6, v18", v_ch)
    a("s_lshr_b32 s%d, s%d, 1", s_t0, s_w)
    a("s_lshl_b32 s%d, s%d, 6", s_t0, s_t0)
    a("v_xor_b32 v19, s%d, v19", s_t0)
    a("v_add_u32 v%d, v17, v19", v_rw)
    a("s_lshl_b32 s%d, s%d, 13", s_stg, s_w)
    a("s_add_u32 s%d, s%d, %d", s_stg, s_stg, HO)
    a("s_mov_b32 s%d, s%d", s_t0, s_stg)
    a("v_add_u32 v%d, s%d, v%d", v_sw, s_t0, v_l16)
    a("v_lshl_add_u32 v%d, v%d, 9, v%d", v_sr, v_g, v_trp)
    a("v_add_u32 v%d, s%d, v%d", v_cr, s_t0, v_sr)
    a("v_add_u32 v%d, s%d, v%d", v_sr, s_stg, v_sr)
    a("v_mul_u32_u24 v17, 896, v%d", v_g)
    a("v_sub_u32 v%d, v%d, v17", v_rw2, v_rw)
    a("s_and_b32 s%d, s%d, 3", s_k, s_cb)
    a("s_mul_i32 s%d, s%d, 7", s_k, s_k)
    a("s_and_b32 s%d, s%d, 7", s_t0, s_rb64)
    a("s_mul_i32 s%d, s%d, 7", s_t0, s_t0)
    a("s_lshr_b32 s%d, s%d, 1", s_t0, s_t0)
    a("s_add_u32 s%d, s%d, s%d", s_k, s_k, s_t0)
    a("s_sub_u32 s%d, s%d, 28", s_t0, s_k)
    a("s_cmp_ge_u32 s%d, 28", s_k)
    a("s_cselect_b32 s%d, s%d, s%d", s_k, s_t0, s_k)
    a("s_mov_b32 s%d, s%d", s_kr, s_k)
    a("s_mul_i32 s%d, s%d, %d", s_w2b, s_w, 28 * 16 * 896)
    a("s_lshl_b32 s%d, s%d, 7", s_t0, s_cb)
    a("s_add_u32 s%d, s%d, s%d", s_w2b, s_w2b, s_t0)
    a("s_cmp_ge_u32 s%d, 7", s_cb)
    a("s_cselect_b32 s%d, 0x4000000, s%d", s_w2b, s_w2b)
    srd(a, sW1, 48, 448 * 1792 * 2)
    srd(a, sW2, 50, 1792 * 448 * 2)
    srd(a, sWS, 46, WS_END)
    srd(a, sDBG, 54, 256)
    a("s_or_b32 s%d, s2, s%d", s_t0, s_w)
    a("s_cmp_lg_u32 s%d, 0", s_t0)
    a("s_cbranch_scc1 L_BNW")
    a("s_memrealtime s[%d:%d]", s_non, s_non + 1)
    a("v_mov_b32 v18, 0")
    a("s_waitcnt lgkmcnt(0)")
    a("s_or_b32 s%d, s%d, 1", s_non, s_non)
    a("v_mov_b32 v16, s%d", s_non)
    a("v_mov_b32 v17, s%d", s_non + 1)
    a("s_mov_b64 exec, 1")
    a("buffer_store_dwordx2 v[16:17], v18, s[%d:%d], 0 offen sc1", sDBG, sDBG + 3)
    a("s_mov_b64 exec, -1")
    a.label("L_BNW")
    def prefetch():
        if OPT.get("wpf", True):
            a("s_lshl_b32 s%d, s2, 2", s_t0)
            a("s_add_u32 s%d, s%d, s%d", s_t0, s_t0, s_w)
            a("s_lshl_b32 s%d, s%d, 10", s_t0, s_t0)
            a("s_sub_u32 s%d, 0x%x, s%d", s_t1, 2047 * 1024, s_t0)
            a("buffer_load_dwordx4 v[232:235], v%d, s[%d:%d], s%d offen", v_l16, sW1, sW1 + 3, s_t0); vm.issue("pf")
            a("buffer_load_dwordx4 v[236:239], v%d, s[%d:%d], s%d offen", v_l16, sW1, sW1 + 3, s_t1); vm.issue("pf")
    def prefetch2():
        if OPT.get("wpf", True):
            a("s_lshl_b32 s%d, s2, 2", s_t0)
            a("s_add_u32 s%d, s%d, s%d", s_t0, s_t0, s_w)
            a("s_lshl_b32 s%d, s%d, 10", s_t0, s_t0)
            a("s_add_u32 s%d, s%d, 0x100000", s_t1, s_t0)
            a("buffer_load_dwordx4 v[224:227], v%d, s[%d:%d], s%d offen", v_l16, sW2, sW2 + 3, s_t0); vm.issue("pf")
            a("buffer_load_dwordx4 v[228:231], v%d, s[%d:%d], s%d offen", v_l16, sW2, sW2 + 3, s_t1); vm.issue("pf")
            srd(a, 72, 44, 448 * 448 * 2)
            a("s_sub_u32 s%d, 0x%x, s%d", s_t1, 1023 * 1024, s_t0)
            a("buffer_load_dwordx4 v[240:243], v%d, s[72:75], s%d offen", v_l16, s_t1); vm.issue("pf")
    nraw = [0]
    def waddr():
        a("s_mul_i32 s%d, s%d, %d", s_t0, s_kr, 16 * 896)
        a("s_add_u32 s%d, s%d, s%d", s_t0, s_t0, s_w2b)
        a("s_add_u32 s%d, s%d, %d", s_t1, s_t0, 8 * 896)
        a("s_add_u32 s%d, s%d, 1", s_kr, s_kr)
        a("s_cmp_eq_u32 s%d, 28", s_kr)
        a("s_cselect_b32 s%d, 0, s%d", s_kr, s_kr)
    def R(cnt):
        for _ in range(cnt):
            e = nraw[0]
            if e >= NE: return
            nraw[0] += 1
            waddr()
            a("buffer_load_dwordx4 %s, v%d, s[%d:%d], s%d offen", vr(E0 + 8 * e, 4), v_rw, sW2, sW2 + 3, s_t0); vm.issue(("R", e))
            a("buffer_load_dwordx4 %s, v%d, s[%d:%d], s%d offen", vr(E0 + 8 * e + 4, 4), v_rw, sW2, sW2 + 3, s_t1); vm.issue(("R", e))
    bar = lambda: a("s_barrier")
    rp = OPT.get("rplan", (0, 6))
    bprio = [OPT.get("prioB1", 1)]
    def hi():
        if OPT.get("synchi", 1): a("s_setprio 3")
    def lo():
        if OPT.get("synchi", 1): a("s_setprio %d", bprio[0])
    npoll = [0]
    def poll(v_addr, s_base, slp, dst):
        n = npoll[0]; npoll[0] += 1
        hi()
        a("s_mov_b32 s%d, %d", s_spin, SPIN_MAX)
        a.label("L_BP%d" % n)
        a("buffer_load_dwordx2 %s, v%d, s[%d:%d], s%d offen sc1", vr(dst, 2), v_addr, sWS, sWS + 3, s_base)
        a("s_sub_u32 s%d, s%d, 1", s_spin, s_spin)
        a("s_cbranch_scc1 L_BPX%d" % n)
        a("s_waitcnt vmcnt(0)")
        a("v_cmp_ne_u64 vcc, s[%d:%d], %s", s_non, s_non + 1, vr(dst, 2))
        a("s_cbranch_vccz L_BPX%d" % n)
        if slp: a("s_sleep %d", slp)
        a("s_branch L_BP%d" % n)
        a.label("L_BPX%d" % n)
        lo()
        vm.done = len(vm.ops)
    nls = [0]
    def ldswait(addr_off, thr, slp=0):
        n = nls[0]; nls[0] += 1
        hi()
        a("s_mov_b32 s%d, %d", s_spin, SPIN_MAX * 8)
        a.label("L_BL%d" % n)
        a("ds_read_b32 v%d, v%d offset:%d", addr_off[2], addr_off[0], addr_off[1])
        a("s_sub_u32 s%d, s%d, 1", s_spin, s_spin)
        a("s_cbranch_scc1 L_BLX%d" % n)
        a("s_waitcnt lgkmcnt(0)")
        a("v_readfirstlane_b32 s%d, v%d", s_t0, addr_off[2])
        a("s_cmp_ge_u32 s%d, %d", s_t0, thr)
        a("s_cbranch_scc1 L_BLX%d" % n)
        if slp: a("s_sleep %d", slp)
        a("s_branch L_BL%d" % n)
        a.label("L_BLX%d" % n)
        lo()
    nfs = [0]
    def flagst(s_addr):
        n = nfs[0]; nfs[0] += 1
        hi()
        a("v_mov_b32 v22, %d", CNT + 96 + 4 * n)
        a("v_mov_b32 v23, 1")
        a("s_mov_b64 exec, 1")
        a("ds_add_rtn_u32 v23, v22, v23")
        a("s_mov_b64 exec, -1")
        a("s_waitcnt lgkmcnt(0)")
        a("v_readfirstlane_b32 s%d, v23", s_t0)
        a("s_cmp_lg_u32 s%d, 3", s_t0)
        a("s_cbranch_scc1 L_FS%d" % n)
        a("s_mov_b64 exec, 0xff")
        a("buffer_store_dwordx4 %s, v%d, s[%d:%d], s%d offen sc1", vr(NON, 4), v_l16, sWS, sWS + 3, s_addr)
        a("s_mov_b64 exec, -1")
        a.label("L_FS%d" % n)
        lo()
    for i in range(4): a("v_mov_b32 v%d, 0", ZR + i)
    s_rt, s_p, s_q, s_r = 64, 65, 66, 67
    a("s_lshl_b32 s%d, s%d, 2", s_t0, s_w)
    a("s_add_u32 s%d, s%d, %d", s_t0, s_t0, CNT + 16)
    a("v_mov_b32 v19, s%d", s_t0)
    a("v_lshlrev_b32 v35, 2, v%d", v_c)
    a("v_add_u32 v35, %d, v35", CNT)
    def landed(n):
        vm.wait(n)
        hi()
        a("v_mov_b32 v21, %d", n + 1)
        a("ds_write_b32 v19, v21 offset:48")
        lo()
    npg = [0]
    def prg(thr, off=80):
        n = npg[0]; npg[0] += 1
        hi()
        a("s_mov_b32 s%d, %d", s_spin, SPIN_MAX * 8)
        a.label("L_PG%d" % n)
        a("ds_read_b32 v21, v35 offset:%d", off)
        a("s_sub_u32 s%d, s%d, 1", s_spin, s_spin)
        a("s_cbranch_scc1 L_PGX%d" % n)
        a("s_waitcnt lgkmcnt(0)")
        a("v_cmp_gt_u32 vcc, %d, v21", thr)
        a("s_cbranch_vccz L_PGX%d" % n)
        a("s_sleep 2")
        a("s_branch L_PG%d" % n)
        a.label("L_PGX%d" % n)
        lo()
    nxt = 2 + AE
    for _ in range(AE): nxt7(s_cp, False)
    plan = OPT["iplan"]
    for n in range(7):
        if n == 0: stamp(a, 5, "b0")
        if not (2 <= n < 2 + AE): vm.wait(n)
        if n < 2: stamp(a, 6 + 2 * n, "b0")
        bar()
        if n < 2: stamp(a, 7 + 2 * n, "b0")
        if n == 0: hold_mark(a, 1)
        for _ in range(plan[n]):
            assert nxt - 5 <= n
            I(nxt); nxt += 1
        if n == OPT["pfb"]: prefetch2()
        if n == 3:
            a("buffer_load_dwordx2 %s, v%d, s[%d:%d], 0 offen sc1", vr(NON, 2), ZR, sDBG, sDBG + 3); vm.issue("non")
    assert nxt >= 10
    def trread(dst, base, off):
        for ct in range(2):
            for h in range(2):
                a("ds_read_b64_tr_b16 %s, v%d offset:%d", vr(dst + 4 * ct + 2 * h, 2), base, off + h * 1024 + ct * 256)
    ncv = [0]
    def convert(cnt):
        for _ in range(cnt):
            e = ncv[0]
            if e >= nraw[0]: return
            ncv[0] += 1
            vm.wait(("R", e))
            for h in range(2):
                a("ds_write_b128 v%d, %s offset:%d", v_sw, vr(E0 + 8 * e + 4 * h, 4), h * 1024)
            trread(E0 + 8 * e, v_cr, 0)
            a("s_waitcnt lgkmcnt(6)")
    a("s_lshl_b32 s%d, s%d, 2", s_rt, s_rb)
    a("s_add_u32 s%d, s%d, s%d", s_rt, s_rt, s_w)
    a("s_and_b32 s%d, s%d, 14", s_p, s_pc)
    a("s_lshl_b32 s%d, s%d, 6", s_p, s_p)
    a("s_add_u32 s%d, s%d, s%d", s_p, s_p, s_rt)
    a("s_lshl_b32 s%d, s%d, 1", s_p, s_p)
    a("s_and_b32 s%d, s%d, 1", s_t0, s_pc)
    a("s_add_u32 s%d, s%d, s%d", s_p, s_p, s_t0)
    a("s_lshl_b32 s%d, s%d, 11", s_p, s_p)
    a("s_add_u32 s%d, s%d, 0x%x", s_p, s_p, KV)
    a("s_add_u32 s%d, s%d, 262144", s_q, s_p)
    a("s_lshr_b32 s%d, s%d, 1", s_r, s_rt)
    a("s_mul_i32 s%d, s%d, 72", s_r, s_r)
    a("s_add_u32 s%d, s%d, s%d", s_r, s_r, s_c)
    a("s_add_u32 s%d, s%d, 56", s_r, s_r)
    a("s_lshl_b32 s%d, s%d, 2", s_r, s_r)
    a("s_and_b32 s%d, s%d, 1", s_t0, s_rt)
    a("s_add_u32 s%d, s%d, s%d", s_r, s_r, s_t0)
    a("s_lshl_b32 s%d, s%d, 10", s_r, s_r)
    a("s_add_u32 s%d, s%d, 0x%x", s_r, s_r, AF)
    a("s_lshl_b32 s%d, s%d, 12", s_t0, s_w)
    a("v_add_u32 v16, s%d, v%d", s_t0, v_l16)
    a("v_and_b32 v17, 1, v%d", v_c)
    a("v_lshl_add_u32 v18, v%d, 2, v%d", v_g, v_rr)
    a("v_lshl_add_u32 v17, v17, 5, v18")
    a("v_lshlrev_b32 v17, 4, v17")
    a("v_lshl_add_u32 v17, v%d, 10, v17", v_ch)
    a("v_lshrrev_b32 v18, 1, v%d", v_c)
    a("v_lshl_add_u32 v17, v18, 3, v17")
    a("v_add_u32 v17, s%d, v17", s_t0)
    a("v_and_b32 v20, 31, v%d", v_lane)
    a("v_mov_b32 v18, v20")
    for th in (11, 14, 25):
        a("v_cmp_le_u32 vcc, %d, v20", th)
        a("v_addc_co_u32 v18, vcc, 0, v18, vcc")
    a("v_and_b32 v22, 1, v20")
    a("v_lshlrev_b32 v22, 2, v22")
    a("v_bfe_u32 v23, v20, 1, 1")
    a("v_lshl_add_u32 v22, v23, 4, v22")
    a("v_add_u32 v22, 11, v22")
    a("s_mov_b32 s%d, 0xf0000000", s_ex)
    a("s_mov_b32 s%d, 0xf0000000", s_ex + 1)
    a("v_cndmask_b32 v18, v18, v22, s[%d:%d]", s_ex, s_ex + 1)
    a("s_bitcmp1_b32 s%d, 0", s_pc)
    a("s_cselect_b32 s%d, -1, 0", s_ex)
    a("s_mov_b32 s%d, s%d", s_ex + 1, s_ex)
    a("v_cndmask_b32 v18, v20, v18, s[%d:%d]", s_ex, s_ex + 1)
    a("v_lshl_add_u32 v18, v%d, 5, v18", v_g)
    a("v_lshlrev_b32 v18, 4, v18")
    vm.wait(9)
    a("s_mov_b32 s%d, %d", s_spin, SPIN_MAX)
    a.label("L_BN")
    a("v_readfirstlane_b32 s%d, v%d", s_non, NON)
    a("v_readfirstlane_b32 s%d, v%d", s_non + 1, NON + 1)
    a("s_cmp_lg_u32 s%d, 0", s_non)
    a("s_cbranch_scc1 L_BNX")
    a("buffer_load_dwordx2 %s, v%d, s[%d:%d], 0 offen sc1", vr(NON, 2), ZR, sDBG, sDBG + 3)
    a("s_sub_u32 s%d, s%d, 1", s_spin, s_spin)
    a("s_cbranch_scc1 L_BNX")
    a("s_waitcnt vmcnt(0)")
    a("s_branch L_BN")
    a.label("L_BNX")
    a("v_mov_b32 v%d, v%d", NON + 2, NON)
    a("v_mov_b32 v%d, v%d", NON + 3, NON + 1)
    bar()
    stamp(a, 2, "b1"); stamp(a, 1, "b2"); hold_mark(a, 2)
    a("s_bitcmp1_b32 s%d, 0", s_pc)
    a("s_cbranch_scc1 L_VT")
    for i in range(4): a("ds_read_b128 %s, v16 offset:%d", vr(TB + 4 * i, 4), 1024 * i)
    a("s_branch L_VJ")
    a.label("L_VT")
    for i in range(4):
        for h in range(2):
            a("ds_read_b64_tr_b16 %s, v17 offset:%d", vr(TB + 4 * i + 2 * h, 2), 2048 * (i >> 1) + (16 * (i & 1) + 8 * h) * 16)
    a.label("L_VJ")
    for i in range(4):
        a("s_waitcnt lgkmcnt(%d)", 3 - i)
        a("buffer_store_dwordx4 %s, v18, s[%d:%d], s%d offen offset:%d sc1", vr(TB + 4 * i, 4), sWS, sWS + 3, s_q if i >> 1 else s_p, 1024 * (i & 1)); vm.issue("kv")
    rp = OPT.get("rplan", (0, 2, 2, 2))
    while nxt < 12: I(nxt); nxt += 1
    landed(11)
    a("s_lshl_b32 s%d, s%d, 4", s_p, s_pc)
    a("s_add_u32 s%d, s%d, s%d", s_p, s_p, s_rb)
    a("s_lshl_b32 s%d, s%d, 7", s_p, s_p)
    a("s_lshl_b32 s%d, s%d, 4", s_q, s_rb)
    a("s_add_u32 s%d, s%d, s%d", s_q, s_q, s_c)
    a("s_lshl_b32 s%d, s%d, 7", s_q, s_q)
    a("s_add_u32 s%d, s%d, 0x%x", s_xo, s_q, FO)
    a("s_lshl_b32 s%d, s%d, 4", s_q, s_rb)
    a("s_add_u32 s%d, s%d, s%d", s_q, s_q, s_fc)
    a("s_lshl_b32 s%d, s%d, 7", s_q, s_q)
    a("s_add_u32 s%d, s%d, 0x%x", s_q, s_q, FH)
    stamp(a, 2, "b2")
    if OPT.get("i12first"):
        prg(12, 64); I(12)
    vm.wait("kv")
    stamp(a, 3, "b2")
    flagst(s_p)
    stamp(a, 5, "b1"); stamp(a, 4, "b2")
    if not OPT.get("i12first"):
        prg(12, 64); I(12)
    prg(8); I(13)
    stamp(a, 5, "b2")
    for f in range(2):
        a("buffer_store_dwordx4 %s, v%d, s[%d:%d], s%d offen offset:%d sc1", vr(ZR, 4), v_l16, sWS, sWS + 3, s_r, 2048 * f); vm.issue("oz")
    a("v_lshlrev_b32 v16, 7, v%d", v_c)
    a("v_bfe_u32 v17, v%d, 2, 1", v_lane)
    a("v_lshl_add_u32 v16, v17, 11, v16")
    a("s_and_b32 s%d, s%d, 14", s_p, s_c)
    a("s_lshl_b32 s%d, s%d, 2", s_p, s_p)
    a("s_add_u32 s%d, s%d, s%d", s_p, s_p, s_w)
    a("s_lshl_b32 s%d, s%d, 9", s_p, s_p)
    a("s_lshl_b32 s%d, s%d, 2", s_r, s_c)
    a("s_add_u32 s%d, s%d, s%d", s_r, s_r, s_w)
    a("s_lshl_b32 s%d, s%d, 16", s_r, s_r)
    a("s_add_u32 s%d, s%d, 0x%x", s_r, s_r, KV)
    a("s_lshl_b32 s%d, s%d, 13", s_t0, s_w)
    a("v_add_u32 v17, s%d, v%d", s_t0, v_l16)
    kvs2_base(s_t0)
    a("v_add_u32 v18, s%d, v%d", s_t0, v_l16)
    a("v_add_u32 v20, %d, v17", HO)
    stamp(a, 6, "b2")
    if OPT.get("split56"): landed(12)
    landed(13)
    stamp(a, 7, "b2")
    KB = [TB + 4 * i for i in range(9)] + [24, 28, ZR]
    def kbloads(count):
        for st in range(3):
            a("s_add_u32 s%d, s%d, %d", s_t0, s_rb, st)
            a("s_and_b32 s%d, s%d, 15", s_t0, s_t0)
            a("s_lshl_b32 s%d, s%d, 12", s_t0, s_t0)
            a("s_add_u32 s%d, s%d, s%d", s_t0, s_t0, s_r)
            for f in range(4):
                a("buffer_load_dwordx4 %s, v%d, s[%d:%d], s%d offen offset:%d sc1", vr(KB[4 * st + f], 4), v_l16, sWS, sWS + 3, s_t0, 1024 * f)
                if count: vm.issue(("kb", 4 * st + f))
    poll(16, s_p, OPT.get("sleepk", 0), 22)
    stamp(a, 8, "b2")
    kbloads(True)
    stamp(a, 9, "b2")
    stamp(a, 1); stamp(a, 1, "b1")
    if OPT["pfb"] == 99: prefetch2()
    R(rp[3])
    flagst(s_xo)
    prg(11)
    for i in range(12):
        vm.wait(("kb", i))
        if i < 8: a("ds_write_b128 v17, %s offset:%d", vr(KB[i], 4), KVS + 1024 * i)
        else: a("ds_write_b128 v18, %s offset:%d", vr(KB[i], 4), 1024 * (i - 8))
        if OPT.get("rmix", 0) and i % 2 == 1: R(1)
    a("v_mov_b32 v21, 1")
    a("ds_write_b32 v19, v21")
    stamp(a, 3, "b1")
    R(OPT.get("rpre", NE))
    a("s_lshr_b32 s%d, s%d, 1", s_t0, s_rt)
    a("s_mul_i32 s%d, s%d, 18", s_p, s_t0)
    a("s_add_u32 s%d, s%d, s%d", s_p, s_p, s_fc)
    a("s_lshl_b32 s%d, s%d, 4", s_p, s_p)
    a("s_and_b32 s%d, s%d, 1", s_t1, s_rt)
    a("s_add_u32 s%d, s%d, s%d", s_p, s_p, s_t1)
    a("s_lshl_b32 s%d, s%d, 10", s_p, s_p)
    a("s_add_u32 s%d, s%d, 0x%x", s_p, s_p, AF)
    a("s_cmp_ge_u32 s%d, 14", s_fc)
    a("s_cselect_b32 s%d, 0x4000000, s%d", s_p, s_p)
    ldswait((19, 16, 21), 1, 1)
    if OPT.get("prioBh") is not None: a("s_setprio %d", OPT["prioBh"]); bprio[0] = OPT["prioBh"]
    stamp(a, 4, "b1"); hold_mark(a, 3)
    for i in range(8): a("ds_read_b128 %s, v20 offset:%d", vr(TB + 4 * i, 4), 1024 * i)
    for i in range(8):
        a("s_waitcnt lgkmcnt(%d)", 7 - i)
        a("buffer_store_dwordx4 %s, v%d, s[%d:%d], s%d offen offset:%d sc1", vr(TB + 4 * i, 4), v_l16, sWS, sWS + 3, s_p, 2048 * (i & 1)); vm.issue("hs")
        if i & 1 and i < 7: a("s_add_u32 s%d, s%d, 4096", s_p, s_p)
    R(OPT.get("rmid", 0))
    convert(min(OPT.get("cvh", 5), nraw[0] - OPT.get("rmid", 0)))
    vm.wait("hs"); flagst(s_q)
    R(NE)
    stamp(a, 6, "b1")
    a("s_setprio %d", OPT.get("prioB2", 0)); bprio[0] = OPT.get("prioB2", 0)
    a("s_cmp_ge_u32 s%d, 7", s_cb)
    a("s_cbranch_scc1 L_END")
    a("s_and_b32 s%d, s%d, 1", s_t0, s_w)
    a("s_lshl_b32 s%d, s%d, 10", s_t0, s_t0)
    a("v_add_u32 v%d, s%d, v%d", v_a0, s_t0, v_l16)
    a("v_xor_b32 v%d, 1024, v%d", v_a1, v_a0)
    a("v_and_b32 v%d, 31, v%d", v_xo, v_lane)
    a("v_mul_u32_u24 v%d, 896, v%d", v_xo, v_xo)
    a("v_lshl_add_u32 v%d, v%d, 4, v%d", v_oo, v_g, v_xo)
    a("v_lshl_add_u32 v%d, v%d, 3, v%d", v_xo, v_g, v_xo)
    a("s_lshl_b32 s%d, s%d, 1", s_xo, s_rb64)
    a("s_and_b32 s%d, s%d, 1", s_t0, s_w)
    a("s_add_u32 s%d, s%d, s%d", s_xo, s_xo, s_t0)
    a("s_mul_i32 s%d, s%d, %d", s_xo, s_xo, 32 * 896)
    a("s_lshl_b32 s%d, s%d, 1", s_t0, s_cb)
    a("s_lshr_b32 s%d, s%d, 1", s_t1, s_w)
    a("s_add_u32 s%d, s%d, s%d", s_t0, s_t0, s_t1)
    a("s_lshl_b32 s%d, s%d, 6", s_t0, s_t0)
    a("s_add_u32 s%d, s%d, s%d", s_xo, s_xo, s_t0)
    srd(a, sW, 40, XBYTES)
    a("s_mul_i32 s%d, s%d, 28", s_t0, s_w)
    a("s_mul_i32 s%d, s%d, 144", s_ab, s_rb64)
    a("s_add_u32 s%d, s%d, s%d", s_ab, s_ab, s_t0)
    a("s_lshl_b32 s%d, s%d, 11", s_ab, s_ab)
    a("s_add_u32 s%d, s%d, 0x%x", s_ab, s_ab, AF)
    a("s_lshl_b32 s%d, s%d, 11", s_k, s_k)
    for q4 in range(4):
        a("buffer_load_dwordx2 %s, v%d, s[%d:%d], s%d offen offset:%d", vr(HR + 2 * q4, 2), v_xo, sW, sW + 3, s_xo, 16 * q4); vm.issue("x")
    convert(NE)
    stamp(a, 2)
    vm.wait("x")
    for jj in range(8):
        a("v_lshlrev_b32 v%d, 16, v%d", BACC + 2 * jj, HR + jj)
        a("v_and_b32 v%d, s%d, v%d", BACC + 2 * jj + 1, s_mask, HR + jj)
    a("s_waitcnt lgkmcnt(0)")
    NL = 28 - NE
    def L(i):
        if OPT.get("noBload"): vm.issue(("L", i)); vm.done = len(vm.ops); return
        if i < NL:
            waddr(); sr_ = sW2
        else:
            k_ = i - NL; sr_ = sW1
            a("s_mul_i32 s%d, s%d, %d", s_t0, s_w, 112 * 896)
            a("s_lshl_b32 s%d, s%d, 7", s_t1, s_cb)
            a("s_add_u32 s%d, s%d, s%d", s_t0, s_t0, s_t1)
            a("s_add_u32 s%d, s%d, %d", s_t0, s_t0, (28 * (k_ >> 1) + 14 * (k_ & 1)) * 896)
            a("s_add_u32 s%d, s%d, %d", s_t1, s_t0, 8 * 896)
        for h in range(2):
            a("s_add_u32 m0, s%d, %d", s_stg, sloff(i) + h * 1024)
            a("buffer_load_dwordx4 v%d, s[%d:%d], s%d offen lds", v_rw2 if (h and i >= NL) else v_rw, sr_, sr_ + 3, s_t1 if h else s_t0); vm.issue(("L", i))
    a("v_lshlrev_b32 v9, 7, v%d", v_c)
    a("s_lshr_b32 s%d, s%d, 1", s_gb, s_rb64)
    a("s_lshl_b32 s%d, s%d, 11", s_gb, s_gb)
    a("s_mul_i32 s%d, s%d, 7", s_t0, s_w)
    a("s_lshr_b32 s%d, s%d, 1", s_t0, s_t0)
    a("s_lshl_b32 s%d, s%d, 7", s_t0, s_t0)
    a("s_add_u32 s%d, s%d, s%d", s_cph, s_gb, s_t0)
    a("s_add_u32 s%d, s%d, 0x%x", s_cph, s_cph, FH)
    a("s_lshl_b32 s%d, s%d, 9", s_t1, s_w)
    a("s_sub_u32 s%d, s%d, s%d", s_t1, s_t1, s_t0)
    a("s_add_u32 s%d, s%d, 0x%x", s_t1, s_t1, FO - FH)
    a("v_bfe_u32 v%d, v%d, 2, 1", HR + 10, v_lane)
    a("v_mul_lo_u32 v%d, v%d, s%d", HR + 10, HR + 10, s_t1)
    a("v_add_u32 v9, v9, v%d", HR + 10)
    srd(a, sW1, 44, 448 * 448 * 2)
    PL = OPT.get("prel", 8)
    a("v_mov_b32 v12, %d", CNT)
    ldswait((12, 0, 10), 4, 1)
    for i in range(PL): L(i)
    poll(9, s_cph, OPT["sleep"], HR + 8)
    stamp(a, 3)
    a("s_setprio %d", OPT.get("prioB3", 0)); bprio[0] = OPT.get("prioB3", 0)
    def hload(k):
        if OPT.get("noBload"): vm.issue(("h", k)); vm.done = len(vm.ops); return
        a("s_add_u32 s%d, s%d, s%d", s_hb, s_ab, s_k)
        for f, v in ((0, v_a0), (1, v_a1)):
            a("buffer_load_dwordx4 %s, v%d, s[%d:%d], s%d offen sc1", vr(HR + 8 * (k % NH) + 4 * f, 4), v, sWS, sWS + 3, s_hb); vm.issue(("h", k))
        a("s_add_u32 s%d, s%d, 2048", s_k, s_k)
        a("s_cmp_eq_u32 s%d, %d", s_k, 28 * 2048)
        a("s_cselect_b32 s%d, 0, s%d", s_k, s_k)
    def mf(Areg, Breg, first):
        for ct in range(2):
            for rt in range(2):
                l = 2 * ct + rt
                d = vr(BACC + 16 * l, 16)
                a("%s %s, %s, %s, %s", MF, d, vr(Breg + 4 * ct, 4), vr(Areg + 4 * rt, 4), "0" if (first and l) else d)
    for k in range(NH - 1): hload(k)
    nl = PL
    def mf1(Areg, Breg, first, l):
        if OPT.get("noBmfma"): return
        ct, rt = l >> 1, l & 1
        d = vr(BACC + 16 * l, 16)
        tog = OPT.get("tog", 0)
        if tog and l != 3: a("s_setprio 0")
        a("%s %s, %s, %s, %s", MF, d, vr(Breg + 4 * ct, 4), vr(Areg + 4 * rt, 4), "0" if (first and l) else d)
        if tog and l != 2: a("s_setprio 3")
    for k in range(28):
        if k == OPT.get("pause"): ldswait((12, 0, 10), OPT.get("pgate", 5), 4)
        vm.wait(("h", k))
        wreg = wslot(k)
        hreg = HR + 8 * (k % NH)
        j = k - (NSL - PL) if PL < NSL else k - 1
        mf1(hreg, wreg, k == 0, 0)
        if k + NH - 1 < 28: hload(k + NH - 1)
        mf1(hreg, wreg, k == 0, 1)
        if 0 <= j < NL + 8:
            vm.wait(("L", j))
            trread(wslot(NE + j), v_sr, sloff(j))
        mf1(hreg, wreg, k == 0, 2)
        mf1(hreg, wreg, k == 0, 3)
        if 0 <= j < NL + 8: a("s_waitcnt lgkmcnt(0)")
        if nl < NL + 8 and nl - NSL <= j:
            L(nl); nl += 1
        if k == 14: stamp(a, 4)
    stamp(a, 5)
    a("v_mov_b32 v13, 1")
    a("s_mov_b64 exec, 1")
    a("ds_add_u32 v12, v13 offset:8")
    a("s_mov_b64 exec, -1")
    assert nl == NL + 8
    used = {wslot(28 + i) for i in range(8)}
    OFB = [r_ for r_ in range(E0, 256, 8) if r_ not in used and r_ != HR + 8][:8]
    for i in range(8):
        for ct in range(2):
            rg = wslot(28 + i) + 4 * ct + 3
            a("v_and_b32 v%d, 0xffff, v%d", rg, rg)
    a("s_lshl_b32 s%d, s%d, 10", s_t0, s_w)
    a("s_add_u32 s%d, s%d, s%d", s_gb, s_gb, s_t0)
    a("s_add_u32 s%d, s%d, 0x%x", s_gb, s_gb, FO)
    a("s_mul_i32 s%d, s%d, 20", s_t0, s_w)
    a("s_sub_u32 s%d, 112, s%d", s_t0, s_t0)
    a("s_lshl_b32 s%d, s%d, 11", s_t0, s_t0)
    a("s_add_u32 s%d, s%d, s%d", s_hb, s_ab, s_t0)
    srd(a, sW, 52, XBYTES)
    RA = 4
    for l in range(4):
        a("s_xor_b32 s%d, s%d, %d", s_t0, s_w, l)
        a("s_cmp_ge_u32 s%d, 2", s_t0)
        a("s_cselect_b32 s%d, %d, %d", s_t1, 96 * K, 48 * K) if False else None
        a("s_mul_i32 s%d, s%d, 12288", s_t0, s_t0)
        a("s_cselect_b32 s%d, %d, 0", s_t1, 48 * K)
        a("s_add_u32 s%d, s%d, s%d", s_t0, s_t0, s_t1)
        a("s_add_u32 s%d, s%d, %d", s_t0, s_t0, 48 * K)
        a("v_add_u32 v%d, s%d, v%d", RA + l, s_t0, v_l16)
    ldswait((12, 0, 13), OPT.get("ogate", 8), 2)
    hold_mark(a, 4)
    a("v_and_b32 v9, 7, v%d", v_lane)
    a("v_lshrrev_b32 v10, 1, v9")
    a("v_and_b32 v9, 1, v9")
    a("v_lshlrev_b32 v9, 10, v9")
    a("v_lshl_add_u32 v9, v10, 12, v9")
    a("s_mov_b32 s%d, 0x10000", s_t1)
    a("s_mov_b32 s%d, %d", s_spin, SPIN_MAX)
    def sentinel(tag):
        a.label("L_SN" + tag)
        a("buffer_load_dword v10, v9, s[%d:%d], s%d offen offset:%d sc1", sWS, sWS + 3, s_hb, 2048 + 1020)
        a("s_sub_u32 s%d, s%d, 1", s_spin, s_spin)
        a("s_cbranch_scc1 L_SNT" + tag)
        a("s_waitcnt vmcnt(0)")
        a("v_cmp_gt_u32 vcc, s%d, v10", s_t1)
        a("s_cbranch_vccz L_SNX" + tag)
        if OPT.get("sleeps", 1): a("s_sleep %d", OPT.get("sleeps", 1))
        a("s_branch L_SN" + tag)
        a.label("L_SNT" + tag)
        a("s_mov_b32 s%d, 0", s_spin)
        a.label("L_SNX" + tag)
    if not OPT.get("spec", 0): sentinel("a")
    stamp(a, 6)
    def oloads(h0):
        for hd in range(h0, 4):
            for f2 in range(2):
                a("s_add_u32 s%d, s%d, %d", s_t0, s_hb, (2 * hd + f2) * 2048)
                for f, v in ((0, v_a0), (1, v_a1)):
                    a("buffer_load_dwordx4 %s, v%d, s[%d:%d], s%d offen sc1", vr(OFB[2 * hd + f2] + 4 * f, 4), v, sWS, sWS + 3, s_t0)
    a("s_mov_b32 s%d, %d", s_spin, SPIN_MAX)
    a("s_mov_b32 s%d, 0x10000", s_t1)
    oloads(0)
    for hd in range(4):
        a.label("L_OW%d" % hd)
        a("s_waitcnt vmcnt(%d)", 4 * (3 - hd))
        a("v_min3_u32 v10, v%d, v%d, v%d", OFB[2 * hd] + 3, OFB[2 * hd] + 7, OFB[2 * hd + 1] + 3)
        a("v_min_u32 v10, v10, v%d", OFB[2 * hd + 1] + 7)
        a("v_cmp_gt_u32 vcc, s%d, v10", s_t1)
        a("s_cbranch_vccnz L_OR%d" % hd)
        a.label("L_OK%d" % hd)
        if hd == 3: a("ds_read_b32 v13, v12 offset:8")
        for f2 in range(2): mf(OFB[2 * hd + f2], wslot(28 + 2 * hd + f2), False)
    stamp(a, 7)
    a("s_waitcnt lgkmcnt(0)")
    a("v_readfirstlane_b32 s%d, v13", s_t0)
    a("s_cmp_ge_u32 s%d, 4", s_t0)
    a("s_cbranch_scc1 L_BD")
    ldswait((12, 8, 13), 4)
    a.label("L_BD")
    for l in range(1, 4):
        for qd in range(4):
            a("ds_write_b128 v%d, %s offset:%d", RA + l, vr(BACC + 16 * l + 4 * qd, 4), (l - 1) * 4096 + qd * 1024)
    a("s_waitcnt lgkmcnt(0)")
    a("s_barrier")
    for l in range(1, 4):
        for qd in range(4):
            a("ds_read_b128 %s, v%d offset:%d", vr(BACC + 16 * l + 4 * qd, 4), RA, (l - 1) * 4096 + qd * 1024)
    a("s_waitcnt lgkmcnt(8)")
    for j in range(16): a("v_add_f32 v%d, v%d, v%d", BACC + j, BACC + j, BACC + 16 + j)
    a("s_waitcnt lgkmcnt(0)")
    for j in range(16): a("v_add_f32 v%d, v%d, v%d", BACC + 32 + j, BACC + 32 + j, BACC + 48 + j)
    for j in range(16): a("v_add_f32 v%d, v%d, v%d", BACC + j, BACC + j, BACC + 32 + j)
    for jj in range(8):
        a("v_cvt_pk_bf16_f32 v%d, v%d, v%d", E0 + jj, BACC + 2 * jj, BACC + 2 * jj + 1)
    for p in range(2):
        a("v_permlane32_swap_b32 v%d, v%d", E0 + 4 * p, E0 + 4 * p + 2)
        a("v_permlane32_swap_b32 v%d, v%d", E0 + 4 * p + 1, E0 + 4 * p + 3)
    for p in range(2):
        a("buffer_store_dwordx4 %s, v%d, s[%d:%d], s%d offen offset:%d %s", vr(E0 + 4 * p, 4), v_oo, sW, sW + 3, s_xo, 32 * p, OPT.get("ofl", ""))
    stamp(a, 8); stamp(a, 9)
    hold_end(a)
    stamp_flush(a)
    a("s_endpgm")
    for hd in range(4):
        a.label("L_OR%d" % hd)
        a("s_sub_u32 s%d, s%d, 1", s_spin, s_spin)
        a("s_cselect_b32 s%d, 0, s%d", s_spin, s_spin)
        a("s_cbranch_scc1 L_OK%d" % hd)
        a("s_waitcnt vmcnt(0)")
        if OPT.get("spec", 0): sentinel("r%d" % hd)
        oloads(hd)
        a("s_branch L_OW%d" % hd)
    l = a.l
    if OPT.get("lay", 0) == 1:
        return l[:mark_a] + l[mark_b:mark_b2] + l[mark_a:mark_s0] + l[mark_s1:mark_b] + l[mark_b2:] + l[mark_s0:mark_s1] + ["L_END:", "    s_endpgm"]
    return l[:mark_a] + l[mark_b:mark_b2 - 1] + l[mark_b2:] + l[mark_a:mark_s0] + l[mark_s1:mark_b] + l[mark_s0:mark_s1] + ["L_END:", "    s_endpgm"]

DOC = """;
;  phase 1  raw x -> MFMA; layernorm applied algebraically: y = rstd * (x@W - mean * colsum(W)) (rank-1 MFMA + scale).
; Generated by a script (instruction scheduling, wait counts and hazard padding are computed there).
;"""
def build(path):
    hdr = open("cdna_kernels/%s.s.ref" % NAME).read().split("\n")
    top = [l for l in hdr if l.startswith(";") and "@launch" not in l]
    lines, added = fix(kernel())
    print("instrs", len(lines), "nop states added", added)
    out = top + ["; @launch grid=(256,1,1) block=(512,1,1) lds=%d" % LDS]
    out += DOC.split("\n")
    out += ['.amdgcn_target "amdgcn-amd-amdhsa--gfx950"', ".text", ".globl " + KN, ".p2align 8", ".type %s,@function" % KN] + lines
    out += ['.section .rodata,"a"', ".p2align 6", """.amdhsa_kernel %s
  .amdhsa_next_free_vgpr 256
  .amdhsa_next_free_sgpr 102
  .amdhsa_accum_offset 256
  .amdhsa_group_segment_fixed_size 0
  .amdhsa_kernarg_size 72
  .amdhsa_user_sgpr_count 2
  .amdhsa_user_sgpr_kernarg_segment_ptr 1
  .amdhsa_system_sgpr_workgroup_id_x 1
.end_amdhsa_kernel""" % KN]
    open(path, "w").write("\n".join(out) + "\n")

if __name__ == "__main__":
    for kv_ in sys.argv[2:]:
        k, v = kv_.split("=", 1); OPT[k] = eval(v)
    build(sys.argv[1])
```

```python
import sys, math, struct
from asmlib import *

NAME = "parallel_sum__softmax_full_mha__dense_activation_relu__prompt"
KN = NAME + "_kernel"
KV, AF = 0x200000, 0x600000
FKV = 0x000000
FH = 0x8000
FO = 0x10000
WS_END = 0xF00000
XBYTES = 2048 * 448 * 2
OPT = dict(kvat=2, bias=96.0, prel=2, prioB2=0, wpf=False, stamps=False, sleep=2, prioA=2, rd=3, ne=16, pfa=99, pfb=99, iplan=(1,1,1,2,1,1,3), prioB1=0, prioA1=2, pat=((3,0),(3,0),(2,2),(8,6)))
STAMP = 0x2000000
SPIN_MAX = 1 << 17
K = 1024
NST = 12
def f32(x): return "0x%08x" % struct.unpack("<I", struct.pack("<f", x))[0]

def stamp(a, i, grp="main"):
    if i not in (0, NST - 2, NST - 1) and grp != OPT.get("sgrp", "main"): return
    if OPT["stamps"]: a("%s s[%d:%d]", "s_memtime" if OPT.get("cyc") else "s_memrealtime", 76 + 2 * i, 77 + 2 * i)
def hold_mark(a, k):
    if OPT.get("hold") == k: a("s_memrealtime s[98:99]")
def hold_end(a):
    if OPT.get("hold") is None: return
    a("s_waitcnt vmcnt(0) lgkmcnt(0)")
    if OPT["hold"] == 9: a("s_mov_b32 s98, s58")
    if OPT.get("holdx") is not None:
        a("s_and_b32 s95, s2, 7")
        a("s_cmp_lg_u32 s95, %d", OPT["holdx"])
        a("s_cbranch_scc1 L_HOLDX")
    a("s_add_u32 s98, s98, 6000")
    a.label("L_HOLD")
    a("s_memrealtime s[96:97]")
    a("s_waitcnt lgkmcnt(0)")
    a("s_sub_u32 s95, s96, s98")
    a("s_cmp_lt_i32 s95, 0")
    a("s_cbranch_scc1 L_HOLD")
    a.label("L_HOLDX")
def stamp_flush(a):
    if not OPT["stamps"]: return
    stamp(a, NST - 2)
    a("s_mov_b32 s64, s46\ns_mov_b32 s65, s47\ns_mov_b32 s66, 0x10000000\ns_mov_b32 s67, 0x00020000")
    a("s_lshl_b32 s68, s2, 3\ns_add_u32 s68, s68, s3\ns_lshl_b32 s68, s68, 6")
    a("s_add_u32 s68, s68, 0x%x", STAMP)
    a("v_mov_b32 v0, 0")
    a("s_waitcnt vmcnt(0) lgkmcnt(0)")
    stamp(a, NST - 1)
    a("s_waitcnt lgkmcnt(0)")
    for i in range(NST):
        a("v_mov_b32 v1, s%d", 76 + 2 * i)
        a("buffer_store_dword v1, v0, s[64:67], s68 offen offset:%d", 4 * i)

def srd(a, d, base, nbytes):
    a("s_mov_b32 s%d, s%d", d, base)
    a("s_mov_b32 s%d, s%d", d + 1, base + 1)
    a("s_mov_b32 s%d, 0x%x", d + 2, nbytes)
    a("s_mov_b32 s%d, 0x00020000", d + 3)

class VM:
    def __init__(self, a): self.a = a; self.ops = []; self.done = 0
    def issue(self, tag): self.ops.append(tag)
    def wait(self, tag):
        idx = max(i for i, t in enumerate(self.ops) if t == tag)
        if idx < self.done: return
        n = len(self.ops) - 1 - idx
        assert n <= 63, n
        self.a("s_waitcnt vmcnt(%d)", n); self.done = idx + 1

SL = 24 * K
def slot_of(n): return (n % 6) * SL
RB = 149 * K
CNT = 150 * K
QX = 152 * K
KVS = 48 * K
KVS2 = (20 * K, 44 * K, 140 * K, 144 * K)
HO = 80 * K
CV = 112 * K
NSL = 8
def sloff(j): return (j & 3) * 2048 + ((j >> 2) & 1) * 32768
CA = 0
LDS = 160 * K
MF = "v_mfma_f32_32x32x16_bf16"

def kernel():
    a = Asm()
    sWS, sX, sW, sW1, sDBG = 8, 12, 16, 20, 24
    s_w, s_rb, s_c, s_rot, s_t0, s_t1, s_cp, s_mask = 28, 29, 30, 31, 32, 33, 34, 35
    s_hi, s_ex, s_spin, s_non = 36, 38, 56, 58
    v_lane, v_l16 = 1, 2
    a.label(KN)
    a("s_cmp_ge_u32 s2, 256")
    a("s_cbranch_scc1 L_END")
    stamp(a, 0); hold_mark(a, 0)
    a("s_load_dwordx4 s[40:43], s[0:1], 0")
    a("s_load_dwordx2 s[44:45], s[0:1], 16")
    a("s_load_dwordx4 s[48:51], s[0:1], 32")
    a("s_load_dwordx4 s[52:55], s[0:1], 48")
    a("s_load_dwordx2 s[46:47], s[0:1], 64")
    if OPT.get("codepf", 1) == 1:
        a("s_getpc_b64 s[%d:%d]", s_ex, s_ex + 1)
        a.label("L_PC")
        a("s_lshr_b32 s%d, s2, 3", s_t0)
        a("v_lshlrev_b32 v16, 5, v0")
        a("v_add_u32 v16, s%d, v16", s_t0)
        a("v_cmp_gt_u32 vcc, (L_END-L_PC)/128, v16")
        a("v_lshlrev_b32 v16, 7, v16")
        a("s_and_saveexec_b64 s[%d:%d], vcc", s_hi, s_hi + 1)
        a("s_cbranch_execz L_NOCPF")
        a("global_load_dword v254, v16, s[%d:%d]", s_ex, s_ex + 1) if False else None
        a("v_mov_b32 v17, s%d", s_ex + 1)
        a("v_add_co_u32 v16, vcc, s%d, v16", s_ex)
        a("v_addc_co_u32 v17, vcc, 0, v17, vcc")
        a("global_load_dword v254, v[16:17], off")
        a.label("L_NOCPF")
        a("s_mov_b64 exec, -1")
    a("v_lshrrev_b32 v3, 6, v0")
    a("v_and_b32 v%d, 63, v0", v_lane)
    a("v_readfirstlane_b32 s%d, v3", s_w)
    a("v_lshlrev_b32 v%d, 4, v%d", v_l16, v_lane)
    a("s_mov_b32 s%d, 0", s_hi)
    a("s_mov_b32 s%d, -1", s_hi + 1)
    a("s_mov_b32 s%d, 0xffff0000", s_mask)
    cb_ = OPT.get("cbits", 2)
    a("s_and_b32 s%d, s2, %d", s_c, (1 << (4 - cb_)) - 1)
    a("s_lshl_b32 s%d, s%d, %d", s_c, s_c, cb_)
    a("s_bfe_u32 s%d, s2, 0x%x", s_t0, (cb_ << 16) | 3)
    a("s_or_b32 s%d, s%d, s%d", s_c, s_c, s_t0)
    a("s_lshr_b32 s%d, s2, %d", s_rb, 3 + cb_)
    if cb_ > 1:
        a("s_bfe_u32 s%d, s2, 0x%x", s_t1, ((cb_ - 1) << 16) | (4 - cb_))
        a("s_lshl_b32 s%d, s%d, %d", s_t1, s_t1, 5 - cb_)
        a("s_or_b32 s%d, s%d, s%d", s_rb, s_rb, s_t1)
    a("s_mul_i32 s%d, s%d, %d", s_rot, s_t0, {1: 3, 2: 2, 3: 1}[cb_])
    a("s_add_u32 s%d, s%d, s%d", s_rot, s_rot, s_rb)
    a("s_mul_i32 s%d, s%d, 37", s_t0, s_rot)
    a("s_lshr_b32 s%d, s%d, 8", s_t0, s_t0)
    a("s_mul_i32 s%d, s%d, 7", s_t0, s_t0)
    a("s_sub_u32 s%d, s%d, s%d", s_rot, s_rot, s_t0)
    a("s_mov_b32 s3, s%d", s_w)
    s_pc, s_fc = 100, 101
    pc = list(range(16)); fc = list(range(16))
    if OPT.get("perm", 1):
        for x, y in ((2, 0), (4, 1), (6, 14), (9, 15)): pc[x], pc[y] = pc[y], pc[x]
        for x, y in ((11, 14), (13, 15)): fc[x], fc[y] = fc[y], fc[x]
    a("s_lshl_b32 s%d, s%d, 2", s_t0, s_c)
    for dst, tab in ((s_pc, pc), (s_fc, fc)):
        v_ = sum(t_ << (4 * i_) for i_, t_ in enumerate(tab))
        a("s_mov_b32 s%d, 0x%x", s_ex, v_ & 0xffffffff)
        a("s_mov_b32 s%d, 0x%x", s_ex + 1, v_ >> 32)
        a("s_lshr_b64 s[%d:%d], s[%d:%d], s%d", s_ex, s_ex + 1, s_ex, s_ex + 1, s_t0)
        a("s_and_b32 s%d, s%d, 15", dst, s_ex)
    v_g, v_ch, v_rr, v_c = 4, 5, 6, 7
    a("v_lshrrev_b32 v%d, 5, v%d", v_g, v_lane)
    a("v_bfe_u32 v%d, v%d, 4, 1", v_ch, v_lane)
    a("v_bfe_u32 v%d, v%d, 2, 2", v_rr, v_lane)
    a("v_and_b32 v%d, 3, v%d", v_c, v_lane)
    v_trp = 8
    a("v_lshlrev_b32 v%d, 6, v%d", v_trp, v_rr)
    a("v_lshl_add_u32 v%d, v%d, 5, v%d", v_trp, v_ch, v_trp)
    a("v_lshl_add_u32 v%d, v%d, 3, v%d", v_trp, v_c, v_trp)
    def nxt7(reg, first):
        if first: a("s_mov_b32 s%d, s%d", reg, s_rot)
        else:
            a("s_add_u32 s%d, s%d, 1", reg, reg)
            a("s_cmp_eq_u32 s%d, 7", reg)
            a("s_cselect_b32 s%d, 0, s%d", reg, reg)
    def kvs2_base(dst):
        a("s_mul_i32 s%d, s%d, %d", dst, s_w, 24 * K)
        a("s_add_u32 s%d, s%d, %d", dst, dst, 20 * K)
        a("s_lshl_b32 s%d, s%d, 12", s_t1, s_w)
        a("s_add_u32 s%d, s%d, %d", s_t1, s_t1, 132 * K)
        a("s_cmp_ge_u32 s%d, 2", s_w)
        a("s_cselect_b32 s%d, s%d, s%d", dst, s_t1, dst)
    a("s_cmp_ge_u32 s%d, 4", s_w)
    a("s_cbranch_scc0 L_A")
    mark_a = len(a.l)
    a.label("L_A")

    a("s_setprio %d", OPT.get("prioA1", 0))
    a("v_lshlrev_b32 v16, 2, v%d", v_lane)
    a("v_add_u32 v16, %d, v16", CNT)
    a("v_mov_b32 v17, 0")
    a("ds_write_b32 v16, v17")
    v_xa, v_gb, v_hb, v_qb, v_r = 9, 13, 14, 15, 6
    v_gw, v_hw, v_qw, C2, v_csw = 5, 13, 3, 8, 0
    v_t = 16
    XE = 20
    X0, ACC, RING = 24, 136, 216
    v_non, v_z, v_pa, v_pd = 248, 254, 255, 252
    T4 = ACC + 64
    v_sum, v_sq, v_cs = T4, T4 + 2, T4 + 4
    WE = T4 + 8
    s_ones, s_st = 62, 63
    s_fl, s_rt, s_state = 4, 5, 6
    s_kvb, s_i, s_off, s_mode, s_cnt, s_tgt, s_pb, s_hdone = 16, 17, 18, 19, 20, 21, 22, 23
    s_bad, s_skip, s_hfl = 64, 70, 71
    t0, t1, t2 = v_t, v_t + 1, v_t + 2
    a("s_lshl_b32 s%d, s%d, 2", s_rt, s_rb)
    a("s_add_u32 s%d, s%d, s%d", s_rt, s_rt, s_w)
    a("s_mov_b32 s%d, 0x3f803f80", s_ones)
    a("v_and_b32 v%d, 31, v%d", t0, v_lane)
    a("v_bfe_u32 v%d, v%d, 1, 3", t1, v_lane)
    a("v_xor_b32 v%d, v%d, v%d", t1, t1, v_g)
    a("v_lshlrev_b32 v%d, 7, v%d", t0, t0)
    a("v_lshl_add_u32 v%d, v%d, 4, v%d", t0, t1, t0)
    a("s_lshl_b32 s%d, s%d, 12", s_t0, s_w)
    for q in range(4):
        a("v_xor_b32 v%d, %d, v%d", t1, 32 * q, t0)
        a("v_add_u32 v%d, s%d, v%d", v_xa + q, s_t0, t1)
    a("v_lshl_add_u32 v%d, v%d, 11, v%d", v_hb, v_g, v_trp)
    a("v_and_b32 v%d, 48, v%d", t1, v_trp)
    a("v_cmp_eq_u32 s[%d:%d], 48, v%d", s_ex, s_ex + 1, t1)
    a("v_or_b32 v%d, 8, v%d", t1, v_trp)
    a("v_cndmask_b32 v%d, v%d, v%d, s[%d:%d]", t1, v_trp, t1, s_ex, s_ex + 1)
    a("v_lshl_add_u32 v%d, v%d, 10, v%d", v_gb, v_g, t1)
    a("v_lshl_add_u32 v%d, v%d, 9, v%d", v_qb, v_g, t1)
    for r_ in (v_sum, v_sq, v_cs, v_cs + 1): a("v_mov_b32 v%d, 0", r_)
    a("s_mov_b32 s%d, 0", s_mode)
    a("s_mov_b32 s%d, 0", s_tgt)
    a("s_lshl_b32 s%d, s%d, 2", s_kvb, s_c)
    a("s_add_u32 s%d, s%d, s%d", s_kvb, s_kvb, s_w)
    a("s_lshl_b32 s%d, s%d, 16", s_kvb, s_kvb)
    a("s_add_u32 s%d, s%d, 0x%x", s_kvb, s_kvb, KV)
    v_ko, v_ks, v_ks2, v_ho, v_tag, v_tg = 248, 249, 250, 251, 252, 253
    a("s_lshl_b32 s%d, s%d, 13", s_t0, s_w)
    a("v_add_u32 v%d, s%d, v%d", v_ks, s_t0, v_l16)
    a("v_add_u32 v%d, %d, v%d", v_ho, HO, v_ks)
    a("v_add_u32 v%d, %d, v%d", v_ks, KVS, v_ks)
    kvs2_base(s_t0)
    a("v_add_u32 v%d, s%d, v%d", v_ks2, s_t0, v_l16)
    a("s_lshl_b32 s%d, s%d, 2", s_t0, s_w)
    a("s_add_u32 s%d, s%d, %d", s_t0, s_t0, CNT + 16)
    a("v_mov_b32 v%d, s%d", v_tag, s_t0)
    a("s_lshl_b32 s%d, s%d, 12", s_t0, s_w)
    a("v_add_u32 v%d, s%d, v%d", v_ko, s_t0, v_l16)
    a("s_bitcmp1_b32 s%d, 0", s_pc)
    a("s_cselect_b32 s%d, s%d, 0x3f80", s_st, s_ones)
    v_q4 = 255
    a("v_lshlrev_b32 v%d, 2, v%d", v_q4, v_c)
    a("v_add_u32 v%d, %d, v%d", v_q4, CNT, v_q4)
    a("s_lshl_b32 s%d, s%d, 11", s_t0, s_w)
    a("v_add_u32 v%d, s%d, v%d", v_gw, s_t0, v_gb)
    a("s_lshl_b32 s%d, s%d, 2", s_t0, s_w)
    a("s_add_u32 s%d, s%d, %d", s_t0, s_t0, QX)
    a("v_add_u32 v%d, s%d, v%d", v_csw, s_t0, v_l16)
    a("s_waitcnt lgkmcnt(0)")
    stamp(a, 1, "p0")
    srd(a, sWS, 46, WS_END)
    AE = 0
    def acc(t): return vr(ACC + 16 * t, 16)
    spins = []
    nin = [0]
    def peek(off): a("ds_read_b32 v%d, v%d offset:%d", v_tg, v_q4, off)
    def need(off, thr):
        if OPT.get("inl"):
            n = nin[0]; nin[0] += 1
            a("v_cmp_gt_u32 vcc, %d, v%d", thr, v_tg)
            a("s_cbranch_vccz L_NI%d" % n)
            a.label("L_NL%d" % n)
            peek(off)
            a("s_waitcnt lgkmcnt(0)")
            a("v_cmp_gt_u32 vcc, %d, v%d", thr, v_tg)
            a("s_cbranch_vccnz L_NL%d" % n)
            a.label("L_NI%d" % n)
            return
        n = len(spins); spins.append((off, thr))
        a("v_cmp_gt_u32 vcc, %d, v%d", thr, v_tg)
        a("s_cbranch_vccnz L_SP%d" % n)
        a.label("L_SPB%d" % n)
    def post(off, val, tmp):
        a("v_mov_b32 v%d, %d", tmp, val)
        a("ds_write_b32 v%d, v%d offset:%d", v_tag, tmp, off - 16)
    def wset(p): return (ACC + 32) if p % 2 == 0 else RING
    win = {"x": 0, "h": 0, "c": 0}
    def setwin(kind, n):
        wdw = (slot_of(n) // (2 * SL)) * 2 * SL
        d = wdw - win[kind]
        if d:
            for r_ in {"x": [v_xa + q for q in range(4)] + [v_gb, v_gw], "h": [v_hb, v_qb], "c": [v_hw, v_qw]}[kind]:
                if d > 0: a("v_add_u32 v%d, %d, v%d", r_, d, r_)
                else: a("v_subrev_u32 v%d, %d, v%d", r_, -d, r_)
            win[kind] = wdw
        return slot_of(n) - wdw
    def rd1(p, q, off):
        a("ds_read_b128 %s, v%d offset:%d", vr(X0 + 16 * p + 4 * q, 4), v_xa + q, off)
        for t in range(2):
            for h in range(2):
                a("ds_read_b64_tr_b16 %s, v%d offset:%d", vr(wset(p) + 8 * q + 4 * t + 2 * h, 2), v_gb, off + 16384 + q * 2048 + h * 512 + t * 256)
    def rdc(off):
        for t in range(2):
            for h in range(2):
                a("ds_read_b64_tr_b16 %s, v%d offset:%d", vr(WE + 4 * t + 2 * h, 2), v_gw, off + 16384 + h * 512 + t * 256)
    def cs_pack(src, off, ta, tb):
        return ["v_and_b32 v%d, s%d, v%d" % (ta, s_mask, src), "v_sub_f32 v%d, v%d, v%d" % (tb, src, ta),
                "v_lshrrev_b32 v%d, 16, v%d" % (ta, ta), "v_and_or_b32 v%d, v%d, s%d, v%d" % (src, tb, s_mask, ta),
                "ds_write_b32 v%d, v%d offset:%d" % (v_csw, src, off)]
    def split3(m, h0, h1, h2, neg):
        o = []
        if neg: o.append("v_sub_f32 v%d, 0, v%d" % (m, m))
        o += ["v_and_b32 v%d, s%d, v%d" % (h0, s_mask, m), "v_sub_f32 v%d, v%d, v%d" % (m, m, h0),
              "v_and_b32 v%d, s%d, v%d" % (h1, s_mask, m), "v_sub_f32 v%d, v%d, v%d" % (m, m, h1),
              "v_lshrrev_b32 v%d, 16, v%d" % (h0, h0), "v_or_b32 v%d, v%d, v%d" % (h0, h0, h1), "v_lshrrev_b32 v%d, 16, v%d" % (h2, m)]
        return o
    def finalize_ops(swap):
        st = ["v_mov_b32 v%d, v%d" % (v_sum + 1, v_sum), "v_mov_b32 v%d, v%d" % (v_sq + 1, v_sq), None, None,
              "v_permlane32_swap_b32 v%d, v%d" % (v_sum, v_sum + 1), "v_permlane32_swap_b32 v%d, v%d" % (v_sq, v_sq + 1),
              "v_add_f32 v%d, v%d, v%d" % (v_sum, v_sum, v_sum + 1), "v_add_f32 v%d, v%d, v%d" % (v_sq, v_sq, v_sq + 1),
              "v_mul_f32 v%d, %s, v%d" % (v_sum, f32(1.0 / 448), v_sum), "v_mul_f32 v%d, %s, v%d" % (v_sq, f32(1.0 / 448), v_sq),
              "v_fma_f32 v%d, -v%d, v%d, v%d" % (v_sq, v_sum, v_sum, v_sq), "v_max_f32 v%d, 0, v%d" % (v_sq, v_sq),
              "v_cvt_pk_bf16_f32 v%d, v%d, v%d" % (t0, v_sq, v_sq), "v_and_b32 v%d, s%d, v%d" % (t0, s_mask, t0),
              "v_add_f32 v%d, %s, v%d" % (t0, f32(1e-5), t0), "v_cvt_pk_bf16_f32 v%d, v%d, v%d" % (t0, t0, t0),
              "v_and_b32 v%d, s%d, v%d" % (t0, s_mask, t0), "v_sqrt_f32 v%d, v%d" % (t0, t0), None,
              "v_cvt_pk_bf16_f32 v%d, v%d, v%d" % (t0, t0, t0), "v_and_b32 v%d, s%d, v%d" % (t0, s_mask, t0),
              "v_rcp_f32 v%d, v%d" % (v_r, t0), None]
        if swap:
            st += ["ds_write_b32 v%d, v%d" % (t2, v_r)] + ["ds_read_b128 %s, v%d offset:%d" % (vr(RING + 4 * k, 4), t2 + 1, 32 * k) for k in range(4)]
        st += ["v_cvt_pk_bf16_f32 v%d, -v%d, -v%d" % (XE + k, v_sum, v_sum) for k in range(4)]
        st += ["v_mov_b32 v%d, v%d" % (v_r + 1, v_r), "v_add_u32 v%d, %d, v%d" % (t1, QX, v_l16)]
        return [o for o in st if o]
    def pass1(swap):
        win["x"] = 0
        a("s_barrier")
        stamp(a, 3); stamp(a, 1, "p1")
        rdc(0)
        for q in range(4): rd1(0, q, 0)
        if swap:
            a("s_lshl_b32 s%d, s%d, 7", s_t0, s_w)
            a("s_add_u32 s%d, s%d, %d", s_t0, s_t0, RB)
            a("v_and_b32 v%d, 31, v%d", t2, v_lane)
            a("v_lshl_add_u32 v%d, v%d, 2, s%d", t2, t2, s_t0)
            a("v_lshl_add_u32 v%d, v%d, 4, s%d", t2 + 1, v_g, s_t0)
        for p in range(7):
            for q in range(4):
                a("s_waitcnt lgkmcnt(%d)", 5 * (3 - q))
                if q == 0:
                    for j in range(4):
                        for t in range(2):
                            a("v_dot2c_f32_bf16 v%d, s%d, v%d", v_cs + t, s_ones, WE + 4 * t + j)
                for j in range(4):
                    x = X0 + 16 * p + 4 * q + j
                    a("v_dot2c_f32_bf16 v%d, s%d, v%d", v_sum, s_ones, x)
                    a("v_dot2c_f32_bf16 v%d, v%d, v%d", v_sq, x, x)
                if q == 0 and p == 6:
                    for t in range(2):
                        for o_ in cs_pack(v_cs + t, 5120 + 1024 * t, t0, t1): a(o_)
                    post(48, 1, t0)
            fin = finalize_ops(swap) if p == 6 else []
            off = setwin("x", p + 1) if p < 6 else None
            for m in range(8):
                q, t = m >> 1, m & 1
                wf = vr(wset(p) + 8 * q + 4 * t, 4); xf = vr(X0 + 16 * p + 4 * q, 4)
                A, B = (xf, wf) if swap else (wf, xf)
                first = (p == 0 and q == 0)
                a("%s %s, %s, %s, %s", MF, acc(t), A, B, "0" if first else acc(t))
                if p < 6:
                    if m == 3:
                        if 2 <= p + 1 < 2 + AE: a("s_waitcnt vmcnt(%d)", 6 * (1 + AE - (p + 1)))
                        a("s_barrier")
                        rdc(off)
                        stamp(a, 2 + p, "p1")
                    if m >= 4: rd1(p + 1, m - 4, off)
                else:
                    if m == 0: peek(48)
                    k = 6 if m < 5 else len(fin)
                    for o in fin[:k]: a(o)
                    fin = fin[k:]
                    if m == 6:
                        a("s_waitcnt lgkmcnt(0)")
                        need(48, 1)
                        for t_ in range(2): a("ds_read_b128 %s, v%d offset:%d", vr(WE + 4 * t_, 4), t1, 5120 + 1024 * t_)
        a("s_waitcnt lgkmcnt(0)")
        for t in range(2):
            wf = vr(WE + 4 * t, 4); xf = vr(XE, 4)
            A, B = (xf, wf) if swap else (wf, xf)
            a("%s %s, %s, %s, %s", MF, acc(t), A, B, acc(t))
        stamp(a, 8, "p1")
    def pack(t, kind, rreg=None):
        b = ACC + 16 * t
        for jj in range(8):
            a("v_pk_mul_f32 %s, %s, %s", vr(b + 2 * jj, 2), vr(b + 2 * jj, 2), vr((RING + 2 * jj) if kind == "v" else v_r, 2))
            a("v_cvt_pk_bf16_f32 v%d, v%d, v%d", b + jj, b + 2 * jj, b + 2 * jj + 1)
            if kind == "h": a("v_pk_max_i16 v%d, v%d, 0", b + jj, b + jj)
        if kind == "q":
            a("v_cndmask_b32 v%d, v%d, 0, s[%d:%d]", b + 6, b + 6, s_hi, s_hi + 1)
            a("v_cndmask_b32 v%d, v%d, 0, s[%d:%d]", b + 7, b + 7, s_hi, s_hi + 1)
        elif kind == "k":
            a("v_cndmask_b32 v%d, v%d, v%d, s[%d:%d]", b + 6, b + 6, v_t, s_hi, s_hi + 1)
            a("v_cndmask_b32 v%d, v%d, v%d, s[%d:%d]", b + 7, b + 7, v_t + 1, s_hi, s_hi + 1)
        elif kind == "v":
            for jj in range(8):
                a("v_cndmask_b32 v%d, v%d, v%d, s[%d:%d]", b + jj, b + jj, v_t, s_ex, s_ex + 1)
    def kv_epilogue(kind):
        for t in range(2):
            pack(t, kind, "v%d" % v_r)
            for f in range(2):
                a("ds_write_b128 v%d, %s offset:%d", v_ko, vr(ACC + 16 * t + 4 * f, 4), 2048 * t + 1024 * f)
    pass1(False)
    stamp(a, 4); stamp(a, 1, "p2")
    a("v_mov_b32 v%d, s%d", v_t, s_ones)
    a("v_mov_b32 v%d, s%d", v_t + 1, s_st)
    kv_epilogue("k")
    stamp(a, 2, "p2"); stamp(a, 9, "p1")
    NPB = 0
    a("s_waitcnt vmcnt(0) lgkmcnt(0)")
    a("s_barrier")
    stamp(a, 3, "p2")
    class LG:
        def __init__(s_): s_.ops = []; s_.done = 0
        def issue(s_, tag): s_.ops.append(tag)
        def wait(s_, tag):
            idx = max(i for i, t_ in enumerate(s_.ops) if t_ == tag)
            if idx < s_.done: return
            n_ = min(15, len(s_.ops) - 1 - idx)
            a("s_waitcnt lgkmcnt(%d)", n_); s_.done = len(s_.ops) - n_
    lg = LG()
    def rdw(dst, kind, p, qoff, t, tag):
        off = setwin(kind, 7 + p)
        hb, qb = (v_hb, v_qb) if kind == "h" else (v_hw, v_qw)
        for h in range(2):
            if t < 4: a("ds_read_b64_tr_b16 %s, v%d offset:%d", vr(dst + 2 * h, 2), hb, off + qoff + h * 1024 + t * 256)
            else: a("ds_read_b64_tr_b16 %s, v%d offset:%d", vr(dst + 2 * h, 2), qb, off + qoff + 4096 + h * 256)
            lg.issue(tag)
    LS = OPT.get("ls", 24)
    jobs = [(s_, t_) for s_ in range(LS) for t_ in range(5)] + [(s_, t_) for t_ in range(5) for s_ in range(LS, 28)]
    def rd2(n):
        s, t = jobs[n]; p, q = divmod(s, 4)
        rdw(RING + 4 * (n % 8), "h", p, q * 5120, t, n)
    for n in range(7): rd2(n)
    a("s_mul_i32 s%d, s%d, 5120", s_t0, s_w)
    a("v_add_u32 v%d, s%d, v%d", v_hw, s_t0, v_hb)
    a("v_add_u32 v%d, s%d, v%d", v_qw, s_t0, v_qb)
    for t in range(5): a("v_mov_b32 v%d, 0", C2 + t)
    stamp(a, 5); stamp(a, 4, "p2")
    KV0, Q0, P0, O0, S0, QP, MX = 24, 88, 120, 136, 216, 200, 208
    CSF = 72
    def q(u, f): return vr(QP + 4 * f, 4) if u == 3 else vr(Q0 + 8 * u + 4 * f, 4)
    def qreg(u, r): return (QP if u == 3 else Q0 + 8 * u) + r
    def qtile(dst, u):
        a("s_add_u32 s%d, s%d, %d", dst, s_w, u + 1)
        a("s_and_b32 s%d, s%d, 3", dst, dst)
    def o(u): return vr(O0 + 16 * u, 16)
    def kv(st, f): return vr(KV0 + 16 * st + 4 * f, 4)
    def kvload(st, fr=(0, 1, 2, 3)):
        a("s_add_u32 s%d, s%d, s%d", s_off, s_i, s_rb)
        a("s_and_b32 s%d, s%d, 15", s_off, s_off)
        a("s_lshl_b32 s%d, s%d, 12", s_off, s_off)
        a("s_add_u32 s%d, s%d, s%d", s_off, s_off, s_kvb)
        for f in fr:
            a("buffer_load_dwordx4 %s, v%d, s[%d:%d], s%d offen offset:%d sc1", kv(st, f), v_l16, sWS, sWS + 3, s_off, 1024 * f)
        a("s_add_u32 s%d, s%d, 1", s_i, s_i)
    NJ = 140
    barjobs = {20 * p - 7: p + 1 for p in (3, 5)}
    if OPT.get("split56"): barjobs[93] = 5; barjobs[108] = 6
    E5 = OPT.get("e5", 0)
    barjobs = {53: 4, 93 - E5: 6}
    if OPT.get("b7lite"): barjobs[33] = 2
    SETS = {"A": [X0, X0 + 4, X0 + 8, X0 + 12, v_t], "B": [X0 + 16 + 4 * i for i in range(5)], "C": [X0 + 36 + 4 * i for i in range(5)]}
    c5 = 94 - E5
    creads = {0: (20, "A"), 1: (45, "B"), 2: (54, "A"), 3: (59, "B"), 4: (70, "C"), 5: (c5, "A"), 6: (c5 + 5, "B")}
    bunches = {53: (0, 1), 78: (2, 3, 4), c5 + 13: (5, 6)}
    assert c5 > 81
    csready = c5 + 13 + 7
    TL = 28 - LS
    def hpack(t, pk):
        b = ACC + 16 * t; o_ = []
        for jj in range(8):
            if pk: o_ += ["v_pk_mul_f32 %s, %s, %s" % (vr(b + 2 * jj, 2), vr(b + 2 * jj, 2), vr(v_r, 2))]
            else: o_ += ["v_mul_f32 v%d, v%d, v%d" % (b + 2 * jj + e, v_r, b + 2 * jj + e) for e in range(2)]
            o_ += ["v_cvt_pk_bf16_f32 v%d, v%d, v%d" % (b + jj, b + 2 * jj, b + 2 * jj + 1), "v_pk_max_i16 v%d, v%d, 0" % (b + jj, b + jj)]
            if jj in (3, 7): o_.append("ds_write_b128 v%d, %s offset:%d" % (v_ho, vr(b + jj - 3, 4), 2048 * t + 1024 * (jj >> 2)))
        return o_
    r1 = {t: csready + 9 + t for t in range(5)}
    assert r1[4] < NJ
    pstart = {t: max(5 * LS + TL * (t + 1) - 1, r1[t]) + 2 for t in range(4)}
    NHID = OPT.get("nhid", 2)
    pend = []
    def fill(k):
        for o_ in pend[:k]:
            a(o_)
            if o_.startswith("ds_"): lg.issue("f")
        del pend[:k]
    for n in range(NJ):
        s, t = jobs[n]
        if n % 20 == 0: stamp(a, 1 + n // 20, "p5")
        if n in bunches:
            lg.wait(("c", bunches[n][-1], 4))
            for p in bunches[n]:
                for j in range(4):
                    for t_ in range(5):
                        a("v_dot2c_f32_bf16 v%d, s%d, v%d", C2 + t_, s_ones, SETS[creads[p][1]][t_] + j)
            if 6 in bunches[n]:
                for t_ in range(5): pend += cs_pack(C2 + t_, 1024 * t_, v_t, v_t + 1)
                pend += ["v_mov_b32 v254, 2", "ds_write_b32 v%d, v254 offset:32" % v_tag, "v_add_u32 v%d, %d, v%d" % (v_t + 2, QX, v_l16)]
        if n % 5 in (0, 3): lg.wait(min(NJ - 1, n + (2 if n % 5 == 0 else 1)))
        a("%s %s, %s, %s, %s", MF, acc(t), vr(RING + 4 * (n % 8), 4), vr(X0 + 4 * s, 4), acc(t) if s else "0")
        if n in barjobs:
            lg.wait(("pk", n)); need(64, 8 + barjobs[n])
        if n + 7 < NJ: rd2(n + 7)
        for p, (j0, st_) in creads.items():
            if j0 <= n < j0 + 5: rdw(SETS[st_][n - j0], "c", p, 0, n - j0, ("c", p, n - j0))
        if n + 6 in barjobs: peek(64); lg.issue(("pk", n + 6))
        if n == 29:
            lg.wait(("c", 0, 4)); post(80, 8, 254); lg.issue("post")
        if n == 81: post(80, 11, 254); lg.issue("post")
        if n == csready - 6: peek(80); lg.issue("pk80")
        if n == csready: assert not pend; lg.wait("pk80"); need(80, 11); peek(48); lg.issue("pk48")
        if n == csready + 4: lg.wait("pk48"); need(48, 2)
        if csready + 4 <= n < csready + 9:
            k_ = n - csready - 4
            a("ds_read_b128 %s, v%d offset:%d", vr(CSF + 4 * k_, 4), v_t + 2, 1024 * k_); lg.issue(("csf", k_))
        if n == NJ - 4: a("ds_read_b32 v%d, v%d", v_tg, v_tag); lg.issue("tg")
        for t_ in range(5):
            if n == r1[t_]:
                lg.wait(("csf", t_))
                a("%s %s, %s, %s, %s", MF, acc(t_), vr(CSF + 4 * t_, 4), vr(XE, 4), acc(t_))
            if t_ < NHID and n == pstart[t_]: pend += hpack(t_, False)
        fill(4 if n + 7 < NJ else 6)
    stamp(a, 7, "p2"); stamp(a, 1, "p3"); stamp(a, 8, "p5")
    a("s_setprio %d", OPT["prioA"])
    def kvreads():
        for st in range(3):
            for f in range(4):
                if st < 2: a("ds_read_b128 %s, v%d offset:%d", kv(st, f), v_ks, 4096 * st + 1024 * f)
                else: a("ds_read_b128 %s, v%d offset:%d", kv(st, f), v_ks2, 1024 * f)
    lg.wait("tg")
    a("v_readfirstlane_b32 s%d, v%d", s_state, v_tg)
    a("s_mov_b32 s%d, 3", s_i)
    a("s_cmp_eq_u32 s%d, 0", s_state)
    a("s_cbranch_scc1 L_NK")
    kvreads()
    a.label("L_NK")
    fill(999)
    for t in range(4):
        if t >= NHID or pstart[t] >= NJ:
            for o_ in hpack(t, True): a(o_)
    a("v_mov_b32 v%d, 1", t0)
    a("ds_write_b32 v%d, v%d offset:16", v_tag, t0)
    stamp(a, 6); stamp(a, 8, "p2"); stamp(a, 2, "p3"); stamp(a, 9, "p5")
    a("v_mul_f32 v%d, %s, v%d", v_r, f32(28 ** -0.5 * math.log2(math.e)), v_r)
    a("v_mov_b32 v%d, v%d", v_r + 1, v_r)
    pack(4, "q")
    a("s_cmp_lg_u32 s%d, 0", s_state)
    a("s_cbranch_scc1 L_LOADED")
    a("s_mov_b32 s%d, %d", s_spin, SPIN_MAX * 8)
    a.label("L_AP")
    a("ds_read_b32 v%d, v%d", v_tg, v_tag)
    a("s_sub_u32 s%d, s%d, 1", s_spin, s_spin)
    a("s_cbranch_scc1 L_APX")
    a("s_waitcnt lgkmcnt(0)")
    a("v_readfirstlane_b32 s%d, v%d", s_state, v_tg)
    a("s_cmp_eq_u32 s%d, 0", s_state)
    a("s_cbranch_scc1 L_AP")
    a.label("L_APX")
    kvreads()
    a.label("L_LOADED")
    a("s_waitcnt lgkmcnt(0)")
    stamp(a, 7); stamp(a, 9, "p2"); stamp(a, 3, "p3")
    nsync = [0]
    def async_():
        n = nsync[0]; nsync[0] += 1
        a("v_mov_b32 v12, %d", CNT)
        a("v_mov_b32 v13, 1")
        a("s_add_u32 s%d, s%d, 4", s_tgt, s_tgt)
        a("s_mov_b64 exec, 1")
        a("ds_add_u32 v12, v13")
        a("s_mov_b64 exec, -1")
        a("s_mov_b32 s%d, %d", s_spin, SPIN_MAX)
        a.label("L_AS%d" % n)
        a("ds_read_b32 v13, v12")
        a("s_sub_u32 s%d, s%d, 1", s_spin, s_spin)
        a("s_cbranch_scc1 L_ASX%d" % n)
        a("s_waitcnt lgkmcnt(0)")
        a("v_readfirstlane_b32 s%d, v13", s_t0)
        a("s_cmp_lt_u32 s%d, s%d", s_t0, s_tgt)
        a("s_cbranch_scc1 L_AS%d" % n)
        a.label("L_ASX%d" % n)
    def split_m(m, h0, h1, h2):
        for o_ in split3(m, h0, h1, h2, True): a(o_)
    def patch(u, h0, h2):
        a("v_cndmask_b32 v%d, v%d, %s, s[%d:%d]", qreg(u, 6), qreg(u, 6), h0, s_hi, s_hi + 1)
        a("v_cndmask_b32 v%d, v%d, %s, s[%d:%d]", qreg(u, 7), qreg(u, 7), h2, s_hi, s_hi + 1)
    a("%s %s, %s, %s, 0", MF, vr(S0, 16), kv(0, 0), q(3, 0))
    a("%s %s, %s, %s, %s", MF, vr(S0, 16), kv(0, 1), q(3, 1), vr(S0, 16))
    for u in range(4):
        qtile(s_t1, u)
        a("s_lshl_b32 s%d, s%d, 13", s_t1, s_t1)
        a("s_add_u32 s%d, s%d, %d", s_t1, s_t1, KVS)
        a("v_add_u32 v%d, s%d, v%d", v_t + u, s_t1, v_l16)
    a("ds_write_b128 v%d, %s", v_t + 3, q(3, 0))
    a("v_max3_f32 v%d, v%d, v%d, v%d", MX, S0, S0 + 1, S0 + 2)
    a("v_max3_f32 v%d, v%d, v%d, v%d", MX + 1, S0 + 3, S0 + 4, S0 + 5)
    for j in range(6, 14, 4):
        a("v_max3_f32 v%d, v%d, v%d, v%d", MX, S0 + j, S0 + j + 1, MX)
        a("v_max3_f32 v%d, v%d, v%d, v%d", MX + 1, S0 + j + 2, S0 + j + 3, MX + 1)
    a("v_max3_f32 v%d, v%d, v%d, v%d", MX, S0 + 14, S0 + 15, MX)
    a("v_max_f32 v%d, v%d, v%d", MX, MX, MX + 1)
    a("v_mov_b32 v%d, v%d", MX + 1, MX)
    a("v_permlane32_swap_b32 v%d, v%d", MX, MX + 1)
    a("v_max_f32 v%d, v%d, v%d", MX, MX, MX + 1)
    a("v_add_f32 v%d, %s, v%d", MX, f32(OPT["bias"]), MX)
    split_m(MX, MX + 2, MX + 1, MX + 3)
    patch(3, "v%d" % (MX + 2), "v%d" % (MX + 3))
    a("ds_write_b128 v%d, %s offset:1024", v_t + 3, q(3, 1))
    stamp(a, 4, "p3")
    async_()
    stamp(a, 5, "p3")
    for u in range(3):
        for f in range(2):
            a("ds_read_b128 %s, v%d offset:%d", q(u, f), v_t + u, 1024 * f)
    mark_s0 = len(a.l)
    a.label("L_RESTART")
    a("s_mov_b32 s%d, 0", s_i)
    kvload(0); kvload(1); kvload(2)
    for u in range(4):
        a("v_mov_b32 v%d, 0xff800000", MX + u)
        patch(u, "0", "0")
    a("s_mov_b32 s%d, 0", s_i)
    a.label("L_MAXLOOP")
    kvload(3, (0, 1))
    a("s_waitcnt vmcnt(0)")
    for u in range(4):
        a("%s %s, %s, %s, 0", MF, o(u), kv(3, 0), q(u, 0))
        a("%s %s, %s, %s, %s", MF, o(u), kv(3, 1), q(u, 1), o(u))
    for u in range(4):
        for j in range(8):
            a("v_max3_f32 v%d, v%d, v%d, v%d", MX + u, O0 + 16 * u + 2 * j, O0 + 16 * u + 2 * j + 1, MX + u)
    a("s_cmp_lt_u32 s%d, 16", s_i)
    a("s_cbranch_scc1 L_MAXLOOP")
    a("s_mov_b32 s%d, 3", s_i)
    for u in range(4): a("v_mov_b32 v%d, v%d", v_t + u, MX + u)
    for u in range(4): a("v_permlane32_swap_b32 v%d, v%d", MX + u, v_t + u)
    for u in range(4): a("v_max_f32 v%d, v%d, v%d", MX + u, MX + u, v_t + u)
    a("v_lshlrev_b32 v%d, 2, v%d", v_t + 4, v_lane)
    for u in range(4):
        qtile(s_t1, u)
        a("s_lshl_b32 s%d, s%d, 10", s_t1, s_t1)
        a("s_add_u32 s%d, s%d, %d", s_t1, s_t1, QX)
        a("v_add_u32 v%d, s%d, v%d", v_t + u, s_t1, v_t + 4)
    a("s_lshl_b32 s%d, s%d, 8", s_t0, s_w)
    for u in range(4):
        a("v_add_u32 v%d, s%d, v%d", v_t + 5, s_t0, v_t + u)
        a("ds_write_b32 v%d, v%d", v_t + 5, MX + u)
    async_()
    for u in range(4):
        a("ds_read2_b32 %s, v%d offset0:0 offset1:64", vr(S0 + 4 * u, 2), v_t + u)
        a("ds_read2_b32 %s, v%d offset0:128 offset1:192", vr(S0 + 4 * u + 2, 2), v_t + u)
    a("s_waitcnt lgkmcnt(0)")
    for u in range(4):
        a("v_max3_f32 v%d, v%d, v%d, v%d", MX + u, S0 + 4 * u, S0 + 4 * u + 1, S0 + 4 * u + 2)
        a("v_max_f32 v%d, v%d, v%d", MX + u, MX + u, S0 + 4 * u + 3)
    for u in range(4):
        split_m(MX + u, v_t, v_t + 1, v_t + 2)
        patch(u, "v%d" % v_t, "v%d" % (v_t + 2))
    a("s_branch L_GO")
    mark_s1 = len(a.l)
    a.label("L_GO")
    def S(n): return S0 + 16 * (n & 1)
    def P(n): return P0 + 8 * (n & 1)
    cur = {"g0": False}
    def uo(n):
        return ((n + 3) & 3) if (cur["g0"] and 0 <= n < 4) else (n & 3)
    def qk(n, f):
        i, u = n >> 2, uo(n)
        d = vr(S(n), 16)
        return "%s %s, %s, %s, %s" % (MF, d, kv(i & 3, f), q(u, f), d if f else "0")
    def pv(n, f, init=False):
        i, u = n >> 2, uo(n)
        return "%s %s, %s, %s, %s" % (MF, o(u), kv(i & 3, 2 + f), vr(P(n) + 4 * f, 4), "0" if (init and f == 0) else o(u))
    def cwrite(u, qd): return "ds_write_b128 v%d, %s offset:%d" % (v_t + u, vr(O0 + 16 * u + 4 * qd, 4), CA + u * 4096 + qd * 1024)
    PAT = OPT.get("pat", ((4, 0), (4, 2), (4, 2), (4, 4)))
    def slot(n, g0, last, loads):
        i, u = n >> 2, n & 3
        m = [None, None] if last else [qk(n + 1, 0), qk(n + 1, 1)]
        m += [None, None] if (g0 and n == 0) else [pv(n - 1, 0, g0 and n <= 4), pv(n - 1, 1)]
        free = [[], [], [], []]
        if u == 2 and loads["wait"] is not None: free[3].append("s_waitcnt vmcnt(%d)" % loads["wait"])
        if loads["issue"]:
            st = (i + 3) & 3
            if u == 0:
                free[0].append("s_add_u32 s%d, s%d, s%d" % (s_off, s_i, s_rb))
                free[1].append("s_and_b32 s%d, s%d, 15" % (s_off, s_off))
                free[2].append("s_lshl_b32 s%d, s%d, 12" % (s_off, s_off))
                free[3].append("s_add_u32 s%d, s%d, s%d" % (s_off, s_off, s_kvb))
            if u == 1:
                if OPT.get("noKV") == 2:
                    for f in range(4): free[f].append("ds_read_b128 %s, v%d offset:%d" % (kv(st, f), v_ks, 1024 * f + 4096 * (st & 1)))
                elif OPT.get("spread"):
                    for f in range(4): free[f].append("buffer_load_dwordx4 %s, v%d, s[%d:%d], s%d offen offset:%d sc1" % (kv(st, f), v_l16, sWS, sWS + 3, s_off, 1024 * f))
                elif OPT.get("kvat") is not None:
                    free[OPT["kvat"]] += ["buffer_load_dwordx4 %s, v%d, s[%d:%d], s%d offen offset:%d sc1" % (kv(st, f), v_l16, sWS, sWS + 3, s_off, 1024 * f) for f in range(4)]
                elif not OPT.get("noKV") or g0 and i == 0:
                    free[0] += ["buffer_load_dwordx4 %s, v%d, s[%d:%d], s%d offen offset:%d sc1" % (kv(st, f), v_l16, sWS, sWS + 3, s_off, 1024 * f) for f in range(4)]
                free[1].append("s_add_u32 s%d, s%d, 1" % (s_i, s_i))
        if loads["lastg"] and n >= 14:
            for k in range(4): free[k].append(cwrite(n - 14, k))
        ne = nc = 0
        for k in range(4):
            if m[k]: a(m[k])
            for x in free[k]: a(x)
            for j in range(PAT[k][0]):
                a("v_exp_f32 v%d, v%d", S(n) + ne, S(n) + ne); ne += 1
            for j in range(PAT[k][1]):
                assert 2 * nc + 1 < ne
                a("v_cvt_pk_bf16_f32 v%d, v%d, v%d", P(n) + nc, S(n) + 2 * nc, S(n) + 2 * nc + 1); nc += 1
        assert ne == 16 and nc == 8
    stamp(a, 8); stamp(a, 6, "p3")
    cur["g0"] = True
    a(qk(0, 0)); a(qk(0, 1))
    a("s_waitcnt lgkmcnt(0)")
    for u in range(4):
        qtile(s_t1, u)
        a("s_mul_i32 s%d, s%d, 12288", s_t1, s_t1)
        a("v_add_u32 v%d, s%d, v%d", v_t + u, s_t1, v_l16)
    def group(g, last_group):
        cur["g0"] = (g == 0)
        for n in range(16):
            i = n >> 2
            issue = (not last_group) or i == 0
            wait = {0: 8, 1: 4, 2: 0, 3: None}[i] if last_group else (None if (g == 0 and i < 2) else 8)
            slot(n, g == 0, last_group and n == 15, dict(issue=issue, wait=wait, lastg=last_group))
    group(0, False)
    stamp(a, 7, "p3")
    a("s_mov_b32 s%d, 2", s_cnt)
    a.label("L_LOOP")
    group(1, False)
    a("s_sub_u32 s%d, s%d, 1", s_cnt, s_cnt)
    a("s_cmp_lg_u32 s%d, 0", s_cnt)
    a("s_cbranch_scc1 L_LOOP")
    stamp(a, 8, "p3")
    group(3, True)
    a(pv(15, 0)); a(cwrite(2, 0)); a(cwrite(2, 1)); a(pv(15, 1)); a(cwrite(2, 2)); a(cwrite(2, 3))
    stamp(a, 9); stamp(a, 9, "p3"); stamp(a, 1, "p4")
    stamp(a, 2, "p4")
    async_()
    stamp(a, 3, "p4")
    for u in range(3):
        for qd in range(4):
            a("ds_read_b128 %s, v%d offset:%d", vr(O0 + 16 * u + 4 * qd, 4), v_t + 3, CA + u * 4096 + qd * 1024)
    a("s_lshr_b32 s%d, s%d, 1", s_t1, s_rt)
    a("s_mul_i32 s%d, s%d, 72", s_t1, s_t1)
    a("s_add_u32 s%d, s%d, s%d", s_t1, s_t1, s_c)
    a("s_add_u32 s%d, s%d, 56", s_t1, s_t1)
    a("s_lshl_b32 s%d, s%d, 2", s_t1, s_t1)
    a("s_and_b32 s%d, s%d, 1", s_t0, s_rt)
    a("s_add_u32 s%d, s%d, s%d", s_t1, s_t1, s_t0)
    a("s_lshl_b32 s%d, s%d, 10", s_t1, s_t1)
    a("s_add_u32 s%d, s%d, 0x%x", s_t1, s_t1, AF)
    a("s_waitcnt lgkmcnt(8)")
    for j in range(16): a("v_add_f32 v%d, v%d, v%d", O0 + j, O0 + j, O0 + 48 + j)
    a("s_waitcnt lgkmcnt(0)")
    for j in range(16): a("v_add_f32 v%d, v%d, v%d", O0 + 16 + j, O0 + 16 + j, O0 + 32 + j)
    for j in (7,) + tuple(x for x in range(16) if x != 7):
        a("v_add_f32 v%d, v%d, v%d", O0 + j, O0 + j, O0 + 16 + j)
        if j == 0: a("v_rcp_f32 v%d, v%d", v_t + 2, O0 + 7)
    js = [j for j in range(16) if j not in (7, 15)]
    a("v_maximum3_f32 v%d, abs(v%d), abs(v%d), abs(v%d)", v_t + 3, O0 + js[0], O0 + js[1], O0 + js[2])
    for i_ in range(3, 13, 2):
        a("v_maximum3_f32 v%d, abs(v%d), abs(v%d), v%d", v_t + 3, O0 + js[i_], O0 + js[i_ + 1], v_t + 3)
    a("v_maximum3_f32 v%d, abs(v%d), abs(v%d), v%d", v_t + 3, O0 + js[13], O0 + js[13], v_t + 3)
    a("v_mov_b32 v%d, 0x7e800000", v_t + 4)
    a("v_cmp_gt_f32 vcc, 0x%x, v%d", (127 - 106) << 23, v_t + 3)
    a("v_maximum3_f32 v%d, v%d, v%d, v%d", v_t + 3, O0 + 7, O0 + 7, v_t + 3)
    a("v_cmp_nlt_f32 s[%d:%d], v%d, v%d", s_bad, s_bad + 1, v_t + 3, v_t + 4)
    a("s_or_b64 s[%d:%d], s[%d:%d], vcc", s_bad, s_bad + 1, s_bad, s_bad + 1)
    for j in range(16):
        a("v_mul_f32 v%d, v%d, v%d", O0 + j, O0 + j, v_t + 2)
    for jj in range(8):
        a("v_cvt_pk_bf16_f32 v%d, v%d, v%d", P0 + jj, O0 + 2 * jj, O0 + 2 * jj + 1)
    stamp(a, 4, "p4")
    a("s_or_b32 s%d, s%d, s%d", s_bad, s_bad, s_bad + 1)
    a("s_cmp_lg_u32 s%d, 0", s_mode)
    a("s_cselect_b32 s%d, 0, s%d", s_bad, s_bad)
    a("s_cmp_lg_u32 s%d, 0", s_bad)
    a("s_cbranch_scc1 L_NOPUB")
    a("s_cmp_eq_u32 s%d, 2", s_mode)
    a("s_cbranch_scc1 L_NOPUB")
    for f in range(2):
        a("buffer_store_dwordx4 %s, v%d, s[%d:%d], s%d offen offset:%d sc1", vr(P0 + 4 * f, 4), v_l16, sWS, sWS + 3, s_t1, 2048 * f)
    stamp(a, 5, "p4")
    a.label("L_NOPUB")
    a("s_cmp_lg_u32 s%d, 0", s_mode)
    a("s_cbranch_scc1 L_AEND")
    a("v_mov_b32 v%d, %d", v_t, CNT + 4)
    a("v_mov_b32 v%d, s%d", v_t + 1, s_bad)
    a("ds_or_b32 v%d, v%d", v_t, v_t + 1)
    async_()
    a("ds_read_b32 v%d, v%d", v_t + 1, v_t)
    a("s_waitcnt lgkmcnt(0)")
    a("v_readfirstlane_b32 s%d, v%d", s_t0, v_t + 1)
    a("s_cmp_eq_u32 s%d, 0", s_t0)
    a("s_cbranch_scc1 L_AEND")
    a("s_cmp_lg_u32 s%d, 0", s_bad)
    a("s_cselect_b32 s%d, 1, 2", s_mode)
    a("s_branch L_RESTART")
    a.label("L_AEND")
    stamp_flush(a)
    a("s_endpgm")
    for n, (off, thr) in enumerate(spins):
        a.label("L_SP%d" % n)
        a("s_mov_b32 s%d, %d", s_spin, SPIN_MAX * 8)
        a.label("L_SPL%d" % n)
        peek(off)
        a("s_sub_u32 s%d, s%d, 1", s_spin, s_spin)
        a("s_cbranch_scc1 L_SPB%d" % n)
        a("s_waitcnt lgkmcnt(0)")
        a("v_cmp_gt_u32 vcc, %d, v%d", thr, v_tg)
        a("s_cbranch_vccnz L_SPL%d" % n)
        a("s_branch L_SPB%d" % n)

    mark_b = len(a.l)
    a("s_setprio %d", OPT.get("prioB1", 1))
    sW2 = 12
    NE = OPT.get("ne", 18)
    BACC, E0 = 16, 80
    HR = E0 + 8 * NE
    def wslot(i): return E0 + 8 * (i % NE)
    NH = (256 - HR) // 8
    v_xoff, v_gd, v_hd, v_qd, v_ch_, v_cq = 24, 28, 30, 34, 35, 36
    CF, CT, CA5 = 40, 60, 64
    v_rw, v_sw, v_sr, v_a0, v_a1, v_xo, v_oo = 11, 12, 13, 14, 15, 3, 0
    v_cr, v_rw2 = 10, 8
    NON, ZR, TB = 36, 40, 44
    s_xo, s_gb, s_hb, s_ab, s_rb64, s_cb, s_k, s_kr = 60, 61, 62, 63, 4, 5, 6, 7
    s_cph, s_stg, s_w2b, s_xrow, s_qb_ = 57, 70, 71, 68, 69
    sXX = 72
    a("s_and_b32 s%d, s%d, 3", s_w, s_w)
    a("s_lshl_b32 s%d, s%d, 2", s_xrow, s_rb)
    a("s_add_u32 s%d, s%d, s%d", s_xrow, s_xrow, s_w)
    a("s_mul_i32 s%d, s%d, %d", s_xrow, s_xrow, 32 * 896)
    a("v_lshrrev_b32 v17, 3, v%d", v_lane)
    a("v_mul_u32_u24 v17, 896, v17")
    a("v_lshrrev_b32 v16, 4, v%d", v_lane)
    a("v_and_b32 v19, 7, v%d", v_lane)
    a("v_xor_b32 v18, v16, v19")
    a("v_lshl_add_u32 v%d, v18, 4, v17", v_xoff)
    a("v_xor_b32 v%d, 64, v%d", v_xoff + 1, v_xoff)
    a("v_add_u32 v%d, %d, v%d", v_xoff + 2, 2 * (7168 - 1024), v_xoff)
    a("v_add_u32 v%d, %d, v%d", v_xoff + 3, 3 * (7168 - 1024), v_xoff + 1)
    a("v_add_u32 v%d, %d, v%d", v_xoff + 1, 1 * (7168 - 1024), v_xoff + 1)
    a("v_lshl_add_u32 v17, v%d, 2, v%d", v_g, v_rr)
    a("v_mul_u32_u24 v17, 2688, v17")
    a("v_mul_u32_u24 v18, 56, v%d", v_ch)
    a("v_lshlrev_b32 v20, 4, v%d", v_c)
    a("v_min_u32 v20, 40, v20")
    a("v_add3_u32 v%d, v17, v18, v20", v_gd)
    a("v_add_u32 v%d, %d, v%d", v_gd + 1, 8 * 2688 - 1024, v_gd)
    a("s_and_b32 s%d, s%d, 14", s_t0, s_pc)
    a("s_mul_i32 s%d, s%d, 56", s_t0, s_t0)
    a("s_and_b32 s%d, s%d, 1", s_t1, s_pc)
    a("s_add_u32 s%d, s%d, 1", s_t1, s_t1)
    a("s_mul_i32 s%d, s%d, 896", s_t1, s_t1)
    a("s_add_u32 s%d, s%d, s%d", s_t0, s_t0, s_t1)
    a("s_mul_i32 s%d, s%d, %d", s_qb_, s_w, 16 * 2688)
    a("s_add_u32 s%d, s%d, s%d", s_gb, s_qb_, s_t0)
    stamp(a, 1, "b0")
    a("s_waitcnt lgkmcnt(0)")
    stamp(a, 2, "b0")
    srd(a, sXX, 40, XBYTES)
    srd(a, sW, 42, 448 * 1344 * 2)
    vm = VM(a)
    def I(n):
        if n < 7:
            nxt7(s_cp, n == 0)
            a("s_lshl_b32 s%d, s%d, 7", s_t0, s_cp)
            a("s_add_u32 s%d, s%d, s%d", s_t0, s_t0, s_xrow)
            a("s_lshl_b32 s%d, s%d, 12", s_t1, s_w)
            a("s_add_u32 m0, s%d, %d", s_t1, slot_of(n))
            for i in range(4):
                a("buffer_load_dwordx4 v%d, s[%d:%d], s%d offen offset:%d %slds", v_xoff + i, sXX, sXX + 3, s_t0, 1024 * i, "nt " if n < OPT.get("ntx", 0) else ""); vm.issue(n)
            a("s_mul_i32 s%d, s%d, %d", s_t0, s_cp, 64 * 2688)
            a("s_add_u32 s%d, s%d, s%d", s_t0, s_t0, s_gb)
            a("s_lshl_b32 s%d, s%d, 11", s_t1, s_w)
            a("s_add_u32 m0, s%d, %d", s_t1, slot_of(n) + 16384)
            for i in range(2):
                a("buffer_load_dwordx4 v%d, s[%d:%d], s%d offen offset:%d %slds", v_gd + i, sW, sW + 3, s_t0, 1024 * i, "nt " if n < OPT.get("ntg", 0) else ""); vm.issue(n)
        else:
            nxt7(s_cp, n == 7)
            a("s_mul_i32 s%d, s%d, %d", s_t0, s_cp, 64 * 3584)
            a("s_add_u32 s%d, s%d, s%d", s_t0, s_t0, s_hb)
            a("s_mul_i32 s%d, s%d, 5120", s_t1, s_w)
            a("s_add_u32 m0, s%d, %d", s_t1, slot_of(n))
            for i in range(4):
                a("buffer_load_dwordx4 v%d, s[%d:%d], s%d offen offset:%d lds", v_hd + i, sW1, sW1 + 3, s_t0, 1024 * i); vm.issue(n)
            a("s_mul_i32 s%d, s%d, %d", s_t0, s_cp, 64 * 2688)
            a("s_add_u32 s%d, s%d, s%d", s_t0, s_t0, s_qb_)
            a("s_add_u32 m0, s%d, %d", s_t1, slot_of(n) + 4096)
            a("buffer_load_dwordx4 v%d, s[%d:%d], s%d offen lds", v_qd, sW, sW + 3, s_t0); vm.issue(n)
    LEAD = OPT.get("lead", 3)
    for n in range(2):
        I(n); stamp(a, 3 + n, "b0")
    a("s_branch L_B2")
    mark_b2 = len(a.l)
    a.label("L_B2")
    a("s_and_b32 s%d, s2, 3", s_rb64)
    a("s_lshl_b32 s%d, s%d, 3", s_rb64, s_rb64)
    a("s_bfe_u32 s%d, s2, 0x30003", s_t0)
    a("s_add_u32 s%d, s%d, s%d", s_rb64, s_rb64, s_t0)
    a("s_and_b32 s%d, s2, 4", s_cb)
    a("s_lshr_b32 s%d, s2, 6", s_t0)
    a("s_add_u32 s%d, s%d, s%d", s_cb, s_cb, s_t0)
    if OPT.get("gbal", 1):
        a("s_bfe_u32 s%d, s2, 0x10005", s_t1)
        a("s_bfe_u32 s%d, s2, 0x10002", s_k)
        a("s_cmp_eq_u32 s%d, s%d", s_t1, s_k)
        a("s_cselect_b32 s%d, 3, 7", s_t1)
        a("s_cmp_eq_u32 s%d, 3", s_t0)
        a("s_cselect_b32 s%d, s%d, s%d", s_cb, s_t1, s_cb)
    a("v_mul_u32_u24 v17, 3584, v%d", v_rr)
    a("v_lshl_add_u32 v17, v16, 6, v17")
    a("v_lshl_add_u32 v%d, v%d, 4, v17", v_hd, v_c)
    for i in range(1, 4): a("v_add_u32 v%d, %d, v%d", v_hd + i, i * (4 * 3584 - 1024), v_hd)
    a("s_mul_i32 s%d, s%d, %d", s_hb, s_w, 16 * 3584)
    a("s_lshl_b32 s%d, s%d, 8", s_t0, s_fc)
    a("s_add_u32 s%d, s%d, s%d", s_hb, s_hb, s_t0)
    a("s_cmp_ge_u32 s%d, 14", s_fc)
    a("s_cselect_b32 s%d, 0x4000000, s%d", s_hb, s_hb)
    a("v_lshrrev_b32 v17, 2, v%d", v_lane)
    a("v_mul_u32_u24 v17, 2688, v17")
    a("v_add_u32 v%d, v20, v17", v_qd)
    a("s_mul_i32 s%d, s%d, 56", s_t0, s_c)
    a("s_add_u32 s%d, s%d, s%d", s_qb_, s_qb_, s_t0)
    a("v_lshl_add_u32 v16, v%d, 2, v%d", v_g, v_rr)
    a("v_mul_u32_u24 v17, 896, v16")
    a("v_lshlrev_b32 v18, 4, v%d", v_c)
    a("v_lshl_add_u32 v19, v%d, 6, v18", v_ch)
    a("s_lshr_b32 s%d, s%d, 1", s_t0, s_w)
    a("s_lshl_b32 s%d, s%d, 6", s_t0, s_t0)
    a("v_xor_b32 v19, s%d, v19", s_t0)
    a("v_add_u32 v%d, v17, v19", v_rw)
    a("s_lshl_b32 s%d, s%d, 13", s_stg, s_w)
    a("s_add_u32 s%d, s%d, %d", s_stg, s_stg, HO)
    a("s_mov_b32 s%d, s%d", s_t0, s_stg)
    a("v_add_u32 v%d, s%d, v%d", v_sw, s_t0, v_l16)
    a("v_lshl_add_u32 v%d, v%d, 9, v%d", v_sr, v_g, v_trp)
    a("v_add_u32 v%d, s%d, v%d", v_cr, s_t0, v_sr)
    a("v_add_u32 v%d, s%d, v%d", v_sr, s_stg, v_sr)
    a("v_mul_u32_u24 v17, 896, v%d", v_g)
    a("v_sub_u32 v%d, v%d, v17", v_rw2, v_rw)
    a("s_and_b32 s%d, s%d, 3", s_k, s_cb)
    a("s_mul_i32 s%d, s%d, 7", s_k, s_k)
    a("s_and_b32 s%d, s%d, 7", s_t0, s_rb64)
    a("s_mul_i32 s%d, s%d, 7", s_t0, s_t0)
    a("s_lshr_b32 s%d, s%d, 1", s_t0, s_t0)
    a("s_add_u32 s%d, s%d, s%d", s_k, s_k, s_t0)
    a("s_sub_u32 s%d, s%d, 28", s_t0, s_k)
    a("s_cmp_ge_u32 s%d, 28", s_k)
    a("s_cselect_b32 s%d, s%d, s%d", s_k, s_t0, s_k)
    a("s_mov_b32 s%d, s%d", s_kr, s_k)
    a("s_mul_i32 s%d, s%d, %d", s_w2b, s_w, 28 * 16 * 896)
    a("s_lshl_b32 s%d, s%d, 7", s_t0, s_cb)
    a("s_add_u32 s%d, s%d, s%d", s_w2b, s_w2b, s_t0)
    a("s_cmp_ge_u32 s%d, 7", s_cb)
    a("s_cselect_b32 s%d, 0x4000000, s%d", s_w2b, s_w2b)
    srd(a, sW1, 48, 448 * 1792 * 2)
    srd(a, sW2, 50, 1792 * 448 * 2)
    srd(a, sWS, 46, WS_END)
    srd(a, sDBG, 54, 256)
    a("s_or_b32 s%d, s2, s%d", s_t0, s_w)
    a("s_cmp_lg_u32 s%d, 0", s_t0)
    a("s_cbranch_scc1 L_BNW")
    a("s_memrealtime s[%d:%d]", s_non, s_non + 1)
    a("v_mov_b32 v18, 0")
    a("s_waitcnt lgkmcnt(0)")
    a("s_or_b32 s%d, s%d, 1", s_non, s_non)
    a("v_mov_b32 v16, s%d", s_non)
    a("v_mov_b32 v17, s%d", s_non + 1)
    a("s_mov_b64 exec, 1")
    a("buffer_store_dwordx2 v[16:17], v18, s[%d:%d], 0 offen sc1", sDBG, sDBG + 3)
    a("s_mov_b64 exec, -1")
    a.label("L_BNW")
    def prefetch():
        if OPT.get("wpf", True):
            a("s_lshl_b32 s%d, s2, 2", s_t0)
            a("s_add_u32 s%d, s%d, s%d", s_t0, s_t0, s_w)
            a("s_lshl_b32 s%d, s%d, 10", s_t0, s_t0)
            a("s_sub_u32 s%d, 0x%x, s%d", s_t1, 2047 * 1024, s_t0)
            a("buffer_load_dwordx4 v[232:235], v%d, s[%d:%d], s%d offen", v_l16, sW1, sW1 + 3, s_t0); vm.issue("pf")
            a("buffer_load_dwordx4 v[236:239], v%d, s[%d:%d], s%d offen", v_l16, sW1, sW1 + 3, s_t1); vm.issue("pf")
    def prefetch2():
        if OPT.get("wpf", True):
            a("s_lshl_b32 s%d, s2, 2", s_t0)
            a("s_add_u32 s%d, s%d, s%d", s_t0, s_t0, s_w)
            a("s_lshl_b32 s%d, s%d, 10", s_t0, s_t0)
            a("s_add_u32 s%d, s%d, 0x100000", s_t1, s_t0)
            a("buffer_load_dwordx4 v[224:227], v%d, s[%d:%d], s%d offen", v_l16, sW2, sW2 + 3, s_t0); vm.issue("pf")
            a("buffer_load_dwordx4 v[228:231], v%d, s[%d:%d], s%d offen", v_l16, sW2, sW2 + 3, s_t1); vm.issue("pf")
            srd(a, 72, 44, 448 * 448 * 2)
            a("s_sub_u32 s%d, 0x%x, s%d", s_t1, 1023 * 1024, s_t0)
            a("buffer_load_dwordx4 v[240:243], v%d, s[72:75], s%d offen", v_l16, s_t1); vm.issue("pf")
    nraw = [0]
    def waddr():
        a("s_mul_i32 s%d, s%d, %d", s_t0, s_kr, 16 * 896)
        a("s_add_u32 s%d, s%d, s%d", s_t0, s_t0, s_w2b)
        a("s_add_u32 s%d, s%d, %d", s_t1, s_t0, 8 * 896)
        a("s_add_u32 s%d, s%d, 1", s_kr, s_kr)
        a("s_cmp_eq_u32 s%d, 28", s_kr)
        a("s_cselect_b32 s%d, 0, s%d", s_kr, s_kr)
    def R(cnt):
        for _ in range(cnt):
            e = nraw[0]
            if e >= NE: return
            nraw[0] += 1
            waddr()
            a("buffer_load_dwordx4 %s, v%d, s[%d:%d], s%d offen", vr(E0 + 8 * e, 4), v_rw, sW2, sW2 + 3, s_t0); vm.issue(("R", e))
            a("buffer_load_dwordx4 %s, v%d, s[%d:%d], s%d offen", vr(E0 + 8 * e + 4, 4), v_rw, sW2, sW2 + 3, s_t1); vm.issue(("R", e))
    bar = lambda: a("s_barrier")
    rp = OPT.get("rplan", (0, 6))
    bprio = [OPT.get("prioB1", 1)]
    def hi():
        if OPT.get("synchi", 1): a("s_setprio 3")
    def lo():
        if OPT.get("synchi", 1): a("s_setprio %d", bprio[0])
    npoll = [0]
    def poll(v_addr, s_base, slp, dst):
        n = npoll[0]; npoll[0] += 1
        hi()
        a("s_mov_b32 s%d, %d", s_spin, SPIN_MAX)
        a.label("L_BP%d" % n)
        a("buffer_load_dwordx2 %s, v%d, s[%d:%d], s%d offen sc1", vr(dst, 2), v_addr, sWS, sWS + 3, s_base)
        a("s_sub_u32 s%d, s%d, 1", s_spin, s_spin)
        a("s_cbranch_scc1 L_BPX%d" % n)
        a("s_waitcnt vmcnt(0)")
        a("v_cmp_ne_u64 vcc, s[%d:%d], %s", s_non, s_non + 1, vr(dst, 2))
        a("s_cbranch_vccz L_BPX%d" % n)
        if slp: a("s_sleep %d", slp)
        a("s_branch L_BP%d" % n)
        a.label("L_BPX%d" % n)
        lo()
        vm.done = len(vm.ops)
    nls = [0]
    def ldswait(addr_off, thr, slp=0):
        n = nls[0]; nls[0] += 1
        hi()
        a("s_mov_b32 s%d, %d", s_spin, SPIN_MAX * 8)
        a.label("L_BL%d" % n)
        a("ds_read_b32 v%d, v%d offset:%d", addr_off[2], addr_off[0], addr_off[1])
        a("s_sub_u32 s%d, s%d, 1", s_spin, s_spin)
        a("s_cbranch_scc1 L_BLX%d" % n)
        a("s_waitcnt lgkmcnt(0)")
        a("v_readfirstlane_b32 s%d, v%d", s_t0, addr_off[2])
        a("s_cmp_ge_u32 s%d, %d", s_t0, thr)
        a("s_cbranch_scc1 L_BLX%d" % n)
        if slp: a("s_sleep %d", slp)
        a("s_branch L_BL%d" % n)
        a.label("L_BLX%d" % n)
        lo()
    nfs = [0]
    def flagst(s_addr):
        n = nfs[0]; nfs[0] += 1
        hi()
        a("v_mov_b32 v22, %d", CNT + 96 + 4 * n)
        a("v_mov_b32 v23, 1")
        a("s_mov_b64 exec, 1")
        a("ds_add_rtn_u32 v23, v22, v23")
        a("s_mov_b64 exec, -1")
        a("s_waitcnt lgkmcnt(0)")
        a("v_readfirstlane_b32 s%d, v23", s_t0)
        a("s_cmp_lg_u32 s%d, 3", s_t0)
        a("s_cbranch_scc1 L_FS%d" % n)
        a("s_mov_b64 exec, 0xff")
        a("buffer_store_dwordx4 %s, v%d, s[%d:%d], s%d offen sc1", vr(NON, 4), v_l16, sWS, sWS + 3, s_addr)
        a("s_mov_b64 exec, -1")
        a.label("L_FS%d" % n)
        lo()
    for i in range(4): a("v_mov_b32 v%d, 0", ZR + i)
    s_rt, s_p, s_q, s_r = 64, 65, 66, 67
    a("s_lshl_b32 s%d, s%d, 2", s_t0, s_w)
    a("s_add_u32 s%d, s%d, %d", s_t0, s_t0, CNT + 16)
    a("v_mov_b32 v19, s%d", s_t0)
    a("v_lshlrev_b32 v35, 2, v%d", v_c)
    a("v_add_u32 v35, %d, v35", CNT)
    def landed(n):
        vm.wait(n)
        hi()
        a("v_mov_b32 v21, %d", n + 1)
        a("ds_write_b32 v19, v21 offset:48")
        lo()
    npg = [0]
    def prg(thr, off=80):
        n = npg[0]; npg[0] += 1
        hi()
        a("s_mov_b32 s%d, %d", s_spin, SPIN_MAX * 8)
        a.label("L_PG%d" % n)
        a("ds_read_b32 v21, v35 offset:%d", off)
        a("s_sub_u32 s%d, s%d, 1", s_spin, s_spin)
        a("s_cbranch_scc1 L_PGX%d" % n)
        a("s_waitcnt lgkmcnt(0)")
        a("v_cmp_gt_u32 vcc, %d, v21", thr)
        a("s_cbranch_vccz L_PGX%d" % n)
        a("s_sleep 2")
        a("s_branch L_PG%d" % n)
        a.label("L_PGX%d" % n)
        lo()
    nxt = 2 + AE
    for _ in range(AE): nxt7(s_cp, False)
    plan = OPT["iplan"]
    for n in range(7):
        if n == 0: stamp(a, 5, "b0")
        if not (2 <= n < 2 + AE): vm.wait(n)
        if n < 2: stamp(a, 6 + 2 * n, "b0")
        bar()
        if n < 2: stamp(a, 7 + 2 * n, "b0")
        if n == 0: hold_mark(a, 1)
        for _ in range(plan[n]):
            assert nxt - 5 <= n
            I(nxt); nxt += 1
        if n == OPT["pfb"]: prefetch2()
        if n == 3:
            a("buffer_load_dwordx2 %s, v%d, s[%d:%d], 0 offen sc1", vr(NON, 2), ZR, sDBG, sDBG + 3); vm.issue("non")
    assert nxt >= 10
    def trread(dst, base, off):
        for ct in range(2):
            for h in range(2):
                a("ds_read_b64_tr_b16 %s, v%d offset:%d", vr(dst + 4 * ct + 2 * h, 2), base, off + h * 1024 + ct * 256)
    ncv = [0]
    def convert(cnt):
        for _ in range(cnt):
            e = ncv[0]
            if e >= nraw[0]: return
            ncv[0] += 1
            vm.wait(("R", e))
            for h in range(2):
                a("ds_write_b128 v%d, %s offset:%d", v_sw, vr(E0 + 8 * e + 4 * h, 4), h * 1024)
            trread(E0 + 8 * e, v_cr, 0)
            a("s_waitcnt lgkmcnt(6)")
    a("s_lshl_b32 s%d, s%d, 2", s_rt, s_rb)
    a("s_add_u32 s%d, s%d, s%d", s_rt, s_rt, s_w)
    a("s_and_b32 s%d, s%d, 14", s_p, s_pc)
    a("s_lshl_b32 s%d, s%d, 6", s_p, s_p)
    a("s_add_u32 s%d, s%d, s%d", s_p, s_p, s_rt)
    a("s_lshl_b32 s%d, s%d, 1", s_p, s_p)
    a("s_and_b32 s%d, s%d, 1", s_t0, s_pc)
    a("s_add_u32 s%d, s%d, s%d", s_p, s_p, s_t0)
    a("s_lshl_b32 s%d, s%d, 11", s_p, s_p)
    a("s_add_u32 s%d, s%d, 0x%x", s_p, s_p, KV)
    a("s_add_u32 s%d, s%d, 262144", s_q, s_p)
    a("s_lshr_b32 s%d, s%d, 1", s_r, s_rt)
    a("s_mul_i32 s%d, s%d, 72", s_r, s_r)
    a("s_add_u32 s%d, s%d, s%d", s_r, s_r, s_c)
    a("s_add_u32 s%d, s%d, 56", s_r, s_r)
    a("s_lshl_b32 s%d, s%d, 2", s_r, s_r)
    a("s_and_b32 s%d, s%d, 1", s_t0, s_rt)
    a("s_add_u32 s%d, s%d, s%d", s_r, s_r, s_t0)
    a("s_lshl_b32 s%d, s%d, 10", s_r, s_r)
    a("s_add_u32 s%d, s%d, 0x%x", s_r, s_r, AF)
    a("s_lshl_b32 s%d, s%d, 12", s_t0, s_w)
    a("v_add_u32 v16, s%d, v%d", s_t0, v_l16)
    a("v_and_b32 v17, 1, v%d", v_c)
    a("v_lshl_add_u32 v18, v%d, 2, v%d", v_g, v_rr)
    a("v_lshl_add_u32 v17, v17, 5, v18")
    a("v_lshlrev_b32 v17, 4, v17")
    a("v_lshl_add_u32 v17, v%d, 10, v17", v_ch)
    a("v_lshrrev_b32 v18, 1, v%d", v_c)
    a("v_lshl_add_u32 v17, v18, 3, v17")
    a("v_add_u32 v17, s%d, v17", s_t0)
    a("v_and_b32 v20, 31, v%d", v_lane)
    a("v_mov_b32 v18, v20")
    for th in (11, 14, 25):
        a("v_cmp_le_u32 vcc, %d, v20", th)
        a("v_addc_co_u32 v18, vcc, 0, v18, vcc")
    a("v_and_b32 v22, 1, v20")
    a("v_lshlrev_b32 v22, 2, v22")
    a("v_bfe_u32 v23, v20, 1, 1")
    a("v_lshl_add_u32 v22, v23, 4, v22")
    a("v_add_u32 v22, 11, v22")
    a("s_mov_b32 s%d, 0xf0000000", s_ex)
    a("s_mov_b32 s%d, 0xf0000000", s_ex + 1)
    a("v_cndmask_b32 v18, v18, v22, s[%d:%d]", s_ex, s_ex + 1)
    a("s_bitcmp1_b32 s%d, 0", s_pc)
    a("s_cselect_b32 s%d, -1, 0", s_ex)
    a("s_mov_b32 s%d, s%d", s_ex + 1, s_ex)
    a("v_cndmask_b32 v18, v20, v18, s[%d:%d]", s_ex, s_ex + 1)
    a("v_lshl_add_u32 v18, v%d, 5, v18", v_g)
    a("v_lshlrev_b32 v18, 4, v18")
    vm.wait(8 if OPT.get("b7lite") else 9)
    a("s_mov_b32 s%d, %d", s_spin, SPIN_MAX)
    a.label("L_BN")
    a("v_readfirstlane_b32 s%d, v%d", s_non, NON)
    a("v_readfirstlane_b32 s%d, v%d", s_non + 1, NON + 1)
    a("s_cmp_lg_u32 s%d, 0", s_non)
    a("s_cbranch_scc1 L_BNX")
    a("buffer_load_dwordx2 %s, v%d, s[%d:%d], 0 offen sc1", vr(NON, 2), ZR, sDBG, sDBG + 3)
    a("s_sub_u32 s%d, s%d, 1", s_spin, s_spin)
    a("s_cbranch_scc1 L_BNX")
    a("s_waitcnt vmcnt(0)")
    a("s_branch L_BN")
    a.label("L_BNX")
    a("v_mov_b32 v%d, v%d", NON + 2, NON)
    a("v_mov_b32 v%d, v%d", NON + 3, NON + 1)
    bar()
    stamp(a, 2, "b1"); stamp(a, 1, "b2"); hold_mark(a, 2)
    a("s_bitcmp1_b32 s%d, 0", s_pc)
    a("s_cbranch_scc1 L_VT")
    for i in range(4): a("ds_read_b128 %s, v16 offset:%d", vr(TB + 4 * i, 4), 1024 * i)
    a("s_branch L_VJ")
    a.label("L_VT")
    for i in range(4):
        for h in range(2):
            a("ds_read_b64_tr_b16 %s, v17 offset:%d", vr(TB + 4 * i + 2 * h, 2), 2048 * (i >> 1) + (16 * (i & 1) + 8 * h) * 16)
    a.label("L_VJ")
    for i in range(4):
        a("s_waitcnt lgkmcnt(%d)", 3 - i)
        a("buffer_store_dwordx4 %s, v18, s[%d:%d], s%d offen offset:%d sc1", vr(TB + 4 * i, 4), sWS, sWS + 3, s_q if i >> 1 else s_p, 1024 * (i & 1)); vm.issue("kv")
    rp = OPT.get("rplan", (0, 2, 2, 2))
    if OPT.get("b7lite"): landed(9)
    while nxt < 12: I(nxt); nxt += 1
    landed(11)
    a("s_lshl_b32 s%d, s%d, 4", s_p, s_pc)
    a("s_add_u32 s%d, s%d, s%d", s_p, s_p, s_rb)
    a("s_lshl_b32 s%d, s%d, 7", s_p, s_p)
    a("s_lshl_b32 s%d, s%d, 4", s_q, s_rb)
    a("s_add_u32 s%d, s%d, s%d", s_q, s_q, s_c)
    a("s_lshl_b32 s%d, s%d, 7", s_q, s_q)
    a("s_add_u32 s%d, s%d, 0x%x", s_xo, s_q, FO)
    a("s_lshl_b32 s%d, s%d, 4", s_q, s_rb)
    a("s_add_u32 s%d, s%d, s%d", s_q, s_q, s_fc)
    a("s_lshl_b32 s%d, s%d, 7", s_q, s_q)
    a("s_add_u32 s%d, s%d, 0x%x", s_q, s_q, FH)
    stamp(a, 2, "b2")
    if OPT.get("i12first"):
        prg(12, 64); I(12)
    vm.wait("kv")
    stamp(a, 3, "b2")
    flagst(s_p)
    stamp(a, 5, "b1"); stamp(a, 4, "b2")
    if not OPT.get("i12first"):
        prg(12, 64); I(12)
    prg(8); I(13)
    stamp(a, 5, "b2")
    for f in range(2):
        a("buffer_store_dwordx4 %s, v%d, s[%d:%d], s%d offen offset:%d sc1", vr(ZR, 4), v_l16, sWS, sWS + 3, s_r, 2048 * f); vm.issue("oz")
    a("v_lshlrev_b32 v16, 7, v%d", v_c)
    a("v_bfe_u32 v17, v%d, 2, 1", v_lane)
    a("v_lshl_add_u32 v16, v17, 11, v16")
    a("s_and_b32 s%d, s%d, 14", s_p, s_c)
    a("s_lshl_b32 s%d, s%d, 2", s_p, s_p)
    a("s_add_u32 s%d, s%d, s%d", s_p, s_p, s_w)
    a("s_lshl_b32 s%d, s%d, 9", s_p, s_p)
    a("s_lshl_b32 s%d, s%d, 2", s_r, s_c)
    a("s_add_u32 s%d, s%d, s%d", s_r, s_r, s_w)
    a("s_lshl_b32 s%d, s%d, 16", s_r, s_r)
    a("s_add_u32 s%d, s%d, 0x%x", s_r, s_r, KV)
    a("s_lshl_b32 s%d, s%d, 13", s_t0, s_w)
    a("v_add_u32 v17, s%d, v%d", s_t0, v_l16)
    kvs2_base(s_t0)
    a("v_add_u32 v18, s%d, v%d", s_t0, v_l16)
    a("v_add_u32 v20, %d, v17", HO)
    stamp(a, 6, "b2")
    if OPT.get("split56"): landed(12)
    landed(13)
    stamp(a, 7, "b2")
    KB = [TB + 4 * i for i in range(9)] + [24, 28, ZR]
    def kbloads(count):
        for st in range(3):
            a("s_add_u32 s%d, s%d, %d", s_t0, s_rb, st)
            a("s_and_b32 s%d, s%d, 15", s_t0, s_t0)
            a("s_lshl_b32 s%d, s%d, 12", s_t0, s_t0)
            a("s_add_u32 s%d, s%d, s%d", s_t0, s_t0, s_r)
            for f in range(4):
                a("buffer_load_dwordx4 %s, v%d, s[%d:%d], s%d offen offset:%d sc1", vr(KB[4 * st + f], 4), v_l16, sWS, sWS + 3, s_t0, 1024 * f)
                if count: vm.issue(("kb", 4 * st + f))
    poll(16, s_p, OPT.get("sleepk", 0), 22)
    stamp(a, 8, "b2")
    kbloads(True)
    stamp(a, 9, "b2")
    stamp(a, 1); stamp(a, 1, "b1")
    if OPT["pfb"] == 99: prefetch2()
    R(rp[3])
    flagst(s_xo)
    prg(11)
    for i in range(12):
        vm.wait(("kb", i))
        if i < 8: a("ds_write_b128 v17, %s offset:%d", vr(KB[i], 4), KVS + 1024 * i)
        else: a("ds_write_b128 v18, %s offset:%d", vr(KB[i], 4), 1024 * (i - 8))
        if OPT.get("rmix", 0) and i % 2 == 1: R(1)
    a("v_mov_b32 v21, 1")
    a("ds_write_b32 v19, v21")
    stamp(a, 3, "b1")
    R(OPT.get("rpre", NE))
    a("s_lshr_b32 s%d, s%d, 1", s_t0, s_rt)
    a("s_mul_i32 s%d, s%d, 18", s_p, s_t0)
    a("s_add_u32 s%d, s%d, s%d", s_p, s_p, s_fc)
    a("s_lshl_b32 s%d, s%d, 4", s_p, s_p)
    a("s_and_b32 s%d, s%d, 1", s_t1, s_rt)
    a("s_add_u32 s%d, s%d, s%d", s_p, s_p, s_t1)
    a("s_lshl_b32 s%d, s%d, 10", s_p, s_p)
    a("s_add_u32 s%d, s%d, 0x%x", s_p, s_p, AF)
    a("s_cmp_ge_u32 s%d, 14", s_fc)
    a("s_cselect_b32 s%d, 0x4000000, s%d", s_p, s_p)
    ldswait((19, 16, 21), 1, 1)
    if OPT.get("prioBh") is not None: a("s_setprio %d", OPT["prioBh"]); bprio[0] = OPT["prioBh"]
    stamp(a, 4, "b1"); hold_mark(a, 3)
    for i in range(8): a("ds_read_b128 %s, v20 offset:%d", vr(TB + 4 * i, 4), 1024 * i)
    for i in range(8):
        a("s_waitcnt lgkmcnt(%d)", 7 - i)
        a("buffer_store_dwordx4 %s, v%d, s[%d:%d], s%d offen offset:%d sc1", vr(TB + 4 * i, 4), v_l16, sWS, sWS + 3, s_p, 2048 * (i & 1)); vm.issue("hs")
        if i & 1 and i < 7: a("s_add_u32 s%d, s%d, 4096", s_p, s_p)
    R(OPT.get("rmid", 0))
    convert(min(OPT.get("cvh", 5), nraw[0] - OPT.get("rmid", 0)))
    vm.wait("hs"); flagst(s_q)
    R(NE)
    stamp(a, 6, "b1")
    a("s_setprio %d", OPT.get("prioB2", 0)); bprio[0] = OPT.get("prioB2", 0)
    a("s_cmp_ge_u32 s%d, 7", s_cb)
    a("s_cbranch_scc1 L_END")
    a("s_and_b32 s%d, s%d, 1", s_t0, s_w)
    a("s_lshl_b32 s%d, s%d, 10", s_t0, s_t0)
    a("v_add_u32 v%d, s%d, v%d", v_a0, s_t0, v_l16)
    a("v_xor_b32 v%d, 1024, v%d", v_a1, v_a0)
    a("v_and_b32 v%d, 31, v%d", v_xo, v_lane)
    a("v_mul_u32_u24 v%d, 896, v%d", v_xo, v_xo)
    a("v_lshl_add_u32 v%d, v%d, 4, v%d", v_oo, v_g, v_xo)
    a("v_lshl_add_u32 v%d, v%d, 3, v%d", v_xo, v_g, v_xo)
    a("s_lshl_b32 s%d, s%d, 1", s_xo, s_rb64)
    a("s_and_b32 s%d, s%d, 1", s_t0, s_w)
    a("s_add_u32 s%d, s%d, s%d", s_xo, s_xo, s_t0)
    a("s_mul_i32 s%d, s%d, %d", s_xo, s_xo, 32 * 896)
    a("s_lshl_b32 s%d, s%d, 1", s_t0, s_cb)
    a("s_lshr_b32 s%d, s%d, 1", s_t1, s_w)
    a("s_add_u32 s%d, s%d, s%d", s_t0, s_t0, s_t1)
    a("s_lshl_b32 s%d, s%d, 6", s_t0, s_t0)
    a("s_add_u32 s%d, s%d, s%d", s_xo, s_xo, s_t0)
    srd(a, sW, 40, XBYTES)
    a("s_mul_i32 s%d, s%d, 28", s_t0, s_w)
    a("s_mul_i32 s%d, s%d, 144", s_ab, s_rb64)
    a("s_add_u32 s%d, s%d, s%d", s_ab, s_ab, s_t0)
    a("s_lshl_b32 s%d, s%d, 11", s_ab, s_ab)
    a("s_add_u32 s%d, s%d, 0x%x", s_ab, s_ab, AF)
    a("s_lshl_b32 s%d, s%d, 11", s_k, s_k)
    for q4 in range(4):
        a("buffer_load_dwordx2 %s, v%d, s[%d:%d], s%d offen offset:%d", vr(HR + 2 * q4, 2), v_xo, sW, sW + 3, s_xo, 16 * q4); vm.issue("x")
    convert(NE)
    stamp(a, 2)
    vm.wait("x")
    for jj in range(8):
        a("v_lshlrev_b32 v%d, 16, v%d", BACC + 2 * jj, HR + jj)
        a("v_and_b32 v%d, s%d, v%d", BACC + 2 * jj + 1, s_mask, HR + jj)
    a("s_waitcnt lgkmcnt(0)")
    NL = 28 - NE
    def L(i):
        if OPT.get("noBload"): vm.issue(("L", i)); vm.done = len(vm.ops); return
        if i < NL:
            waddr(); sr_ = sW2
        else:
            k_ = i - NL; sr_ = sW1
            a("s_mul_i32 s%d, s%d, %d", s_t0, s_w, 112 * 896)
            a("s_lshl_b32 s%d, s%d, 7", s_t1, s_cb)
            a("s_add_u32 s%d, s%d, s%d", s_t0, s_t0, s_t1)
            a("s_add_u32 s%d, s%d, %d", s_t0, s_t0, (28 * (k_ >> 1) + 14 * (k_ & 1)) * 896)
            a("s_add_u32 s%d, s%d, %d", s_t1, s_t0, 8 * 896)
        for h in range(2):
            a("s_add_u32 m0, s%d, %d", s_stg, sloff(i) + h * 1024)
            a("buffer_load_dwordx4 v%d, s[%d:%d], s%d offen lds", v_rw2 if (h and i >= NL) else v_rw, sr_, sr_ + 3, s_t1 if h else s_t0); vm.issue(("L", i))
    a("v_lshlrev_b32 v9, 7, v%d", v_c)
    a("s_lshr_b32 s%d, s%d, 1", s_gb, s_rb64)
    a("s_lshl_b32 s%d, s%d, 11", s_gb, s_gb)
    a("s_mul_i32 s%d, s%d, 7", s_t0, s_w)
    a("s_lshr_b32 s%d, s%d, 1", s_t0, s_t0)
    a("s_lshl_b32 s%d, s%d, 7", s_t0, s_t0)
    a("s_add_u32 s%d, s%d, s%d", s_cph, s_gb, s_t0)
    a("s_add_u32 s%d, s%d, 0x%x", s_cph, s_cph, FH)
    a("s_lshl_b32 s%d, s%d, 9", s_t1, s_w)
    a("s_sub_u32 s%d, s%d, s%d", s_t1, s_t1, s_t0)
    a("s_add_u32 s%d, s%d, 0x%x", s_t1, s_t1, FO - FH)
    a("v_bfe_u32 v%d, v%d, 2, 1", HR + 10, v_lane)
    a("v_mul_lo_u32 v%d, v%d, s%d", HR + 10, HR + 10, s_t1)
    a("v_add_u32 v9, v9, v%d", HR + 10)
    srd(a, sW1, 44, 448 * 448 * 2)
    PL = OPT.get("prel", 8)
    a("v_mov_b32 v12, %d", CNT)
    ldswait((12, 0, 10), 4, 1)
    for i in range(PL): L(i)
    poll(9, s_cph, OPT["sleep"], HR + 8)
    stamp(a, 3)
    a("s_setprio %d", OPT.get("prioB3", 0)); bprio[0] = OPT.get("prioB3", 0)
    def hload(k):
        if OPT.get("noBload"): vm.issue(("h", k)); vm.done = len(vm.ops); return
        a("s_add_u32 s%d, s%d, s%d", s_hb, s_ab, s_k)
        for f, v in ((0, v_a0), (1, v_a1)):
            a("buffer_load_dwordx4 %s, v%d, s[%d:%d], s%d offen sc1", vr(HR + 8 * (k % NH) + 4 * f, 4), v, sWS, sWS + 3, s_hb); vm.issue(("h", k))
        a("s_add_u32 s%d, s%d, 2048", s_k, s_k)
        a("s_cmp_eq_u32 s%d, %d", s_k, 28 * 2048)
        a("s_cselect_b32 s%d, 0, s%d", s_k, s_k)
    def mf(Areg, Breg, first):
        for ct in range(2):
            for rt in range(2):
                l = 2 * ct + rt
                d = vr(BACC + 16 * l, 16)
                a("%s %s, %s, %s, %s", MF, d, vr(Breg + 4 * ct, 4), vr(Areg + 4 * rt, 4), "0" if (first and l) else d)
    for k in range(NH - 1): hload(k)
    nl = PL
    def mf1(Areg, Breg, first, l):
        if OPT.get("noBmfma"): return
        ct, rt = l >> 1, l & 1
        d = vr(BACC + 16 * l, 16)
        tog = OPT.get("tog", 0)
        if tog and l != 3: a("s_setprio 0")
        a("%s %s, %s, %s, %s", MF, d, vr(Breg + 4 * ct, 4), vr(Areg + 4 * rt, 4), "0" if (first and l) else d)
        if tog and l != 2: a("s_setprio 3")
    for k in range(28):
        if k == OPT.get("pause"): ldswait((12, 0, 10), OPT.get("pgate", 5), 4)
        vm.wait(("h", k))
        wreg = wslot(k)
        hreg = HR + 8 * (k % NH)
        j = k - (NSL - PL) if PL < NSL else k - 1
        mf1(hreg, wreg, k == 0, 0)
        if k + NH - 1 < 28: hload(k + NH - 1)
        mf1(hreg, wreg, k == 0, 1)
        if 0 <= j < NL + 8:
            vm.wait(("L", j))
            trread(wslot(NE + j), v_sr, sloff(j))
        mf1(hreg, wreg, k == 0, 2)
        mf1(hreg, wreg, k == 0, 3)
        if 0 <= j < NL + 8: a("s_waitcnt lgkmcnt(0)")
        if nl < NL + 8 and nl - NSL <= j:
            L(nl); nl += 1
        if k == 14: stamp(a, 4)
    stamp(a, 5)
    a("v_mov_b32 v13, 1")
    a("s_mov_b64 exec, 1")
    a("ds_add_u32 v12, v13 offset:8")
    a("s_mov_b64 exec, -1")
    assert nl == NL + 8
    used = {wslot(28 + i) for i in range(8)}
    OFB = [r_ for r_ in range(E0, 256, 8) if r_ not in used and r_ != HR + 8][:8]
    for i in range(8):
        for ct in range(2):
            rg = wslot(28 + i) + 4 * ct + 3
            a("v_and_b32 v%d, 0xffff, v%d", rg, rg)
    a("s_lshl_b32 s%d, s%d, 10", s_t0, s_w)
    a("s_add_u32 s%d, s%d, s%d", s_gb, s_gb, s_t0)
    a("s_add_u32 s%d, s%d, 0x%x", s_gb, s_gb, FO)
    a("s_mul_i32 s%d, s%d, 20", s_t0, s_w)
    a("s_sub_u32 s%d, 112, s%d", s_t0, s_t0)
    a("s_lshl_b32 s%d, s%d, 11", s_t0, s_t0)
    a("s_add_u32 s%d, s%d, s%d", s_hb, s_ab, s_t0)
    srd(a, sW, 52, XBYTES)
    RA = 4
    for l in range(4):
        a("s_xor_b32 s%d, s%d, %d", s_t0, s_w, l)
        a("s_cmp_ge_u32 s%d, 2", s_t0)
        a("s_cselect_b32 s%d, %d, %d", s_t1, 96 * K, 48 * K) if False else None
        a("s_mul_i32 s%d, s%d, 12288", s_t0, s_t0)
        a("s_cselect_b32 s%d, %d, 0", s_t1, 48 * K)
        a("s_add_u32 s%d, s%d, s%d", s_t0, s_t0, s_t1)
        a("s_add_u32 s%d, s%d, %d", s_t0, s_t0, 48 * K)
        a("v_add_u32 v%d, s%d, v%d", RA + l, s_t0, v_l16)
    ldswait((12, 0, 13), OPT.get("ogate", 8), 2)
    hold_mark(a, 4)
    a("v_and_b32 v9, 7, v%d", v_lane)
    a("v_lshrrev_b32 v10, 1, v9")
    a("v_and_b32 v9, 1, v9")
    a("v_lshlrev_b32 v9, 10, v9")
    a("v_lshl_add_u32 v9, v10, 12, v9")
    a("s_mov_b32 s%d, 0x10000", s_t1)
    a("s_mov_b32 s%d, %d", s_spin, SPIN_MAX)
    def sentinel(tag):
        a.label("L_SN" + tag)
        a("buffer_load_dword v10, v9, s[%d:%d], s%d offen offset:%d sc1", sWS, sWS + 3, s_hb, 2048 + 1020)
        a("s_sub_u32 s%d, s%d, 1", s_spin, s_spin)
        a("s_cbranch_scc1 L_SNT" + tag)
        a("s_waitcnt vmcnt(0)")
        a("v_cmp_gt_u32 vcc, s%d, v10", s_t1)
        a("s_cbranch_vccz L_SNX" + tag)
        if OPT.get("sleeps", 1): a("s_sleep %d", OPT.get("sleeps", 1))
        a("s_branch L_SN" + tag)
        a.label("L_SNT" + tag)
        a("s_mov_b32 s%d, 0", s_spin)
        a.label("L_SNX" + tag)
    if not OPT.get("spec", 0): sentinel("a")
    stamp(a, 6)
    def oloads(h0):
        for hd in range(h0, 4):
            for f2 in range(2):
                a("s_add_u32 s%d, s%d, %d", s_t0, s_hb, (2 * hd + f2) * 2048)
                for f, v in ((0, v_a0), (1, v_a1)):
                    a("buffer_load_dwordx4 %s, v%d, s[%d:%d], s%d offen sc1", vr(OFB[2 * hd + f2] + 4 * f, 4), v, sWS, sWS + 3, s_t0)
    a("s_mov_b32 s%d, %d", s_spin, SPIN_MAX)
    a("s_mov_b32 s%d, 0x10000", s_t1)
    oloads(0)
    for hd in range(4):
        a.label("L_OW%d" % hd)
        a("s_waitcnt vmcnt(%d)", 4 * (3 - hd))
        a("v_min3_u32 v10, v%d, v%d, v%d", OFB[2 * hd] + 3, OFB[2 * hd] + 7, OFB[2 * hd + 1] + 3)
        a("v_min_u32 v10, v10, v%d", OFB[2 * hd + 1] + 7)
        a("v_cmp_gt_u32 vcc, s%d, v10", s_t1)
        a("s_cbranch_vccnz L_OR%d" % hd)
        a.label("L_OK%d" % hd)
        if hd == 3: a("ds_read_b32 v13, v12 offset:8")
        for f2 in range(2): mf(OFB[2 * hd + f2], wslot(28 + 2 * hd + f2), False)
    stamp(a, 7)
    a("s_waitcnt lgkmcnt(0)")
    a("v_readfirstlane_b32 s%d, v13", s_t0)
    a("s_cmp_ge_u32 s%d, 4", s_t0)
    a("s_cbranch_scc1 L_BD")
    ldswait((12, 8, 13), 4)
    a.label("L_BD")
    for l in range(1, 4):
        for qd in range(4):
            a("ds_write_b128 v%d, %s offset:%d", RA + l, vr(BACC + 16 * l + 4 * qd, 4), (l - 1) * 4096 + qd * 1024)
    a("s_waitcnt lgkmcnt(0)")
    a("s_barrier")
    for l in range(1, 4):
        for qd in range(4):
            a("ds_read_b128 %s, v%d offset:%d", vr(BACC + 16 * l + 4 * qd, 4), RA, (l - 1) * 4096 + qd * 1024)
    a("s_waitcnt lgkmcnt(8)")
    for j in range(16): a("v_add_f32 v%d, v%d, v%d", BACC + j, BACC + j, BACC + 16 + j)
    a("s_waitcnt lgkmcnt(0)")
    for j in range(16): a("v_add_f32 v%d, v%d, v%d", BACC + 32 + j, BACC + 32 + j, BACC + 48 + j)
    for j in range(16): a("v_add_f32 v%d, v%d, v%d", BACC + j, BACC + j, BACC + 32 + j)
    for jj in range(8):
        a("v_cvt_pk_bf16_f32 v%d, v%d, v%d", E0 + jj, BACC + 2 * jj, BACC + 2 * jj + 1)
    for p in range(2):
        a("v_permlane32_swap_b32 v%d, v%d", E0 + 4 * p, E0 + 4 * p + 2)
        a("v_permlane32_swap_b32 v%d, v%d", E0 + 4 * p + 1, E0 + 4 * p + 3)
    for p in range(2):
        a("buffer_store_dwordx4 %s, v%d, s[%d:%d], s%d offen offset:%d %s", vr(E0 + 4 * p, 4), v_oo, sW, sW + 3, s_xo, 32 * p, OPT.get("ofl", ""))
    stamp(a, 8); stamp(a, 9)
    hold_end(a)
    stamp_flush(a)
    a("s_endpgm")
    for hd in range(4):
        a.label("L_OR%d" % hd)
        a("s_sub_u32 s%d, s%d, 1", s_spin, s_spin)
        a("s_cselect_b32 s%d, 0, s%d", s_spin, s_spin)
        a("s_cbranch_scc1 L_OK%d" % hd)
        a("s_waitcnt vmcnt(0)")
        if OPT.get("spec", 0): sentinel("r%d" % hd)
        oloads(hd)
        a("s_branch L_OW%d" % hd)
    l = a.l
    if OPT.get("lay", 0) == 1:
        return l[:mark_a] + l[mark_b:mark_b2] + l[mark_a:mark_s0] + l[mark_s1:mark_b] + l[mark_b2:] + l[mark_s0:mark_s1] + ["L_END:", "    s_endpgm"]
    return l[:mark_a] + l[mark_b:mark_b2 - 1] + l[mark_b2:] + l[mark_a:mark_s0] + l[mark_s1:mark_b] + l[mark_s0:mark_s1] + ["L_END:", "    s_endpgm"]

DOC = """;
;  phase 1  raw x -> MFMA; layernorm applied algebraically: y = rstd * (x@W - mean * colsum(W)) (rank-1 MFMA + scale).
; Generated by a script (instruction scheduling, wait counts and hazard padding are computed there).
;"""
def build(path):
    hdr = open("cdna_kernels/%s.s.ref" % NAME).read().split("\n")
    top = [l for l in hdr if l.startswith(";") and "@launch" not in l]
    lines, added = fix(kernel())
    print("instrs", len(lines), "nop states added", added)
    out = top + ["; @launch grid=(256,1,1) block=(512,1,1) lds=%d" % LDS]
    out += DOC.split("\n")
    out += ['.amdgcn_target "amdgcn-amd-amdhsa--gfx950"', ".text", ".globl " + KN, ".p2align 8", ".type %s,@function" % KN] + lines
    out += ['.section .rodata,"a"', ".p2align 6", """.amdhsa_kernel %s
  .amdhsa_next_free_vgpr 256
  .amdhsa_next_free_sgpr 102
  .amdhsa_accum_offset 256
  .amdhsa_group_segment_fixed_size 0
  .amdhsa_kernarg_size 72
  .amdhsa_user_sgpr_count 2
  .amdhsa_user_sgpr_kernarg_segment_ptr 1
  .amdhsa_system_sgpr_workgroup_id_x 1
.end_amdhsa_kernel""" % KN]
    open(path, "w").write("\n".join(out) + "\n")

if __name__ == "__main__":
    for kv_ in sys.argv[2:]:
        k, v = kv_.split("=", 1); OPT[k] = eval(v)
    build(sys.argv[1])
```
